```python
import torch

def _softmax(x, axis=-1):
    return torch.softmax(x, dim=axis)
def _gelu(x):
    return torch.nn.functional.gelu(x, approximate="tanh")
def _silu(x):
    return torch.nn.functional.silu(x)
def _sigmoid(x):
    return torch.sigmoid(x)
def _layernorm(x, axis=-1, eps=1e-5):
    m = x.mean(dim=axis, keepdim=True)
    v = x.var(dim=axis, keepdim=True, unbiased=False)
    return (x - m) / torch.sqrt(v + eps)
def _scatter_add(tgt, idx, src, axis=0):
    return tgt.clone().index_add_(axis, idx, src)
def _segment_sum(src, seg, n):
    out = torch.zeros((n,) + src.shape[1:], dtype=src.dtype)
    return out.index_add_(0, seg, src)
def _pad(x, pw):
    flat = tuple(v for pair in reversed(pw) for v in pair)
    return torch.nn.functional.pad(x, flat)

kernel_name = 'recurrent_scan__spectral_fnet__moe_arch_mod__prompt'

def setup_inputs():

    _w = (lambda a: (lambda t: t.to(torch.bfloat16) if t.is_floating_point() else t)(torch.as_tensor(a)))
    def _A_setup():
        B, S, D = 1, 2048, 1024
        ns = torch.arange(S)[:, None] * torch.arange(S)[None, :]
        nd = torch.arange(D)[:, None] * torch.arange(D)[None, :]
        Ws_re = torch.cos(-2.0 * torch.pi * ns / S).to(float)
        Ws_im = torch.sin(-2.0 * torch.pi * ns / S).to(float)
        Wd_re = torch.cos(-2.0 * torch.pi * nd / D).to(float)
        Wd_im = torch.sin(-2.0 * torch.pi * nd / D).to(float)
        return {
            "x": _w((lambda *s: torch.randn(*s, dtype=torch.bfloat16) * 0.05)(B, S, D)),
            "dft_seq_re": _w(Ws_re),
            "dft_seq_im": _w(Ws_im),
            "dft_hid_re": _w(Wd_re),
            "dft_hid_im": _w(Wd_im),
        }
    _A_in = _A_setup()

    def _B_setup():
        B, S, D, F, C = 1, 2048, 1024, 3584, 1
        return {
            "x": _w((lambda *s: torch.randn(*s, dtype=torch.bfloat16) * 0.05)(B, S, D)),
            "w_r": _w((lambda *s: torch.randn(*s, dtype=torch.bfloat16) * 0.05)(D)),
            "w_gate": _w((lambda *s: torch.randn(*s, dtype=torch.bfloat16) * 0.05)(D, F)),
            "w_up": _w((lambda *s: torch.randn(*s, dtype=torch.bfloat16) * 0.05)(D, F)),
            "w_down": _w((lambda *s: torch.randn(*s, dtype=torch.bfloat16) * 0.05)(F, D)),
        }
    _B_in = _B_setup()

    return {
        "A_x": _A_in["x"],
        "A_dft_seq_re": _A_in["dft_seq_re"],
        "A_dft_seq_im": _A_in["dft_seq_im"],
        "A_dft_hid_re": _A_in["dft_hid_re"],
        "A_dft_hid_im": _A_in["dft_hid_im"],
        "B_x": _B_in["x"],
        "B_w_r": _B_in["w_r"],
        "B_w_gate": _B_in["w_gate"],
        "B_w_up": _B_in["w_up"],
        "B_w_down": _B_in["w_down"],
    }

def reference(A_x, A_dft_seq_re, A_dft_seq_im, A_dft_hid_re, A_dft_hid_im, B_x, B_w_r, B_w_gate, B_w_up, B_w_down):
    def _A_ref(x, dft_seq_re, dft_seq_im, dft_hid_re, dft_hid_im):
        a = torch.einsum("bsd,ed->bse", x, dft_hid_re)
        b = torch.einsum("bsd,ed->bse", x, dft_hid_im)
        y = torch.einsum("ts,bse->bte", dft_seq_re, a) - torch.einsum("ts,bse->bte", dft_seq_im, b)
        return y

    def _B_ref(x, w_r, w_gate, w_up, w_down):
        B, S, D = x.shape
        C = 1
        r = x @ w_r
        idx = torch.argsort(-r, axis=-1)[:, :C]
        idx_e = (lambda x, n, axis: torch.repeat_interleave(x, n, dim=axis))(idx.reshape(B, C, 1), D, axis=2)
        x_sel = (lambda x, i, axis: torch.take_along_dim(x, i, dim=axis))(x, idx_e, axis=1)
        g = _silu(x_sel @ w_gate)
        u = x_sel @ w_up
        y = (g * u) @ w_down
        r_sel = _sigmoid((lambda x, i, axis: torch.take_along_dim(x, i, dim=axis))(r, idx, axis=1))
        y = y * r_sel.reshape(B, C, 1)
        b_off = (torch.arange(B) * S).reshape(B, 1)
        flat_idx = (idx + b_off).reshape(B * C)
        zero = (x * 0.0).reshape(B * S, D)
        upd = _scatter_add(zero, flat_idx, y.reshape(B * C, D), axis=0)
        return x + upd.reshape(B, S, D)

    x = A_x
    xn = _layernorm(x, axis=-1)
    s = _A_ref(xn, A_dft_seq_re, A_dft_seq_im, A_dft_hid_re, A_dft_hid_im)
    g = _silu(_B_ref(xn, B_w_r, B_w_gate, B_w_up, B_w_down))
    return x + s * g
```

```python
NAME = "recurrent_scan__spectral_fnet__moe_arch_mod__prompt"

ARG = dict(x=0, seq_re=8, seq_im=16, hid_re=24, hid_im=32, bx=40, wr=48, wg=56, wu=64, wd=72, out=80, dbg=88, ws=96)


class Asm:
    def __init__(self):
        self.lines = []
        self.launch = []
        self.desc = []

    def __call__(self, s=""):
        for ln in s.split("\n"):
            ln = ln.strip()
            if not ln:
                continue
            self.lines.append(ln if ln.endswith(":") or ln.startswith(".") else "    " + ln)

    def begin(self, label):
        self.lines += [f".globl {label}", ".p2align 8", f".type {label},@function", f"{label}:"]

    def kernel_desc(self, label, vgpr, sgpr=102, accum=None):
        accum = accum if accum is not None else min(256, (vgpr + 3) // 4 * 4)
        self.desc += [".p2align 6", f".amdhsa_kernel {label}", f"  .amdhsa_next_free_vgpr {vgpr}",
                      f"  .amdhsa_next_free_sgpr {sgpr}", f"  .amdhsa_accum_offset {accum}",
                      "  .amdhsa_group_segment_fixed_size 0", "  .amdhsa_kernarg_size 104",
                      "  .amdhsa_user_sgpr_count 2", "  .amdhsa_user_sgpr_kernarg_segment_ptr 1",
                      "  .amdhsa_system_sgpr_workgroup_id_x 1", "  .amdhsa_float_denorm_mode_32 3",
                      ".end_amdhsa_kernel"]

    def add_launch(self, label, grid, block, lds=0):
        self.launch.append((label, grid, block, lds))

    def srd(self, d, base, nbytes):
        self(f"s_mov_b32 s{d}, s{base}\ns_mov_b32 s{d+1}, s{base+1}\ns_mov_b32 s{d+2}, {nbytes}\ns_mov_b32 s{d+3}, 0x00020000")

    def text(self, header=""):
        out = [h for h in header.split("\n") if h]
        if len(self.launch) == 1 and self.launch[0][0] == NAME + "_kernel":
            _, g, b, lds = self.launch[0]
            out.append(f"; @launch grid=({g},1,1) block=({b},1,1) lds={lds}")
        else:
            for label, g, b, lds in self.launch:
                out.append(f"; @launch kernel={label} grid=({g},1,1) block=({b},1,1) lds={lds}")
        out += ['.amdgcn_target "amdgcn-amd-amdhsa--gfx950"', ".text"]
        out += self.lines
        out += ['.section .rodata,"a"'] + self.desc
        return "\n".join(out) + "\n"

    def write(self, path, header=""):
        open(path, "w").write(self.text(header))
```

```python
import re

TRANS = ("v_exp_f32", "v_log_f32", "v_rcp_f32", "v_rsq_f32", "v_sqrt_f32", "v_sin_f32", "v_cos_f32")
REG = re.compile(r"(?<![\w.])(-?\|?(?:abs\()?)([vsa])(?:(\d+)|\[(\d+):(\d+)\])")


def regs(tok):
    out = set()
    for m in REG.finditer(tok):
        k = m.group(2)
        if m.group(3) is not None:
            out.add((k, int(m.group(3))))
        else:
            out.update((k, i) for i in range(int(m.group(4)), int(m.group(5)) + 1))
    if re.search(r"\bvcc(_lo|_hi)?\b", tok):
        out.add(("s", "vcc"))
    if re.search(r"\bexec(_lo|_hi)?\b", tok):
        out.add(("s", "exec"))
    if re.search(r"\bm0\b", tok):
        out.add(("s", "m0"))
    return out


class Ins:
    def __init__(self, text):
        self.text = text
        body = text.split(";")[0].strip()
        parts = body.split(None, 1)
        self.op = op = parts[0]
        rest = parts[1] if len(parts) > 1 else ""
        ops = [o.strip() for o in re.split(r",(?![^\[]*\])", rest)] if rest else []
        self.ops = ops
        self.valu = op.startswith("v_")
        self.mfma = op.startswith("v_mfma")
        self.dot = op.startswith("v_dot")
        self.trans = any(op.startswith(t) for t in TRANS)
        self.dpp = "_dpp" in op or " row_" in body or "quad_perm" in body or " wave_" in body
        self.perm = op.startswith("v_permlane")
        self.rdlane = op.startswith("v_readlane") or op.startswith("v_readfirstlane")
        self.lanesel = op.startswith("v_readlane") or op.startswith("v_writelane")
        self.vmem = op.startswith(("buffer_", "global_", "flat_"))
        self.ds = op.startswith("ds_")
        self.salu = op.startswith("s_")
        self.lds_dma = self.vmem and (" lds" in body or "_lds_" in op)
        w, r = set(), set()
        allr = [regs(o) for o in ops]
        if self.valu:
            nd = 1
            if op.startswith(("v_add_co", "v_sub_co", "v_addc_co", "v_subb_co", "v_mad_u64", "v_div_scale")):
                nd = 2
            if op.startswith(("v_swap", "v_permlane16_swap", "v_permlane32_swap")):
                w = allr[0] | allr[1]
                r = set(w)
            else:
                for o in allr[:nd]:
                    w |= o
                for o in allr[nd:]:
                    r |= o
                if op.startswith(("v_fmac", "v_dot2c", "v_writelane", "v_pk_fmac")) or self.dpp or "_sdwa" in op:
                    r |= allr[0]
                if op.startswith("v_cmpx"):
                    w.add(("s", "exec"))
        elif self.vmem:
            store = "store" in op or "atomic" in op
            if self.lds_dma:
                for o in allr:
                    r |= o
                r.add(("s", "m0"))
            elif store:
                for o in allr:
                    r |= o
            elif allr:
                w = allr[0]
                for o in allr[1:]:
                    r |= o
        elif self.ds:
            if op.startswith(("ds_read", "ds_bpermute", "ds_permute", "ds_swizzle")) or "_rtn" in op:
                w = allr[0]
                for o in allr[1:]:
                    r |= o
            else:
                for o in allr:
                    r |= o
        elif self.salu:
            if op.startswith(("s_cmp", "s_cbranch", "s_branch", "s_waitcnt", "s_nop", "s_barrier", "s_sleep", "s_endpgm", "s_setprio", "s_bitcmp")):
                for o in allr:
                    r |= o
            elif allr:
                w = allr[0]
                for o in allr[1:]:
                    r |= o
        self.w, self.r = w, r
        self.srcc = allr[3] if self.mfma and len(allr) > 3 else set()
        self.srcab = (allr[1] | allr[2]) if self.mfma else set()
        self.passes = 0
        if self.mfma:
            self.passes = 8 if "32x32" in op else 4
        self.widestore = self.vmem and "store" in op and ("x4" in op or "x3" in op)
        self.storedata = set()
        if self.widestore:
            self.storedata = allr[0] if op.startswith("buffer") else allr[1]
        self.states = 1
        if op == "s_nop":
            self.states = int(ops[0], 0) + 1


def vg(s):
    return {x for x in s if x[0] in "va"}


def sg(s):
    return {x for x in s if x[0] == "s"}


def need(p, c):
    n = 0
    if p.mfma:
        big = {4: 8, 8: 12}[p.passes]
        if c.mfma:
            if p.w & c.srcab:
                n = max(n, big)
            if p.w & c.srcc and not (p.w == c.srcc and p.passes == c.passes):
                n = max(n, {4: 6, 8: 10}[p.passes])
            if p.w & c.w and not (p.w == c.srcc):
                n = max(n, big)
        elif (c.valu or c.vmem or c.ds) and p.w & (c.r | c.w):
            n = max(n, big)
        if c.valu and not c.mfma and p.srcc & c.w:
            n = max(n, {4: 3, 8: 7}[p.passes])
        return n
    if p.valu:
        wv, ws = vg(p.w), sg(p.w)
        if c.mfma and wv & c.r:
            n = max(n, 2)
        if c.mfma and ("s", "exec") in ws:
            n = max(n, 4)
        if p.dot and c.valu and wv & (c.r | c.w):
            same = c.op == p.op
            accum_only = same and not (wv & (regs(c.ops[1]) | regs(c.ops[2])))
            if not accum_only:
                n = max(n, 3)
        if p.dot and (c.vmem or c.ds) and wv & c.r:
            n = max(n, 3)
        if p.trans and c.valu and not c.trans and wv & c.r:
            n = max(n, 1)
        if c.valu and c.dpp and wv & c.r:
            n = max(n, 2)
        if c.valu and c.dpp and ("s", "exec") in ws:
            n = max(n, 5)
        if c.perm and wv & c.r:
            n = max(n, 2)
        if c.rdlane and wv & c.r:
            n = max(n, 1)
        if c.valu and ws & c.r:
            n = max(n, 2)
        if c.lanesel and ws & regs(c.ops[-1]):
            n = max(n, 4)
        if c.vmem and ws & c.r:
            n = max(n, 5)
        if ("_sdwa" in p.op or "op_sel" in p.text) and c.valu and wv & c.r:
            n = max(n, 1)
        if c.salu and ws & c.r:
            n = max(n, 1)
        if c.op.startswith("s_cbranch_vcc") and ("s", "vcc") in ws:
            n = max(n, 1)
    if p.widestore and (c.valu or c.vmem or c.ds) and p.storedata & c.w:
        n = max(n, 2)
    if p.salu and ("s", "m0") in p.w and c.lds_dma:
        n = max(n, 1)
    return n


WINDOW = 14


def fix(lines, report=None):
    label_hist = {}
    for _ in range(3):
        out = []
        hist = []
        added = []
        for ln in lines:
            s = ln.strip()
            if not s or s.startswith((";", ".")):
                out.append(ln)
                continue
            if s.endswith(":"):
                out.append(ln)
                for h in label_hist.get(s[:-1], []):
                    hist = hist + h
                continue
            c = Ins(s)
            pad = 0
            for p, dist in hist:
                pad = max(pad, need(p, c) - dist)
            if pad > 0:
                out.append(f"    s_nop {pad - 1}")
                added.append((pad, s))
                hist = [(p, d + pad) for p, d in hist]
            out.append(ln)
            hist = [(p, d + c.states) for p, d in hist if d + c.states < WINDOW]
            hist.append((c, 0))
            if c.op.startswith(("s_cbranch", "s_branch")):
                label_hist.setdefault(c.ops[0], [])
                label_hist[c.ops[0]] = label_hist[c.ops[0]][-8:] + [list(hist)]
            if c.op in ("s_branch", "s_endpgm"):
                hist = []
    if report is not None:
        report.extend(added)
    return out
```

```python
import sys

sys.path.insert(0, "tools")
from asmgen import Asm, NAME
import hazard

EPOCH = 0
GRAN = 0x1000
STAT = 0x8000
ZF = 0x10000
MP = 0x40000
MPS = 4608
ZB = 0x200000
ZTS = 129 * 128
STAMP = 0x1000000
OOB = 0x7FFFFF00
WBYTES = 1024 * 3584 * 2

RS, QS = 2592, 640
EX = 16 * RS
MISC = EX + 16384
L_ENT = MISC
L_KEY = MISC + 80
L_YS = MISC + 128
L_ROW = MISC + 1024
LDS_BYTES = MISC + 1536
M_XS, M_PART, M_HS = 0, 512, 512 + 2048

SPIN = 1 << 16
NWG = 482

HEADER = """; Fused kernel: LayerNorm, Re(2-D DFT) as a folded mixed-radix transform on MFMA, routed-token SwiGLU, gating.
; Workgroups 0..255 and 480..481: transform role. Workgroups 256..479: routed-token role."""


class Gen:
    def __init__(self, stamps=False, wflag="nt", xflag="", window=8, oflag="sc1"):
        self.a = Asm()
        self.stamps = stamps
        self.nst = 0
        self.wflag, self.xflag, self.window, self.oflag = wflag, xflag, window, oflag

    def stamp(self, i):
        if self.stamps:
            self.a(f"s_memrealtime s[{68 + 2 * i}:{69 + 2 * i}]\ns_waitcnt lgkmcnt(0)")

    def spin_check(self, loop, out):
        self.a(f"s_cmp_eq_u32 s35, 0\ns_cbranch_scc1 {out}\ns_sub_u32 s35, s35, 1\ns_branch {loop}")

    def prologue(self):
        a = self.a
        a.begin(NAME + "_kernel")
        a(f"s_cmp_ge_u32 s2, {NWG}\ns_cbranch_scc1 L_exit")
        a("s_load_dwordx2 s[4:5], s[0:1], 0")
        a("s_load_dwordx2 s[6:7], s[0:1], 96")
        a("s_load_dwordx8 s[36:43], s[0:1], 48")
        a("s_load_dwordx2 s[44:45], s[0:1], 80")
        if self.stamps:
            for i in range(68, 100):
                a(f"s_mov_b32 s{i}, 0")
            a("s_memrealtime s[68:69]")
        a("v_lshrrev_b32 v1, 6, v0\nv_and_b32 v2, 63, v0")
        a("v_readfirstlane_b32 s30, v1")
        a("s_mov_b32 s10, 0x400000\ns_mov_b32 s11, 0x00020000\ns_mov_b32 s14, 0x10000000\ns_mov_b32 s15, 0x00020000")
        a(f"s_mov_b32 s35, {SPIN}")
        a("s_sub_u32 s31, s2, 256\ns_cmp_lt_u32 s31, 224\ns_cbranch_scc1 L_moe")

    def base_srds(self):
        self.a("s_mov_b32 s8, s4\ns_mov_b32 s9, s5\ns_mov_b32 s12, s6\ns_mov_b32 s13, s7")

    def tag_from_epoch(self):
        self.a("s_add_u32 s28, s28, 0x7f4a7c15\ns_addc_u32 s29, s29, 0x9e3779b9")

    def gran_poll(self, name, g, va):
        a = self.a
        a(f"v_lshlrev_b32 v{va}, 6, v2\nv_add_u32 v{va}, {GRAN}, v{va}")
        a("s_mov_b32 s60, 4096\ns_mov_b32 s61, 8192\ns_mov_b32 s62, 12288")
        a(f"L_{name}_poll:")
        for j in range(4):
            so = "0" if j == 0 else f"s{59 + j}"
            a(f"buffer_load_dwordx4 v[{g + 4 * j}:{g + 4 * j + 3}], v{va}, s[12:15], {so} offen sc1")
        a("s_waitcnt vmcnt(0)")
        a(f"v_cmp_ne_u64 vcc, s[28:29], v[{g + 2}:{g + 3}]")
        a(f"v_cmp_ne_u64 s[54:55], s[28:29], v[{g + 6}:{g + 7}]")
        a(f"v_cmp_ne_u64 s[56:57], s[28:29], v[{g + 10}:{g + 11}]")
        a(f"v_cmp_ne_u64 s[58:59], s[28:29], v[{g + 14}:{g + 15}]")
        a(f"v_max_u32 v{va + 1}, v{g + 1}, v{g + 5}\nv_max3_u32 v{va + 1}, v{va + 1}, v{g + 9}, v{g + 13}")
        a("s_or_b64 s[54:55], s[54:55], vcc\ns_or_b64 s[56:57], s[56:57], s[58:59]\ns_or_b64 s[54:55], s[54:55], s[56:57]")
        a(f"s_cbranch_scc0 L_{name}_got")
        self.spin_check(f"L_{name}_poll", f"L_{name}_got")
        a(f"L_{name}_got:")
        k = va + 2
        a(f"v_mov_b32 v{k}, v{va + 1}")
        for d in ("row_shr:1", "row_shr:2", "row_shr:4", "row_shr:8"):
            a(f"v_max_u32_dpp v{k}, v{k}, v{k} {d} row_mask:0xf bank_mask:0xf")
        a(f"v_max_u32_dpp v{k}, v{k}, v{k} row_bcast:15 row_mask:0xa bank_mask:0xf")
        a(f"v_max_u32_dpp v{k}, v{k}, v{k} row_bcast:31 row_mask:0xc bank_mask:0xf")
        a(f"v_readlane_b32 s33, v{k}, 63")

    def gran_stats(self, g, va):
        a = self.a
        k = va + 2
        a(f"v_mov_b32 v{k}, v{g}")
        for j in (1, 2, 3):
            a(f"v_cmp_eq_u32 vcc, s33, v{g + 4 * j + 1}\nv_cndmask_b32 v{k}, v{k}, v{g + 4 * j}, vcc")
        a(f"v_cmp_eq_u32 vcc, s33, v{va + 1}")
        a("s_ff1_i32_b64 s32, vcc")
        a(f"v_readlane_b32 s34, v{k}, s32")

    def p2_matrix(self, M, t0, t1r, t2r):
        a = self.a
        a(f"v_and_b32 v{t0}, 15, v2\ns_lshl_b32 s31, s30, 4\nv_add_u32 v{t0}, s31, v{t0}")
        a(f"v_lshrrev_b32 v{t1r}, 5, v2\nv_bfe_u32 v{t2r}, v2, 4, 1\nv_lshlrev_b32 v{t1r}, 4, v{t1r}\nv_lshl_add_u32 v{t1r}, v{t2r}, 2, v{t1r}")
        a(f"v_mul_u32_u24 v{t1r}, v{t1r}, v{t0}\nv_cvt_f32_u32 v{t0}, v{t0}\nv_cvt_f32_u32 v{t1r}, v{t1r}")
        a(f"v_mul_f32 v{t0}, 0x3b800000, v{t0}\nv_mul_f32 v{t1r}, 0x3b800000, v{t1r}")
        import struct
        items = []
        for ks in range(8):
            for dw in range(4):
                v, rr = dw // 2, dw % 2
                items.append((M + 4 * ks + dw, 32 * (ks % 4) + 8 * v + 2 * rr + ks // 4))
        for n in range(0, 32, 2):
            (d0, c0), (d1, c1) = items[n], items[n + 1]
            f0 = struct.unpack("<I", struct.pack("<f", float(c0)))[0]
            f1 = struct.unpack("<I", struct.pack("<f", float(c1)))[0]
            a(f"v_fmamk_f32 v{d0}, v{t0}, {f0:#x}, v{t1r}\nv_fmamk_f32 v{d1}, v{t0}, {f1:#x}, v{t1r}")
            a(f"v_sin_f32 v{t2r}, v{d0}\nv_cos_f32 v{d0}, v{d0}\nv_sin_f32 v{t2r + 1}, v{d1}\nv_cos_f32 v{d1}, v{d1}")
            a(f"v_cvt_pk_f16_f32 v{d0}, v{d0}, v{t2r}\nv_cvt_pk_f16_f32 v{d1}, v{d1}, v{t2r + 1}")
        a(f"v_lshlrev_b32 v{t2r}, 31, v2\nv_or_b32 v{t2r}, 0x3c003c00, v{t2r}")
        a(f"v_cmp_gt_u32 vcc, 16, v2\nv_cndmask_b32 v{M}, v{M}, v{t2r}, vcc")

    def dft(self):
        a = self.a
        A1, M2, TW = 8, 16, 48
        R0, R1, N = 80, 88, 96
        WR = N + 8
        ACC = 112
        VOFF, VPUB = 3, 4
        MM = 16

        a("s_and_b32 s31, s2, 7\ns_lshr_b32 s32, s2, 4\ns_lshl_b32 s32, s32, 3\ns_add_u32 s46, s32, s31\ns_bfe_u32 s47, s2, 0x10003")
        a("s_and_b32 s31, s2, 1\ns_cmp_lt_u32 s2, 256\ns_cselect_b32 s46, s46, 128\ns_cselect_b32 s47, s47, s31")
        a("s_lshl_b32 s31, s30, 8\ns_add_u32 s31, s31, s46\ns_sub_u32 s32, 2048, s31\ns_and_b32 s32, s32, 2047")
        a("s_cmp_eq_u32 s47, 0\ns_cselect_b32 s48, s31, s32\ns_cselect_b32 s49, s32, s31")
        a("s_lshl_b32 s54, s48, 11\ns_lshl_b32 s55, s49, 11")
        a(f"v_lshlrev_b32 v{VOFF}, 4, v2")
        a("s_and_b32 s51, s48, 255\ns_and_b32 s31, s46, 127\ns_cmp_lg_u32 s31, 0\ns_cselect_b32 s50, 1, 0\ns_xor_b32 s31, s47, 1\ns_or_b32 s50, s50, s31")
        a(f"s_mul_i32 s31, s51, {MPS}\ns_add_u32 s31, s31, {MP}\ns_cmp_lt_u32 s51, 224\ns_cselect_b32 s32, s50, 0\ns_cmp_eq_u32 s32, 1\ns_cselect_b32 s31, s31, {OOB}")
        a(f"v_lshlrev_b32 v5, 4, v0\nv_add_u32 v5, s31, v5\nv_mov_b32 v6, {OOB}\nv_cmp_gt_u32 vcc, 288, v0\nv_cndmask_b32 v5, v6, v5, vcc")
        for i in range(4):
            a(f"v_mov_b32 v{ACC + 4 + i}, -1")
        a("s_mov_b32 s22, 2048\ns_mov_b32 s23, 0x00020000\ns_mov_b32 s18, 0x400000\ns_mov_b32 s19, 0x00020000")
        a("s_waitcnt lgkmcnt(0)")
        self.base_srds()
        a("s_mov_b32 s20, s36\ns_mov_b32 s21, s37\ns_mov_b32 s16, s44\ns_mov_b32 s17, s45")
        xf = self.xflag
        a(f"buffer_load_dwordx4 v[{R0}:{R0 + 3}], v{VOFF}, s[8:11], s54 offen {xf}")
        a(f"buffer_load_dwordx4 v[{R0 + 4}:{R0 + 7}], v{VOFF}, s[8:11], s54 offen offset:1024 {xf}")
        a(f"buffer_load_dwordx4 v[{WR}:{WR + 3}], v{VOFF}, s[20:23], 0 offen")
        a(f"buffer_load_dwordx4 v[{WR + 4}:{WR + 7}], v{VOFF}, s[20:23], 0 offen offset:1024")
        a(f"buffer_load_dwordx4 v[{R1}:{R1 + 3}], v{VOFF}, s[8:11], s55 offen {xf}")
        a(f"buffer_load_dwordx4 v[{R1 + 4}:{R1 + 7}], v{VOFF}, s[8:11], s55 offen offset:1024 {xf}")
        a(f"buffer_store_dwordx4 v[{ACC + 4}:{ACC + 7}], v5, s[12:15], 0 offen sc1")
        a(f"s_load_dwordx2 s[28:29], s[6:7], {EPOCH}")
        a(f"v_mov_b32 v6, 0\nv_mov_b32 v7, 0\nv_mov_b32 v5, {L_ENT + 64}\nds_write_b64 v5, v[6:7]")
        a(f"s_lshl_b32 s31, s51, 7\ns_add_u32 s31, s31, {STAT}\nv_add_u32 v{VPUB}, s31, v{VOFF}")
        a(f"s_lshl_b32 s31, s51, 6\ns_add_u32 s31, s31, {GRAN}\nv_writelane_b32 v{VPUB}, s31, 8")
        a(f"v_mov_b32 v6, {OOB}\nv_cmp_gt_u32 vcc, 9, v2\nv_cndmask_b32 v{VPUB}, v6, v{VPUB}, vcc")

        T0, T1, T2 = N, N + 1, N + 2
        a(f"v_bfe_u32 v{T0}, v2, 2, 2\ns_lshl_b32 s31, s47, 2\nv_add_u32 v{T0}, s31, v{T0}")
        a(f"v_lshrrev_b32 v{T1}, 4, v2\nv_bfe_u32 v{T2}, v2, 1, 1\nv_mul_u32_u24 v{T1}, v{T1}, v{T2}\nv_and_b32 v{T2}, 1, v2\nv_add_u32 v{T1}, v{T1}, v{T2}")
        a(f"v_cvt_f32_u32 v{T0}, v{T0}\nv_cvt_f32_u32 v{T1}, v{T1}\nv_mul_f32 v{T0}, 0x3e000000, v{T0}\nv_mul_f32 v{T1}, 0x3e800000, v{T1}")
        a("s_and_b32 s31, s46, 127\ns_cmp_lg_u32 s31, 0\ns_cselect_b32 s31, 1.0, 0.5")
        for j in range(0, 8, 2):
            a(f"v_cos_f32 v{T2}, v{T1}\nv_add_f32 v{T1}, v{T1}, v{T0}\nv_cos_f32 v{T2 + 1}, v{T1}\nv_add_f32 v{T1}, v{T1}, v{T0}")
            a(f"v_mul_f32 v{T2}, s31, v{T2}\nv_mul_f32 v{T2 + 1}, s31, v{T2 + 1}\nv_cvt_pk_bf16_f32 v{A1 + j // 2}, v{T2}, v{T2 + 1}")
        a(f"v_bfe_u32 v{T2}, v2, 4, 1\nv_sub_u32 v{T2}, 0, v{T2}\nv_and_b32 v{T2}, 0x80008000, v{T2}")
        for j in range(4):
            a(f"v_xor_b32 v{A1 + 4 + j}, v{T2}, v{A1 + j}")
        a("s_cmp_ge_u32 s30, 4\ns_cbranch_scc1 L_light_consts")
        a(f"v_lshrrev_b32 v{T0}, 2, v2\nv_and_b32 v{T0}, 12, v{T0}\nv_and_b32 v{T1}, 15, v2\nv_lshlrev_b32 v{T1}, 2, v{T1}")
        a(f"v_cvt_f32_u32 v{T0}, v{T0}\nv_cvt_f32_u32 v{T1}, v{T1}\nv_mul_f32 v{T0}, 0x3c800000, v{T0}")
        a(f"s_lshl_b32 s31, s47, 2\ns_add_u32 s52, s31, s30\ns_mul_i32 s31, s52, s46\nv_cvt_f32_u32 v{T2}, s31\nv_mul_f32 v{T2}, 0x3a000000, v{T2}")
        a("s_mov_b32 s31, 0x3d800000")
        BI = N + 3
        a(f"v_mov_b32 v{BI}, v{T0}\nv_add_f32 v{BI + 1}, 0x3c800000, v{T0}\nv_add_f32 v{BI + 2}, 0x3d000000, v{T0}\nv_add_f32 v{BI + 3}, 0x3d400000, v{T0}")
        for f in range(4):
            for i in range(4):
                re, im = M2 + 8 * f + i, M2 + 8 * f + 4 + i
                tc, ts = TW + 8 * f + i, TW + 8 * f + 4 + i
                a(f"v_mul_f32 v{T0}, v{BI + i}, v{T1}")
                a(f"v_fma_f32 v{ts}, v{T0}, s31, v{T2}")
                a(f"v_sin_f32 v{im}, v{T0}\nv_cos_f32 v{T0}, v{T0}\nv_cos_f32 v{tc}, v{ts}\nv_sin_f32 v{ts}, v{ts}")
                a(f"v_cvt_pk_f16_f32 v{re}, v{T0}, v{im}\nv_cvt_pk_f16_f32 v{im}, -v{im}, v{T0}")
            if f < 3:
                a(f"v_add_f32 v{T1}, 1.0, v{T1}")
        a("s_branch L_consts_done")
        a("L_light_consts:")
        self.p2_matrix(MM, T0, T1, T2)
        a("L_consts_done:")
        a("s_waitcnt lgkmcnt(0)\ns_barrier")
        self.tag_from_epoch()
        self.stamp(1)

        a("s_mov_b32 s53, 0\ns_mov_b32 s56, s47\ns_mov_b32 s57, 0x3f803f80\ns_mov_b32 s66, 0\ns_brev_b32 s67, 1")
        a("s_sub_u32 s58, 2047, s48")
        a("s_waitcnt vmcnt(3)")
        self.stamp(2)
        a("L_row:")
        for i in range(4):
            a(f"v_mov_b32 v{ACC + i}, 0")
        for i in range(8):
            a(f"v_dot2c_f32_bf16 v{ACC}, s57, v{R0 + i}\nv_dot2c_f32_bf16 v{ACC + 1}, v{R0 + i}, v{R0 + i}")
            a(f"v_dot2c_f32_bf16 v{ACC + 2}, v{WR + i}, v{R0 + i}\nv_dot2c_f32_bf16 v{ACC + 3}, s57, v{WR + i}")
        for d, m in (("row_shr:1", 0xf), ("row_shr:2", 0xf), ("row_shr:4", 0xf), ("row_shr:8", 0xf), ("row_bcast:15", 0xa), ("row_bcast:31", 0xc)):
            for i in range(4):
                a(f"v_add_f32_dpp v{ACC + i}, v{ACC + i}, v{ACC + i} {d} row_mask:{m:#x} bank_mask:0xf")
        m_, q_, t_, st = ACC, ACC + 1, ACC + 4, ACC + 6
        a(f"v_mul_f32 v{m_}, 0x3a800000, v{m_}\nv_mul_f32 v{q_}, 0x3a800000, v{q_}")
        a(f"v_fma_f32 v{q_}, -v{m_}, v{m_}, v{q_}\nv_max_f32 v{q_}, 0, v{q_}")
        a(f"v_cvt_pk_bf16_f32 v{q_}, v{q_}, v{q_}\nv_lshlrev_b32 v{q_}, 16, v{q_}\nv_add_f32 v{q_}, 0x3727c5ac, v{q_}")
        a(f"v_cvt_pk_bf16_f32 v{q_}, v{q_}, v{q_}\nv_lshlrev_b32 v{q_}, 16, v{q_}\nv_sqrt_f32 v{q_}, v{q_}")
        a(f"v_cvt_pk_bf16_f32 v{st}, v{m_}, v{q_}\nv_and_b32 v{q_}, 0xffff0000, v{st}\nv_lshlrev_b32 v{m_}, 16, v{st}\nv_rcp_f32 v{q_}, v{q_}")
        a(f"v_fma_f32 v{t_}, -v{m_}, v{ACC + 3}, v{ACC + 2}")
        a(f"v_readlane_b32 s62, v{m_}, 63")
        a(f"v_mul_f32 v{t_}, v{t_}, v{q_}")
        a(f"v_readlane_b32 s64, v{q_}, 63")
        a("s_cmp_lg_u32 s53, 0\ns_cbranch_scc1 L_norm")
        a(f"v_ashrrev_i32 v{t_ + 1}, 31, v{t_}\nv_or_b32 v{t_ + 1}, 0x80000000, v{t_ + 1}\nv_xor_b32 v{t_}, v{t_}, v{t_ + 1}")
        a(f"v_and_b32 v{t_}, 0xfffff800, v{t_}\nv_or_b32 v{st + 1}, s58, v{t_}")
        a(f"s_lshr_b32 s31, s48, 8\ns_lshl_b32 s31, s31, 3\ns_add_u32 s31, s31, {L_ENT}\nv_mov_b32 v{t_}, s31")
        a("s_mov_b64 exec, s[66:67]")
        a(f"ds_write_b64 v{t_}, v[{st}:{st + 1}]\nds_max_u64 v5, v[{st}:{st + 1}]")
        a("s_mov_b64 exec, -1")
        a("s_waitcnt vmcnt(0) lgkmcnt(0)\ns_barrier")
        a("s_cmp_eq_u32 s30, 0\ns_cselect_b32 s31, s50, 0\ns_cmp_eq_u32 s31, 0\ns_cbranch_scc1 L_norm")
        a(f"v_min_u32 v{t_}, 8, v2\nv_lshlrev_b32 v{t_}, 3, v{t_}\nds_read_b64 v[{ACC}:{ACC + 1}], v{t_} offset:{L_ENT}")
        a(f"v_mov_b32 v{ACC + 2}, s28\nv_mov_b32 v{ACC + 3}, s29\ns_waitcnt lgkmcnt(0)")
        a(f"buffer_store_dwordx4 v[{ACC}:{ACC + 3}], v{VPUB}, s[12:15], 0 offen sc1")
        self.stamp(3)
        a("L_norm:")
        for i in range(8):
            a(f"v_lshlrev_b32 v{N + 2 * i}, 16, v{R0 + i}\nv_and_b32 v{N + 2 * i + 1}, 0xffff0000, v{R0 + i}")
        for i in range(8):
            a(f"v_pk_add_f32 v[{N + 2 * i}:{N + 2 * i + 1}], v[{N + 2 * i}:{N + 2 * i + 1}], s[62:63] op_sel_hi:[1,0] neg_lo:[0,1] neg_hi:[0,1]")
        for i in range(8):
            a(f"v_cvt_pk_bf16_f32 v{R0 + i}, v{N + 2 * i}, v{N + 2 * i + 1}")
        for i in range(8):
            a(f"v_lshlrev_b32 v{N + 2 * i}, 16, v{R0 + i}\nv_and_b32 v{N + 2 * i + 1}, 0xffff0000, v{R0 + i}")
        for i in range(8):
            a(f"v_pk_mul_f32 v[{N + 2 * i}:{N + 2 * i + 1}], v[{N + 2 * i}:{N + 2 * i + 1}], s[64:65] op_sel_hi:[1,0]")
        a(f"s_mul_i32 s31, s30, {RS}")
        a("s_cmp_lg_u32 s56, 0\ns_cbranch_scc1 L_pack_mirror")
        for i in range(8):
            a(f"v_cvt_pk_bf16_f32 v{R0 + i}, v{N + 2 * i}, v{N + 2 * i + 1}")
        a(f"v_mov_b32 v{ACC + 4}, v2")
        a("s_branch L_pack_done")
        a("L_pack_mirror:")
        a(f"v_mov_b32_dpp v{ACC + 4}, v{N} wave_rol:1 row_mask:0xf bank_mask:0xf\nv_mov_b32_dpp v{ACC + 5}, v{N + 8} wave_rol:1 row_mask:0xf bank_mask:0xf")
        a(f"v_cndmask_b32 v{N}, v{ACC + 4}, v{ACC + 5}, s[66:67]\nv_cndmask_b32 v{N + 8}, v{ACC + 5}, v{ACC + 4}, s[66:67]")
        for half in range(2):
            b, dst = N + 8 * half, R0 + 4 * (1 - half)
            a(f"v_cvt_pk_bf16_f32 v{dst}, v{b}, v{b + 7}\nv_cvt_pk_bf16_f32 v{dst + 1}, v{b + 6}, v{b + 5}")
            a(f"v_cvt_pk_bf16_f32 v{dst + 2}, v{b + 4}, v{b + 3}\nv_cvt_pk_bf16_f32 v{dst + 3}, v{b + 2}, v{b + 1}")
        a(f"v_sub_u32 v{ACC + 4}, 63, v2\ns_add_u32 s31, s31, {8 * RS}")
        a("L_pack_done:")
        a(f"v_lshrrev_b32 v{ACC + 5}, 5, v{ACC + 4}\nv_lshlrev_b32 v{ACC + 4}, 4, v{ACC + 4}\nv_lshlrev_b32 v{ACC + 5}, 7, v{ACC + 5}\nv_add3_u32 v{ACC + 4}, v{ACC + 4}, v{ACC + 5}, s31")
        a(f"ds_write_b128 v{ACC + 4}, v[{R0}:{R0 + 3}]\nds_write_b128 v{ACC + 4}, v[{R0 + 4}:{R0 + 7}] offset:{2 * QS}")
        a("s_cmp_lg_u32 s53, 0\ns_cbranch_scc1 L_rows_done")
        a("s_mov_b32 s53, 1\ns_xor_b32 s56, s56, 1\ns_waitcnt lgkmcnt(0)")
        for i in range(8):
            a(f"v_mov_b32 v{R0 + i}, v{R1 + i}")
        a("s_branch L_row")
        a("L_rows_done:")
        FR, DD = 80, 96
        a(f"v_bfe_u32 v5, v2, 2, 2\nv_mul_u32_u24 v5, {RS}, v5\nv_lshrrev_b32 v6, 4, v2\nv_mul_u32_u24 v7, {QS}, v6\nv_add_u32 v5, v5, v7")
        a("v_and_b32 v7, 3, v2\nv_lshlrev_b32 v7, 3, v7\ns_lshl_b32 s31, s30, 6\nv_add3_u32 v5, v5, v7, s31")
        a(f"v_lshlrev_b32 v6, 12, v6\nv_and_b32 v7, 15, v2\nv_lshl_add_u32 v6, v7, 4, v6")
        a(f"s_lshr_b32 s31, s30, 1\ns_lshl_b32 s31, s31, 8\ns_and_b32 s32, s30, 1\ns_lshl_b32 s32, s32, 3\ns_add_u32 s31, s31, s32\nv_add_u32 v6, s31, v6")
        a("s_waitcnt lgkmcnt(0)\ns_barrier")
        self.stamp(4)
        for blk in range(2):
            for m in range(2):
                for v in range(2):
                    d = FR + 8 * blk + 4 * m + 2 * v
                    a(f"ds_read_b64_tr_b16 v[{d}:{d + 1}], v5 offset:{(8 * m + 4 * v) * RS + 32 * blk}")
        for blk in range(2):
            for m in range(2):
                a(f"s_waitcnt lgkmcnt({6 - 4 * blk - 2 * m})")
                for mb in range(2):
                    d = DD + 8 * blk + 4 * mb
                    c = "0" if m == 0 else f"v[{d}:{d + 3}]"
                    a(f"v_mfma_f32_16x16x32_bf16 v[{d}:{d + 3}], v[{A1 + 4 * mb}:{A1 + 4 * mb + 3}], v[{FR + 8 * blk + 4 * m}:{FR + 8 * blk + 4 * m + 3}], {c}")
        EE = 112
        for blk in range(2):
            for f in range(4):
                s = DD + 8 * blk + 2 * f
                a(f"v_cvt_pk_f16_f32 v{EE + 2 * f + blk}, v{s}, v{s + 1}")
        for f in range(4):
            a(f"ds_write_b64 v6, v[{EE + 2 * f}:{EE + 2 * f + 1}] offset:{EX + 1024 * f}")
        a("s_waitcnt lgkmcnt(0)\ns_barrier")
        self.stamp(5)
        a("s_cmp_ge_u32 s30, 4\ns_cbranch_scc1 L_p1_done")
        PP, UU, TT = 80, 96, 112
        a(f"s_lshl_b32 s31, s30, 12\nv_add_u32 v5, s31, v{VOFF}")
        for f in range(4):
            a(f"ds_read_b128 v[{PP + 4 * f}:{PP + 4 * f + 3}], v5 offset:{EX + 1024 * f}")
        a("s_and_b32 s31, s46, 1\ns_lshl_b32 s31, s31, 6\ns_lshr_b32 s32, s46, 1\ns_add_u32 s59, s31, s32\ns_cmp_eq_u32 s46, 128\ns_cselect_b32 s59, 128, s59")
        a("s_bfe_u32 s31, s59, 0x10001\nv_and_b32 v6, 7, v2\nv_xor_b32 v6, s31, v6\nv_lshlrev_b32 v6, 4, v6")
        a(f"v_lshrrev_b32 v7, 4, v2\nv_lshlrev_b32 v7, 3, v7\nv_bfe_u32 v5, v2, 3, 1\nv_add_u32 v7, v7, v5\nv_mul_u32_u24 v7, {ZTS}, v7\nv_add_u32 v6, v6, v7")
        a(f"s_mul_i32 s31, s52, {32 * ZTS}\ns_lshl_b32 s32, s59, 7\ns_add_u32 s31, s31, s32\ns_add_u32 s60, s31, {ZB}")
        for i in range(1, 4):
            a(f"s_add_u32 s{60 + i}, s{59 + i}, {2 * ZTS}")

        def st2(f):
            u = UU + 8 * (f % 2)
            a(f"s_waitcnt lgkmcnt({3 - f})")
            a(f"v_mfma_f32_16x16x32_f16 v[{u}:{u + 3}], v[{PP + 4 * f}:{PP + 4 * f + 3}], v[{M2 + 8 * f}:{M2 + 8 * f + 3}], 0")
            a(f"v_mfma_f32_16x16x32_f16 v[{u + 4}:{u + 7}], v[{PP + 4 * f}:{PP + 4 * f + 3}], v[{M2 + 8 * f + 4}:{M2 + 8 * f + 7}], 0")

        def tw(f):
            u = UU + 8 * (f % 2)
            tc, ts = TW + 8 * f, TW + 8 * f + 4
            for p in (0, 2):
                a(f"v_pk_mul_f32 v[{TT + p}:{TT + p + 1}], v[{tc + p}:{tc + p + 1}], v[{u + p}:{u + p + 1}]")
                a(f"v_pk_mul_f32 v[{TT + 4 + p}:{TT + 5 + p}], v[{tc + p}:{tc + p + 1}], v[{u + 4 + p}:{u + 5 + p}]")
            for p in (0, 2):
                a(f"v_pk_fma_f32 v[{TT + p}:{TT + p + 1}], v[{ts + p}:{ts + p + 1}], v[{u + 4 + p}:{u + 5 + p}], v[{TT + p}:{TT + p + 1}]")
                a(f"v_pk_fma_f32 v[{TT + 4 + p}:{TT + 5 + p}], v[{ts + p}:{ts + p + 1}], v[{u + p}:{u + p + 1}], v[{TT + 4 + p}:{TT + 5 + p}] neg_lo:[1,0,0] neg_hi:[1,0,0]")
            for i in range(4):
                a(f"v_cvt_pk_f16_f32 v{PP + 4 * f + i}, v{TT + i}, v{TT + 4 + i}")

        def st3(f):
            z = TW + 8 * f
            a(f"v_mfma_f32_16x16x32_f16 v[{z}:{z + 3}], v[{M2}:{M2 + 3}], v[{PP + 4 * f}:{PP + 4 * f + 3}], 0")
            a(f"v_mfma_f32_16x16x32_f16 v[{z + 4}:{z + 7}], v[{M2 + 4}:{M2 + 7}], v[{PP + 4 * f}:{PP + 4 * f + 3}], 0")

        st2(0); st2(1); tw(0); st2(2); st3(0); tw(1); st2(3); st3(1); tw(2); st3(2); tw(3); st3(3)
        OO = 96
        for i in range(4):
            o = OO + 4 * i
            a(f"v_cvt_pk_f16_f32 v{o}, v{TW + i}, v{TW + 8 + i}\nv_cvt_pk_f16_f32 v{o + 2}, v{TW + 4 + i}, v{TW + 12 + i}")
        for i in range(4):
            o = OO + 4 * i
            a(f"v_cvt_pk_f16_f32 v{o + 1}, v{TW + 16 + i}, v{TW + 24 + i}\nv_cvt_pk_f16_f32 v{o + 3}, v{TW + 20 + i}, v{TW + 28 + i}")
            a(f"buffer_store_dwordx4 v[{o}:{o + 3}], v6, s[12:15], s{60 + i} offen sc1")
        self.stamp(6)
        self.p2_matrix(MM, 80, 81, 82)
        a(f"s_lshl_b32 s31, s52, 14\ns_lshl_b32 s32, s59, 6\ns_add_u32 s31, s31, s32\ns_add_u32 s31, s31, {ZF}")
        a(f"v_mov_b32 v5, {OOB}\nv_writelane_b32 v5, s31, 0\nv_mov_b32 v6, s28\nv_mov_b32 v7, s29")
        a("s_waitcnt vmcnt(0)")
        a("buffer_store_dwordx2 v[6:7], v5, s[12:15], 0 offen sc1")
        self.stamp(7)
        a("L_p1_done:")
        a("s_cmp_ge_u32 s2, 256\ns_cbranch_scc1 L_fin")
        self.phase2(MM, VOFF)

    def phase2(self, MM, VOFF):
        a = self.a
        XP, SG, XF, GG = 8, 48, 56, 72
        AC, AF = 88, 104
        VX, VT = 4, 120
        a("s_lshr_b32 s46, s2, 5\ns_and_b32 s31, s2, 7\ns_lshl_b32 s31, s31, 2\ns_bfe_u32 s32, s2, 0x20003\ns_add_u32 s47, s31, s32")
        a(f"v_and_b32 v{VT}, 15, v2\ns_lshl_b32 s31, s30, 7\ns_add_u32 s31, s31, s46\nv_lshl_add_u32 v{VT}, v{VT}, 3, s31")
        a(f"v_lshlrev_b32 v{VX}, 11, v{VT}\nv_and_b32 v5, 48, v2\ns_lshl_b32 s31, s47, 6\nv_add3_u32 v{VX}, v{VX}, v5, s31")
        a(f"v_and_b32 v5, 255, v{VT}\nv_lshlrev_b32 v5, 7, v5\nv_lshrrev_b32 v6, 8, v{VT}\nv_lshl_add_u32 v5, v6, 4, v5\nv_add_u32 v5, {STAT}, v5")
        a("s_mov_b32 s48, 0x200000")
        a(f"buffer_load_dwordx4 v[{XP}:{XP + 3}], v{VX}, s[8:11], 0 offen")
        a(f"buffer_load_dwordx4 v[{XP + 4}:{XP + 7}], v{VX}, s[8:11], s48 offen")
        a("L_stat_poll:")
        a(f"buffer_load_dwordx4 v[{SG}:{SG + 3}], v5, s[12:15], 0 offen sc1")
        a(f"buffer_load_dwordx4 v[{SG + 4}:{SG + 7}], v5, s[12:15], 0 offen offset:64 sc1")
        a("s_waitcnt vmcnt(0)")
        a(f"v_cmp_ne_u64 vcc, s[28:29], v[{SG + 2}:{SG + 3}]\nv_cmp_ne_u64 s[54:55], s[28:29], v[{SG + 6}:{SG + 7}]")
        a("s_or_b64 s[54:55], s[54:55], vcc\ns_cbranch_scc0 L_stat_got")
        self.spin_check("L_stat_poll", "L_stat_got")
        a("L_stat_got:")
        self.stamp(8)
        for h in range(2):
            s = SG + 4 * h
            a(f"v_and_b32 v{s + 2}, 0xffff0000, v{s}\nv_lshlrev_b32 v{s}, 16, v{s}\nv_rcp_f32 v{s + 2}, v{s + 2}")
        for i in range(8):
            a(f"v_lshlrev_b32 v{XF + 2 * i}, 16, v{XP + i}\nv_and_b32 v{XF + 2 * i + 1}, 0xffff0000, v{XP + i}")
        for i in range(8):
            s = SG + 4 * (i // 4)
            a(f"v_pk_add_f32 v[{GG + 2 * i}:{GG + 2 * i + 1}], v[{XF + 2 * i}:{XF + 2 * i + 1}], v[{s}:{s + 1}] op_sel_hi:[1,0] neg_lo:[0,1] neg_hi:[0,1]")
        for i in range(8):
            a(f"v_cvt_pk_bf16_f32 v{XP + i}, v{GG + 2 * i}, v{GG + 2 * i + 1}")
        for i in range(8):
            a(f"v_lshlrev_b32 v{GG + 2 * i}, 16, v{XP + i}\nv_and_b32 v{GG + 2 * i + 1}, 0xffff0000, v{XP + i}")
        for i in range(8):
            s = SG + 4 * (i // 4) + 2
            a(f"v_pk_mul_f32 v[{GG + 2 * i}:{GG + 2 * i + 1}], v[{GG + 2 * i}:{GG + 2 * i + 1}], v[{s}:{s + 1}] op_sel_hi:[1,0]")
        for i in range(8):
            a(f"v_cvt_pk_bf16_f32 v{XP + i}, v{GG + 2 * i}, v{GG + 2 * i + 1}")
        for i in range(8):
            a(f"v_lshlrev_b32 v{GG + 2 * i}, 16, v{XP + i}\nv_and_b32 v{GG + 2 * i + 1}, 0xffff0000, v{XP + i}")
        a("s_mov_b32 s54, 0xbfb8aa3b\ns_mov_b32 s56, 1.0")
        for i in range(8):
            a(f"v_pk_mul_f32 v[{AC + 2 * i}:{AC + 2 * i + 1}], v[{GG + 2 * i}:{GG + 2 * i + 1}], s[54:55] op_sel_hi:[1,0]")
        for i in range(16):
            a(f"v_exp_f32 v{AC + i}, v{AC + i}")
        for i in range(8):
            a(f"v_pk_add_f32 v[{AC + 2 * i}:{AC + 2 * i + 1}], v[{AC + 2 * i}:{AC + 2 * i + 1}], s[56:57] op_sel_hi:[1,0]")
        for i in range(16):
            a(f"v_rcp_f32 v{AC + i}, v{AC + i}")
        for i in range(8):
            a(f"v_pk_mul_f32 v[{GG + 2 * i}:{GG + 2 * i + 1}], v[{GG + 2 * i}:{GG + 2 * i + 1}], v[{AC + 2 * i}:{AC + 2 * i + 1}]")
        self.stamp(9)
        a("s_cmp_lg_u32 s30, 7\ns_cbranch_scc1 L_no_idx")
        self.gran_poll("di", AC, 5)
        self.gran_stats(AC, 5)
        a(f"v_mov_b32 v6, s34\nv_mov_b32 v7, s33\nv_mov_b32 v5, {L_KEY}\nds_write_b64 v5, v[6:7]")
        a("L_no_idx:")
        a(f"s_lshl_b32 s31, s46, 14\ns_add_u32 s31, s31, {ZF}\ns_lshl_b32 s32, s30, 10\ns_add_u32 s32, s32, s31\ns_add_u32 s31, s31, {128 * 64}")
        a(f"v_lshlrev_b32 v5, 6, v2\nv_add_u32 v5, s32, v5\nv_mov_b32 v6, s31\nv_cmp_gt_u32 vcc, 16, v2\nv_cndmask_b32 v5, v6, v5, vcc")
        a(f"s_mov_b32 s31, {ZF + 4 * 16384}\nv_writelane_b32 v5, s31, 17\ns_mov_b32 s31, {ZF + 4 * 16384 + 128 * 64}\nv_writelane_b32 v5, s31, 18")
        a(f"s_lshl_b32 s31, s46, 5\ns_add_u32 s31, s31, s47\ns_mul_i32 s31, s31, {ZTS}\ns_add_u32 s49, s31, {ZB}\ns_lshl_b32 s32, s30, 11\ns_add_u32 s50, s49, s32\ns_add_u32 s49, s49, 16384")
        a("s_mov_b32 m0, s32")
        a("L_zf_poll:")
        a("buffer_load_dwordx2 v[6:7], v5, s[12:15], 0 offen sc1")
        a("s_waitcnt vmcnt(0)")
        a("v_cmp_ne_u64 vcc, s[28:29], v[6:7]\ns_cbranch_vccz L_zf_got")
        self.spin_check("L_zf_poll", "L_zf_got")
        a("L_zf_got:")
        a(f"buffer_load_dwordx4 v{VOFF}, s[12:15], s50 offen sc1 lds")
        a(f"buffer_load_dwordx4 v{VOFF}, s[12:15], s50 offen offset:1024 sc1 lds")
        a("s_cmp_lg_u32 s30, 0\ns_cbranch_scc1 L_no_nyq")
        a("s_mov_b32 m0, 16384\ns_mov_b64 exec, 0xff")
        a(f"buffer_load_dwordx4 v{VOFF}, s[12:15], s49 offen sc1 lds")
        a("s_mov_b64 exec, -1")
        a("L_no_nyq:")
        self.stamp(10)
        a("v_lshrrev_b32 v5, 5, v2\nv_lshlrev_b32 v5, 10, v5\nv_bfe_u32 v6, v2, 3, 2\nv_lshl_add_u32 v5, v6, 7, v5")
        a("v_bfe_u32 v6, v2, 2, 1\nv_lshl_add_u32 v5, v6, 3, v5\nv_and_b32 v7, 3, v2\nv_lshl_add_u32 v5, v7, 5, v5")
        a("v_and_b32 v6, 16, v2\nv_add_u32 v5, v5, v6\nv_xor_b32 v6, 16, v5")
        a("v_lshrrev_b32 v8, 2, v2\nv_cmp_eq_u32 vcc, 1, v8\nv_add_u32 v7, 16376, v5\nv_add_u32 v8, 16376, v6")
        a("v_cndmask_b32 v7, v5, v7, vcc\nv_cndmask_b32 v8, v6, v8, vcc")
        a("s_waitcnt vmcnt(0) lgkmcnt(0)\ns_barrier")
        self.stamp(11)
        a(f"v_mov_b32 v9, {L_KEY}\nds_read_b64 v[10:11], v9")

        def rd(ks):
            b = AF + 8 * (ks % 2)
            for mb in range(2):
                for v in range(2):
                    ad = (7 if ks == 0 and v == 0 else 5) + mb
                    a(f"ds_read_b64_tr_b16 v[{b + 4 * mb + 2 * v}:{b + 4 * mb + 2 * v + 1}], v{ad} offset:{2048 * ks + 512 * v}")

        rd(0)
        rd(1)
        for ks in range(8):
            b = AF + 8 * (ks % 2)
            for mb in range(2):
                left = (4 if ks < 7 else 0) + (2 if mb == 0 else 0)
                a(f"s_waitcnt lgkmcnt({left})")
                d = AC + 8 * (ks // 4) + 4 * mb
                c = "0" if ks % 4 == 0 else f"v[{d}:{d + 3}]"
                a(f"v_mfma_f32_16x16x32_f16 v[{d}:{d + 3}], v[{b + 4 * mb}:{b + 4 * mb + 3}], v[{MM + 4 * ks}:{MM + 4 * ks + 3}], {c}")
            if ks + 2 < 8:
                rd(ks + 2)
        a("v_readfirstlane_b32 s33, v11\nv_readfirstlane_b32 s34, v10")
        a("s_andn2_b32 s51, 0x7ff, s33\ns_and_b32 s31, s51, 7\ns_cmp_eq_u32 s31, s46\ns_cselect_b32 s52, 1, 0")
        YL = MM
        a("s_cbranch_scc0 L_not_owner1")
        a(f"v_lshrrev_b32 v5, 3, v2\ns_lshl_b32 s31, s30, 5\nv_add_u32 v5, s31, v5\nv_mul_u32_u24 v5, {MPS}, v5\nv_and_b32 v6, 7, v2\nv_lshlrev_b32 v6, 4, v6")
        a(f"s_lshl_b32 s31, s47, 7\ns_add_u32 s31, s31, {MP}\ns_cmp_eq_u32 s30, 7\ns_cselect_b32 s31, {OOB}, s31\nv_add3_u32 v5, v5, v6, s31")
        for j in range(1, 4):
            a(f"s_mov_b32 s{59 + j}, {8 * j * MPS}")
        a("s_lshl_b32 s31, s51, 11\ns_lshl_b32 s32, s47, 6\ns_add_u32 s53, s31, s32\nv_and_b32 v12, 31, v2\nv_lshlrev_b32 v12, 1, v12")
        a("buffer_load_ushort v13, v12, s[8:11], s53 offen")
        for j in range(4):
            so = "0" if j == 0 else f"s{59 + j}"
            a(f"buffer_load_dwordx4 v[{YL + 4 * j}:{YL + 4 * j + 3}], v5, s[12:15], {so} offen sc1")
        a("L_not_owner1:")
        SA = AF
        for i in range(4):
            e, o = AC + 2 * i, AC + 8 + 2 * i
            a(f"v_pk_add_f32 v[{SA + 2 * i}:{SA + 2 * i + 1}], v[{e}:{e + 1}], v[{o}:{o + 1}]")
            a(f"v_pk_add_f32 v[{SA + 8 + 2 * i}:{SA + 9 + 2 * i}], v[{e}:{e + 1}], v[{o}:{o + 1}] neg_lo:[0,1] neg_hi:[0,1]")
        a(f"v_cmp_ne_u32 s[54:55], s51, v{VT}\ns_sub_u32 s31, s51, 1024\nv_cmp_ne_u32 s[56:57], s31, v{VT}")
        for h in range(2):
            for i in range(4):
                k = 8 * h + 2 * i
                a(f"v_pk_fma_f32 v[{XF + k}:{XF + k + 1}], v[{SA + k}:{SA + k + 1}], v[{GG + k}:{GG + k + 1}], v[{XF + k}:{XF + k + 1}]")
            for i in range(4):
                k = 8 * h + 2 * i
                a(f"v_cvt_pk_bf16_f32 v{SG + 4 * h + i}, v{XF + k}, v{XF + k + 1}")
            a(f"s_mov_b64 exec, s[{54 + 2 * h}:{55 + 2 * h}]")
            so = "0" if h == 0 else "s48"
            a(f"buffer_store_dwordx4 v[{SG + 4 * h}:{SG + 4 * h + 3}], v{VX}, s[16:19], {so} offen {self.oflag}")
            a("s_mov_b64 exec, -1")
        self.stamp(12)
        a("s_cmp_eq_u32 s52, 0\ns_cbranch_scc1 L_fin")
        a(f"v_and_b32 v6, 48, v2\nv_lshlrev_b32 v6, 1, v6")
        for h in range(2):
            a(f"s_not_b64 exec, s[{54 + 2 * h}:{55 + 2 * h}]")
            a(f"ds_write_b128 v6, v[{SA + 8 * h}:{SA + 8 * h + 3}] offset:{L_ROW}\nds_write_b128 v6, v[{SA + 8 * h + 4}:{SA + 8 * h + 7}] offset:{L_ROW + 16}")
        a("s_mov_b64 exec, -1")
        a("s_waitcnt vmcnt(2)")
        a("s_cmp_eq_u32 s30, 7\ns_cbranch_scc1 L_row_prep")
        a("L_y_check:")
        a(f"v_max3_u32 v6, v{YL}, v{YL + 1}, v{YL + 2}")
        for i in range(3, 15, 2):
            a(f"v_max3_u32 v6, v6, v{YL + i}, v{YL + i + 1}")
        a(f"v_max_u32 v6, v6, v{YL + 15}\nv_cmp_eq_u32 vcc, -1, v6\ns_cbranch_vccz L_y_got")
        a("s_cmp_eq_u32 s35, 0\ns_cbranch_scc1 L_y_got\ns_sub_u32 s35, s35, 1")
        for j in range(4):
            so = "0" if j == 0 else f"s{59 + j}"
            a(f"buffer_load_dwordx4 v[{YL + 4 * j}:{YL + 4 * j + 3}], v5, s[12:15], {so} offen sc1")
        a("s_waitcnt vmcnt(0)\ns_branch L_y_check")
        a("L_y_got:")
        for p in (0, 2):
            a(f"v_pk_add_f32 v[{YL + p}:{YL + p + 1}], v[{YL + p}:{YL + p + 1}], v[{YL + 4 + p}:{YL + 5 + p}]")
            a(f"v_pk_add_f32 v[{YL + 8 + p}:{YL + 9 + p}], v[{YL + 8 + p}:{YL + 9 + p}], v[{YL + 12 + p}:{YL + 13 + p}]")
        for p in (0, 2):
            a(f"v_pk_add_f32 v[{YL + p}:{YL + p + 1}], v[{YL + p}:{YL + p + 1}], v[{YL + 8 + p}:{YL + 9 + p}]")
        a(f"v_and_b32 v6, 7, v2\nv_lshlrev_b32 v6, 4, v6\nv_lshrrev_b32 v7, 4, v2\nv_lshl_add_u32 v6, v7, 2, v6\ns_lshl_b32 s31, s30, 7\nv_add_u32 v6, s31, v6")
        a(f"v_permlane16_swap_b32 v{YL}, v{YL + 1}\nv_permlane16_swap_b32 v{YL + 2}, v{YL + 3}")
        a(f"v_add_f32 v{YL}, v{YL}, v{YL + 1}\nv_add_f32 v{YL + 2}, v{YL + 2}, v{YL + 3}")
        a(f"v_permlane32_swap_b32 v{YL}, v{YL + 2}\nv_add_f32 v{YL}, v{YL}, v{YL + 2}")
        a(f"v_add_f32_dpp v{YL}, v{YL}, v{YL} row_ror:8 row_mask:0xf bank_mask:0xf")
        a(f"ds_write_b32 v6, v{YL} offset:{L_YS}")
        a("s_waitcnt lgkmcnt(0)\ns_barrier")
        self.stamp(13)
        a("s_branch L_fin")
        a("L_row_prep:")
        a("s_lshl_b32 s31, s34, 16\ns_and_b32 s32, s34, 0xffff0000\nv_rcp_f32 v14, s32\nv_lshlrev_b32 v13, 16, v13\nv_subrev_f32 v15, s31, v13")
        a("v_cvt_pk_bf16_f32 v15, v15, v15\nv_lshlrev_b32 v15, 16, v15\nv_mul_f32 v15, v15, v14\nv_cvt_pk_bf16_f32 v15, v15, v15\nv_lshlrev_b32 v15, 16, v15")
        a("s_ashr_i32 s31, s33, 31\ns_orn2_b32 s31, 0x80000000, s31\ns_xor_b32 s31, s31, s33\ns_and_b32 s31, s31, 0xfffff800")
        a("v_cvt_pk_bf16_f32 v14, s31, s31\nv_lshlrev_b32 v14, 16, v14\nv_mul_f32 v14, 0xbfb8aa3b, v14\nv_exp_f32 v14, v14\nv_add_f32 v14, 1.0, v14\nv_rcp_f32 v14, v14")
        a("v_cvt_pk_bf16_f32 v14, v14, v14\nv_lshlrev_b32 v14, 16, v14\nv_lshlrev_b32 v6, 1, v12")
        a("s_waitcnt lgkmcnt(0)\ns_barrier")
        for j in range(7):
            a(f"ds_read_b32 v{YL + j}, v6 offset:{L_YS + 128 * j}")
        a(f"ds_read_b32 v{YL + 7}, v6 offset:{L_ROW}")
        a("s_waitcnt lgkmcnt(0)")
        a(f"v_add_f32 v{YL}, v{YL}, v{YL + 1}\nv_add_f32 v{YL + 2}, v{YL + 2}, v{YL + 3}\nv_add_f32 v{YL + 4}, v{YL + 4}, v{YL + 5}")
        a(f"v_add_f32 v{YL}, v{YL}, v{YL + 6}\nv_add_f32 v{YL + 2}, v{YL + 2}, v{YL + 4}\nv_add_f32 v{YL}, v{YL}, v{YL + 2}")
        y = YL
        a(f"v_cvt_pk_bf16_f32 v{y}, v{y}, v{y}\nv_lshlrev_b32 v{y}, 16, v{y}\nv_mul_f32 v{y}, v{y}, v14")
        a(f"v_cvt_pk_bf16_f32 v{y}, v{y}, v{y}\nv_lshlrev_b32 v{y}, 16, v{y}\nv_add_f32 v{y}, v{y}, v15")
        a(f"v_cvt_pk_bf16_f32 v{y}, v{y}, v{y}\nv_lshlrev_b32 v{y}, 16, v{y}\nv_mul_f32 v14, 0xbfb8aa3b, v{y}")
        a(f"v_exp_f32 v14, v14\nv_add_f32 v14, 1.0, v14\nv_rcp_f32 v14, v14\nv_mul_f32 v{y}, v{y}, v14")
        a(f"v_fma_f32 v{y}, v{y}, v{YL + 7}, v13\nv_cvt_pk_bf16_f32 v{y}, v{y}, v{y}")
        a("s_mov_b32 exec_hi, 0")
        a(f"buffer_store_short v{y}, v12, s[16:19], s53 offen {self.oflag}")
        a("s_mov_b64 exec, -1")
        a(f"s_cmp_eq_u32 s47, 0\ns_cselect_b32 s31, {EPOCH}, {OOB}\nv_mov_b32 v5, {OOB}\nv_writelane_b32 v5, s31, 0\nv_mov_b32 v6, s28\nv_mov_b32 v7, s29")
        a("buffer_store_dwordx2 v[6:7], v5, s[12:15], 0 offen sc1")
        self.stamp(13)
        a("s_branch L_fin")

    def moe(self):
        a = self.a
        a("L_moe:")
        a("s_cmp_ge_u32 s30, 6\ns_cbranch_scc1 L_exit")
        a("s_and_b32 s32, s31, 7\ns_mul_i32 s32, s32, 7\ns_lshr_b32 s46, s31, 5\ns_add_u32 s46, s46, s32\ns_bfe_u32 s47, s31, 0x20003\ns_lshl_b32 s48, s46, 2\ns_add_u32 s48, s48, s47")
        a("s_cmp_eq_u32 s30, 4\ns_cbranch_scc1 L_h1\ns_cmp_eq_u32 s30, 5\ns_cbranch_scc1 L_h2")
        for d in (16, 20, 24):
            a(f"s_mov_b32 s{d + 2}, {WBYTES}\ns_mov_b32 s{d + 3}, 0x00020000")
        a("s_lshl_b32 s31, s47, 8\ns_lshl_b32 s32, s30, 6\ns_add_u32 s31, s31, s32\nv_and_b32 v3, 48, v2\nv_add_u32 v3, s31, v3\nv_mul_u32_u24 v3, 7168, v3")
        a("v_and_b32 v4, 15, v2\nv_lshlrev_b32 v4, 3, v4\ns_lshl_b32 s31, s46, 7\nv_add3_u32 v3, v3, v4, s31")
        a("s_lshl_b32 s31, s48, 15\ns_lshl_b32 s32, s30, 9\ns_add_u32 s31, s31, s32\nv_lshl_add_u32 v4, v2, 3, s31")
        a("s_mov_b32 s50, 0x05040100\ns_mov_b32 s51, 0x07060302")
        a("s_waitcnt lgkmcnt(0)")
        self.base_srds()
        a("s_mov_b32 s16, s38\ns_mov_b32 s17, s39\ns_mov_b32 s20, s40\ns_mov_b32 s21, s41\ns_mov_b32 s24, s42\ns_mov_b32 s25, s43")
        W0 = 24
        loads = []
        for j in range(16):
            loads.append(("g", j))
            loads.append(("u", j))
        for j in range(16):
            loads.append(("d", j))
        reg = {l: W0 + 2 * n for n, l in enumerate(loads)}
        pair = {}
        free = [8]

        def perm(kind, j):
            for d in range(2):
                r0, r1 = reg[(kind, j)] + d, reg[(kind, j + 1)] + d
                t = free.pop()
                a(f"v_perm_b32 v{t}, v{r1}, v{r0}, s50\nv_perm_b32 v{r1}, v{r1}, v{r0}, s51")
                pair[(kind, j // 2, 2 * d)] = t
                pair[(kind, j // 2, 2 * d + 1)] = r1
                free.append(r0)

        def issue(n):
            kind, j = loads[n]
            r = reg[loads[n]]
            if kind == "g":
                a(f"s_mov_b32 s49, {7168 * j}")
            if kind == "d" and j % 2 == 0:
                a(f"s_mov_b32 s49, {2048 * j}")
            srd = {"g": "s[16:19]", "u": "s[20:23]", "d": "s[24:27]"}[kind]
            off = " offset:2048" if kind == "d" and j % 2 else ""
            a(f"buffer_load_dwordx2 v[{r}:{r + 1}], v{4 if kind == 'd' else 3}, {srd}, s49 offen{off} {self.wflag}")

        Wn = self.window
        done = 0

        def retire(upto):
            nonlocal done
            while done < upto:
                kind, j = loads[done]
                if j % 2 == 1:
                    perm(kind, j - 1)
                done += 1

        n = 0
        while n < 48:
            if done >= 32 or n < Wn:
                issue(n)
                n += 1
                continue
            a(f"s_waitcnt vmcnt({Wn - 2})")
            issue(n)
            issue(n + 1)
            n += 2
            retire(n - Wn)
        if done < 32:
            a("s_waitcnt vmcnt(16)")
            retire(32)
        XS, AC = 120, 10
        for i in range(8):
            a(f"v_mov_b32 v{AC + i}, 0")
        a("s_lshl_b32 s31, s30, 7\nv_and_b32 v5, 48, v2\nv_lshl_add_u32 v5, v5, 1, s31")
        a("v_and_b32 v6, 15, v2\nv_lshrrev_b32 v7, 4, v2\nv_lshlrev_b32 v6, 5, v6\nv_lshl_add_u32 v6, v7, 3, v6\ns_lshl_b32 s31, s30, 9\nv_add_u32 v6, s31, v6")
        self.stamp(1)
        a("s_barrier")
        self.stamp(2)
        a(f"ds_read_b128 v[{XS}:{XS + 3}], v5 offset:{M_XS}\nds_read_b128 v[{XS + 4}:{XS + 7}], v5 offset:{M_XS + 16}")
        for p in range(8):
            if p % 4 == 0:
                a(f"s_waitcnt lgkmcnt({1 - p // 4})")
            for kind, base in (("g", AC), ("u", AC + 4)):
                for c in range(4):
                    a(f"v_dot2c_f32_bf16 v{base + c}, v{XS + p}, v{pair[(kind, p, c)]}")
        for c in (0, 2, 4, 6):
            a(f"v_permlane16_swap_b32 v{AC + c}, v{AC + c + 1}")
        for c in (0, 2, 4, 6):
            a(f"v_add_f32 v{AC + c}, v{AC + c}, v{AC + c + 1}")
        a(f"v_permlane32_swap_b32 v{AC}, v{AC + 2}\nv_permlane32_swap_b32 v{AC + 4}, v{AC + 6}")
        a(f"v_add_f32 v{AC}, v{AC}, v{AC + 2}\nv_add_f32 v{AC + 1}, v{AC + 4}, v{AC + 6}")
        a(f"ds_write_b64 v6, v[{AC}:{AC + 1}] offset:{M_PART}")
        a("s_waitcnt lgkmcnt(0)\ns_barrier")
        self.stamp(3)
        YA = 12
        a(f"s_mul_i32 s31, s48, {MPS}\ns_lshl_b32 s32, s30, 10\ns_add_u32 s31, s31, s32\ns_add_u32 s31, s31, {MP}\nv_lshl_add_u32 v5, v2, 4, s31\nv_mov_b32 v6, 0")
        for i in range(4):
            a(f"v_mov_b32 v{YA + i}, 0")
        while done < 48:
            a(f"s_waitcnt vmcnt({48 - done - 2})")
            retire(done + 2)
        self.stamp(4)
        a("s_barrier")
        self.stamp(5)
        a(f"ds_read_b128 v[{XS}:{XS + 3}], v6 offset:{M_HS}\nds_read_b128 v[{XS + 4}:{XS + 7}], v6 offset:{M_HS + 16}")
        for p in range(8):
            if p % 4 == 0:
                a(f"s_waitcnt lgkmcnt({1 - p // 4})")
            for c in range(4):
                a(f"v_dot2c_f32_bf16 v{YA + c}, v{XS + p}, v{pair[('d', p, c)]}")
        a(f"buffer_store_dwordx4 v[{YA}:{YA + 3}], v5, s[12:15], 0 offen sc1")
        self.stamp(6)
        a("s_branch L_fin")

        a("L_h1:")
        a("s_waitcnt lgkmcnt(0)")
        self.base_srds()
        a(f"s_load_dwordx2 s[28:29], s[6:7], {EPOCH}")
        a("s_lshl_b32 s31, s47, 9\nv_lshlrev_b32 v3, 3, v2\nv_add_u32 v4, s31, v3")
        a(f"v_lshrrev_b32 v9, 4, v2\nv_mul_u32_u24 v9, {MPS}, v9\nv_and_b32 v10, 15, v2\nv_lshl_add_u32 v9, v10, 3, v9")
        a(f"s_mul_i32 s31, s46, {4 * MPS}\ns_lshl_b32 s32, s47, 7\ns_add_u32 s31, s31, s32\ns_add_u32 s31, s31, {MP + 4096}\nv_add_u32 v9, s31, v9")
        a("s_waitcnt lgkmcnt(0)")
        self.tag_from_epoch()
        self.gran_poll("mi", 16, 5)
        a("s_andn2_b32 s51, 0x7ff, s33\ns_lshl_b32 s51, s51, 11")
        a("buffer_load_dwordx2 v[10:11], v4, s[8:11], s51 offen")
        self.stamp(1)
        self.gran_stats(16, 5)
        a("s_lshl_b32 s62, s34, 16\ns_and_b32 s32, s34, 0xffff0000\nv_rcp_f32 v16, s32")
        a("s_waitcnt vmcnt(0)")
        a("v_lshlrev_b32 v12, 16, v10\nv_and_b32 v13, 0xffff0000, v10\nv_lshlrev_b32 v14, 16, v11\nv_and_b32 v15, 0xffff0000, v11")
        for p in (12, 14):
            a(f"v_pk_add_f32 v[{p}:{p + 1}], v[{p}:{p + 1}], s[62:63] op_sel_hi:[1,0] neg_lo:[0,1] neg_hi:[0,1]")
        a("v_cvt_pk_bf16_f32 v10, v12, v13\nv_cvt_pk_bf16_f32 v11, v14, v15")
        a("v_lshlrev_b32 v12, 16, v10\nv_and_b32 v13, 0xffff0000, v10\nv_lshlrev_b32 v14, 16, v11\nv_and_b32 v15, 0xffff0000, v11")
        for p in (12, 14):
            a(f"v_pk_mul_f32 v[{p}:{p + 1}], v[{p}:{p + 1}], v[16:17] op_sel_hi:[1,0]")
        a("v_cvt_pk_bf16_f32 v10, v12, v13\nv_cvt_pk_bf16_f32 v11, v14, v15")
        a(f"ds_write_b64 v3, v[10:11] offset:{M_XS}")
        a("s_waitcnt lgkmcnt(0)")
        self.stamp(2)
        a("s_barrier\ns_barrier")
        for w in range(4):
            a(f"ds_read_b64 v[{10 + 2 * w}:{11 + 2 * w}], v3 offset:{M_PART + 512 * w}")
        a("s_waitcnt lgkmcnt(0)")
        a("v_pk_add_f32 v[10:11], v[10:11], v[12:13]\nv_pk_add_f32 v[14:15], v[14:15], v[16:17]\nv_pk_add_f32 v[10:11], v[10:11], v[14:15]")
        a("buffer_store_dwordx2 v[10:11], v9, s[12:15], 0 offen sc1")
        self.stamp(3)
        a("s_barrier")
        a("s_branch L_fin")

        a("L_h2:")
        a("s_waitcnt lgkmcnt(0)")
        self.base_srds()
        a(f"s_mul_i32 s31, s48, {MPS}\ns_add_u32 s31, s31, {MP + 4096}\nv_lshl_add_u32 v3, v2, 3, s31\nv_and_b32 v4, 15, v2\nv_lshlrev_b32 v4, 1, v4")
        a("s_barrier\ns_barrier")
        a("L_hp_poll:")
        a("buffer_load_dwordx2 v[10:11], v3, s[12:15], 0 offen sc1")
        a("s_waitcnt vmcnt(0)")
        a("v_max_u32 v12, v10, v11\nv_cmp_eq_u32 vcc, -1, v12\ns_cbranch_vccz L_hp_got")
        self.spin_check("L_hp_poll", "L_hp_got")
        a("L_hp_got:")
        self.stamp(4)
        a("v_permlane16_swap_b32 v10, v11\nv_add_f32 v10, v10, v11\nv_mov_b32 v11, v10\nv_permlane32_swap_b32 v10, v11\nv_add_f32 v10, v10, v11")
        a("v_mov_b32 v11, v10\nv_permlane16_swap_b32 v10, v11\nv_cvt_pk_bf16_f32 v10, v10, v11\nv_and_b32 v11, 0xffff0000, v10\nv_lshlrev_b32 v10, 16, v10")
        a("v_mul_f32 v12, 0xbfb8aa3b, v10\nv_exp_f32 v12, v12\nv_add_f32 v12, 1.0, v12\nv_rcp_f32 v12, v12\nv_mul_f32 v10, v10, v12")
        a("v_cvt_pk_bf16_f32 v10, v10, v10\nv_lshlrev_b32 v10, 16, v10\nv_mul_f32 v10, v10, v11\nv_cvt_pk_bf16_f32 v10, v10, v10")
        a(f"ds_write_b16 v4, v10 offset:{M_HS}")
        a("s_waitcnt lgkmcnt(0)\ns_barrier")
        self.stamp(5)

    def finish(self):
        a = self.a
        a("L_fin:")
        if self.stamps:
            a("s_waitcnt vmcnt(0)")
            self.stamp(15)
            a(f"s_lshl_b32 s31, s2, 3\ns_add_u32 s31, s31, s30\ns_lshl_b32 s31, s31, 6\ns_add_u32 s31, s31, {STAMP}\nv_mov_b32 v4, {OOB}\nv_writelane_b32 v4, s31, 0")
            for q in range(4):
                for i in range(4):
                    a(f"v_mov_b32 v{8 + i}, s{68 + 2 * (4 * q + i)}")
                a(f"buffer_store_dwordx4 v[8:11], v4, s[12:15], 0 offen offset:{16 * q}")
        a("L_exit:")
        a("s_endpgm")
        a.kernel_desc(NAME + "_kernel", 128, 102 if self.stamps else 72)
        a.add_launch(NAME + "_kernel", NWG, 512, LDS_BYTES)

    def build(self, path, verbose=False):
        self.prologue()
        self.dft()
        self.moe()
        self.finish()
        rep = []
        self.a.lines = hazard.fix(self.a.lines, rep)
        if verbose:
            for pad, s in rep:
                print("nop", pad, s)
        self.a.write(path, HEADER)


if __name__ == "__main__":
    import argparse
    ap = argparse.ArgumentParser()
    ap.add_argument("out")
    ap.add_argument("--stamps", action="store_true")
    ap.add_argument("-v", action="store_true")
    ap.add_argument("--wflag", default="nt")
    ap.add_argument("--xflag", default="")
    ap.add_argument("--oflag", default="sc1")
    ap.add_argument("--window", type=int, default=8)
    o = ap.parse_args()
    Gen(o.stamps, o.wflag, o.xflag, o.window, o.oflag).build(o.out, o.v)
```

```python
import struct
import sys

sys.path.insert(0, "tools")
from asmgen import Asm, NAME
import hazard

EPOCH = 0
GRAN = 0x1000
STAT = 0x8000
HP = 0x40000
YP = 0x80000
ZB = 0x200000
ZTS = 129 * 128
STAMP = 0x1000000
OOB = 0x7FFFFF00
WBYTES = 1024 * 3584 * 2
ZMASK = 0x00030003
FMASK = 0x000000FF

RS, QS = 2592, 640
MISC = 16 * RS
EX = MISC + 1536
L_ENT = MISC
L_KEY = MISC + 80
L_MEAN = MISC + 96
L_YS = MISC + 128
L_ROW = MISC + 1024
L_RST = MISC + 1280
L_CNT = MISC + 1344
M_XS = MISC + 640
M_HS = MISC + 896
M_G = EX + 32768
M_U = M_G + 32768
LDS_BYTES = M_U + 32768
C_A, C_B, C_C, C_ST3, C_D, C_ROW, C_S1, C_S2, C_HP, C_H, C_Y, C_S0 = range(12)
REL = {"s0": (C_S0, 1), "s1": (C_S1, 1), "s2": (C_S2, 4), "hp": (C_HP, 4), "h": (C_H, 4), "y": (C_Y, 4)}

SPIN = 1 << 16
NWG = 256
WAVES = 8

HEADER = """; Fused kernel: LayerNorm, Re(2-D DFT) as a folded mixed-radix transform on MFMA, routed-token SwiGLU, gating.
; Waves 0..3 of a workgroup run the transform, waves 4..7 the routed-token path."""

SHR = ("row_shr:1", "row_shr:2", "row_shr:4", "row_shr:8")


def fbits(x):
    return struct.unpack("<I", struct.pack("<f", float(x)))[0]


class Gen:
    def __init__(self, stamps=False, probe=None, diag=None, wflag="", oflag="sc1", prefetch=True, prio=True, psleep=2,
                 win=3, n3=8, win3=3, h1wait=2, hpearly=None, dfirst=4, gate3=True, rel_zw="s0", rel_x="hp", rel_zr="h", zdelay=2, d1=0, d2=2, dwait=2, gate=C_ST3):
        self.a = Asm()
        self.role = "all"
        self.nsync = 0
        self.__dict__.update(stamps=stamps, probe=probe, diag=diag, wflag=wflag, oflag=oflag, prefetch=prefetch, prio=prio,
                             psleep=psleep, win=win, n3=n3, win3=win3, h1wait=h1wait, hpearly=hpearly, dfirst=dfirst, gate3=gate3,
                             rel_zw=rel_zw, rel_x=rel_x, rel_zr=rel_zr, zdelay=zdelay, d1=d1, d2=d2, dwait=dwait, gate=gate)

    def arrive(self, c):
        self.a(f"s_mov_b64 exec, 1\nds_add_u32 v0, v255 offset:{L_CNT + 4 * c}\ns_mov_b64 exec, -1")

    def wait(self, c, n):
        self.nsync += 1
        lb = f"L_sync{self.nsync}"
        self.a(f"{lb}:\nds_read_b32 v1, v0 offset:{L_CNT + 4 * c}\ns_waitcnt lgkmcnt(0)\nv_readfirstlane_b32 s31, v1\ns_cmp_ge_u32 s31, {n}\ns_cbranch_scc0 {lb}")

    def sync(self, c, n=4):
        self.arrive(c)
        self.wait(c, n)

    def release(self, name):
        if name:
            self.wait(*REL[name])

    def stamp(self, i):
        if self.probe == (self.role, i):
            self.a("s_memrealtime s[68:69]\ns_waitcnt lgkmcnt(0)")
        if self.stamps:
            self.a(f"s_memrealtime s[70:71]\ns_waitcnt lgkmcnt(0)\nv_writelane_b32 v211, s70, {i}")

    def spin_guard(self, out):
        self.a(f"s_cmp_eq_u32 s35, 0\ns_cbranch_scc1 {out}\ns_sub_u32 s35, s35, 1")
        if self.psleep:
            self.a(f"s_sleep {self.psleep}")

    def setprio(self, p):
        if self.prio:
            self.a(f"s_setprio {p}")

    def mfma(self, ty, d, A, B, c=None):
        c = "0" if c is None else f"v[{c}:{c + 3}]"
        self.a(f"v_mfma_f32_16x16x32_{ty} v[{d}:{d + 3}], v[{A}:{A + 3}], v[{B}:{B + 3}], {c}")

    def prologue(self):
        a = self.a
        a.begin(NAME + "_kernel")
        a(f"s_cmp_ge_u32 s2, {NWG}\ns_cbranch_scc1 L_exit")
        a("s_load_dwordx2 s[4:5], s[0:1], 0")
        a("s_load_dwordx2 s[6:7], s[0:1], 96")
        a("s_load_dwordx8 s[36:43], s[0:1], 48")
        a("s_load_dwordx2 s[44:45], s[0:1], 80")
        if self.stamps:
            a("s_memrealtime s[68:69]")
            a("v_mov_b32 v211, 0")
        if self.probe:
            a("s_mov_b32 s68, 0")
            if self.probe == ("all", 0):
                a("s_memrealtime s[68:69]")
        if self.prefetch:
            a("s_getpc_b64 s[32:33]\nL_pc:\ns_bfe_u32 s31, s2, 0x30003\nv_subrev_u32 v3, 496, v0\nv_lshl_add_u32 v3, v3, 3, s31\nv_lshlrev_b32 v3, 7, v3")
            a("v_cmp_gt_u32 vcc, L_code_end-L_pc, v3\ns_and_saveexec_b64 s[46:47], vcc\ns_cbranch_execz L_nopf")
            a("global_load_dword v254, v3, s[32:33]")
            a("L_nopf:\ns_mov_b64 exec, -1")
        a("v_lshrrev_b32 v1, 6, v0\nv_and_b32 v2, 63, v0")
        a("v_readfirstlane_b32 s30, v1")
        a("s_mov_b32 s10, 0x400000\ns_mov_b32 s11, 0x00020000\ns_mov_b32 s14, 0x10000000\ns_mov_b32 s15, 0x00020000")
        a(f"s_mov_b32 s35, {SPIN}\nv_lshlrev_b32 v3, 4, v2")
        a("v_mov_b32 v0, 0\nv_mov_b32 v255, 1\ns_mov_b32 s3, s30\ns_and_b32 s30, s30, 3")
        a("s_cmp_ge_u32 s3, 4\ns_cbranch_scc1 L_moe")

    def base_srds(self):
        self.a("s_mov_b32 s8, s4\ns_mov_b32 s9, s5\ns_mov_b32 s12, s6\ns_mov_b32 s13, s7")

    def tag_from_epoch(self):
        self.a("s_add_u32 s28, s28, 0x7f4a7c15\ns_addc_u32 s29, s29, 0x9e3779b9")

    def gran_issue(self, g):
        for j in range(4):
            self.a(f"buffer_load_dwordx4 v[{g + 4 * j}:{g + 4 * j + 3}], v3, s[12:15], s63 offen offset:{1024 * j} sc1")

    def gran_resolve(self, name, g, k):
        a = self.a
        a(f"L_{name}_check:")
        for j in range(4):
            a(f"v_cmp_ne_u64 s[{52 + 2 * j}:{53 + 2 * j}], s[28:29], v[{g + 4 * j + 2}:{g + 4 * j + 3}]")
        a(f"v_max_u32 v{k}, v{g + 1}, v{g + 5}\nv_max3_u32 v{k}, v{k}, v{g + 9}, v{g + 13}")
        a("s_or_b64 s[64:65], s[52:53], s[54:55]\ns_or_b64 vcc, s[56:57], s[58:59]\ns_or_b64 s[64:65], s[64:65], vcc")
        a(f"s_cbranch_scc0 L_{name}_got")
        self.spin_guard(f"L_{name}_got")
        for j in range(4):
            a(f"s_mov_b64 exec, s[{52 + 2 * j}:{53 + 2 * j}]\ns_cbranch_execz L_{name}_skip{j}")
            a(f"buffer_load_dwordx4 v[{g + 4 * j}:{g + 4 * j + 3}], v3, s[12:15], s63 offen offset:{1024 * j} sc1")
            a(f"L_{name}_skip{j}:")
        a(f"s_mov_b64 exec, -1\ns_waitcnt vmcnt(0)\ns_branch L_{name}_check")
        a(f"L_{name}_got:")
        a(f"v_max_u32_dpp v{k + 1}, v{k}, v{k} row_ror:1 row_mask:0xf bank_mask:0xf")
        for d in ("row_ror:2", "row_ror:4", "row_ror:8"):
            a(f"v_max_u32_dpp v{k + 1}, v{k + 1}, v{k + 1} {d} row_mask:0xf bank_mask:0xf")
        a(f"v_readlane_b32 s33, v{k + 1}, 0\nv_readlane_b32 s31, v{k + 1}, 16\nv_readlane_b32 s32, v{k + 1}, 32\nv_readlane_b32 s34, v{k + 1}, 48")
        a("s_max_u32 s33, s33, s31\ns_max_u32 s32, s32, s34\ns_max_u32 s33, s33, s32")

    def gran_stats(self, g, k):
        a = self.a
        for j in (1, 2, 3):
            a(f"v_cmp_eq_u32 s[{50 + 2 * j}:{51 + 2 * j}], s33, v{g + 4 * j + 1}")
        a(f"v_cmp_eq_u32 vcc, s33, v{k}")
        a(f"v_cndmask_b32 v{k + 1}, v{g}, v{g + 4}, s[52:53]\nv_cndmask_b32 v{k + 1}, v{k + 1}, v{g + 8}, s[54:55]\nv_cndmask_b32 v{k + 1}, v{k + 1}, v{g + 12}, s[56:57]")
        a("s_ff1_i32_b64 s32, vcc")
        a(f"v_readlane_b32 s34, v{k + 1}, s32")

    def p2_matrix(self, MM, T0, T1, T2):
        a = self.a
        a(f"v_and_b32 v{T0}, 15, v2\ns_lshl_b32 s31, s30, 4\nv_add_u32 v{T0}, s31, v{T0}\nv_cvt_f32_u32 v{T0}, v{T0}\nv_add_f32 v{T0}, 0.5, v{T0}\nv_mul_f32 v{T0}, 0x3b800000, v{T0}")
        a(f"v_and_b32 v{T1}, 32, v2\nv_bfe_u32 v{T2}, v2, 4, 1\nv_lshl_add_u32 v{T1}, v{T2}, 3, v{T1}\nv_cvt_f32_u32 v{T1}, v{T1}\nv_mul_f32 v{T1}, v{T1}, v{T0}")
        for p in range(2):
            for hf in range(2):
                for dw in range(4):
                    c0 = 64 * hf + 16 * (dw // 2) + 4 * (dw % 2) + p
                    dc, ds = MM + 4 * (2 * p + hf) + dw, MM + 16 + 4 * (2 * p + hf) + dw
                    a(f"v_fmamk_f32 v{dc}, v{T0}, {fbits(c0):#x}, v{T1}\nv_fmamk_f32 v{T2}, v{T0}, {fbits(c0 + 2):#x}, v{T1}")
                    a(f"v_sin_f32 v{ds}, v{dc}\nv_sin_f32 v{T2 + 1}, v{T2}\nv_cos_f32 v{dc}, v{dc}\nv_cos_f32 v{T2}, v{T2}")
                    a(f"v_cvt_pk_f16_f32 v{ds}, v{ds}, v{T2 + 1}\nv_cvt_pk_f16_f32 v{dc}, v{dc}, v{T2}")
        a(f"v_cmp_gt_u32 vcc, 16, v2\nv_and_b32 v{T2}, 1, v2\nv_lshlrev_b32 v{T2}, 15, v{T2}\nv_or_b32 v{T2}, 0x3c00, v{T2}\nv_and_b32 v{T0}, 0xffff0000, v{MM + 16}\nv_or_b32 v{T2}, v{T2}, v{T0}")
        a(f"v_cndmask_b32 v{MM + 16}, v{MM + 16}, v{T2}, vcc")

    def sleep(self, n):
        while n > 0:
            self.a(f"s_sleep {min(n, 127)}")
            n -= 127

    def dft(self):
        a = self.a
        self.role = "dft"
        CV, M2, TW, M3, MM = 8, 16, 48, 80, 88
        RW, WR = 120, 152
        T = 160
        VPUB = 4

        a("s_and_b32 s31, s2, 7\ns_lshr_b32 s32, s2, 4\ns_sub_u32 s32, 15, s32\ns_lshl_b32 s32, s32, 3\ns_add_u32 s46, s32, s31\ns_bfe_u32 s47, s2, 0x10003")
        a("s_lshl_b32 s31, s30, 9\ns_add_u32 s52, s31, s46\ns_sub_u32 s54, 2048, s52\ns_add_u32 s31, s52, 128")
        a("s_cmp_eq_u32 s46, 0\ns_cselect_b32 s54, s31, s54\ns_cselect_b32 s50, 1, 0\ns_cselect_b32 s31, 1, -1\ns_lshl_b32 s31, s31, 8")
        a("s_add_u32 s53, s52, 256\ns_add_u32 s55, s54, s31")
        for i in range(4):
            a(f"s_lshl_b32 s{56 + i}, s{52 + i}, 11")
        a("s_mov_b32 s22, 2048\ns_mov_b32 s23, 0x00020000")
        a(f"v_mov_b32 v1, 0\nv_and_b32 v6, 15, v2\nv_lshlrev_b32 v6, 2, v6\nds_write_b64 v0, v[0:1] offset:{L_ENT + 64}\nds_write_b32 v6, v0 offset:{L_CNT}")
        a("s_waitcnt lgkmcnt(0)")
        self.base_srds()
        a("s_mov_b32 s20, s36\ns_mov_b32 s21, s37")
        a(f"buffer_load_dwordx4 v[{WR}:{WR + 3}], v3, s[20:23], 0 offen")
        a(f"buffer_load_dwordx4 v[{WR + 4}:{WR + 7}], v3, s[20:23], 0 offen offset:1024")
        for r in range(4):
            a(f"buffer_load_dwordx4 v[{RW + 8 * r}:{RW + 8 * r + 3}], v3, s[8:11], s{56 + r} offen")
            a(f"buffer_load_dwordx4 v[{RW + 8 * r + 4}:{RW + 8 * r + 7}], v3, s[8:11], s{56 + r} offen offset:1024")
        a("s_barrier")
        if self.diag == "xarr":
            self.stamp(12)
            a("s_waitcnt vmcnt(6)")
            self.stamp(13)
            a("s_waitcnt vmcnt(0)")
            self.stamp(14)
        a(f"s_load_dwordx2 s[28:29], s[6:7], {EPOCH}")
        a("s_mov_b32 s16, s44\ns_mov_b32 s17, s45\ns_mov_b32 s18, 0x400000\ns_mov_b32 s19, 0x00020000")
        a(f"v_mov_b32 v5, {L_ENT + 64}")
        VROW, VEN, VST, VLD, VLM, VTR, VEX, VSG = T + 40, T + 41, T + 42, T + 44, T + 45, T + 46, T + 47, T + 48
        for r in range(4):
            a(f"v_writelane_b32 v{VROW}, s{52 + r}, {16 * r + 15}")
        a(f"v_lshrrev_b32 v{VEN}, 8, v{VROW}\nv_lshlrev_b32 v{VEN}, 3, v{VEN}\nv_sub_u32 v{VROW}, 2047, v{VROW}")
        a(f"v_bfe_u32 v{VST}, v2, 4, 1\nv_lshrrev_b32 v6, 5, v2\nv_lshl_add_u32 v{VST}, v6, 3, v{VST}\ns_lshl_b32 s31, s30, 1\nv_add_u32 v{VST}, s31, v{VST}")
        a(f"v_lshlrev_b32 v{VST + 1}, 2, v{VST}\nv_lshlrev_b32 v{VST}, 1, v{VST}")
        a("s_cmp_eq_u32 s47, 0\ns_cselect_b32 s51, s52, s54\ns_and_b32 s51, s51, 255")
        a(f"s_cmp_eq_u32 s30, 3\ns_cselect_b32 s32, 9, 0\nv_cmp_gt_u32 vcc, s32, v2\ns_lshl_b32 s31, s51, 7\ns_add_u32 s31, s31, {STAT}\nv_add_u32 v{VPUB}, s31, v3")
        a(f"s_lshl_b32 s31, s51, 4\ns_add_u32 s31, s31, {GRAN}\nv_writelane_b32 v{VPUB}, s31, 8\nv_mov_b32 v6, {OOB}\nv_cndmask_b32 v{VPUB}, v6, v{VPUB}, vcc")
        a(f"s_mul_i32 s31, s30, {2 * RS}\nv_and_b32 v{VLD}, 32, v2\nv_lshlrev_b32 v{VLD}, 2, v{VLD}\nv_add3_u32 v{VLD}, v{VLD}, v3, s31")
        a(f"s_lshl_b32 s32, s31, 1\ns_add_u32 s32, s32, {8 * RS + 63 * 16 + 128}\nv_sub_u32 v{VLM}, s32, v{VLD}")
        a(f"v_bfe_u32 v{VTR}, v2, 2, 2\nv_mul_u32_u24 v{VTR}, {RS}, v{VTR}\nv_lshrrev_b32 v6, 4, v2\nv_mul_u32_u24 v7, {QS}, v6\nv_add_u32 v{VTR}, v{VTR}, v7")
        a(f"v_and_b32 v7, 3, v2\nv_lshlrev_b32 v7, 3, v7\ns_lshl_b32 s31, s30, 7\nv_add3_u32 v{VTR}, v{VTR}, v7, s31")
        a(f"v_lshlrev_b32 v6, 12, v6\nv_and_b32 v7, 15, v2\nv_lshl_add_u32 v6, v7, 4, v6\ns_lshl_b32 s31, s30, 8\nv_add_u32 v{VEX}, s31, v6")
        a(f"v_bfe_i32 v{VSG}, v2, 4, 1\nv_and_b32 v{VSG}, 0x80008000, v{VSG}")

        T0, T1, T2 = T, T + 1, T + 2
        a(f"v_bfe_u32 v{T0}, v2, 2, 2\ns_lshl_b32 s31, s47, 2\nv_add_u32 v{T0}, s31, v{T0}")
        a(f"v_lshrrev_b32 v{T1}, 4, v2\nv_bfe_u32 v{T2}, v2, 1, 1\nv_mul_u32_u24 v{T1}, v{T1}, v{T2}\nv_and_b32 v{T2}, 1, v2\nv_add_u32 v{T1}, v{T1}, v{T2}")
        a(f"v_cvt_f32_u32 v{T0}, v{T0}\nv_cvt_f32_u32 v{T1}, v{T1}\nv_mul_f32 v{T0}, 0x3e000000, v{T0}\nv_mul_f32 v{T1}, 0x3e800000, v{T1}")
        for j in range(8):
            a(f"v_cos_f32 v{CV + j}, v{T1}")
            if j < 7:
                a(f"v_add_f32 v{T1}, v{T1}, v{T0}")
        BI = T + 52
        a(f"v_lshrrev_b32 v{T0}, 2, v2\nv_and_b32 v{T0}, 12, v{T0}\nv_and_b32 v{T1}, 15, v2\nv_lshlrev_b32 v{T1}, 2, v{T1}")
        a(f"v_cvt_f32_u32 v{T0}, v{T0}\nv_cvt_f32_u32 v{T1}, v{T1}\nv_mul_f32 v{BI}, 0x3c800000, v{T0}")
        a(f"s_lshl_b32 s31, s47, 2\ns_add_u32 s48, s31, s30\ns_sub_u32 s31, s48, 4\ns_mul_i32 s31, s31, s46\nv_cvt_f32_i32 v{T2}, s31\nv_mul_f32 v{T2}, 0x3a000000, v{T2}")
        a(f"v_add_f32 v{BI + 1}, 0x3c800000, v{BI}\nv_add_f32 v{BI + 2}, 0x3d000000, v{BI}\nv_add_f32 v{BI + 3}, 0x3d400000, v{BI}")
        for f in range(4):
            for i in range(4):
                re, im = M2 + 8 * f + i, M2 + 8 * f + 4 + i
                tc, ts = TW + 8 * f + i, TW + 8 * f + 4 + i
                a(f"v_mul_f32 v{T0}, v{BI + i}, v{T1}")
                a(f"v_fmamk_f32 v{ts}, v{T0}, 0x3d800000, v{T2}")
                a(f"v_sin_f32 v{im}, v{T0}\nv_cos_f32 v{T0}, v{T0}\nv_cos_f32 v{tc}, v{ts}\nv_sin_f32 v{ts}, v{ts}")
                a(f"v_cvt_pk_f16_f32 v{re}, v{T0}, v{im}\nv_cvt_pk_f16_f32 v{im}, -v{im}, v{T0}")
            if f < 3:
                a(f"v_add_f32 v{T1}, 1.0, v{T1}")
        a("s_and_b32 s31, s46, 1\ns_lshl_b32 s31, s31, 6\ns_lshr_b32 s32, s46, 1\ns_add_u32 s49, s31, s32")
        a("s_bitcmp1_b32 s49, 2\ns_cselect_b64 vcc, -1, 0")
        for i in range(4):
            a(f"v_cndmask_b32 v{M3 + i}, v{M2 + i}, v{M2 + 4 + i}, vcc\nv_cndmask_b32 v{M3 + 4 + i}, v{M2 + 4 + i}, v{M2 + i}, vcc")
        VZ = T + 49
        a(f"s_bfe_u32 s31, s49, 0x10001\nv_and_b32 v6, 7, v2\nv_xor_b32 v6, s31, v6\nv_lshlrev_b32 v6, 4, v6")
        a(f"v_lshrrev_b32 v7, 4, v2\nv_lshlrev_b32 v7, 3, v7\nv_bfe_u32 v{VZ}, v2, 3, 1\nv_add_u32 v7, v7, v{VZ}\nv_mul_u32_u24 v7, {ZTS}, v7\nv_add_u32 v{VZ}, v6, v7")
        a(f"s_mul_i32 s31, s48, {32 * ZTS}\ns_lshl_b32 s32, s49, 7\ns_add_u32 s31, s31, s32\ns_add_u32 s60, s31, {ZB}")
        SS, QQ, DD, DC = T, T + 4, T + 8, T + 10
        for r in range(11):
            a(f"v_mov_b32 v{T + r}, 0")
        a("s_mov_b32 s57, 0x3f803f80\ns_mov_b32 s59, 0xffff\ns_brev_b32 s67, 1\ns_mov_b32 s66, 0\ns_mov_b32 s64, 0x80008000\ns_mov_b32 s65, 0x80008000")
        a("s_cmp_eq_u32 s47, 0\ns_cselect_b32 s62, s64, 0\ns_cselect_b32 s63, 0, s64")
        a(f"s_cmp_ge_u32 s2, {0 if self.diag == 'nomoe' else 224}\ns_cselect_b32 s61, 8, 4")
        a("s_waitcnt vmcnt(8)")
        for i in range(8):
            a(f"v_dot2c_f32_bf16 v{DC}, s57, v{WR + i}")
        for d in SHR:
            a(f"v_add_f32_dpp v{DC}, v{DC}, v{DC} {d} row_mask:0xf bank_mask:0xf")
        a(f"v_add_f32_dpp v{DC}, v{DC}, v{DC} row_bcast:15 row_mask:0xa bank_mask:0xf\nv_add_f32_dpp v{DC}, v{DC}, v{DC} row_bcast:31 row_mask:0xc bank_mask:0xf")
        a(f"v_readlane_b32 s56, v{DC}, 63")
        a("s_waitcnt lgkmcnt(0)")
        self.tag_from_epoch()
        self.setprio(2)
        self.stamp(1)

        def sq(r):
            for i in range(8):
                x = RW + 8 * r + i
                a(f"v_dot2c_f32_bf16 v{SS + r}, s57, v{x}\nv_dot2c_f32_bf16 v{QQ + r}, v{x}, v{x}")

        def rdot(r0):
            for i in range(8):
                a(f"v_dot2c_f32_bf16 v{DD}, v{WR + i}, v{RW + 8 * r0 + i}\nv_dot2c_f32_bf16 v{DD + 1}, v{WR + i}, v{RW + 8 * r0 + 8 + i}")

        for r in range(2):
            a(f"s_waitcnt vmcnt({6 - 2 * r})")
            a(f"ds_write_b128 v{VLD}, v[{RW + 8 * r}:{RW + 8 * r + 3}] offset:{RS * r}\nds_write_b128 v{VLD}, v[{RW + 8 * r + 4}:{RW + 8 * r + 7}] offset:{RS * r + 2 * QS}")
            sq(r)
        a("s_cmp_lg_u32 s47, 0\ns_cbranch_scc1 L_dot_m")
        rdot(0)
        a("s_waitcnt vmcnt(0)\ns_branch L_dot_done")
        a("L_dot_m:\ns_waitcnt vmcnt(0)")
        rdot(2)
        a("L_dot_done:")
        self.stamp(2)
        sq(2)
        a(f"v_permlane16_swap_b32 v{DD}, v{DD + 1}\nv_permlane16_swap_b32 v{SS}, v{SS + 1}\nv_permlane16_swap_b32 v{QQ}, v{QQ + 1}")
        a(f"v_add_f32 v{DD}, v{DD}, v{DD + 1}\nv_add_f32 v{SS}, v{SS}, v{SS + 1}\nv_add_f32 v{QQ}, v{QQ}, v{QQ + 1}\nv_mov_b32 v{DD + 1}, v{DD}")
        sq(3)
        a(f"v_permlane32_swap_b32 v{DD}, v{DD + 1}\nv_add_f32 v{DD}, v{DD}, v{DD + 1}")
        a(f"v_permlane16_swap_b32 v{SS + 2}, v{SS + 3}\nv_permlane16_swap_b32 v{QQ + 2}, v{QQ + 3}")
        a(f"v_add_f32 v{SS + 2}, v{SS + 2}, v{SS + 3}\nv_add_f32 v{QQ + 2}, v{QQ + 2}, v{QQ + 3}")
        a(f"v_add_f32_dpp v{DD}, v{DD}, v{DD} {SHR[0]} row_mask:0xf bank_mask:0xf")
        a(f"v_permlane32_swap_b32 v{SS}, v{SS + 2}\nv_permlane32_swap_b32 v{QQ}, v{QQ + 2}")
        a(f"v_add_f32 v{SS}, v{SS}, v{SS + 2}\nv_add_f32 v{QQ}, v{QQ}, v{QQ + 2}")
        for n, d in enumerate(SHR):
            if n < 3:
                a(f"v_add_f32_dpp v{DD}, v{DD}, v{DD} {SHR[n + 1]} row_mask:0xf bank_mask:0xf")
            a(f"v_add_f32_dpp v{SS}, v{SS}, v{SS} {d} row_mask:0xf bank_mask:0xf\nv_add_f32_dpp v{QQ}, v{QQ}, v{QQ} {d} row_mask:0xf bank_mask:0xf")
        m_, q_, t_, NM, st = SS, QQ, DD, SS + 1, SS + 2
        a(f"v_mul_f32 v{m_}, 0x3a800000, v{m_}\nv_mul_f32 v{q_}, 0x3a800000, v{q_}")
        a(f"v_fma_f32 v{q_}, -v{m_}, v{m_}, v{q_}\nv_cvt_pk_bf16_f32 v{NM}, -v{m_}, -v{m_}\nv_max_f32 v{q_}, 0, v{q_}")
        a(f"v_cvt_pk_bf16_f32 v{q_}, v{q_}, v{q_}\nv_and_b32 v{q_}, 0xffff0000, v{q_}\nv_add_f32 v{q_}, 0x3727c5ac, v{q_}")
        a(f"v_cvt_pk_bf16_f32 v{q_}, v{q_}, v{q_}\nv_and_b32 v{q_}, 0xffff0000, v{q_}\nv_sqrt_f32 v{q_}, v{q_}\nv_and_b32 v{DC}, 0xffff0000, v{NM}")
        a(f"v_cvt_pk_bf16_f32 v{st}, v{m_}, v{q_}\nv_and_b32 v{q_}, 0xffff0000, v{st}\nv_rcp_f32 v{q_}, v{q_}\nv_fmac_f32 v{t_}, s56, v{DC}")
        a(f"v_mul_f32 v{t_}, v{t_}, v{q_}")
        a(f"v_ashrrev_i32 v{DC}, 31, v{t_}\nv_or_b32 v{DC}, 0x80000000, v{DC}\nv_xor_b32 v{t_}, v{t_}, v{DC}")
        a(f"v_and_b32 v{t_}, 0xfffff800, v{t_}\nv_or_b32 v{st + 1}, v{VROW}, v{t_}")
        a("s_mov_b64 exec, s[62:63]")
        a(f"ds_write_b64 v{VEN}, v[{st}:{st + 1}] offset:{L_ENT}\nds_max_u64 v5, v[{st}:{st + 1}]")
        a("s_mov_b64 exec, s[64:65]")
        a(f"ds_write_b16 v{VST}, v{NM} offset:{L_MEAN}\nds_write_b32 v{VST + 1}, v{q_} offset:{L_RST}")
        self.arrive(C_A)
        PB, RST, MEAN, SH = T + 12, T + 16, T + 32, T + 56
        a(f"v_min_u32 v5, 8, v2\nv_lshlrev_b32 v5, 3, v5\nv_mov_b32 v{PB + 2}, s28\nv_mov_b32 v{PB + 3}, s29")
        self.wait(C_A, "s61")
        a(f"ds_read_b64 v[{PB}:{PB + 1}], v5 offset:{L_ENT}")
        for k in range(4):
            a(f"ds_read_b128 v[{RST + 4 * k}:{RST + 4 * k + 3}], v0 offset:{L_RST + 16 * k}")
        a(f"ds_read_b128 v[{MEAN}:{MEAN + 3}], v0 offset:{L_MEAN}\nds_read_b128 v[{MEAN + 4}:{MEAN + 7}], v0 offset:{L_MEAN + 16}")
        for r in range(2):
            b = RW + 16 + 8 * r
            a(f"v_mov_b32_dpp v{T + 2 * r}, v{b} wave_rol:1 row_mask:0xf bank_mask:0xf\nv_mov_b32_dpp v{T + 2 * r + 1}, v{b + 4} wave_rol:1 row_mask:0xf bank_mask:0xf")
        for r in range(2):
            a(f"v_cndmask_b32 v{T + 4 + 2 * r}, v{T + 2 * r}, v{T + 2 * r + 1}, s[66:67]\nv_cndmask_b32 v{T + 5 + 2 * r}, v{T + 2 * r + 1}, v{T + 2 * r}, s[66:67]")
        a("s_waitcnt lgkmcnt(6)")
        a(f"buffer_store_dwordx4 v[{PB}:{PB + 3}], v{VPUB}, s[12:15], 0 offen sc1")
        self.stamp(3)
        self.setprio(1)
        if self.diag == "pubonly":
            self.arrive(C_ST3)
            a("s_branch L_fin")
        a("s_cmp_lg_u32 s50, 0\ns_cbranch_scc1 L_second_plain")
        for r in range(2):
            for half in range(2):
                b, dst = RW + 16 + 8 * r + 4 * half, SH + 8 * r + 4 * (1 - half)
                a(f"v_bfi_b32 v{dst}, s59, v{T + 4 + 2 * r + half}, v{b + 3}")
                for i in (1, 2, 3):
                    a(f"v_bfi_b32 v{dst + i}, s59, v{b + 4 - i}, v{b + 3 - i}")
                a(f"ds_write_b128 v{VLM}, v[{dst}:{dst + 3}] offset:{RS * r + 2 * QS * (1 - half)}")
        a("s_branch L_second_done")
        a("L_second_plain:")
        for r in range(2):
            b = RW + 16 + 8 * r
            a(f"ds_write_b128 v{VLD}, v[{b}:{b + 3}] offset:{(8 + r) * RS}\nds_write_b128 v{VLD}, v[{b + 4}:{b + 7}] offset:{(8 + r) * RS + 2 * QS}")
        a("L_second_done:")
        self.arrive(C_B)
        AD, AM, C0 = T, WR, T + 8
        a("s_waitcnt lgkmcnt(5)")
        for k in range(8):
            a(f"v_pk_mul_f32 v[{RST + 2 * k}:{RST + 2 * k + 1}], v[{RST + 2 * k}:{RST + 2 * k + 1}], v[{CV + 2 * (k % 4)}:{CV + 2 * (k % 4) + 1}]")
        for k in range(4):
            a(f"v_cvt_pk_bf16_f32 v{AD + k}, v{RST + 2 * k}, v{RST + 2 * k + 1}\nv_cvt_pk_bf16_f32 v{AM + k}, v{RST + 8 + 2 * k}, v{RST + 9 + 2 * k}")
        for k in range(4):
            a(f"v_xor_b32 v{AD + 4 + k}, v{VSG}, v{AD + k}\nv_xor_b32 v{AM + 4 + k}, v{VSG}, v{AM + k}")
        self.wait(C_B, 4)
        self.stamp(4)
        FR, DA, EE = RW, T + 56, RST

        def trd(blk):
            for m in range(2):
                for v in range(2):
                    d = FR + 8 * blk + 4 * m + 2 * v
                    a(f"ds_read_b64_tr_b16 v[{d}:{d + 1}], v{VTR} offset:{(8 * m + 4 * v) * RS + 32 * blk}")

        def cvt_ex(blk):
            for f in range(4):
                a(f"v_cvt_pk_f16_f32 v{EE + 4 * f + blk}, v{DA + 8 * blk + 2 * f}, v{DA + 8 * blk + 2 * f + 1}")

        def cvt_f(f, area):
            for blk in range(4):
                a(f"v_cvt_pk_f16_f32 v{EE + 4 * f + blk}, v{DA + 8 * blk + 2 * f}, v{DA + 8 * blk + 2 * f + 1}")
            a(f"ds_write_b128 v{VEX}, v[{EE + 4 * f}:{EE + 4 * f + 3}] offset:{EX + area + 1024 * f}")

        def write_ex(area):
            for f in range(4):
                a(f"ds_write_b128 v{VEX}, v[{EE + 4 * f}:{EE + 4 * f + 3}] offset:{EX + area + 1024 * f}")

        trd(0); trd(1); trd(2)
        a("s_cmp_lg_u32 s50, 0\ns_cbranch_scc1 L_st1_split")
        self.mfma("bf16", C0, AD, MEAN)
        self.mfma("bf16", C0, AM, MEAN + 4, C0)
        for blk in range(4):
            d, fr = DA + 8 * blk, FR + 8 * blk
            a(f"s_waitcnt lgkmcnt({(10, 10, 6, 2)[blk]})")
            if blk == 0:
                trd(3)
            self.mfma("bf16", d, AD, fr, C0)
            a(f"s_waitcnt lgkmcnt({(12, 8, 4, 0)[blk]})")
            self.mfma("bf16", d, AM, fr + 4, d)
        for blk in range(4):
            d, fr = DA + 8 * blk, FR + 8 * blk
            self.mfma("bf16", d + 4, AD + 4, fr)
            self.mfma("bf16", d + 4, AM + 4, fr + 4, d + 4)
            if blk in (1, 2):
                cvt_f(blk - 1, 0)
        cvt_f(2, 0)
        cvt_f(3, 0)
        a("s_branch L_st1_done")
        a("L_st1_split:")
        a("s_waitcnt lgkmcnt(8)")
        trd(3)
        a("s_waitcnt lgkmcnt(0)")
        for A, o, area in ((AD, 0, 0), (AM, 4, 16384)):
            self.mfma("bf16", C0, A, MEAN + o)
            for blk in range(4):
                self.mfma("bf16", DA + 8 * blk + 4, A + 4, FR + 8 * blk + o)
                self.mfma("bf16", DA + 8 * blk, A, FR + 8 * blk + o, C0)
            if area:
                a("s_waitcnt lgkmcnt(0)")
            for blk in range(4):
                cvt_ex(blk)
            write_ex(area)
        a("L_st1_done:")
        self.arrive(C_C)
        PP, UU, TT, ZZ, VTAG = RW, RW + 16, WR, T + 56, T + 50
        a(f"s_lshl_b32 s31, s30, 12\nv_add_u32 v5, s31, v3\ns_and_b32 s31, s28, {ZMASK:#x}\nv_mov_b32 v{VTAG}, s31\ns_mov_b32 s58, {~ZMASK & 0xFFFFFFFF:#x}")
        self.wait(C_C, 4)
        self.stamp(5)
        a("L_st23:")
        for f in range(4):
            a(f"ds_read_b128 v[{PP + 4 * f}:{PP + 4 * f + 3}], v5 offset:{EX + 1024 * f}")
        for i in range(1, 4):
            a(f"s_add_u32 s{60 + i}, s{59 + i}, {2 * ZTS}")

        def st2(f):
            u = UU + 8 * (f % 2)
            a(f"s_waitcnt lgkmcnt({3 - f})")
            self.mfma("f16", u, PP + 4 * f, M2 + 8 * f)
            self.mfma("f16", u + 4, PP + 4 * f, M2 + 8 * f + 4)

        def tw(f):
            u = UU + 8 * (f % 2)
            tc, ts = TW + 8 * f, TW + 8 * f + 4
            for p in (0, 2):
                a(f"v_pk_mul_f32 v[{TT + p}:{TT + p + 1}], v[{tc + p}:{tc + p + 1}], v[{u + p}:{u + p + 1}]")
            for p in (0, 2):
                a(f"v_pk_mul_f32 v[{TT + 4 + p}:{TT + 5 + p}], v[{ts + p}:{ts + p + 1}], v[{u + p}:{u + p + 1}]")
            for p in (0, 2):
                a(f"v_pk_fma_f32 v[{TT + p}:{TT + p + 1}], v[{ts + p}:{ts + p + 1}], v[{u + 4 + p}:{u + 5 + p}], v[{TT + p}:{TT + p + 1}]")
                a(f"v_pk_fma_f32 v[{TT + 4 + p}:{TT + 5 + p}], v[{tc + p}:{tc + p + 1}], v[{u + 4 + p}:{u + 5 + p}], v[{TT + 4 + p}:{TT + 5 + p}] neg_lo:[0,0,1] neg_hi:[0,0,1]")
            for i in range(4):
                a(f"v_cvt_pk_f16_f32 v{PP + 4 * f + i}, v{TT + i}, v{TT + 4 + i}")

        def st3(f):
            self.mfma("f16", ZZ + 8 * f, M3, PP + 4 * f)
            self.mfma("f16", ZZ + 8 * f + 4, M3 + 4, PP + 4 * f)

        OO = T + 16

        def pack(lo):
            for i in range(4):
                o = OO + 4 * i + lo
                a(f"v_cvt_pk_f16_f32 v{o}, v{ZZ + 16 * lo + i}, v{ZZ + 16 * lo + 8 + i}\nv_cvt_pk_f16_f32 v{o + 2}, v{ZZ + 16 * lo + 4 + i}, v{ZZ + 16 * lo + 12 + i}")
                a(f"v_and_or_b32 v{o}, v{o}, s58, v{VTAG}\nv_and_or_b32 v{o + 2}, v{o + 2}, s58, v{VTAG}")

        def z_stores():
            for i in range(4):
                a(f"buffer_store_dwordx4 v[{OO + 4 * i}:{OO + 4 * i + 3}], v{VZ}, s[12:15], s{60 + i} offen sc1")

        st2(0); st2(1); tw(0); st2(2); st3(0); tw(1); st2(3); st3(1); tw(2); st3(2); tw(3); st3(3); pack(0); pack(1)
        a("s_cmp_eq_u32 s50, 0\ns_cbranch_scc1 L_p1_done")
        z_stores()
        a(f"s_mov_b32 s50, 0\ns_add_u32 s60, s60, 16384\nv_add_u32 v5, 16384, v5\ns_sub_u32 s31, s48, 4\nv_cvt_f32_i32 v{T2}, s31\nv_mul_f32 v{T2}, 0x3d800000, v{T2}")
        a(f"v_and_b32 v{T1}, 15, v2\nv_lshlrev_b32 v{T1}, 2, v{T1}\nv_cvt_f32_u32 v{T1}, v{T1}")
        for i in range(4):
            a(f"v_fma_f32 v{T0}, v{BI + i}, v{T1}, v{T2}\nv_sin_f32 v{M3 + 4 + i}, v{T0}\nv_cos_f32 v{T0}, v{T0}")
            a(f"v_cvt_pk_f16_f32 v{M3 + i}, v{T0}, v{M3 + 4 + i}\nv_cvt_pk_f16_f32 v{M3 + 4 + i}, -v{M3 + 4 + i}, v{T0}")
        a("s_branch L_st23")
        a("L_p1_done:")
        self.arrive(C_ST3)
        self.stamp(6)
        self.setprio(0)
        if self.rel_zw:
            self.p2_matrix(MM, 160, 161, 162)
            self.release(self.rel_zw)
        z_stores()
        self.stamp(7)
        if self.diag in ("p1only", "xarr"):
            a("s_branch L_fin")
        self.phase2(MM, VTAG)

    def phase2(self, MM, VTAG):
        a = self.a
        XP, SG, XF, GG = 8, 24, 40, 120
        AC, ZL, AF, GR = 216, 72, 152, 192
        ZN = 212
        VXA, VXB, VTA, VTB = 4, 5, 248, 249
        a("s_and_b32 s46, s2, 7\ns_lshr_b32 s47, s2, 3\ns_mov_b32 s48, 0x200000")
        a(f"v_and_b32 v{VTA}, 15, v2\ns_lshl_b32 s31, s30, 7\ns_add_u32 s31, s31, s46\nv_lshl_add_u32 v{VTA}, v{VTA}, 3, s31")
        a(f"s_lshl_b32 s31, s46, 1\ns_add_u32 s31, s31, 1016\nv_sub_u32 v{VTB}, s31, v{VTA}")
        a("v_and_b32 v6, 48, v2\ns_lshl_b32 s31, s47, 6\nv_add_u32 v6, s31, v6")
        a(f"v_lshl_add_u32 v{VXA}, v{VTA}, 11, v6\nv_lshl_add_u32 v{VXB}, v{VTB}, 11, v6\ns_mov_b32 s49, {STAT}")
        a(f"s_mov_b32 vcc_lo, 0\ns_mov_b32 vcc_hi, -1\nv_cndmask_b32 v7, v{VTA}, v{VTB}, vcc\nv_and_b32 v6, 255, v7\nv_lshlrev_b32 v6, 7, v6\nv_lshrrev_b32 v7, 8, v7")
        a("v_lshl_add_u32 v6, v7, 4, v6\nv_and_b32 v7, 16, v2\nv_lshl_add_u32 v6, v7, 2, v6")
        a(f"buffer_load_dwordx4 v[{SG}:{SG + 3}], v6, s[12:15], s49 offen")
        a(f"v_lshrrev_b32 v7, 2, v2\ns_lshl_b32 s31, s30, 7\ns_add_u32 s31, s31, s46\nv_lshl_add_u32 v7, v7, 3, s31\ns_lshl_b32 s31, s46, 1\ns_add_u32 s31, s31, 1016\nv_sub_u32 v{XF}, s31, v7")
        a(f"v_and_b32 v1, 48, v3\nv_and_b32 v{XF + 1}, 32, v2\nv_xor_b32 v1, v1, v{XF + 1}\ns_lshl_b32 s31, s47, 6\nv_add_u32 v1, s31, v1")
        a(f"v_lshl_add_u32 v7, v7, 11, v1\nv_lshl_add_u32 v{XF}, v{XF}, 11, v1\ns_lshl_b32 s52, s30, 12\ns_add_u32 s52, s52, {EX}")
        a(f"v_and_b32 v1, 15, v2\nv_lshlrev_b32 v{XF + 1}, 6, v1\nv_and_b32 v1, 8, v2\nv_lshlrev_b32 v1, 2, v1\nv_and_b32 v{XF + 2}, 48, v2\nv_xor_b32 v1, v1, v{XF + 2}\nv_add3_u32 v{XF + 1}, v{XF + 1}, v1, s52")
        self.release(self.rel_x)
        for h in range(4):
            so = "s48" if h % 2 else "0"
            a(f"s_add_u32 m0, s52, {1024 * h}")
            a(f"buffer_load_dwordx4 v{XF if h // 2 else 7}, s[8:11], {so} offen lds")
        a(f"s_lshl_b32 s31, s46, 5\ns_add_u32 s31, s31, s47\ns_mul_i32 s31, s31, {ZTS}\ns_add_u32 s51, s31, {ZB}\ns_lshl_b32 s32, s30, 12\ns_add_u32 s50, s51, s32\ns_add_u32 s51, s51, 16384")
        a("v_add_u32 v250, s32, v3")
        a("v_lshrrev_b32 v251, 5, v2\nv_lshlrev_b32 v251, 11, v251\nv_bfe_u32 v1, v2, 2, 3\nv_lshl_add_u32 v251, v1, 7, v251")
        a("v_and_b32 v1, 3, v2\nv_lshl_add_u32 v251, v1, 5, v251\nv_bfe_u32 v1, v2, 3, 1\nv_lshl_add_u32 v251, v1, 4, v251\nv_bfe_u32 v1, v2, 4, 1\nv_lshl_add_u32 v251, v1, 3, v251")
        a("v_xor_b32 v252, 16, v251\nv_xor_b32 v253, 8, v251\nv_xor_b32 v254, 24, v251\nv_cmp_gt_u32 vcc, 4, v2\nv_mov_b32 v1, 16384\nv_cndmask_b32 v1, v0, v1, vcc")
        a("v_add_u32 v208, v253, v1\nv_add_u32 v209, v254, v1")
        if not self.rel_zw:
            self.p2_matrix(MM, 160, 161, 162)
        a("s_waitcnt vmcnt(4)")
        a("L_stat_check:")
        a(f"v_cmp_ne_u64 vcc, s[28:29], v[{SG + 2}:{SG + 3}]\ns_cbranch_vccz L_stat_got")
        self.spin_guard("L_stat_got")
        a(f"s_mov_b64 exec, vcc\nbuffer_load_dwordx4 v[{SG}:{SG + 3}], v6, s[12:15], s49 offen sc1")
        a("s_mov_b64 exec, -1\ns_waitcnt vmcnt(0)\ns_branch L_stat_check")
        a("L_stat_got:")
        a(f"v_mov_b32 v{SG + 8}, v{SG}\nv_permlane32_swap_b32 v{SG}, v{SG + 8}\nv_mov_b32 v{SG + 4}, v{SG}\nv_mov_b32 v{SG + 12}, v{SG + 8}")
        a(f"v_permlane16_swap_b32 v{SG}, v{SG + 4}\nv_permlane16_swap_b32 v{SG + 8}, v{SG + 12}")
        for h in range(4):
            s_ = SG + 4 * h
            a(f"v_lshlrev_b32 v{s_ + 2}, 16, v{s_}\nv_and_b32 v{s_}, 0xffff0000, v{s_}\nv_rcp_f32 v{s_}, v{s_}")
        for h in range(4):
            s_ = SG + 4 * h
            a(f"v_mul_f32_e64 v{s_ + 2}, -v{s_ + 2}, v{s_}\nv_mul_f32 v{AF + 4 * h}, 0xbfb8aa3b, v{s_}\nv_mul_f32 v{AF + 4 * h + 2}, 0xbfb8aa3b, v{s_ + 2}")
        a("s_waitcnt vmcnt(0)")
        for h in range(4):
            a(f"ds_read_b128 v[{XP + 4 * h}:{XP + 4 * h + 3}], v{XF + 1} offset:{1024 * h}")
        a("s_waitcnt lgkmcnt(0)")
        self.stamp(8)

        def z_loads():
            for j in range(4):
                a(f"buffer_load_dwordx4 v[{ZL + 4 * j}:{ZL + 4 * j + 3}], v3, s[12:15], s50 offen offset:{1024 * j} sc1")
            a("s_mov_b64 exec, 0xff")
            a(f"buffer_load_dwordx4 v[{ZN}:{ZN + 3}], v3, s[12:15], s51 offen sc1")
            a("s_mov_b64 exec, -1")

        def gate(h0, h1):
            rng = range(4 * h0, 4 * h1)
            for i in rng:
                a(f"v_lshlrev_b32 v{XF + 2 * i}, 16, v{XP + i}\nv_and_b32 v{XF + 2 * i + 1}, 0xffff0000, v{XP + i}")
            for i in rng:
                s_ = AF + 4 * (i // 4)
                a(f"v_pk_fma_f32 v[{AC + 2 * i}:{AC + 2 * i + 1}], v[{XF + 2 * i}:{XF + 2 * i + 1}], v[{s_}:{s_ + 1}], v[{s_ + 2}:{s_ + 3}] op_sel_hi:[1,0,0]")
            for i in rng:
                a(f"v_exp_f32 v{AC + 2 * i}, v{AC + 2 * i}\nv_exp_f32 v{AC + 2 * i + 1}, v{AC + 2 * i + 1}")
            for i in rng:
                s_ = SG + 4 * (i // 4)
                a(f"v_pk_fma_f32 v[{GG + 2 * i}:{GG + 2 * i + 1}], v[{XF + 2 * i}:{XF + 2 * i + 1}], v[{s_}:{s_ + 1}], v[{s_ + 2}:{s_ + 3}] op_sel_hi:[1,0,0]")
            for i in rng:
                a(f"v_pk_add_f32 v[{AC + 2 * i}:{AC + 2 * i + 1}], v[{AC + 2 * i}:{AC + 2 * i + 1}], 1.0 op_sel_hi:[1,0]")
            for i in rng:
                a(f"v_rcp_f32 v{AC + 2 * i}, v{AC + 2 * i}\nv_rcp_f32 v{AC + 2 * i + 1}, v{AC + 2 * i + 1}")
            for i in rng:
                a(f"v_pk_mul_f32 v[{GG + 2 * i}:{GG + 2 * i + 1}], v[{GG + 2 * i}:{GG + 2 * i + 1}], v[{AC + 2 * i}:{AC + 2 * i + 1}]")

        for i in range(4):
            a(f"v_mov_b32 v{ZN + i}, v{VTAG}")
        gate(0, self.zdelay)
        self.release(self.rel_zr)
        z_loads()
        gate(self.zdelay, 4)
        self.wait(C_S1, 1)
        self.stamp(9)
        a("L_z_wait:")
        self.setprio(1)
        ZC = AF
        srcs = [ZL + i for i in range(16)] + [ZN + i for i in range(4)]
        for j in range(5):
            a(f"s_waitcnt vmcnt({4 - j})")
            for i in range(4):
                a(f"v_xor_b32 v{ZC + 4 * j + i}, v{VTAG}, v{srcs[4 * j + i]}")
            if j < 4:
                a(f"ds_write_b128 v250, v[{ZC + 4 * j}:{ZC + 4 * j + 3}] offset:{1024 * j}")
            else:
                a(f"s_mov_b64 exec, 0xff\nds_write_b128 v3, v[{ZC + 16}:{ZC + 19}] offset:16384\ns_mov_b64 exec, -1")
            if j == 0:
                a(f"v_or3_b32 v1, v{ZC}, v{ZC + 1}, v{ZC + 2}\nv_or_b32 v1, v1, v{ZC + 3}")
            else:
                a(f"v_or3_b32 v1, v1, v{ZC + 4 * j}, v{ZC + 4 * j + 1}\nv_or3_b32 v1, v1, v{ZC + 4 * j + 2}, v{ZC + 4 * j + 3}")
        a(f"v_and_b32 v1, {ZMASK:#x}, v1\nv_cmp_ne_u32 vcc, 0, v1\ns_cbranch_vccz L_z_got")
        self.spin_guard("L_z_got")
        a("s_mov_b64 exec, vcc")
        for j in range(4):
            a(f"buffer_load_dwordx4 v[{ZL + 4 * j}:{ZL + 4 * j + 3}], v3, s[12:15], s50 offen offset:{1024 * j} sc1")
        a("s_mov_b64 exec, 0xff")
        a(f"buffer_load_dwordx4 v[{ZN}:{ZN + 3}], v3, s[12:15], s51 offen sc1")
        a("s_mov_b64 exec, -1\ns_waitcnt lgkmcnt(0)\ns_branch L_z_wait")
        a("L_z_got:")
        self.stamp(10)
        self.sync(C_D)
        self.stamp(11)
        a(f"ds_read_b64 v[6:7], v0 offset:{L_KEY}")

        def rd(ks):
            c, ph = ks // 4, ks % 4
            b = AF + 8 * (ks % 4)
            for mb in range(2):
                for v in range(2):
                    ad = 208 + mb if (ks == 4 and v == 0) else 251 + mb + 2 * c
                    a(f"ds_read_b64_tr_b16 v[{b + 4 * mb + 2 * v}:{b + 4 * mb + 2 * v + 1}], v{ad} offset:{4096 * ph + 1024 * v}")

        CP, CM = ZL, ZL + 8
        rd(0); rd(1); rd(2)
        for ks in range(8):
            b = AF + 8 * (ks % 4)
            ahead = min(7 - ks, 2)
            for mb in range(2):
                a(f"s_waitcnt lgkmcnt({4 * ahead + (2 if mb == 0 else 0)})")
                d = AC + 8 * (ks // 2) + 4 * mb
                self.mfma("f16", d, b + 4 * mb, MM + 4 * ks, None if ks % 2 == 0 else d)
            if ks + 3 < 8:
                rd(ks + 3)
            if ks == 1:
                a("v_readfirstlane_b32 s33, v7\nv_and_b32 v6, 48, v2\nv_lshlrev_b32 v6, 1, v6")
            if ks == 2:
                a("s_andn2_b32 s51, 0x7ff, s33\ns_sub_u32 s31, s51, 1024")
            if ks == 3:
                a(f"v_cmp_ne_u32 s[54:55], s51, v{VTA}\nv_cmp_ne_u32 s[56:57], s31, v{VTA}")
            if ks == 4:
                a(f"v_cmp_ne_u32 s[58:59], s51, v{VTB}\nv_cmp_ne_u32 s[60:61], s31, v{VTB}")
            if ks in (5, 6):
                for i in range(2 * (ks - 5), 2 * (ks - 5) + 2):
                    e, o = AC + 2 * i, AC + 8 + 2 * i
                    a(f"v_pk_add_f32 v[{CP + 2 * i}:{CP + 2 * i + 1}], v[{e}:{e + 1}], v[{o}:{o + 1}]")
                    a(f"v_pk_add_f32 v[{CM + 2 * i}:{CM + 2 * i + 1}], v[{e}:{e + 1}], v[{o}:{o + 1}] neg_lo:[0,1] neg_hi:[0,1]")
        SP, SM, SA = AC, AC + 8, AF
        for i in range(4):
            e, o = AC + 16 + 2 * i, AC + 24 + 2 * i
            a(f"v_pk_add_f32 v[{SP + 2 * i}:{SP + 2 * i + 1}], v[{e}:{e + 1}], v[{o}:{o + 1}]")
            a(f"v_pk_add_f32 v[{SM + 2 * i}:{SM + 2 * i + 1}], v[{e}:{e + 1}], v[{o}:{o + 1}] neg_lo:[0,1] neg_hi:[0,1]")
        for h, (cc, ss, neg) in enumerate(((CP, SP, 0), (CM, SM, 0), (CM, SM, 1), (CP, SP, 1))):
            ng = " neg_lo:[0,1] neg_hi:[0,1]" if neg else ""
            for i in range(4):
                k = 8 * h + 2 * i
                a(f"v_pk_add_f32 v[{SA + k}:{SA + k + 1}], v[{cc + 2 * i}:{cc + 2 * i + 1}], v[{ss + 2 * i}:{ss + 2 * i + 1}]{ng}")
            for i in range(4):
                k = 8 * h + 2 * i
                a(f"v_pk_fma_f32 v[{XF + k}:{XF + k + 1}], v[{SA + k}:{SA + k + 1}], v[{GG + k}:{GG + k + 1}], v[{XF + k}:{XF + k + 1}]")
            for i in range(4):
                k = 8 * h + 2 * i
                a(f"v_cvt_pk_bf16_f32 v{XP + 4 * h + i}, v{XF + k}, v{XF + k + 1}")
            a(f"s_mov_b64 exec, s[{54 + 2 * h}:{55 + 2 * h}]")
            so = "s48" if h % 2 else "0"
            a(f"buffer_store_dwordx4 v[{XP + 4 * h}:{XP + 4 * h + 3}], v{VXA + h // 2}, s[16:19], {so} offen {self.oflag}")
            a(f"s_not_b64 exec, exec\ns_cbranch_scc0 L_nodump{h}")
            a(f"ds_write_b128 v6, v[{SA + 8 * h}:{SA + 8 * h + 3}] offset:{L_ROW}\nds_write_b128 v6, v[{SA + 8 * h + 4}:{SA + 8 * h + 7}] offset:{L_ROW + 16}")
            self.arrive(C_ROW)
            a(f"L_nodump{h}:\ns_mov_b64 exec, -1")
        self.stamp(12)
        a("s_branch L_fin")

    def moe(self):
        a = self.a
        a("L_moe:")
        self.role = "moe"
        nA = (32 - self.n3) // 3
        assert self.n3 + 3 * nA == 32
        a("s_and_b32 s32, s2, 7\ns_mul_i32 s32, s32, 28\ns_lshr_b32 s31, s2, 3\ns_add_u32 s31, s31, s32\ns_lshr_b32 s46, s31, 3\ns_and_b32 s47, s31, 7")
        for d in (16, 20, 24):
            a(f"s_mov_b32 s{d + 2}, {WBYTES}\ns_mov_b32 s{d + 3}, 0x00020000")
        a("v_lshrrev_b32 v4, 4, v2\nv_lshlrev_b32 v5, 5, v4\nv_and_b32 v6, 0xf0, v3\nv_xor_b32 v5, v5, v6\nv_mul_u32_u24 v4, 7168, v4")
        a(f"s_mul_i32 s31, s47, {128 * 7168}\ns_lshl_b32 s32, s46, 8\ns_add_u32 s31, s31, s32\nv_add3_u32 v4, v4, v5, s31")
        a(f"s_mul_i32 s48, s30, {nA}\ns_add_u32 s49, s48, {nA}\ns_cmp_eq_u32 s30, 3\ns_cselect_b32 s49, 32, s49")
        a("s_waitcnt lgkmcnt(0)")
        self.base_srds()
        a("s_mov_b32 s16, s38\ns_mov_b32 s17, s39\ns_mov_b32 s20, s40\ns_mov_b32 s21, s41\ns_mov_b32 s24, s42\ns_mov_b32 s25, s43")
        a(f"s_load_dwordx2 s[28:29], s[6:7], {EPOCH}")
        a("s_barrier")
        a(f"s_cmp_ge_u32 s2, {0 if self.diag == 'nomoe' else 224}\ns_cselect_b32 s66, 0, 1\ns_cbranch_scc1 L_dma_done")
        a("L_dma:")
        a(f"s_bfe_u32 s31, s48, 0x10001\ns_lshl_b32 s31, s31, 7\nv_xor_b32 v5, s31, v4\ns_lshl_b32 s32, s48, 10\ns_add_u32 m0, s32, {M_G}\ns_mul_i32 s31, s48, {4 * 7168}")
        a(f"buffer_load_dwordx4 v5, s[16:19], s31 offen {self.wflag} lds")
        a(f"s_add_u32 m0, s32, {M_U}\ns_add_u32 s48, s48, 1")
        a(f"buffer_load_dwordx4 v5, s[20:23], s31 offen {self.wflag} lds")
        a("s_cmp_eq_u32 s30, 3\ns_cbranch_scc1 L_dma3")
        a(f"s_waitcnt vmcnt({2 * self.win - 2})\ns_cmp_lt_u32 s48, s49\ns_cbranch_scc1 L_dma\ns_branch L_dma_done")
        a(f"L_dma3:\ns_waitcnt vmcnt({2 * self.win3 - 2})\ns_cmp_lt_u32 s48, s49\ns_cbranch_scc1 L_dma")
        a("L_dma_done:")
        self.setprio(3)
        WD = 100
        a("s_lshr_b32 s31, s47, 2\ns_lshl_b32 s32, s46, 1\ns_add_u32 s50, s31, s32")
        a("s_lshl_b32 s31, s50, 17\ns_and_b32 s32, s47, 3\ns_lshl_b32 s32, s32, 2\ns_add_u32 s51, s32, s30\ns_lshl_b32 s32, s51, 7\ns_add_u32 s31, s31, s32")
        a("v_lshrrev_b32 v6, 3, v2\nv_lshlrev_b32 v6, 14, v6\nv_and_b32 v7, 0x70, v3\nv_add3_u32 v6, v6, v7, s31")
        a("s_mov_b32 s60, 4096\ns_mov_b32 s61, 8192\ns_mov_b32 s62, 12288")

        def d_loads(j0, j1):
            for j in range(j0, j1):
                so = "0" if j < 2 else f"s{59 + j // 2}"
                a(f"buffer_load_dwordx4 v[{WD + 4 * j}:{WD + 4 * j + 3}], v6, s[24:27], {so} offen offset:{2048 * (j % 2)} {self.wflag}")

        a("v_bfe_u32 v8, v2, 2, 3\nv_lshlrev_b32 v9, 5, v8\ns_lshl_b32 s31, s30, 6\nv_xor_b32 v9, s31, v9")
        a(f"v_bfe_u32 v8, v2, 2, 2\nv_lshl_add_u32 v9, v8, 8, v9\nv_lshrrev_b32 v8, 4, v2\nv_lshl_add_u32 v9, v8, 11, v9\nv_and_b32 v10, 3, v2\nv_lshl_add_u32 v9, v10, 3, v9")
        a(f"v_add_u32 v9, {M_G}, v9\nv_xor_b32 v10, 32, v9\nv_lshlrev_b32 v8, 4, v8")
        a(f"s_lshr_b32 s31, s30, 1\ns_lshl_b32 s32, s46, 1\ns_add_u32 s31, s31, s32\ns_lshl_b32 s31, s31, 12\ns_lshl_b32 s32, s47, 9\ns_add_u32 s31, s31, s32")
        a(f"s_and_b32 s32, s30, 1\ns_lshl_b32 s32, s32, 8\ns_add_u32 s31, s31, s32\ns_add_u32 s31, s31, {HP}\nv_lshl_add_u32 v13, v2, 3, s31")
        a("s_waitcnt lgkmcnt(0)")
        self.tag_from_epoch()
        a(f"s_and_b32 s31, s28, {FMASK:#x}\nv_mov_b32 v14, s31\ns_mov_b32 s49, {~FMASK & 0xFFFFFFFF:#x}")
        DF = self.dfirst
        a("s_cmp_lg_u32 s66, 0\ns_cbranch_scc1 L_tagged")
        self.arrive(C_A)
        a("L_tagged:")
        D1, D2 = self.d1, self.d2
        a(f"s_lshl_b32 s31, s47, 8\ns_lshl_b32 s32, s30, 6\ns_add_u32 s67, s31, s32\nv_lshlrev_b32 v15, 2, v2\nv_add_u32 v15, s32, v15")
        a("s_cmp_eq_u32 s30, 3\ns_cbranch_scc1 L_h1")
        a("s_cmp_eq_u32 s66, 0\ns_cbranch_scc1 L_key")
        if D1:
            self.wait(C_S0, 1)
            a(f"s_waitcnt vmcnt({self.dwait})")
            d_loads(0, D1)
        a(f"s_waitcnt vmcnt({D1})")
        self.stamp(1)
        a("L_key:")
        self.wait(C_S1, 1)
        a(f"ds_read_b64 v[18:19], v0 offset:{L_KEY}\ns_waitcnt lgkmcnt(0)\nv_readfirstlane_b32 s33, v19\nv_readfirstlane_b32 s34, v18")
        a("s_andn2_b32 s31, 0x7ff, s33\ns_lshl_b32 s31, s31, 11\ns_add_u32 s31, s31, s67\ns_load_dwordx16 s[76:91], s[4:5], s31")
        a("s_cmp_eq_u32 s66, 0\ns_cbranch_scc1 L_slice")
        d_loads(D1, D2)
        a("s_branch L_slice")
        a("L_h1:")
        a(f"s_mov_b32 s63, {GRAN}")
        a(f"s_waitcnt vmcnt({self.h1wait})")
        if not self.gate3:
            a("s_cmp_lg_u32 s66, 0\ns_cbranch_scc1 L_nogate")
        self.wait(self.gate, 4)
        a("L_nogate:")
        self.stamp(7)
        self.gran_issue(20)
        self.arrive(C_S0)
        a("s_waitcnt vmcnt(0)")
        self.stamp(8)
        self.gran_resolve("mi", 20, 18)
        a("s_andn2_b32 s31, 0x7ff, s33\ns_lshl_b32 s31, s31, 11\ns_add_u32 s31, s31, s67\ns_load_dwordx16 s[76:91], s[4:5], s31")
        a("s_sub_u32 s31, s31, 128\ns_load_dword s72, s[4:5], s31")
        self.gran_stats(20, 18)
        a(f"v_mov_b32 v19, s33\nv_mov_b32 v18, s34\nds_write_b64 v0, v[18:19] offset:{L_KEY}")
        self.arrive(C_S1)
        a("s_cmp_eq_u32 s66, 0\ns_cbranch_scc1 L_slice")
        d_loads(0, D2)
        a("L_slice:")
        a("s_lshl_b32 s52, s34, 16\ns_and_b32 s32, s34, 0xffff0000\nv_rcp_f32 v20, s32")
        a("s_waitcnt lgkmcnt(0)")
        a("s_cmp_eq_u32 s66, 0\ns_cbranch_scc1 L_idle")
        d_loads(D2, DF)
        for i in range(16):
            a(f"v_writelane_b32 v17, s{76 + i}, {i}")
        a("v_lshlrev_b32 v18, 16, v17\nv_and_b32 v19, 0xffff0000, v17")
        a("v_pk_add_f32 v[18:19], v[18:19], s[52:53] op_sel_hi:[1,0] neg_lo:[0,1] neg_hi:[0,1]")
        a("v_cvt_pk_bf16_f32 v17, v18, v19\nv_lshlrev_b32 v18, 16, v17\nv_and_b32 v19, 0xffff0000, v17")
        a("v_pk_mul_f32 v[18:19], v[18:19], v[20:21] op_sel_hi:[1,0]\nv_cvt_pk_bf16_f32 v17, v18, v19")
        a(f"s_mov_b64 exec, 0xffff\nds_write_b32 v15, v17 offset:{M_XS}")
        self.sync(C_S2)
        self.stamp(2)
        XA, BF, GA = 20, 36, 132
        order = [(ks, t) for ks in range(4) for t in range(4)]

        def brd(n):
            ks, t = order[n]
            if t == 0:
                a(f"ds_read_b128 v[{XA + 4 * ks}:{XA + 4 * ks + 3}], v8 offset:{M_XS + 64 * ks}")
            for v in range(2):
                a(f"ds_read_b64_tr_b16 v[{BF + 4 * n + 2 * v}:{BF + 4 * n + 2 * v + 1}], v{9 + t % 2} offset:{32768 * (t // 2) + 8192 * ks + 1024 * v}")

        def nreads(n):
            return 2 + (1 if order[n][1] == 0 else 0)

        LOOK = 6
        for n in range(LOOK):
            brd(n)
        for n in range(16):
            ks, t = order[n]
            left = sum(nreads(m) for m in range(n + 1, min(n + LOOK, 16)))
            a(f"s_waitcnt lgkmcnt({left})")
            self.mfma("bf16", GA + 4 * t, XA + 4 * ks, BF + 4 * n, None if ks == 0 else GA + 4 * t)
            if n + LOOK < 16:
                brd(n + LOOK)
        a("s_mov_b32 vcc_lo, 0xffff0000\ns_mov_b32 vcc_hi, 0")
        a(f"s_lshl_b32 s31, s50, 12\ns_lshl_b32 s32, s30, 7\ns_add_u32 s31, s31, s32\ns_add_u32 s31, s31, {HP}")
        a("v_lshrrev_b32 v15, 3, v2\nv_lshlrev_b32 v15, 9, v15\nv_add3_u32 v15, v15, v7, s31")
        a(f"v_cndmask_b32 v20, v{GA}, v{GA + 4}, vcc\nv_cndmask_b32 v21, v{GA + 8}, v{GA + 12}, vcc")
        a("v_and_or_b32 v20, v20, s49, v14\nv_and_or_b32 v21, v21, s49, v14")
        a("s_mov_b32 exec_hi, 0")
        a("buffer_store_dwordx2 v[20:21], v13, s[12:15], 0 offen sc1")
        a("s_mov_b64 exec, -1")
        d_loads(DF, 8)
        self.arrive(C_HP)
        self.stamp(3)
        pair = {}
        free = [98]
        a("s_mov_b32 s52, 0x05040100\ns_mov_b32 s53, 0x07060302")
        YA = 36
        for i in range(8):
            a(f"v_mov_b32 v{YA + i}, 0")
        a("v_and_b32 v16, 7, v2\nv_lshlrev_b32 v16, 2, v16\nv_lshrrev_b32 v17, 5, v2\nv_lshl_add_u32 v16, v17, 1, v16\ns_lshl_b32 s31, s30, 5\nv_add_u32 v16, s31, v16")
        a("v_lshrrev_b32 v17, 3, v2\nv_lshlrev_b32 v17, 4, v17")
        a(f"s_lshl_b32 s31, s50, 12\ns_lshl_b32 s32, s51, 8\ns_add_u32 s31, s31, s32\ns_add_u32 s31, s31, {YP}")
        a("v_lshlrev_b32 v18, 1, v7\nv_lshrrev_b32 v19, 4, v2\nv_lshl_add_u32 v18, v19, 3, v18\nv_add_u32 v18, s31, v18")
        for j in range(0, 8, 2):
            early = self.hpearly is not None and j >= self.hpearly
            if j == self.hpearly:
                a("buffer_load_dwordx4 v[20:23], v15, s[12:15], 0 offen sc1")
            a(f"s_waitcnt vmcnt({6 - j + (1 if j + 2 <= DF else 0) + (1 if early else 0)})")
            for d in range(4):
                r0, r1 = WD + 4 * j + d, WD + 4 * j + 4 + d
                t = free.pop()
                a(f"v_perm_b32 v{t}, v{r1}, v{r0}, s52\nv_perm_b32 v{r1}, v{r1}, v{r0}, s53")
                pair[(j // 2, 2 * d)] = t
                pair[(j // 2, 2 * d + 1)] = r1
                free.append(r0)
        self.stamp(4)
        if self.hpearly is not None:
            a("s_branch L_hp_wait")
        a("L_hp_poll:")
        a("buffer_load_dwordx4 v[20:23], v15, s[12:15], 0 offen sc1")
        a("L_hp_wait:")
        a("s_waitcnt vmcnt(0)")
        for i in range(4):
            a(f"v_xor_b32 v{20 + i}, v14, v{20 + i}")
        a(f"v_or3_b32 v24, v20, v21, v22\nv_or_b32 v24, v24, v23\nv_and_b32 v24, {FMASK:#x}, v24\nv_cmp_ne_u32 vcc, 0, v24")
        a("v_permlane16_swap_b32 v20, v21\nv_permlane16_swap_b32 v22, v23")
        a("s_cbranch_vccz L_hp_got")
        self.spin_guard("L_hp_got")
        a("s_branch L_hp_poll")
        a("L_hp_got:")
        self.stamp(5)
        a("v_add_f32 v20, v20, v21\nv_add_f32 v22, v22, v23\nv_permlane32_swap_b32 v20, v22\nv_add_f32 v20, v20, v22")
        a("v_add_f32_dpp v21, v20, v20 row_ror:8 row_mask:0xf bank_mask:0xf\nv_add_f32_dpp v20, v20, v20 row_ror:8 row_mask:0xf bank_mask:0xf")
        a("v_permlane16_swap_b32 v20, v21\nv_cvt_pk_bf16_f32 v20, v20, v21\nv_and_b32 v21, 0xffff0000, v20\nv_lshlrev_b32 v20, 16, v20")
        a("v_mul_f32 v22, 0xbfb8aa3b, v20\nv_exp_f32 v22, v22\nv_add_f32 v22, 1.0, v22\nv_rcp_f32 v22, v22\nv_mul_f32 v20, v20, v22")
        a("v_cvt_pk_bf16_f32 v20, v20, v20\nv_lshlrev_b32 v20, 16, v20\nv_mul_f32 v20, v20, v21\nv_cvt_pk_bf16_f32 v20, v20, v20")
        a(f"ds_write_b16 v16, v20 offset:{M_HS}")
        self.sync(C_H)
        a(f"ds_read_b128 v[20:23], v17 offset:{M_HS}\ns_waitcnt lgkmcnt(0)")
        for p in range(4):
            for c in range(8):
                a(f"v_dot2c_f32_bf16 v{YA + c}, v{20 + p}, v{pair[(p, c)]}")
        for c in range(4):
            a(f"v_permlane32_swap_b32 v{YA + c}, v{YA + c + 4}")
        for c in range(4):
            a(f"v_add_f32 v{YA + c}, v{YA + c}, v{YA + c + 4}")
        for c in range(2):
            a(f"v_permlane16_swap_b32 v{YA + c}, v{YA + c + 2}")
        for c in range(2):
            a(f"v_add_f32 v{YA + c}, v{YA + c}, v{YA + c + 2}")
        for c in range(2):
            a(f"v_add_f32_dpp v{YA + c}, v{YA + c}, v{YA + c} row_ror:8 row_mask:0xf bank_mask:0xf")
        a(f"v_and_or_b32 v{YA}, v{YA}, s49, v14\nv_and_or_b32 v{YA + 1}, v{YA + 1}, s49, v14")
        a("s_mov_b32 exec_lo, 0x00ff00ff\ns_mov_b32 exec_hi, 0x00ff00ff")
        a(f"buffer_store_dwordx2 v[{YA}:{YA + 1}], v18, s[12:15], 0 offen sc1")
        self.arrive(C_Y)
        self.stamp(6)
        a("s_branch L_owner")
        a("L_idle:")
        for c in (C_S2, C_HP, C_H, C_Y):
            self.arrive(c)
        a("L_owner:")
        if self.diag:
            a("s_branch L_fin")
        a("s_andn2_b32 s51, 0x7ff, s33\ns_xor_b32 s31, s51, s2\ns_and_b32 s31, s31, 7\ns_cbranch_scc1 L_fin")
        YL, YC = 20, 28
        a("s_mov_b32 s16, s44\ns_mov_b32 s17, s45\ns_mov_b32 s18, 0x400000\ns_lshr_b32 s47, s2, 3")
        a("s_lshl_b32 s31, s51, 11\ns_lshl_b32 s32, s47, 6\ns_add_u32 s63, s31, s32\nv_and_b32 v8, 31, v2\nv_lshlrev_b32 v8, 1, v8")
        a("buffer_load_ushort v9, v8, s[8:11], s63 offen")
        a(f"v_lshrrev_b32 v4, 3, v2\ns_lshl_b32 s31, s30, 4\nv_add_u32 v4, s31, v4\nv_lshlrev_b32 v4, 12, v4")
        a(f"s_lshl_b32 s31, s47, 7\ns_add_u32 s31, s31, {YP}\nv_add3_u32 v4, v4, v7, s31\ns_mov_b32 s62, 32768")
        for i in range(4):
            a(f"v_mov_b32 v{YL + 4 + i}, v14")
        a("v_lshrrev_b32 v5, 4, v2\nv_lshl_add_u32 v6, v5, 2, v7\ns_lshl_b32 s31, s30, 7\nv_add_u32 v6, s31, v6")
        a("s_ashr_i32 s31, s33, 31\ns_orn2_b32 s31, 0x80000000, s31\ns_xor_b32 s31, s31, s33\ns_and_b32 s31, s31, 0xfffff800")
        a("v_cvt_pk_bf16_f32 v11, s31, s31\nv_lshlrev_b32 v11, 16, v11\nv_mul_f32 v11, 0xbfb8aa3b, v11\nv_exp_f32 v11, v11\ns_and_b32 s32, s34, 0xffff0000\nv_add_f32 v11, 1.0, v11\nv_rcp_f32 v11, v11")
        a("v_rcp_f32 v12, s32\nv_cvt_pk_bf16_f32 v11, v11, v11\nv_lshlrev_b32 v11, 16, v11\ns_lshl_b32 s31, s34, 16")
        a("s_waitcnt vmcnt(0)")
        a("v_lshlrev_b32 v9, 16, v9\nv_subrev_f32 v10, s31, v9\nv_cvt_pk_bf16_f32 v10, v10, v10\nv_lshlrev_b32 v10, 16, v10\nv_mul_f32 v10, v10, v12")
        a("v_cvt_pk_bf16_f32 v10, v10, v10\nv_lshlrev_b32 v10, 16, v10\nv_lshlrev_b32 v13, 1, v8\ns_mov_b64 vcc, -1")
        a("L_y_poll:")
        a("s_mov_b64 exec, vcc")
        a(f"buffer_load_dwordx4 v[{YL}:{YL + 3}], v4, s[12:15], 0 offen sc1")
        a("s_cmp_eq_u32 s30, 3\ns_cbranch_scc1 L_y_one")
        a(f"buffer_load_dwordx4 v[{YL + 4}:{YL + 7}], v4, s[12:15], s62 offen sc1")
        a("L_y_one:\ns_mov_b64 exec, -1\ns_waitcnt vmcnt(0)")
        for i in range(8):
            a(f"v_xor_b32 v{YC + i}, v14, v{YL + i}")
        a(f"v_or3_b32 v1, v{YC}, v{YC + 1}, v{YC + 2}\nv_or3_b32 v1, v1, v{YC + 3}, v{YC + 4}\nv_or3_b32 v1, v1, v{YC + 5}, v{YC + 6}\nv_or_b32 v1, v1, v{YC + 7}")
        a(f"v_and_b32 v1, {FMASK:#x}, v1\nv_cmp_ne_u32 vcc, 0, v1")
        for p in (0, 2):
            a(f"v_pk_add_f32 v[{YC + p}:{YC + p + 1}], v[{YC + p}:{YC + p + 1}], v[{YC + 4 + p}:{YC + 5 + p}]")
        a("s_cbranch_vccz L_y_got")
        self.spin_guard("L_y_got")
        a("s_branch L_y_poll")
        a("L_y_got:")
        a(f"v_permlane16_swap_b32 v{YC}, v{YC + 1}\nv_permlane16_swap_b32 v{YC + 2}, v{YC + 3}")
        a(f"v_add_f32 v{YC}, v{YC}, v{YC + 1}\nv_add_f32 v{YC + 2}, v{YC + 2}, v{YC + 3}")
        a(f"v_permlane32_swap_b32 v{YC}, v{YC + 2}\nv_add_f32 v{YC}, v{YC}, v{YC + 2}")
        a(f"v_add_f32_dpp v{YC}, v{YC}, v{YC} row_ror:8 row_mask:0xf bank_mask:0xf")
        a(f"ds_write_b32 v6, v{YC} offset:{L_YS}")
        self.arrive(C_ROW)
        self.stamp(13)
        a("s_cmp_lg_u32 s30, 0\ns_cbranch_scc1 L_fin")
        a(f"s_cmp_eq_u32 s47, 0\ns_cselect_b32 s32, {EPOCH}, {OOB}\nv_mov_b32 v5, {OOB}\nv_writelane_b32 v5, s32, 0\nv_mov_b32 v6, s28\nv_mov_b32 v7, s29")
        self.wait(C_ROW, 5)
        for j in range(4):
            a(f"ds_read_b32 v{YL + j}, v13 offset:{L_YS + 128 * j}")
        a(f"ds_read_b32 v{YL + 4}, v13 offset:{L_ROW}")
        a("s_waitcnt lgkmcnt(0)")
        y = YL
        a(f"v_add_f32 v{y}, v{y}, v{y + 1}\nv_add_f32 v{y + 2}, v{y + 2}, v{y + 3}\nv_add_f32 v{y}, v{y}, v{y + 2}")
        a(f"v_cvt_pk_bf16_f32 v{y}, v{y}, v{y}\nv_lshlrev_b32 v{y}, 16, v{y}\nv_mul_f32 v{y}, v{y}, v11")
        a(f"v_cvt_pk_bf16_f32 v{y}, v{y}, v{y}\nv_lshlrev_b32 v{y}, 16, v{y}\nv_add_f32 v{y}, v{y}, v10")
        a(f"v_cvt_pk_bf16_f32 v{y}, v{y}, v{y}\nv_lshlrev_b32 v{y}, 16, v{y}\nv_mul_f32 v1, 0xbfb8aa3b, v{y}")
        a(f"v_exp_f32 v1, v1\nv_mul_f32 v{y}, v{y}, v{YL + 4}\nv_add_f32 v1, 1.0, v1\nv_rcp_f32 v1, v1")
        a(f"s_mov_b32 exec_hi, 0\nv_fma_f32 v{y}, v{y}, v1, v9\nv_cvt_pk_bf16_f32 v{y}, v{y}, v{y}")
        a(f"buffer_store_short v{y}, v8, s[16:19], s63 offen {self.oflag}")
        a("buffer_store_dwordx2 v[6:7], v5, s[12:15], 0 offen sc1")
        a("s_mov_b64 exec, -1")
        self.stamp(14)

    def finish(self):
        a = self.a
        a("L_fin:")
        self.role = "all"
        if self.probe:
            if self.probe == ("all", 15):
                a("s_waitcnt vmcnt(0)")
                self.stamp(15)
            a("s_cmp_eq_u32 s68, 0\ns_cbranch_scc1 L_exit\ns_mov_b32 s35, 100000")
            a("L_probe:\ns_sleep 1\ns_memrealtime s[70:71]\ns_waitcnt lgkmcnt(0)\ns_sub_u32 s31, s70, s68\ns_cmp_ge_u32 s31, 4000\ns_cbranch_scc1 L_exit")
            a("s_cmp_eq_u32 s35, 0\ns_cbranch_scc1 L_exit\ns_sub_u32 s35, s35, 1\ns_branch L_probe")
        if self.stamps:
            a("s_waitcnt vmcnt(0)")
            self.stamp(15)
            a(f"v_writelane_b32 v211, s68, 0\ns_lshl_b32 s31, s2, 3\ns_add_u32 s31, s31, s3\ns_lshl_b32 s31, s31, 6\ns_add_u32 s31, s31, {STAMP}\nv_lshl_add_u32 v4, v2, 2, s31")
            a("s_mov_b64 exec, 0xffff\nbuffer_store_dword v211, v4, s[12:15], 0 offen")
        a("L_exit:")
        a("s_endpgm")
        a("L_code_end:")
        a.kernel_desc(NAME + "_kernel", 256, 92)
        a.add_launch(NAME + "_kernel", NWG, 64 * WAVES, LDS_BYTES)

    def build(self, path, verbose=False):
        self.prologue()
        self.dft()
        self.moe()
        self.finish()
        rep = []
        self.a.lines = hazard.fix(self.a.lines, rep)
        if verbose:
            for pad, s in rep:
                print("nop", pad, s)
        self.a.write(path, HEADER)


GROUPS = {"dft": (slice(0, 256), slice(0, 4)), "load": (slice(0, 224), slice(4, 7)), "h1": (slice(0, 224), slice(7, 8)), "idle": (slice(224, 256), slice(4, 8))}

if __name__ == "__main__":
    kw = eval(sys.argv[2]) if len(sys.argv) > 2 else {}
    Gen(**kw).build(sys.argv[1], verbose=True)
```

```python
import struct
import sys

sys.path.insert(0, "tools")
from asmgen import Asm, NAME
import hazard

EPOCH = 0
GRAN = 0x1000
STAT = 0x8000
HP = 0x40000
YP = 0x80000
ZB = 0x200000
ZTS = 129 * 128
STAMP = 0x1000000
OOB = 0x7FFFFF00
WBYTES = 1024 * 3584 * 2
ZMASK = 0x00030003
FMASK = 0x000000FF

RS, QS = 2592, 640
MISC = 16 * RS
EX = MISC + 2560
L_ENT = MISC
L_KEY = MISC + 80
L_MEAN = MISC + 96
L_YS = MISC + 1536
L_ROW = MISC + 1024
L_RST = MISC + 1280
L_CNT = MISC + 1344
M_XS = MISC + 640
M_HS = MISC + 896
M_G = EX + 32768
M_U = M_G + 32768
LDS_BYTES = M_U + 32768
C_A, C_B, C_C, C_ST3, C_D, C_ROW, C_S1, C_S2, C_HP, C_H, C_Y, C_S0, C_ROW1, C_DMA = range(14)
SHD = 16640
REL = {"s0": (C_S0, 1), "s1": (C_S1, 1), "s2": (C_S2, 1), "hp": (C_HP, 4), "h": (C_H, 4), "y": (C_Y, 4)}

SPIN = 1 << 16
NWG = 256
WAVES = 8

HEADER = """; Fused kernel: LayerNorm, Re(2-D DFT) as a folded mixed-radix transform on MFMA, routed-token SwiGLU, gating.
; Waves 0..3 of a workgroup run the transform, waves 4..7 the routed-token path."""

SHR = ("row_shr:1", "row_shr:2", "row_shr:4", "row_shr:8")


def fbits(x):
    return struct.unpack("<I", struct.pack("<f", float(x)))[0]


class Gen:
    def __init__(self, stamps=False, probe=None, diag=None, wflag="", oflag="sc1", prefetch=True, prio=True, psleep=2,
                 win=3, n3=8, win3=3, h1wait=2, hpearly=None, dfirst=4, gate3=True, rel_zw="s0", rel_x="hp", rel_zr="h", zdelay=2, d1=0, d2=2, dwait=2, gate=C_ST3, order="zxm", xearly=2, rel_x0="s0", zwith=True):
        self.a = Asm()
        self.role = "all"
        self.nsync = 0
        self.__dict__.update(stamps=stamps, probe=probe, diag=diag, wflag=wflag, oflag=oflag, prefetch=prefetch, prio=prio,
                             psleep=psleep, win=win, n3=n3, win3=win3, h1wait=h1wait, hpearly=hpearly, dfirst=dfirst, gate3=gate3,
                             rel_zw=rel_zw, rel_x=rel_x, rel_zr=rel_zr, zdelay=zdelay, d1=d1, d2=d2, dwait=dwait, gate=gate, order=order, xearly=xearly, rel_x0=rel_x0, zwith=zwith)

    def arrive(self, c):
        self.a(f"s_mov_b64 exec, 1\nds_add_u32 v0, v255 offset:{L_CNT + 4 * c}\ns_mov_b64 exec, -1")

    def wait(self, c, n):
        self.nsync += 1
        lb = f"L_sync{self.nsync}"
        self.a(f"{lb}:\nds_read_b32 v1, v0 offset:{L_CNT + 4 * c}\ns_waitcnt lgkmcnt(0)\nv_readfirstlane_b32 s31, v1\ns_cmp_ge_u32 s31, {n}\ns_cbranch_scc0 {lb}")

    def sync(self, c, n=4):
        self.arrive(c)
        self.wait(c, n)

    def release(self, name):
        if name:
            self.wait(*REL[name])

    def stamp(self, i):
        if self.probe == (self.role, i):
            self.a("s_memrealtime s[68:69]\ns_waitcnt lgkmcnt(0)")
        if self.stamps and (self.stamps is True or i == 15 or (self.role, i) in self.stamps):
            self.a(f"s_memrealtime s[70:71]\ns_waitcnt lgkmcnt(0)\nv_writelane_b32 v211, s70, {i}")

    def fine(self, i):
        if self.diag == "fine" and i not in (2, 3, 4, 5):
            self.a(f"s_memtime s[{76 + 2 * i}:{77 + 2 * i}]")

    def spin_guard(self, out):
        self.a(f"s_cmp_eq_u32 s35, 0\ns_cbranch_scc1 {out}\ns_sub_u32 s35, s35, 1")
        if self.psleep:
            self.a(f"s_sleep {self.psleep}")

    def setprio(self, p):
        if self.prio:
            self.a(f"s_setprio {p}")

    def mfma(self, ty, d, A, B, c=None):
        c = "0" if c is None else f"v[{c}:{c + 3}]"
        self.a(f"v_mfma_f32_16x16x32_{ty} v[{d}:{d + 3}], v[{A}:{A + 3}], v[{B}:{B + 3}], {c}")

    def prologue(self):
        a = self.a
        a.begin(NAME + "_kernel")
        a(f"s_cmp_ge_u32 s2, {NWG}\ns_cbranch_scc1 L_exit")
        a("s_load_dwordx2 s[4:5], s[0:1], 0")
        a("s_load_dwordx2 s[6:7], s[0:1], 96")
        a("s_load_dwordx8 s[36:43], s[0:1], 48")
        a("s_load_dwordx2 s[44:45], s[0:1], 80")
        if self.stamps:
            a("s_memrealtime s[68:69]")
            a("v_mov_b32 v211, 0")
        if self.probe:
            a("s_mov_b32 s68, 0")
            if self.probe == ("all", 0):
                a("s_memrealtime s[68:69]")
        if self.prefetch:
            a("s_getpc_b64 s[32:33]\nL_pc:\ns_bfe_u32 s31, s2, 0x30003\nv_subrev_u32 v3, 496, v0\nv_lshl_add_u32 v3, v3, 3, s31\nv_lshlrev_b32 v3, 7, v3")
            a("v_cmp_gt_u32 vcc, L_code_end-L_pc, v3\ns_and_saveexec_b64 s[46:47], vcc\ns_cbranch_execz L_nopf")
            a("global_load_dword v254, v3, s[32:33]")
            a("L_nopf:\ns_mov_b64 exec, -1")
        a("v_lshrrev_b32 v1, 6, v0\nv_and_b32 v2, 63, v0")
        a("v_readfirstlane_b32 s30, v1")
        a("s_mov_b32 s10, 0x400000\ns_mov_b32 s11, 0x00020000\ns_mov_b32 s14, 0x10000000\ns_mov_b32 s15, 0x00020000")
        a(f"s_mov_b32 s35, {SPIN}\nv_lshlrev_b32 v3, 4, v2")
        a("v_mov_b32 v0, 0\nv_mov_b32 v255, 1\ns_mov_b32 s3, s30\ns_and_b32 s30, s30, 3")
        a("s_cmp_ge_u32 s3, 4\ns_cbranch_scc1 L_moe")

    def base_srds(self):
        self.a("s_mov_b32 s8, s4\ns_mov_b32 s9, s5\ns_mov_b32 s12, s6\ns_mov_b32 s13, s7")

    def tag_from_epoch(self):
        self.a("s_add_u32 s28, s28, 0x7f4a7c15\ns_addc_u32 s29, s29, 0x9e3779b9")

    def gran_issue(self, g):
        for j in range(4):
            self.a(f"buffer_load_dwordx4 v[{g + 4 * j}:{g + 4 * j + 3}], v3, s[12:15], s63 offen offset:{1024 * j} sc1")

    def gran_resolve(self, name, g, k):
        a = self.a
        a(f"L_{name}_check:")
        for j in range(4):
            a(f"v_cmp_ne_u64 s[{52 + 2 * j}:{53 + 2 * j}], s[28:29], v[{g + 4 * j + 2}:{g + 4 * j + 3}]")
        a(f"v_max_u32 v{k}, v{g + 1}, v{g + 5}\nv_max3_u32 v{k}, v{k}, v{g + 9}, v{g + 13}")
        a("s_or_b64 s[64:65], s[52:53], s[54:55]\ns_or_b64 vcc, s[56:57], s[58:59]\ns_or_b64 s[64:65], s[64:65], vcc")
        a(f"s_cbranch_scc0 L_{name}_got")
        self.spin_guard(f"L_{name}_got")
        for j in range(4):
            a(f"s_mov_b64 exec, s[{52 + 2 * j}:{53 + 2 * j}]\ns_cbranch_execz L_{name}_skip{j}")
            a(f"buffer_load_dwordx4 v[{g + 4 * j}:{g + 4 * j + 3}], v3, s[12:15], s63 offen offset:{1024 * j} sc1")
            a(f"L_{name}_skip{j}:")
        a(f"s_mov_b64 exec, -1\ns_waitcnt vmcnt(0)\ns_branch L_{name}_check")
        a(f"L_{name}_got:")
        a(f"v_max_u32_dpp v{k + 1}, v{k}, v{k} row_ror:1 row_mask:0xf bank_mask:0xf")
        for d in ("row_ror:2", "row_ror:4", "row_ror:8"):
            a(f"v_max_u32_dpp v{k + 1}, v{k + 1}, v{k + 1} {d} row_mask:0xf bank_mask:0xf")
        a(f"v_readlane_b32 s33, v{k + 1}, 0\nv_readlane_b32 s31, v{k + 1}, 16\nv_readlane_b32 s32, v{k + 1}, 32\nv_readlane_b32 s34, v{k + 1}, 48")
        a("s_max_u32 s33, s33, s31\ns_max_u32 s32, s32, s34\ns_max_u32 s33, s33, s32")

    def gran_stats(self, g, k):
        a = self.a
        for j in (1, 2, 3):
            a(f"v_cmp_eq_u32 s[{50 + 2 * j}:{51 + 2 * j}], s33, v{g + 4 * j + 1}")
        a(f"v_cmp_eq_u32 vcc, s33, v{k}")
        a(f"v_cndmask_b32 v{k + 1}, v{g}, v{g + 4}, s[52:53]\nv_cndmask_b32 v{k + 1}, v{k + 1}, v{g + 8}, s[54:55]\nv_cndmask_b32 v{k + 1}, v{k + 1}, v{g + 12}, s[56:57]")
        a("s_ff1_i32_b64 s32, vcc")
        a(f"v_readlane_b32 s34, v{k + 1}, s32")

    def p2_matrix(self, MM, T0, T1, T2):
        a = self.a
        a(f"v_and_b32 v{T0}, 15, v2\nv_add_u32 v{T0}, s53, v{T0}\nv_cvt_f32_u32 v{T0}, v{T0}\nv_add_f32 v{T0}, 0.5, v{T0}\nv_mul_f32 v{T0}, 0x3b800000, v{T0}")
        a(f"v_and_b32 v{T1}, 32, v2\nv_bfe_u32 v{T2}, v2, 4, 1\nv_lshl_add_u32 v{T1}, v{T2}, 3, v{T1}\nv_cvt_f32_u32 v{T1}, v{T1}\nv_mul_f32 v{T1}, v{T1}, v{T0}")
        for p in range(2):
            for hf in range(2):
                for dw in range(4):
                    c0 = 64 * hf + 16 * (dw // 2) + 4 * (dw % 2) + p
                    dc, ds = MM + 4 * (2 * p + hf) + dw, MM + 16 + 4 * (2 * p + hf) + dw
                    a(f"v_fmamk_f32 v{dc}, v{T0}, {fbits(c0):#x}, v{T1}\nv_fmamk_f32 v{T2}, v{T0}, {fbits(c0 + 2):#x}, v{T1}")
                    a(f"v_sin_f32 v{ds}, v{dc}\nv_sin_f32 v{T2 + 1}, v{T2}\nv_cos_f32 v{dc}, v{dc}\nv_cos_f32 v{T2}, v{T2}")
                    a(f"v_cvt_pk_f16_f32 v{ds}, v{ds}, v{T2 + 1}\nv_cvt_pk_f16_f32 v{dc}, v{dc}, v{T2}")
        a(f"v_cmp_gt_u32 vcc, 16, v2\nv_and_b32 v{T2}, 1, v2\nv_lshlrev_b32 v{T2}, 15, v{T2}\nv_or_b32 v{T2}, 0x3c00, v{T2}\nv_and_b32 v{T0}, 0xffff0000, v{MM + 16}\nv_or_b32 v{T2}, v{T2}, v{T0}")
        a(f"v_cndmask_b32 v{MM + 16}, v{MM + 16}, v{T2}, vcc")

    def tile_decode(self):
        self.a("s_and_b32 s31, s2, 7\ns_sub_u32 s32, 8, s31\ns_min_u32 s46, s31, s32\ns_cmp_gt_u32 s31, 4\ns_cselect_b32 s31, 16, 0")
        self.a("s_lshr_b32 s47, s2, 4\ns_add_u32 s47, s47, s31\ns_bfe_u32 s53, s2, 0x10003\ns_lshl_b32 s53, s53, 7\ns_add_u32 s53, s53, s31")

    def sleep(self, n):
        while n > 0:
            self.a(f"s_sleep {min(n, 127)}")
            n -= 127

    def dft(self):
        a = self.a
        self.role = "dft"
        CV, M2, TW, M3, MM = 8, 16, 48, 80, 88
        RW, WR = 120, 152
        T = 160
        VPUB = 4

        a("s_and_b32 s31, s2, 7\ns_lshr_b32 s32, s2, 4\ns_sub_u32 s32, 15, s32\ns_lshl_b32 s32, s32, 3\ns_add_u32 s46, s32, s31\ns_bfe_u32 s47, s2, 0x10003")
        a("s_lshl_b32 s31, s30, 9\ns_add_u32 s52, s31, s46\ns_sub_u32 s54, 2048, s52\ns_add_u32 s31, s52, 128")
        a("s_cmp_eq_u32 s46, 0\ns_cselect_b32 s54, s31, s54\ns_cselect_b32 s50, 1, 0\ns_cselect_b32 s31, 1, -1\ns_lshl_b32 s31, s31, 8")
        a("s_add_u32 s53, s52, 256\ns_add_u32 s55, s54, s31")
        for i in range(4):
            a(f"s_lshl_b32 s{56 + i}, s{52 + i}, 11")
        a("s_mov_b32 s22, 2048\ns_mov_b32 s23, 0x00020000")
        a(f"v_mov_b32 v1, 0\nv_and_b32 v6, 15, v2\nv_lshlrev_b32 v6, 2, v6\nds_write_b64 v0, v[0:1] offset:{L_ENT + 64}\nds_write_b32 v6, v0 offset:{L_CNT}")
        a("s_waitcnt lgkmcnt(0)")
        self.base_srds()
        a("s_mov_b32 s20, s36\ns_mov_b32 s21, s37")
        a(f"buffer_load_dwordx4 v[{WR}:{WR + 3}], v3, s[20:23], 0 offen")
        a(f"buffer_load_dwordx4 v[{WR + 4}:{WR + 7}], v3, s[20:23], 0 offen offset:1024")
        for r in range(4):
            a(f"buffer_load_dwordx4 v[{RW + 8 * r}:{RW + 8 * r + 3}], v3, s[8:11], s{56 + r} offen")
            a(f"buffer_load_dwordx4 v[{RW + 8 * r + 4}:{RW + 8 * r + 7}], v3, s[8:11], s{56 + r} offen offset:1024")
        a("s_barrier")
        if self.diag == "xarr":
            self.stamp(12)
            a("s_waitcnt vmcnt(6)")
            self.stamp(13)
            a("s_waitcnt vmcnt(0)")
            self.stamp(14)
        a(f"s_load_dwordx2 s[28:29], s[6:7], {EPOCH}")
        a("s_mov_b32 s16, s44\ns_mov_b32 s17, s45\ns_mov_b32 s18, 0x400000\ns_mov_b32 s19, 0x00020000")
        a(f"v_mov_b32 v5, {L_ENT + 64}")
        VROW, VEN, VST, VLD, VLM, VTR, VEX, VSG = T + 40, T + 41, T + 42, T + 44, T + 45, T + 46, T + 47, T + 48
        for r in range(4):
            a(f"v_writelane_b32 v{VROW}, s{52 + r}, {16 * r + 15}")
        a(f"v_lshrrev_b32 v{VEN}, 8, v{VROW}\nv_lshlrev_b32 v{VEN}, 3, v{VEN}\nv_sub_u32 v{VROW}, 2047, v{VROW}")
        a(f"v_bfe_u32 v{VST}, v2, 4, 1\nv_lshrrev_b32 v6, 5, v2\nv_lshl_add_u32 v{VST}, v6, 3, v{VST}\ns_lshl_b32 s31, s30, 1\nv_add_u32 v{VST}, s31, v{VST}")
        a(f"v_lshlrev_b32 v{VST + 1}, 2, v{VST}\nv_lshlrev_b32 v{VST}, 1, v{VST}")
        a("s_cmp_eq_u32 s47, 0\ns_cselect_b32 s51, s52, s54\ns_and_b32 s51, s51, 255")
        a(f"s_cmp_eq_u32 s30, 3\ns_cselect_b32 s32, 9, 0\nv_cmp_gt_u32 vcc, s32, v2\ns_lshl_b32 s31, s51, 7\ns_add_u32 s31, s31, {STAT}\nv_add_u32 v{VPUB}, s31, v3")
        a(f"s_lshl_b32 s31, s51, 4\ns_add_u32 s31, s31, {GRAN}\nv_writelane_b32 v{VPUB}, s31, 8\nv_mov_b32 v6, {OOB}\nv_cndmask_b32 v{VPUB}, v6, v{VPUB}, vcc")
        a(f"s_mul_i32 s31, s30, {2 * RS}\nv_and_b32 v{VLD}, 32, v2\nv_lshlrev_b32 v{VLD}, 2, v{VLD}\nv_add3_u32 v{VLD}, v{VLD}, v3, s31")
        a(f"s_lshl_b32 s32, s31, 1\ns_add_u32 s32, s32, {8 * RS + 63 * 16 + 128}\nv_sub_u32 v{VLM}, s32, v{VLD}")
        a(f"v_bfe_u32 v{VTR}, v2, 2, 2\nv_mul_u32_u24 v{VTR}, {RS}, v{VTR}\nv_lshrrev_b32 v6, 4, v2\nv_mul_u32_u24 v7, {QS}, v6\nv_add_u32 v{VTR}, v{VTR}, v7")
        a(f"v_and_b32 v7, 3, v2\nv_lshlrev_b32 v7, 3, v7\ns_lshl_b32 s31, s30, 7\nv_add3_u32 v{VTR}, v{VTR}, v7, s31")
        a(f"v_lshlrev_b32 v6, 12, v6\nv_and_b32 v7, 15, v2\nv_lshl_add_u32 v6, v7, 4, v6\ns_lshl_b32 s31, s30, 8\nv_add_u32 v{VEX}, s31, v6")
        a(f"v_bfe_i32 v{VSG}, v2, 4, 1\nv_and_b32 v{VSG}, 0x80008000, v{VSG}")

        T0, T1, T2 = T, T + 1, T + 2
        a(f"s_cmp_eq_u32 s47, 0\ns_movk_i32 s48, 0x7403\ns_cselect_b32 s48, 0x7721, s48\nv_and_b32 v{T0}, 12, v2\nv_bfe_u32 v{T0}, s48, v{T0}, 4")
        a(f"v_lshrrev_b32 v{T1}, 4, v2\nv_bfe_u32 v{T2}, v2, 1, 1\nv_mul_u32_u24 v{T1}, v{T1}, v{T2}\nv_and_b32 v{T2}, 1, v2\nv_add_u32 v{T1}, v{T1}, v{T2}")
        a(f"v_cvt_f32_u32 v{T0}, v{T0}\nv_cvt_f32_u32 v{T1}, v{T1}\nv_mul_f32 v{T0}, 0x3e000000, v{T0}\nv_mul_f32 v{T1}, 0x3e800000, v{T1}")
        for j in range(8):
            a(f"v_cos_f32 v{CV + j}, v{T1}")
            if j < 7:
                a(f"v_add_f32 v{T1}, v{T1}, v{T0}")
        for j in range(8):
            a(f"v_mul_f32 v{CV + j}, 0xbf317218, v{CV + j}")
        BI = T + 52
        a(f"v_lshrrev_b32 v{T0}, 2, v2\nv_and_b32 v{T0}, 12, v{T0}\nv_and_b32 v{T1}, 15, v2\nv_lshlrev_b32 v{T1}, 2, v{T1}")
        a(f"v_cvt_f32_u32 v{T0}, v{T0}\nv_cvt_f32_u32 v{T1}, v{T1}\nv_mul_f32 v{BI}, 0x3c800000, v{T0}")
        a(f"s_lshl_b32 s31, s30, 2\ns_lshr_b32 s48, s48, s31\ns_and_b32 s48, s48, 15\ns_sub_u32 s31, s48, 4\ns_mul_i32 s31, s31, s46\nv_cvt_f32_i32 v{T2}, s31\nv_mul_f32 v{T2}, 0x3a000000, v{T2}")
        a(f"v_add_f32 v{BI + 1}, 0x3c800000, v{BI}\nv_add_f32 v{BI + 2}, 0x3d000000, v{BI}\nv_add_f32 v{BI + 3}, 0x3d400000, v{BI}")
        for f in range(4):
            for i in range(4):
                re, im = M2 + 8 * f + i, M2 + 8 * f + 4 + i
                tc, ts = TW + 8 * f + i, TW + 8 * f + 4 + i
                a(f"v_mul_f32 v{T0}, v{BI + i}, v{T1}")
                a(f"v_fmamk_f32 v{ts}, v{T0}, 0x3d800000, v{T2}")
                a(f"v_sin_f32 v{im}, v{T0}\nv_cos_f32 v{T0}, v{T0}\nv_cos_f32 v{tc}, v{ts}\nv_sin_f32 v{ts}, v{ts}")
                a(f"v_cvt_pk_f16_f32 v{re}, v{T0}, v{im}\nv_cvt_pk_f16_f32 v{im}, -v{im}, v{T0}")
            if f < 3:
                a(f"v_add_f32 v{T1}, 1.0, v{T1}")
        a("s_and_b32 s31, s46, 1\ns_lshl_b32 s31, s31, 6\ns_lshr_b32 s32, s46, 1\ns_add_u32 s49, s31, s32")
        a("s_bitcmp1_b32 s49, 2\ns_cselect_b64 vcc, -1, 0")
        for i in range(4):
            a(f"v_cndmask_b32 v{M3 + i}, v{M2 + i}, v{M2 + 4 + i}, vcc\nv_cndmask_b32 v{M3 + 4 + i}, v{M2 + 4 + i}, v{M2 + i}, vcc")
        VZ = T + 49
        a(f"s_bfe_u32 s31, s49, 0x10001\nv_and_b32 v6, 7, v2\nv_xor_b32 v6, s31, v6\nv_lshlrev_b32 v6, 4, v6")
        a(f"v_lshrrev_b32 v7, 4, v2\nv_lshlrev_b32 v7, 3, v7\nv_bfe_u32 v{VZ}, v2, 3, 1\nv_add_u32 v7, v7, v{VZ}\nv_mul_u32_u24 v7, {ZTS}, v7\nv_add_u32 v{VZ}, v6, v7")
        a(f"s_mul_i32 s31, s48, {32 * ZTS}\ns_lshl_b32 s32, s49, 7\ns_add_u32 s31, s31, s32\ns_add_u32 s60, s31, {ZB}")
        SS, QQ, DD, DC = T, T + 4, T + 8, T + 10
        for r in range(11):
            a(f"v_mov_b32 v{T + r}, 0")
        a("s_mov_b32 s57, 0x3f803f80\ns_mov_b32 s59, 0xffff\ns_brev_b32 s67, 1\ns_mov_b32 s66, 0\ns_mov_b32 s64, 0x80008000\ns_mov_b32 s65, 0x80008000")
        a("s_cmp_eq_u32 s47, 0\ns_cselect_b32 s62, s64, 0\ns_cselect_b32 s63, 0, s64")
        a(f"s_cmp_ge_u32 s2, {0 if self.diag == 'nomoe' else 224}\ns_cselect_b32 s61, 8, 4")
        a("s_waitcnt vmcnt(8)")
        for i in range(8):
            a(f"v_dot2c_f32_bf16 v{DC}, s57, v{WR + i}")
        for d in SHR:
            a(f"v_add_f32_dpp v{DC}, v{DC}, v{DC} {d} row_mask:0xf bank_mask:0xf")
        a(f"v_add_f32_dpp v{DC}, v{DC}, v{DC} row_bcast:15 row_mask:0xa bank_mask:0xf\nv_add_f32_dpp v{DC}, v{DC}, v{DC} row_bcast:31 row_mask:0xc bank_mask:0xf")
        a(f"v_readlane_b32 s56, v{DC}, 63")
        a("s_waitcnt lgkmcnt(0)")
        self.tag_from_epoch()
        self.setprio(2)
        self.stamp(1)

        def sq(r):
            for i in range(8):
                x = RW + 8 * r + i
                a(f"v_dot2c_f32_bf16 v{SS + r}, s57, v{x}\nv_dot2c_f32_bf16 v{QQ + r}, v{x}, v{x}")

        def rdot(r0):
            for i in range(8):
                a(f"v_dot2c_f32_bf16 v{DD}, v{WR + i}, v{RW + 8 * r0 + i}\nv_dot2c_f32_bf16 v{DD + 1}, v{WR + i}, v{RW + 8 * r0 + 8 + i}")

        for r in range(2):
            a(f"s_waitcnt vmcnt({6 - 2 * r})")
            a(f"ds_write_b128 v{VLD}, v[{RW + 8 * r}:{RW + 8 * r + 3}] offset:{RS * r}\nds_write_b128 v{VLD}, v[{RW + 8 * r + 4}:{RW + 8 * r + 7}] offset:{RS * r + 2 * QS}")
            sq(r)
        a("s_cmp_lg_u32 s47, 0\ns_cbranch_scc1 L_dot_m")
        rdot(0)
        a("s_waitcnt vmcnt(0)\ns_branch L_dot_done")
        a("L_dot_m:\ns_waitcnt vmcnt(0)")
        rdot(2)
        a("L_dot_done:")
        self.stamp(2)
        sq(2)
        a(f"v_permlane16_swap_b32 v{DD}, v{DD + 1}\nv_permlane16_swap_b32 v{SS}, v{SS + 1}\nv_permlane16_swap_b32 v{QQ}, v{QQ + 1}")
        a(f"v_add_f32 v{DD}, v{DD}, v{DD + 1}\nv_add_f32 v{SS}, v{SS}, v{SS + 1}\nv_add_f32 v{QQ}, v{QQ}, v{QQ + 1}\nv_mov_b32 v{DD + 1}, v{DD}")
        sq(3)
        a(f"v_permlane32_swap_b32 v{DD}, v{DD + 1}\nv_add_f32 v{DD}, v{DD}, v{DD + 1}")
        a(f"v_permlane16_swap_b32 v{SS + 2}, v{SS + 3}\nv_permlane16_swap_b32 v{QQ + 2}, v{QQ + 3}")
        a(f"v_add_f32 v{SS + 2}, v{SS + 2}, v{SS + 3}\nv_add_f32 v{QQ + 2}, v{QQ + 2}, v{QQ + 3}")
        a(f"v_add_f32_dpp v{DD}, v{DD}, v{DD} {SHR[0]} row_mask:0xf bank_mask:0xf")
        a(f"v_permlane32_swap_b32 v{SS}, v{SS + 2}\nv_permlane32_swap_b32 v{QQ}, v{QQ + 2}")
        a(f"v_add_f32 v{SS}, v{SS}, v{SS + 2}\nv_add_f32 v{QQ}, v{QQ}, v{QQ + 2}")
        for n, d in enumerate(SHR):
            if n < 3:
                a(f"v_add_f32_dpp v{DD}, v{DD}, v{DD} {SHR[n + 1]} row_mask:0xf bank_mask:0xf")
            a(f"v_add_f32_dpp v{SS}, v{SS}, v{SS} {d} row_mask:0xf bank_mask:0xf\nv_add_f32_dpp v{QQ}, v{QQ}, v{QQ} {d} row_mask:0xf bank_mask:0xf")
        m_, q_, t_, NM, st = SS, QQ, DD, SS + 1, SS + 2
        a(f"v_mul_f32 v{m_}, 0x3a800000, v{m_}\nv_mul_f32 v{q_}, 0x3a800000, v{q_}")
        a(f"v_fma_f32 v{q_}, -v{m_}, v{m_}, v{q_}\nv_cvt_pk_bf16_f32 v{NM}, -v{m_}, -v{m_}\nv_max_f32 v{q_}, 0, v{q_}")
        a(f"v_cvt_pk_bf16_f32 v{q_}, v{q_}, v{q_}\nv_and_b32 v{q_}, 0xffff0000, v{q_}\nv_add_f32 v{q_}, 0x3727c5ac, v{q_}")
        a(f"v_cvt_pk_bf16_f32 v{q_}, v{q_}, v{q_}\nv_and_b32 v{q_}, 0xffff0000, v{q_}\nv_sqrt_f32 v{q_}, v{q_}\nv_and_b32 v{DC}, 0xffff0000, v{NM}")
        a(f"v_cvt_pk_bf16_f32 v{st}, v{m_}, v{q_}\nv_and_b32 v{q_}, 0xffff0000, v{st}\nv_rcp_f32 v{q_}, v{q_}\nv_fmac_f32 v{t_}, s56, v{DC}")
        a(f"v_mul_f32 v{t_}, v{t_}, v{q_}")
        a(f"v_ashrrev_i32 v{DC}, 31, v{t_}\nv_or_b32 v{DC}, 0x80000000, v{DC}\nv_xor_b32 v{t_}, v{t_}, v{DC}")
        a(f"v_and_b32 v{t_}, 0xfffff800, v{t_}\nv_or_b32 v{st + 1}, v{VROW}, v{t_}")
        a("s_mov_b64 exec, s[62:63]")
        a(f"ds_write_b64 v{VEN}, v[{st}:{st + 1}] offset:{L_ENT}\nds_max_u64 v5, v[{st}:{st + 1}]")
        a("s_mov_b64 exec, s[64:65]")
        a(f"ds_write_b16 v{VST}, v{NM} offset:{L_MEAN}\nds_write_b32 v{VST + 1}, v{q_} offset:{L_RST}")
        self.arrive(C_A)
        PB, RST, MEAN, SH = T + 12, T + 16, T + 32, T + 56
        a(f"v_min_u32 v5, 8, v2\nv_lshlrev_b32 v5, 3, v5\nv_mov_b32 v{PB + 2}, s28\nv_mov_b32 v{PB + 3}, s29")
        self.wait(C_A, "s61")
        a(f"ds_read_b64 v[{PB}:{PB + 1}], v5 offset:{L_ENT}")
        for k in range(4):
            a(f"ds_read_b128 v[{RST + 4 * k}:{RST + 4 * k + 3}], v0 offset:{L_RST + 16 * k}")
        a(f"ds_read_b128 v[{MEAN}:{MEAN + 3}], v0 offset:{L_MEAN}\nds_read_b128 v[{MEAN + 4}:{MEAN + 7}], v0 offset:{L_MEAN + 16}")
        for r in range(2):
            b = RW + 16 + 8 * r
            a(f"v_mov_b32_dpp v{T + 2 * r}, v{b} wave_rol:1 row_mask:0xf bank_mask:0xf\nv_mov_b32_dpp v{T + 2 * r + 1}, v{b + 4} wave_rol:1 row_mask:0xf bank_mask:0xf")
        for r in range(2):
            a(f"v_cndmask_b32 v{T + 4 + 2 * r}, v{T + 2 * r}, v{T + 2 * r + 1}, s[66:67]\nv_cndmask_b32 v{T + 5 + 2 * r}, v{T + 2 * r + 1}, v{T + 2 * r}, s[66:67]")
        a("s_waitcnt lgkmcnt(6)")
        a(f"buffer_store_dwordx4 v[{PB}:{PB + 3}], v{VPUB}, s[12:15], 0 offen sc1")
        self.stamp(3)
        self.setprio(1)
        if self.diag == "pubonly":
            self.arrive(C_ST3)
            a("s_branch L_fin")
        a("s_cmp_lg_u32 s50, 0\ns_cbranch_scc1 L_second_plain")
        for r in range(2):
            for half in range(2):
                b, dst = RW + 16 + 8 * r + 4 * half, SH + 8 * r + 4 * (1 - half)
                a(f"v_bfi_b32 v{dst}, s59, v{T + 4 + 2 * r + half}, v{b + 3}")
                for i in (1, 2, 3):
                    a(f"v_bfi_b32 v{dst + i}, s59, v{b + 4 - i}, v{b + 3 - i}")
                a(f"ds_write_b128 v{VLM}, v[{dst}:{dst + 3}] offset:{RS * r + 2 * QS * (1 - half)}")
        a("s_branch L_second_done")
        a("L_second_plain:")
        for r in range(2):
            b = RW + 16 + 8 * r
            a(f"ds_write_b128 v{VLD}, v[{b}:{b + 3}] offset:{(8 + r) * RS}\nds_write_b128 v{VLD}, v[{b + 4}:{b + 7}] offset:{(8 + r) * RS + 2 * QS}")
        a("L_second_done:")
        self.arrive(C_B)
        AD, AM, C0 = T, WR, T + 8
        a("s_waitcnt lgkmcnt(5)")
        for k in range(8):
            a(f"v_pk_mul_f32 v[{RST + 2 * k}:{RST + 2 * k + 1}], v[{RST + 2 * k}:{RST + 2 * k + 1}], v[{CV + 2 * (k % 4)}:{CV + 2 * (k % 4) + 1}]")
        for k in range(4):
            a(f"v_cvt_pk_bf16_f32 v{AD + k}, v{RST + 2 * k}, v{RST + 2 * k + 1}\nv_cvt_pk_bf16_f32 v{AM + k}, v{RST + 8 + 2 * k}, v{RST + 9 + 2 * k}")
        for k in range(4):
            a(f"v_xor_b32 v{AD + 4 + k}, v{VSG}, v{AD + k}\nv_xor_b32 v{AM + 4 + k}, v{VSG}, v{AM + k}")
        self.wait(C_B, 4)
        self.stamp(4)
        FR, DA, EE = RW, T + 56, RST

        def trd(blk):
            for m in range(2):
                for v in range(2):
                    d = FR + 8 * blk + 4 * m + 2 * v
                    a(f"ds_read_b64_tr_b16 v[{d}:{d + 1}], v{VTR} offset:{(8 * m + 4 * v) * RS + 32 * blk}")

        def cvt_ex(blk):
            for f in range(4):
                a(f"v_cvt_pk_f16_f32 v{EE + 4 * f + blk}, v{DA + 8 * blk + 2 * f}, v{DA + 8 * blk + 2 * f + 1}")

        def cvt_f(f, area):
            for blk in range(4):
                a(f"v_cvt_pk_f16_f32 v{EE + 4 * f + blk}, v{DA + 8 * blk + 2 * f}, v{DA + 8 * blk + 2 * f + 1}")
            a(f"ds_write_b128 v{VEX}, v[{EE + 4 * f}:{EE + 4 * f + 3}] offset:{EX + area + 1024 * f}")

        def write_ex(area):
            for f in range(4):
                a(f"ds_write_b128 v{VEX}, v[{EE + 4 * f}:{EE + 4 * f + 3}] offset:{EX + area + 1024 * f}")

        trd(0); trd(1); trd(2)
        a("s_cmp_lg_u32 s50, 0\ns_cbranch_scc1 L_st1_split")
        self.mfma("bf16", C0, AD, MEAN)
        self.mfma("bf16", C0, AM, MEAN + 4, C0)
        for blk in range(4):
            d, fr = DA + 8 * blk, FR + 8 * blk
            a(f"s_waitcnt lgkmcnt({(10, 10, 6, 2)[blk]})")
            if blk == 0:
                trd(3)
            self.mfma("bf16", d, AD, fr, C0)
            a(f"s_waitcnt lgkmcnt({(12, 8, 4, 0)[blk]})")
            self.mfma("bf16", d, AM, fr + 4, d)
        for blk in range(4):
            d, fr = DA + 8 * blk, FR + 8 * blk
            self.mfma("bf16", d + 4, AD + 4, fr)
            self.mfma("bf16", d + 4, AM + 4, fr + 4, d + 4)
            if blk in (1, 2):
                cvt_f(blk - 1, 0)
        cvt_f(2, 0)
        cvt_f(3, 0)
        a("s_branch L_st1_done")
        a("L_st1_split:")
        a("s_waitcnt lgkmcnt(8)")
        trd(3)
        a("s_waitcnt lgkmcnt(0)")
        for A, o, area in ((AD, 0, 0), (AM, 4, 16384)):
            self.mfma("bf16", C0, A, MEAN + o)
            for blk in range(4):
                self.mfma("bf16", DA + 8 * blk + 4, A + 4, FR + 8 * blk + o)
                self.mfma("bf16", DA + 8 * blk, A, FR + 8 * blk + o, C0)
            if area:
                a("s_waitcnt lgkmcnt(0)")
            for blk in range(4):
                cvt_ex(blk)
            write_ex(area)
        a("L_st1_done:")
        self.arrive(C_C)
        PP, UU, TT, ZZ, VTAG = RW, RW + 16, WR, T + 56, T + 50
        a(f"s_lshl_b32 s31, s30, 12\nv_add_u32 v5, s31, v3\ns_and_b32 s31, s28, {ZMASK:#x}\nv_mov_b32 v{VTAG}, s31\ns_mov_b32 s58, {~ZMASK & 0xFFFFFFFF:#x}")
        a("s_and_b32 s32, s48, 3\ns_cselect_b32 s72, -1, 0xff\ns_cselect_b32 s73, -1, 0\ns_mov_b32 s74, s48")
        self.wait(C_C, 4)
        self.stamp(5)
        a("s_cmp_eq_u32 s48, 7\ns_cbranch_scc1 L_p1_done")
        a("L_st23:")
        for f in range(4):
            a(f"ds_read_b128 v[{PP + 4 * f}:{PP + 4 * f + 3}], v5 offset:{EX + 1024 * f}")
        for i in range(1, 4):
            a(f"s_add_u32 s{60 + i}, s{59 + i}, {2 * ZTS}")

        def st2(f):
            u = UU + 8 * (f % 2)
            a(f"s_waitcnt lgkmcnt({3 - f})")
            self.mfma("f16", u, PP + 4 * f, M2 + 8 * f)
            self.mfma("f16", u + 4, PP + 4 * f, M2 + 8 * f + 4)

        def tw(f):
            u = UU + 8 * (f % 2)
            tc, ts = TW + 8 * f, TW + 8 * f + 4
            for p in (0, 2):
                a(f"v_pk_mul_f32 v[{TT + p}:{TT + p + 1}], v[{tc + p}:{tc + p + 1}], v[{u + p}:{u + p + 1}]")
            for p in (0, 2):
                a(f"v_pk_mul_f32 v[{TT + 4 + p}:{TT + 5 + p}], v[{ts + p}:{ts + p + 1}], v[{u + p}:{u + p + 1}]")
            for p in (0, 2):
                a(f"v_pk_fma_f32 v[{TT + p}:{TT + p + 1}], v[{ts + p}:{ts + p + 1}], v[{u + 4 + p}:{u + 5 + p}], v[{TT + p}:{TT + p + 1}]")
                a(f"v_pk_fma_f32 v[{TT + 4 + p}:{TT + 5 + p}], v[{tc + p}:{tc + p + 1}], v[{u + 4 + p}:{u + 5 + p}], v[{TT + 4 + p}:{TT + 5 + p}] neg_lo:[0,0,1] neg_hi:[0,0,1]")
            for i in range(4):
                a(f"v_cvt_pk_f16_f32 v{PP + 4 * f + i}, v{TT + i}, v{TT + 4 + i}")

        def st3(f):
            self.mfma("f16", ZZ + 8 * f, M3, PP + 4 * f)
            self.mfma("f16", ZZ + 8 * f + 4, M3 + 4, PP + 4 * f)

        OO = T + 16

        def pack(lo):
            for i in range(4):
                o = OO + 4 * i + lo
                a(f"v_cvt_pk_f16_f32 v{o}, v{ZZ + 16 * lo + i}, v{ZZ + 16 * lo + 8 + i}\nv_cvt_pk_f16_f32 v{o + 2}, v{ZZ + 16 * lo + 4 + i}, v{ZZ + 16 * lo + 12 + i}")
                a(f"v_and_or_b32 v{o}, v{o}, s58, v{VTAG}\nv_and_or_b32 v{o + 2}, v{o + 2}, s58, v{VTAG}")

        def z_stores():
            for i in range(4):
                if i < 2:
                    a(f"s_mov_b32 exec_hi, s{72 + i}")
                a(f"buffer_store_dwordx4 v[{OO + 4 * i}:{OO + 4 * i + 3}], v{VZ}, s[12:15], s{60 + i} offen sc1")
            a("s_mov_b32 exec_hi, -1")

        st2(0); st2(1); tw(0); st2(2); st3(0); tw(1); st2(3); st3(1); tw(2); st3(2); tw(3); st3(3); pack(0); pack(1)
        a("s_cmp_eq_u32 s50, 0\ns_cbranch_scc1 L_p1_done")
        z_stores()
        a(f"s_mov_b32 s50, 0\ns_add_u32 s60, s60, 16384\nv_add_u32 v5, 16384, v5\ns_sub_u32 s31, s48, 4\nv_cvt_f32_i32 v{T2}, s31\nv_mul_f32 v{T2}, 0x3d800000, v{T2}")
        a(f"v_and_b32 v{T1}, 15, v2\nv_lshlrev_b32 v{T1}, 2, v{T1}\nv_cvt_f32_u32 v{T1}, v{T1}")
        for i in range(4):
            a(f"v_fma_f32 v{T0}, v{BI + i}, v{T1}, v{T2}\nv_sin_f32 v{M3 + 4 + i}, v{T0}\nv_cos_f32 v{T0}, v{T0}")
            a(f"v_cvt_pk_f16_f32 v{M3 + i}, v{T0}, v{M3 + 4 + i}\nv_cvt_pk_f16_f32 v{M3 + 4 + i}, -v{M3 + 4 + i}, v{T0}")
        a("s_branch L_st23")
        a("L_p1_done:")
        self.arrive(C_ST3)
        self.stamp(6)
        self.setprio(0)
        self.phase2(MM, VTAG, z_stores)

    def phase2(self, MM, VTAG, z_stores):
        a = self.a
        XP, SG, XF, GG = 8, 24, 40, 120
        AC, ZL, AF, GR = 216, 72, 152, 192
        ZN = 212
        XS_, VTA, XR, VTC = (4, 5, 249, 205), 248, 208, 7
        self.tile_decode()
        a("s_lshl_b32 s31, s30, 5\ns_add_u32 s53, s53, s31\ns_lshl_b32 s54, s53, 3\ns_add_u32 s54, s54, s46")
        a("s_lshl_b32 s55, s47, 6\ns_sub_u32 s56, 1984, s55\ns_lshl_b32 s48, s46, 1\ns_add_u32 s48, s48, 2040")

        def offsets(vt, vc, d):
            a(f"v_sub_u32 v{d[1]}, 0, v{vt}\nv_sub_u32 v{d[2]}, s48, v{vt}\nv_and_b32 v{d[1]}, 2047, v{d[1]}\nv_sub_u32 v{d[3]}, 2048, v{d[2]}")
            a(f"v_add_u32 v{d[0]}, s55, v{vc}\nv_lshl_add_u32 v{d[2]}, v{d[2]}, 11, v{d[0]}\nv_lshl_add_u32 v{d[0]}, v{vt}, 11, v{d[0]}")
            a(f"v_xor_b32 v{vc}, 48, v{vc}\nv_add_u32 v{vc}, s56, v{vc}\nv_lshl_add_u32 v{d[1]}, v{d[1]}, 11, v{vc}\nv_lshl_add_u32 v{d[3]}, v{d[3]}, 11, v{vc}")

        a(f"v_and_b32 v{VTA}, 15, v2\nv_lshl_add_u32 v{VTA}, v{VTA}, 3, s54")
        a(f"s_mov_b32 vcc_lo, 0\ns_mov_b32 vcc_hi, -1\nv_sub_u32 v7, s48, v{VTA}\nv_cndmask_b32 v7, v{VTA}, v7, vcc")
        a("s_mov_b32 vcc_lo, 0xffff0000\ns_mov_b32 vcc_hi, 0xffff0000\nv_sub_u32 v6, 0, v7\nv_cndmask_b32 v7, v7, v6, vcc")
        a(f"v_and_b32 v6, 255, v7\nv_lshlrev_b32 v6, 7, v6\nv_bfe_u32 v7, v7, 8, 3\nv_lshl_add_u32 v6, v7, 4, v6\ns_mov_b32 s49, {STAT}")
        a(f"v_lshrrev_b32 v7, 2, v2\nv_lshl_add_u32 v7, v7, 3, s54\nv_and_b32 v1, 48, v3\nv_and_b32 v{XF}, 32, v2\nv_xor_b32 v1, v1, v{XF}")
        offsets(7, 1, XS_)
        a(f"s_lshl_b32 s52, s30, 12\ns_add_u32 s52, s52, {EX}")
        a(f"v_and_b32 v1, 15, v2\nv_lshlrev_b32 v{XF + 1}, 6, v1\nv_and_b32 v1, 8, v2\nv_lshlrev_b32 v1, 2, v1\nv_and_b32 v{XF + 2}, 48, v2\nv_xor_b32 v1, v1, v{XF + 2}\nv_add3_u32 v{XR}, v{XF + 1}, v1, s52")
        def x_loads(h0, h1):
            for h in range(h0, h1):
                a(f"s_add_u32 m0, s52, {1024 * h}")
                a(f"buffer_load_dwordx4 v{XS_[h]}, s[8:11], 0 offen lds")

        def x_reads(h0, h1):
            for h in range(h0, h1):
                a(f"ds_read_b128 v[{XP + 4 * h}:{XP + 4 * h + 3}], v{XR} offset:{1024 * h}")
            a("s_waitcnt lgkmcnt(0)")

        XE = self.xearly

        def step(op):
            if op == "x":
                self.release(self.rel_x0)
                a(f"buffer_load_dwordx4 v[{SG}:{SG + 3}], v6, s[12:15], s49 offen")
                x_loads(0, XE)
            elif op == "z":
                a("s_cmp_eq_u32 s74, 7\ns_cbranch_scc1 L_no_zst")
                self.release(self.rel_zw)
                z_stores()
                self.stamp(7)
                a("L_no_zst:")
            elif op == "m":
                self.p2_matrix(MM, 160, 161, 162)

        for op in self.order:
            step(op)
        a(f"s_mul_i32 s51, s46, {32 * ZTS}\ns_add_u32 s51, s51, {ZB}\ns_mul_i32 s54, s47, {ZTS}\ns_lshl_b32 s32, s30, 12\ns_add_u32 s50, s51, s54\ns_add_u32 s50, s50, s32")
        a(f"s_add_u32 s55, s47, 1\ns_and_b32 s55, s55, 31\ns_mul_i32 s55, s55, {ZTS}\nv_add_u32 v250, s32, v3")
        a(f"v_lshl_add_u32 v200, v2, 7, s32\nv_and_b32 v1, 2, v2\nv_lshl_add_u32 v200, v1, 3, v200\nv_and_b32 v1, 0x70, v3\nv_add_u32 v1, 16384, v1")
        a(f"s_mov_b32 vcc_lo, 0\ns_mov_b32 vcc_hi, -1\nv_cndmask_b32 v200, v200, v1, vcc\ns_mov_b32 vcc_hi, 0xff\nv_mov_b32 v1, s55\nv_mov_b32 v201, s54")
        a(f"v_cndmask_b32 v1, v1, v201, vcc\nv_mov_b32 v201, {SHD}\nv_cndmask_b32 v201, v201, v0, vcc\nv_add_u32 v201, v201, v200\nv_add_u32 v200, v1, v200")
        a("v_lshrrev_b32 v251, 5, v2\nv_lshlrev_b32 v251, 11, v251\nv_bfe_u32 v1, v2, 2, 3\nv_lshl_add_u32 v251, v1, 7, v251")
        a("v_and_b32 v1, 3, v2\nv_lshl_add_u32 v251, v1, 5, v251\nv_bfe_u32 v1, v2, 3, 1\nv_lshl_add_u32 v251, v1, 4, v251\nv_bfe_u32 v1, v2, 4, 1\nv_lshl_add_u32 v251, v1, 3, v251")
        a("v_xor_b32 v252, 16, v251\nv_xor_b32 v253, 8, v251\nv_xor_b32 v254, 24, v251\nv_cmp_gt_u32 vcc, 4, v2\nv_mov_b32 v1, 16384\nv_cndmask_b32 v1, v0, v1, vcc")
        a("v_add_u32 v206, v253, v1\nv_add_u32 v207, v254, v1")
        a(f"s_mov_b32 vcc_lo, 0x88888888\ns_mov_b32 vcc_hi, 0x88888888\nv_mov_b32 v1, {SHD - 96}\nv_cndmask_b32 v1, 32, v1, vcc")
        a("v_add_u32 v202, v251, v1\nv_add_u32 v203, v253, v1\nv_add_u32 v204, v206, v1")
        a("s_waitcnt vmcnt(0)")
        a("L_stat_check:")
        a(f"v_cmp_ne_u64 vcc, s[28:29], v[{SG + 2}:{SG + 3}]\ns_cbranch_vccz L_stat_got")
        self.spin_guard("L_stat_got")
        a(f"s_mov_b64 exec, vcc\nbuffer_load_dwordx4 v[{SG}:{SG + 3}], v6, s[12:15], s49 offen sc1")
        a("s_mov_b64 exec, -1\ns_waitcnt vmcnt(0)\ns_branch L_stat_check")
        a("L_stat_got:")
        a(f"v_mov_b32 v{SG + 8}, v{SG}\nv_permlane32_swap_b32 v{SG}, v{SG + 8}\nv_mov_b32 v{SG + 4}, v{SG}\nv_mov_b32 v{SG + 12}, v{SG + 8}")
        a(f"v_permlane16_swap_b32 v{SG}, v{SG + 4}\nv_permlane16_swap_b32 v{SG + 8}, v{SG + 12}")
        for h in range(4):
            s_ = SG + 4 * h
            a(f"v_lshlrev_b32 v{s_ + 2}, 16, v{s_}\nv_and_b32 v{s_}, 0xffff0000, v{s_}\nv_rcp_f32 v{s_}, v{s_}")
        for h in range(4):
            s_ = SG + 4 * h
            a(f"v_mul_f32 v{s_}, 0xbfb8aa3b, v{s_}\nv_mul_f32_e64 v{s_ + 2}, -v{s_ + 2}, v{s_}")

        def z_loads():
            for j in range(4):
                a(f"buffer_load_dwordx4 v[{ZL + 4 * j}:{ZL + 4 * j + 3}], v3, s[12:15], s50 offen offset:{1024 * j} sc1")
            a("s_mov_b32 exec_hi, 0x1ff")
            a(f"buffer_load_dwordx4 v[{ZN}:{ZN + 3}], v200, s[12:15], s51 offen sc1")
            a("s_mov_b32 exec_hi, -1")

        def slots(h, i):
            if h % 2 == 0:
                return 8 * h + 2 * i, 8 * h + 2 * i + 1
            return 8 * h + (8 - 2 * i) % 8, 8 * h + 7 - 2 * i

        def gate(h0, h1):
            rng = range(4 * h0, 4 * h1)
            for i in rng:
                lo, hi = slots(i // 4, i % 4)
                a(f"v_lshlrev_b32 v{XF + lo}, 16, v{XP + i}\nv_and_b32 v{XF + hi}, 0xffff0000, v{XP + i}")
            for i in rng:
                s_ = SG + 4 * (i // 4)
                a(f"v_pk_fma_f32 v[{GG + 2 * i}:{GG + 2 * i + 1}], v[{XF + 2 * i}:{XF + 2 * i + 1}], v[{s_}:{s_ + 1}], v[{s_ + 2}:{s_ + 3}] op_sel_hi:[1,0,0]")
            for i in rng:
                a(f"v_exp_f32 v{AC + 2 * i}, v{GG + 2 * i}\nv_exp_f32 v{AC + 2 * i + 1}, v{GG + 2 * i + 1}")
            for i in rng:
                a(f"v_pk_add_f32 v[{AC + 2 * i}:{AC + 2 * i + 1}], v[{AC + 2 * i}:{AC + 2 * i + 1}], 1.0 op_sel_hi:[1,0]")
            for i in rng:
                a(f"v_rcp_f32 v{AC + 2 * i}, v{AC + 2 * i}\nv_rcp_f32 v{AC + 2 * i + 1}, v{AC + 2 * i + 1}")
            for i in rng:
                a(f"v_pk_mul_f32 v[{GG + 2 * i}:{GG + 2 * i + 1}], v[{GG + 2 * i}:{GG + 2 * i + 1}], v[{AC + 2 * i}:{AC + 2 * i + 1}]")

        for i in range(4):
            a(f"v_mov_b32 v{ZN + i}, v{VTAG}")
        if XE:
            x_reads(0, XE)
            self.stamp(13)
            gate(0, XE)
        self.stamp(14)
        if XE < 4:
            self.release(self.rel_x)
            x_loads(XE, 4)
            if self.zwith:
                z_loads()
            a(f"s_waitcnt vmcnt({5 if self.zwith else 0})")
            x_reads(XE, 4)
        self.stamp(8)
        if not (XE < 4 and self.zwith):
            self.release(self.rel_zr)
            z_loads()
        gate(XE, 4)
        self.wait(C_S1, 1)
        a(f"ds_read_b32 v1, v0 offset:{L_KEY + 4}\nv_and_b32 v6, 48, v2\nv_lshlrev_b32 v6, 1, v6\nv_mov_b32 v209, {OOB}\ns_waitcnt lgkmcnt(0)\nv_readfirstlane_b32 s33, v1")
        a("s_andn2_b32 s33, 0x7ff, s33\ns_sub_u32 s31, 0, s33\ns_and_b32 s31, s31, 2047\ns_sub_u32 s32, s48, s33\ns_sub_u32 s34, s48, s31")
        for h, sr in enumerate((33, 31, 32, 34)):
            a(f"v_cmp_eq_u32 vcc, s{sr}, v{VTC}\nv_cmp_eq_u32 s[{54 + 2 * h}:{55 + 2 * h}], s{sr}, v{VTA}\nv_cndmask_b32 v{XS_[h]}, v{XS_[h]}, v209, vcc")
        a("s_or_b64 s[62:63], s[54:55], s[58:59]\ns_or_b64 s[64:65], s[56:57], s[60:61]")
        self.stamp(9)
        a("L_z_wait:")
        self.setprio(1)
        ZC = AF
        srcs = [ZL + i for i in range(16)] + [ZN + i for i in range(4)]
        for j in range(5):
            a(f"s_waitcnt vmcnt({4 - j})")
            for i in range(4):
                a(f"v_xor_b32 v{ZC + 4 * j + i}, v{VTAG}, v{srcs[4 * j + i]}")
            if j < 4:
                a(f"ds_write_b128 v250, v[{ZC + 4 * j}:{ZC + 4 * j + 3}] offset:{1024 * j}")
            else:
                a(f"s_mov_b32 exec_hi, 0x1ff\nds_write_b128 v201, v[{ZC + 16}:{ZC + 19}]\ns_mov_b32 exec_hi, -1")
            if j == 0:
                a(f"v_or3_b32 v1, v{ZC}, v{ZC + 1}, v{ZC + 2}\nv_or_b32 v1, v1, v{ZC + 3}")
            else:
                a(f"v_or3_b32 v1, v1, v{ZC + 4 * j}, v{ZC + 4 * j + 1}\nv_or3_b32 v1, v1, v{ZC + 4 * j + 2}, v{ZC + 4 * j + 3}")
        a(f"v_and_b32 v1, {ZMASK:#x}, v1\nv_cmp_ne_u32 vcc, 0, v1\ns_cbranch_vccz L_z_got")
        self.spin_guard("L_z_got")
        a("s_mov_b64 exec, vcc")
        for j in range(4):
            a(f"buffer_load_dwordx4 v[{ZL + 4 * j}:{ZL + 4 * j + 3}], v3, s[12:15], s50 offen offset:{1024 * j} sc1")
        a("s_and_b32 exec_hi, exec_hi, 0x1ff\ns_or_b32 exec_lo, exec_lo, 1")
        a(f"buffer_load_dwordx4 v[{ZN}:{ZN + 3}], v200, s[12:15], s51 offen sc1")
        a("s_mov_b64 exec, -1\ns_waitcnt lgkmcnt(0)\ns_branch L_z_wait")
        a("L_z_got:")
        self.stamp(10)
        self.fine(0)
        self.sync(C_D)
        self.stamp(11)
        self.fine(1)
        if self.diag == "fine":
            a("s_waitcnt lgkmcnt(0)")

        def rd(ks):
            c, ph = ks // 4, ks % 4
            b = AF + 8 * (ks % 4)
            for mb in range(2):
                for v in range(2):
                    ad = 206 + mb if (ks == 4 and v == 0) else 251 + mb + 2 * c
                    a(f"ds_read_b64_tr_b16 v[{b + 4 * mb + 2 * v}:{b + 4 * mb + 2 * v + 1}], v{ad} offset:{4096 * ph + 1024 * v}")

        def b3(ks):
            return (ZL if ks < 4 else 184) + 4 * (ks % 4)

        def rd3(ks):
            c, ph = ks // 4, ks % 4
            for v in range(2):
                ad = 204 if (ks == 4 and v == 0) else 202 + c
                a(f"ds_read_b64_tr_b16 v[{b3(ks) + 2 * v}:{b3(ks) + 2 * v + 1}], v{ad} offset:{4096 * ph + 1024 * v}")

        def mf3(ks):
            d = AC + 16 + 4 * (ks // 4)
            self.mfma("f16", d, b3(ks), MM + 4 * ks, None if ks % 4 == 0 else d)

        rd(0); rd(1); rd(2)
        for ks in range(8):
            b = AF + 8 * (ks % 4)
            a("s_waitcnt lgkmcnt(8)")
            for mb in range(2):
                d = AC + 8 * (ks // 4) + 4 * mb
                self.mfma("f16", d, b + 4 * mb, MM + 4 * ks, None if ks % 4 == 0 else d)
            if ks + 3 < 8:
                rd(ks + 3)
            else:
                rd3(2 * (ks - 5))
                rd3(2 * (ks - 5) + 1)
        a("s_waitcnt lgkmcnt(8)")
        rd3(6); rd3(7)
        mf3(0); mf3(1)
        a("s_waitcnt lgkmcnt(4)")
        mf3(2); mf3(3)
        SA = AF

        def combine(h):
            ng = " neg_lo:[0,1] neg_hi:[0,1]" if h else ""
            for i in range(4):
                e, o = AC + 2 * i, AC + 8 + 2 * i
                a(f"v_pk_add_f32 v[{SA + 8 * h + 2 * i}:{SA + 8 * h + 2 * i + 1}], v[{e}:{e + 1}], v[{o}:{o + 1}]{ng}")

        def emit(h, between=None):
            sa = SA + 8 * (h // 2)
            for i in range(4):
                k = 8 * h + 2 * i
                a(f"v_pk_fma_f32 v[{XF + k}:{XF + k + 1}], v[{sa + 2 * i}:{sa + 2 * i + 1}], v[{GG + k}:{GG + k + 1}], v[{XF + k}:{XF + k + 1}]")
            if between:
                between()
            for i in range(4):
                lo, hi = slots(h, i)
                a(f"v_cvt_pk_bf16_f32 v{XP + 4 * h + i}, v{XF + lo}, v{XF + hi}")
            a(f"ds_write_b128 v{XR}, v[{XP + 4 * h}:{XP + 4 * h + 3}] offset:{1024 * h}")
            a(f"ds_read_b128 v[{SG + 4 * h}:{SG + 4 * h + 3}], v250 offset:{EX + 1024 * h}")

        def store(h, left):
            a(f"s_waitcnt lgkmcnt({left})")
            a(f"buffer_store_dwordx4 v[{SG + 4 * h}:{SG + 4 * h + 3}], v{XS_[h]}, s[16:19], 0 offen {self.oflag}")

        def dump(m):
            a(f"s_cmp_eq_u64 s[{62 + 2 * m}:{63 + 2 * m}], 0\ns_cbranch_scc1 L_nodump{m}")
            for h in (m, m + 2):
                sa, o = SA + 8 * (h // 2), L_ROW + 128 * m
                a(f"s_mov_b64 exec, s[{54 + 2 * h}:{55 + 2 * h}]")
                a(f"ds_write_b128 v6, v[{sa}:{sa + 3}] offset:{o}\nds_write_b128 v6, v[{sa + 4}:{sa + 7}] offset:{o + 16}")
            self.arrive(C_ROW1 if m else C_ROW)
            a("s_waitcnt lgkmcnt(0)")
            a(f"L_nodump{m}:")

        def tail_a():
            a("s_waitcnt lgkmcnt(0)")
            self.fine(2)
            mf3(6); mf3(7)

        combine(0)
        mf3(4); mf3(5)
        emit(0, tail_a)
        self.fine(3)
        combine(1)
        dump(0)
        emit(2)
        store(0, 2)
        self.fine(4)
        a(f"v_add_f32 v{SA}, v{AC + 16}, v{AC + 20}\nv_sub_f32 v{SA + 8}, v{AC + 16}, v{AC + 20}")
        dump(1)
        emit(1)
        store(2, 2)
        self.fine(5)
        emit(3)
        store(1, 2)
        store(3, 0)
        self.fine(6)
        if self.diag == "fine":
            a("s_waitcnt vmcnt(0)")
            self.fine(7)
            a("s_waitcnt lgkmcnt(0)")
            for i in range(1, 8):
                a(f"s_sub_u32 s31, s{76 + 2 * i}, s76\ns_add_u32 s31, s31, s68\nv_writelane_b32 v211, s31, {i}")
        self.stamp(12)
        a("s_branch L_fin")

    def moe(self):
        a = self.a
        a("L_moe:")
        self.role = "moe"
        nA = (32 - self.n3) // 3
        assert self.n3 + 3 * nA == 32
        a("s_and_b32 s32, s2, 7\ns_mul_i32 s32, s32, 28\ns_lshr_b32 s31, s2, 3\ns_add_u32 s31, s31, s32\ns_lshr_b32 s46, s31, 3\ns_and_b32 s47, s31, 7")
        for d in (16, 20, 24):
            a(f"s_mov_b32 s{d + 2}, {WBYTES}\ns_mov_b32 s{d + 3}, 0x00020000")
        a("v_lshrrev_b32 v4, 4, v2\nv_lshlrev_b32 v5, 5, v4\nv_and_b32 v6, 0xf0, v3\nv_xor_b32 v5, v5, v6\nv_mul_u32_u24 v4, 7168, v4")
        a(f"s_mul_i32 s31, s47, {128 * 7168}\ns_lshl_b32 s32, s46, 8\ns_add_u32 s31, s31, s32\nv_add3_u32 v4, v4, v5, s31")
        a(f"s_mul_i32 s48, s30, {nA}\ns_add_u32 s49, s48, {nA}\ns_cmp_eq_u32 s30, 3\ns_cselect_b32 s49, 32, s49")
        a("s_waitcnt lgkmcnt(0)")
        self.base_srds()
        a("s_mov_b32 s16, s38\ns_mov_b32 s17, s39\ns_mov_b32 s20, s40\ns_mov_b32 s21, s41\ns_mov_b32 s24, s42\ns_mov_b32 s25, s43")
        a(f"s_load_dwordx2 s[28:29], s[6:7], {EPOCH}")
        a("s_barrier")
        a(f"s_cmp_ge_u32 s2, {0 if self.diag == 'nomoe' else 224}\ns_cselect_b32 s66, 0, 1\ns_cbranch_scc1 L_dma_done")
        a("L_dma:")
        a(f"s_bfe_u32 s31, s48, 0x10001\ns_lshl_b32 s31, s31, 7\nv_xor_b32 v5, s31, v4\ns_lshl_b32 s32, s48, 10\ns_add_u32 m0, s32, {M_G}\ns_mul_i32 s31, s48, {4 * 7168}")
        a(f"buffer_load_dwordx4 v5, s[16:19], s31 offen {self.wflag} lds")
        a(f"s_add_u32 m0, s32, {M_U}\ns_add_u32 s48, s48, 1")
        a(f"buffer_load_dwordx4 v5, s[20:23], s31 offen {self.wflag} lds")
        a("s_cmp_eq_u32 s30, 3\ns_cbranch_scc1 L_dma3")
        a(f"s_waitcnt vmcnt({2 * self.win - 2})\ns_cmp_lt_u32 s48, s49\ns_cbranch_scc1 L_dma\ns_branch L_dma_done")
        a(f"L_dma3:\ns_waitcnt vmcnt({2 * self.win3 - 2})\ns_cmp_lt_u32 s48, s49\ns_cbranch_scc1 L_dma")
        a("L_dma_done:")
        self.setprio(3)
        WD = 100
        a("s_lshr_b32 s31, s47, 2\ns_lshl_b32 s32, s46, 1\ns_add_u32 s50, s31, s32")
        a("s_lshl_b32 s31, s50, 17\ns_and_b32 s32, s47, 3\ns_lshl_b32 s32, s32, 2\ns_add_u32 s51, s32, s30\ns_lshl_b32 s32, s51, 7\ns_add_u32 s31, s31, s32")
        a("v_lshrrev_b32 v6, 3, v2\nv_lshlrev_b32 v6, 14, v6\nv_and_b32 v7, 0x70, v3\nv_add3_u32 v6, v6, v7, s31")
        a("s_mov_b32 s60, 4096\ns_mov_b32 s61, 8192\ns_mov_b32 s62, 12288")

        def d_loads(j0, j1):
            for j in range(j0, j1):
                so = "0" if j < 2 else f"s{59 + j // 2}"
                a(f"buffer_load_dwordx4 v[{WD + 4 * j}:{WD + 4 * j + 3}], v6, s[24:27], {so} offen offset:{2048 * (j % 2)} {self.wflag}")

        a("v_bfe_u32 v8, v2, 2, 3\nv_lshlrev_b32 v9, 5, v8\ns_lshl_b32 s31, s30, 6\nv_xor_b32 v9, s31, v9")
        a(f"v_bfe_u32 v8, v2, 2, 2\nv_lshl_add_u32 v9, v8, 8, v9\nv_lshrrev_b32 v8, 4, v2\nv_lshl_add_u32 v9, v8, 11, v9\nv_and_b32 v10, 3, v2\nv_lshl_add_u32 v9, v10, 3, v9")
        a(f"v_add_u32 v9, {M_G}, v9\nv_xor_b32 v10, 32, v9\nv_lshlrev_b32 v8, 4, v8")
        a(f"s_lshr_b32 s31, s30, 1\ns_lshl_b32 s32, s46, 1\ns_add_u32 s31, s31, s32\ns_lshl_b32 s31, s31, 12\ns_lshl_b32 s32, s47, 9\ns_add_u32 s31, s31, s32")
        a(f"s_and_b32 s32, s30, 1\ns_lshl_b32 s32, s32, 8\ns_add_u32 s31, s31, s32\ns_add_u32 s31, s31, {HP}\nv_lshl_add_u32 v13, v2, 3, s31")
        a("s_waitcnt lgkmcnt(0)")
        self.tag_from_epoch()
        a(f"s_and_b32 s31, s28, {FMASK:#x}\nv_mov_b32 v14, s31\ns_mov_b32 s49, {~FMASK & 0xFFFFFFFF:#x}")
        DF = self.dfirst
        a("s_cmp_lg_u32 s66, 0\ns_cbranch_scc1 L_tagged")
        self.arrive(C_A)
        a("L_tagged:")
        D2 = self.d2
        XA, BF, GA = 20, 36, 132
        order = [(ks, t) for ks in range(4) for t in range(4)]

        def b_reads():
            for n, (ks, t) in enumerate(order):
                if n >= 7:
                    a("s_waitcnt lgkmcnt(12)")
                for v in range(2):
                    a(f"ds_read_b64_tr_b16 v[{BF + 4 * n + 2 * v}:{BF + 4 * n + 2 * v + 1}], v{9 + t % 2} offset:{32768 * (t // 2) + 8192 * ks + 1024 * v}")

        a("s_cmp_eq_u32 s30, 3\ns_cbranch_scc1 L_h1")
        a("s_cmp_eq_u32 s66, 0\ns_cbranch_scc1 L_key")
        a("s_waitcnt vmcnt(0)")
        self.stamp(1)
        self.arrive(C_DMA)
        a("L_key:")
        self.wait(C_S1, 1)
        a(f"ds_read_b64 v[18:19], v0 offset:{L_KEY}\ns_cmp_eq_u32 s66, 0\ns_cbranch_scc1 L_slice")
        d_loads(0, D2)
        a("s_branch L_slice")
        a("L_h1:")
        a(f"s_mov_b32 s63, {GRAN}\ns_lshl_b32 s31, s47, 8\nv_lshlrev_b32 v15, 2, v2\nv_add_u32 v16, s31, v15")
        a(f"s_waitcnt vmcnt({self.h1wait})")
        self.wait(self.gate, 4)
        self.stamp(7)
        self.gran_issue(20)
        self.arrive(C_S0)
        a("s_waitcnt vmcnt(0)")
        self.stamp(8)
        self.gran_resolve("mi", 20, 18)
        a("s_andn2_b32 s31, 0x7ff, s33\ns_lshl_b32 s48, s31, 11")
        a("buffer_load_dword v17, v16, s[8:11], s48 offen")
        self.gran_stats(20, 18)
        a(f"v_mov_b32 v19, s33\nv_mov_b32 v18, s34\nds_write_b64 v0, v[18:19] offset:{L_KEY}")
        a(f"s_mov_b64 exec, 1\nds_add_u32 v0, v255 offset:{L_CNT + 4 * C_S1}\nds_add_u32 v0, v255 offset:{L_CNT + 4 * C_DMA}\ns_mov_b64 exec, -1")
        a("s_cmp_eq_u32 s66, 0\ns_cbranch_scc1 L_slice")
        d_loads(0, D2)
        a("s_lshl_b32 s52, s34, 16\ns_and_b32 s32, s34, 0xffff0000\nv_rcp_f32 v148, s32")
        a("L_slice:")
        a("s_waitcnt lgkmcnt(0)\nv_readfirstlane_b32 s33, v19\nv_readfirstlane_b32 s34, v18")
        a("s_cmp_eq_u32 s66, 0\ns_cbranch_scc1 L_idle")
        self.wait(C_DMA, 4)
        b_reads()
        a("s_cmp_lg_u32 s30, 3\ns_cbranch_scc1 L_xs_wait")
        a(f"s_waitcnt vmcnt({D2}) lgkmcnt(0)")
        a("v_lshlrev_b32 v18, 16, v17\nv_and_b32 v19, 0xffff0000, v17")
        a("v_pk_add_f32 v[18:19], v[18:19], s[52:53] op_sel_hi:[1,0] neg_lo:[0,1] neg_hi:[0,1]")
        a("v_cvt_pk_bf16_f32 v17, v18, v19\nv_lshlrev_b32 v18, 16, v17\nv_and_b32 v19, 0xffff0000, v17")
        a("v_pk_mul_f32 v[18:19], v[18:19], v[148:149] op_sel_hi:[1,0]\nv_cvt_pk_bf16_f32 v17, v18, v19")
        a(f"ds_write_b32 v15, v17 offset:{M_XS}")
        self.arrive(C_S2)
        a("s_branch L_xs_ok")
        a("L_xs_wait:")
        self.wait(C_S2, 1)
        a("L_xs_ok:")
        self.stamp(2)
        for ks in range(4):
            a(f"ds_read_b128 v[{XA + 4 * ks}:{XA + 4 * ks + 3}], v8 offset:{M_XS + 64 * ks}")
        d_loads(D2, DF)
        for n, (ks, t) in enumerate(order):
            if t == 0:
                a(f"s_waitcnt lgkmcnt({3 - ks})")
            self.mfma("bf16", GA + 4 * t, XA + 4 * ks, BF + 4 * n, None if ks == 0 else GA + 4 * t)
        a("s_mov_b32 vcc_lo, 0xffff0000\ns_mov_b32 vcc_hi, 0")
        a(f"s_lshl_b32 s31, s50, 12\ns_lshl_b32 s32, s30, 7\ns_add_u32 s31, s31, s32\ns_add_u32 s31, s31, {HP}")
        a("v_lshrrev_b32 v15, 3, v2\nv_lshlrev_b32 v15, 9, v15\nv_add3_u32 v15, v15, v7, s31")
        a(f"v_cndmask_b32 v20, v{GA}, v{GA + 4}, vcc\nv_cndmask_b32 v21, v{GA + 8}, v{GA + 12}, vcc")
        a("v_and_or_b32 v20, v20, s49, v14\nv_and_or_b32 v21, v21, s49, v14")
        a("s_mov_b32 exec_hi, 0")
        a("buffer_store_dwordx2 v[20:21], v13, s[12:15], 0 offen sc1")
        a("s_mov_b64 exec, -1")
        d_loads(DF, 8)
        self.arrive(C_HP)
        self.stamp(3)
        pair = {}
        free = [98]
        a("s_mov_b32 s52, 0x05040100\ns_mov_b32 s53, 0x07060302")
        YA = 36
        for i in range(8):
            a(f"v_mov_b32 v{YA + i}, 0")
        a("v_and_b32 v16, 7, v2\nv_lshlrev_b32 v16, 2, v16\nv_lshrrev_b32 v17, 5, v2\nv_lshl_add_u32 v16, v17, 1, v16\ns_lshl_b32 s31, s30, 5\nv_add_u32 v16, s31, v16")
        a("v_lshrrev_b32 v17, 3, v2\nv_lshlrev_b32 v17, 4, v17")
        a(f"s_lshl_b32 s31, s50, 12\ns_lshl_b32 s32, s51, 8\ns_add_u32 s31, s31, s32\ns_add_u32 s31, s31, {YP}")
        a("v_lshlrev_b32 v18, 1, v7\nv_lshrrev_b32 v19, 4, v2\nv_lshl_add_u32 v18, v19, 3, v18\nv_add_u32 v18, s31, v18")
        for j in range(0, 8, 2):
            early = self.hpearly is not None and j >= self.hpearly
            if j == self.hpearly:
                a("buffer_load_dwordx4 v[20:23], v15, s[12:15], 0 offen sc1")
            a(f"s_waitcnt vmcnt({6 - j + (1 if j + 2 <= DF else 0) + (1 if early else 0)})")
            for d in range(4):
                r0, r1 = WD + 4 * j + d, WD + 4 * j + 4 + d
                t = free.pop()
                a(f"v_perm_b32 v{t}, v{r1}, v{r0}, s52\nv_perm_b32 v{r1}, v{r1}, v{r0}, s53")
                pair[(j // 2, 2 * d)] = t
                pair[(j // 2, 2 * d + 1)] = r1
                free.append(r0)
        self.stamp(4)
        if self.hpearly is not None:
            a("s_branch L_hp_wait")
        a("L_hp_poll:")
        a("buffer_load_dwordx4 v[20:23], v15, s[12:15], 0 offen sc1")
        a("L_hp_wait:")
        a("s_waitcnt vmcnt(0)")
        for i in range(4):
            a(f"v_xor_b32 v{20 + i}, v14, v{20 + i}")
        a(f"v_or3_b32 v24, v20, v21, v22\nv_or_b32 v24, v24, v23\nv_and_b32 v24, {FMASK:#x}, v24\nv_cmp_ne_u32 vcc, 0, v24")
        a("v_permlane16_swap_b32 v20, v21\nv_permlane16_swap_b32 v22, v23")
        a("s_cbranch_vccz L_hp_got")
        self.spin_guard("L_hp_got")
        a("s_branch L_hp_poll")
        a("L_hp_got:")
        self.stamp(5)
        a("v_add_f32 v20, v20, v21\nv_add_f32 v22, v22, v23\nv_permlane32_swap_b32 v20, v22\nv_add_f32 v20, v20, v22")
        a("v_add_f32_dpp v21, v20, v20 row_ror:8 row_mask:0xf bank_mask:0xf\nv_add_f32_dpp v20, v20, v20 row_ror:8 row_mask:0xf bank_mask:0xf")
        a("v_permlane16_swap_b32 v20, v21\nv_cvt_pk_bf16_f32 v20, v20, v21\nv_and_b32 v21, 0xffff0000, v20\nv_lshlrev_b32 v20, 16, v20")
        a("v_mul_f32 v22, 0xbfb8aa3b, v20\nv_exp_f32 v22, v22\nv_add_f32 v22, 1.0, v22\nv_rcp_f32 v22, v22\nv_mul_f32 v20, v20, v22")
        a("v_cvt_pk_bf16_f32 v20, v20, v20\nv_lshlrev_b32 v20, 16, v20\nv_mul_f32 v20, v20, v21\nv_cvt_pk_bf16_f32 v20, v20, v20")
        a(f"ds_write_b16 v16, v20 offset:{M_HS}")
        self.sync(C_H)
        a(f"ds_read_b128 v[20:23], v17 offset:{M_HS}\ns_waitcnt lgkmcnt(0)")
        for p in range(4):
            for c in range(8):
                a(f"v_dot2c_f32_bf16 v{YA + c}, v{20 + p}, v{pair[(p, c)]}")
        for c in range(4):
            a(f"v_permlane32_swap_b32 v{YA + c}, v{YA + c + 4}")
        for c in range(4):
            a(f"v_add_f32 v{YA + c}, v{YA + c}, v{YA + c + 4}")
        for c in range(2):
            a(f"v_permlane16_swap_b32 v{YA + c}, v{YA + c + 2}")
        for c in range(2):
            a(f"v_add_f32 v{YA + c}, v{YA + c}, v{YA + c + 2}")
        for c in range(2):
            a(f"v_add_f32_dpp v{YA + c}, v{YA + c}, v{YA + c} row_ror:8 row_mask:0xf bank_mask:0xf")
        a(f"v_and_or_b32 v{YA}, v{YA}, s49, v14\nv_and_or_b32 v{YA + 1}, v{YA + 1}, s49, v14")
        a("s_mov_b32 exec_lo, 0x00ff00ff\ns_mov_b32 exec_hi, 0x00ff00ff")
        a(f"buffer_store_dwordx2 v[{YA}:{YA + 1}], v18, s[12:15], 0 offen sc1")
        self.arrive(C_Y)
        self.stamp(6)
        a("s_branch L_owner")
        a("L_idle:")
        for c in (C_S2, C_HP, C_H, C_Y):
            self.arrive(c)
        a("L_owner:")
        if self.diag:
            a("s_branch L_fin")
        YL, YC = 20, 28
        self.tile_decode()
        a("s_lshl_b32 s53, s53, 3\ns_add_u32 s53, s53, s46\ns_andn2_b32 s51, 0x7ff, s33\ns_mov_b32 s54, s51\ns_mov_b32 s55, 0")
        a("s_mov_b32 s16, s44\ns_mov_b32 s17, s45\ns_mov_b32 s18, 0x400000\nv_and_b32 v8, 31, v2\nv_lshlrev_b32 v15, 2, v8\nv_lshlrev_b32 v8, 1, v8\nv_mov_b32 v16, 0")
        a("L_seg:")
        a("s_xor_b32 s31, s54, s53\ns_and_b32 s31, s31, 0x487\ns_cbranch_scc0 L_seg_own\ns_cmpk_lg_u32 s31, 0x480\ns_cbranch_scc1 L_seg_next")
        a("L_seg_own:")
        a("s_lshl_b32 s31, s51, 11\ns_lshl_b32 s32, s47, 6\ns_add_u32 s63, s31, s32")
        a("buffer_load_ushort v9, v8, s[8:11], s63 offen")
        a(f"v_lshrrev_b32 v4, 3, v2\ns_lshl_b32 s31, s30, 4\nv_add_u32 v4, s31, v4\nv_lshlrev_b32 v4, 12, v4")
        a(f"s_lshl_b32 s31, s47, 7\ns_add_u32 s31, s31, {YP}\nv_add3_u32 v4, v4, v7, s31\ns_mov_b32 s62, 32768")
        for i in range(4):
            a(f"v_mov_b32 v{YL + 4 + i}, v14")
        a("v_lshrrev_b32 v5, 4, v2\nv_lshl_add_u32 v6, v5, 2, v7\ns_lshl_b32 s31, s30, 7\ns_add_u32 s31, s31, s55\nv_add_u32 v6, s31, v6")
        a("s_ashr_i32 s31, s33, 31\ns_orn2_b32 s31, 0x80000000, s31\ns_xor_b32 s31, s31, s33\ns_and_b32 s31, s31, 0xfffff800")
        a("v_cvt_pk_bf16_f32 v11, s31, s31\nv_lshlrev_b32 v11, 16, v11\nv_mul_f32 v11, 0xbfb8aa3b, v11\nv_exp_f32 v11, v11\ns_and_b32 s32, s34, 0xffff0000\nv_add_f32 v11, 1.0, v11\nv_rcp_f32 v11, v11")
        a("v_rcp_f32 v12, s32\nv_cvt_pk_bf16_f32 v11, v11, v11\nv_lshlrev_b32 v11, 16, v11\ns_lshl_b32 s31, s34, 16")
        a("s_waitcnt vmcnt(0)")
        a("v_lshlrev_b32 v9, 16, v9\nv_subrev_f32 v10, s31, v9\nv_cvt_pk_bf16_f32 v10, v10, v10\nv_lshlrev_b32 v10, 16, v10\nv_mul_f32 v10, v10, v12")
        a("v_cvt_pk_bf16_f32 v10, v10, v10\nv_lshlrev_b32 v10, 16, v10\nv_lshl_add_u32 v13, v8, 1, s55\ns_mov_b64 vcc, -1")
        a("L_y_poll:")
        a("s_mov_b64 exec, vcc")
        a(f"buffer_load_dwordx4 v[{YL}:{YL + 3}], v4, s[12:15], 0 offen sc1")
        a("s_cmp_eq_u32 s30, 3\ns_cbranch_scc1 L_y_one")
        a(f"buffer_load_dwordx4 v[{YL + 4}:{YL + 7}], v4, s[12:15], s62 offen sc1")
        a("L_y_one:\ns_mov_b64 exec, -1\ns_waitcnt vmcnt(0)")
        for i in range(8):
            a(f"v_xor_b32 v{YC + i}, v14, v{YL + i}")
        a(f"v_or3_b32 v1, v{YC}, v{YC + 1}, v{YC + 2}\nv_or3_b32 v1, v1, v{YC + 3}, v{YC + 4}\nv_or3_b32 v1, v1, v{YC + 5}, v{YC + 6}\nv_or_b32 v1, v1, v{YC + 7}")
        a(f"v_and_b32 v1, {FMASK:#x}, v1\nv_cmp_ne_u32 vcc, 0, v1")
        for p in (0, 2):
            a(f"v_pk_add_f32 v[{YC + p}:{YC + p + 1}], v[{YC + p}:{YC + p + 1}], v[{YC + 4 + p}:{YC + 5 + p}]")
        a("s_cbranch_vccz L_y_got")
        self.spin_guard("L_y_got")
        a("s_branch L_y_poll")
        a("L_y_got:")
        a(f"v_permlane16_swap_b32 v{YC}, v{YC + 1}\nv_permlane16_swap_b32 v{YC + 2}, v{YC + 3}")
        a(f"v_add_f32 v{YC}, v{YC}, v{YC + 1}\nv_add_f32 v{YC + 2}, v{YC + 2}, v{YC + 3}")
        a(f"v_permlane32_swap_b32 v{YC}, v{YC + 2}\nv_add_f32 v{YC}, v{YC}, v{YC + 2}")
        a(f"v_add_f32_dpp v{YC}, v{YC}, v{YC} row_ror:8 row_mask:0xf bank_mask:0xf")
        a(f"ds_write_b32 v6, v{YC} offset:{L_YS}")
        a(f"s_mov_b64 exec, 1\nds_add_u32 v16, v255 offset:{L_CNT + 4 * C_ROW}\ns_mov_b64 exec, -1")
        self.stamp(13)
        a("s_cmp_lg_u32 s30, 0\ns_cbranch_scc1 L_seg_next")
        a(f"s_cmp_eq_u32 s47, 0\ns_cselect_b32 s32, {EPOCH}, {OOB}\nv_mov_b32 v5, {OOB}\nv_writelane_b32 v5, s32, 0\nv_mov_b32 v18, s28\nv_mov_b32 v19, s29")
        a(f"L_rowsync:\nds_read_b32 v1, v16 offset:{L_CNT + 4 * C_ROW}\ns_waitcnt lgkmcnt(0)\nv_readfirstlane_b32 s31, v1\ns_cmp_ge_u32 s31, 5\ns_cbranch_scc0 L_rowsync")
        for j in range(4):
            a(f"ds_read_b32 v{YL + j}, v13 offset:{L_YS + 128 * j}")
        a(f"ds_read_b32 v{YL + 4}, v15 offset:{L_ROW}")
        a("s_waitcnt lgkmcnt(0)")
        y = YL
        a(f"v_add_f32 v{y}, v{y}, v{y + 1}\nv_add_f32 v{y + 2}, v{y + 2}, v{y + 3}\nv_add_f32 v{y}, v{y}, v{y + 2}")
        a(f"v_cvt_pk_bf16_f32 v{y}, v{y}, v{y}\nv_lshlrev_b32 v{y}, 16, v{y}\nv_mul_f32 v{y}, v{y}, v11")
        a(f"v_cvt_pk_bf16_f32 v{y}, v{y}, v{y}\nv_lshlrev_b32 v{y}, 16, v{y}\nv_add_f32 v{y}, v{y}, v10")
        a(f"v_cvt_pk_bf16_f32 v{y}, v{y}, v{y}\nv_lshlrev_b32 v{y}, 16, v{y}\nv_mul_f32 v1, 0xbfb8aa3b, v{y}")
        a(f"v_mul_f32 v{y}, v1, v{YL + 4}\nv_exp_f32 v1, v1\nv_add_f32 v1, 1.0, v1\nv_rcp_f32 v1, v1")
        a(f"s_mov_b32 exec_hi, 0\nv_fma_f32 v{y}, v{y}, v1, v9\nv_cvt_pk_bf16_f32 v{y}, v{y}, v{y}")
        a(f"buffer_store_short v{y}, v8, s[16:19], s63 offen {self.oflag}")
        a("buffer_store_dwordx2 v[18:19], v5, s[12:15], 0 offen sc1")
        a("s_mov_b64 exec, -1")
        self.stamp(14)
        a("L_seg_next:")
        a("s_cmp_lg_u32 s55, 0\ns_cbranch_scc1 L_fin")
        a(f"s_mov_b32 s55, 512\ns_sub_u32 s54, 0, s51\ns_sub_u32 s47, 31, s47\nv_mov_b32 v16, {4 * (C_ROW1 - C_ROW)}")
        a("v_and_b32 v15, 24, v2\nv_xor_b32 v15, 24, v15\nv_sub_u32 v1, 0, v2\nv_and_b32 v1, 7, v1\nv_add_u32 v15, v15, v1\nv_lshlrev_b32 v15, 2, v15\nv_add_u32 v15, 128, v15")
        a("s_branch L_seg")

    def finish(self):
        a = self.a
        a("L_fin:")
        self.role = "all"
        if self.probe:
            if self.probe == ("all", 15):
                a("s_waitcnt vmcnt(0)")
                self.stamp(15)
            a("s_cmp_eq_u32 s68, 0\ns_cbranch_scc1 L_exit\ns_mov_b32 s35, 100000")
            a("L_probe:\ns_sleep 1\ns_memrealtime s[70:71]\ns_waitcnt lgkmcnt(0)\ns_sub_u32 s31, s70, s68\ns_cmp_ge_u32 s31, 4000\ns_cbranch_scc1 L_exit")
            a("s_cmp_eq_u32 s35, 0\ns_cbranch_scc1 L_exit\ns_sub_u32 s35, s35, 1\ns_branch L_probe")
        if self.stamps:
            a("s_waitcnt vmcnt(0)")
            self.stamp(15)
            a(f"v_writelane_b32 v211, s68, 0\ns_lshl_b32 s31, s2, 3\ns_add_u32 s31, s31, s3\ns_lshl_b32 s31, s31, 6\ns_add_u32 s31, s31, {STAMP}\nv_lshl_add_u32 v4, v2, 2, s31")
            a("s_mov_b64 exec, 0xffff\nbuffer_store_dword v211, v4, s[12:15], 0 offen")
        a("L_exit:")
        a("s_endpgm")
        a("L_code_end:")
        a.kernel_desc(NAME + "_kernel", 256, 92)
        a.add_launch(NAME + "_kernel", NWG, 64 * WAVES, LDS_BYTES)

    def build(self, path, verbose=False):
        self.prologue()
        self.dft()
        self.moe()
        self.finish()
        rep = []
        self.a.lines = hazard.fix(self.a.lines, rep)
        if verbose:
            for pad, s in rep:
                print("nop", pad, s)
        self.a.write(path, HEADER)


GROUPS = {"dft": (slice(0, 256), slice(0, 4)), "load": (slice(0, 224), slice(4, 7)), "h1": (slice(0, 224), slice(7, 8)), "idle": (slice(224, 256), slice(4, 8))}

if __name__ == "__main__":
    kw = eval(sys.argv[2]) if len(sys.argv) > 2 else {}
    Gen(**kw).build(sys.argv[1], verbose=True)
```

```python
import struct
import sys

sys.path.insert(0, "tools")
from asmgen import Asm, NAME
import hazard

EPOCH = 0
GRAN = 0x1000
STAT = 0x8000
HP = 0x40000
YP = 0x80000
ZB = 0x200000
ZTS = 129 * 128
STAMP = 0x1000000
OOB = 0x7FFFFF00
WBYTES = 1024 * 3584 * 2
ZMASK = 0x00030003
FMASK = 0x000000FF

RS, QS = 2592, 640
MISC = 16 * RS
EX = MISC + 2560
L_ENT = MISC
L_KEY = MISC + 80
L_MEAN = MISC + 96
L_YS = MISC + 1536
L_ROW = MISC + 1024
L_RST = MISC + 1280
L_CNT = MISC + 1344
M_XS = MISC + 128
M_HS = MISC + 896
M_G = EX + 32768
M_U = M_G + 32768
L_XT = M_U + 32768
LDS_BYTES = L_XT + 16384
C_A, C_B, C_C, C_ST3, C_D, C_ROW, C_S1, C_S2, C_HP, C_H, C_Y, C_S0, C_ROW1, C_DMA, C_E = range(15)
C_YG = 15
SHD = 16640
REL = {"k2": (C_DMA, 1), "k3": (C_DMA, 3), "s0": (C_S0, 1), "s1": (C_S1, 1), "s2": (C_S2, 1), "hp": (C_HP, 4), "h": (C_H, 4), "y": (C_Y, 4)}

SPIN = 1 << 16
NWG = 256
WAVES = 8

HEADER = """; Fused kernel: LayerNorm, Re(2-D DFT) as a folded mixed-radix transform on MFMA, routed-token SwiGLU, gating.
; Waves 0..3 of a workgroup run the transform, waves 4..7 the routed-token path."""

SHR = ("row_shr:1", "row_shr:2", "row_shr:4", "row_shr:8")


def fbits(x):
    return struct.unpack("<I", struct.pack("<f", float(x)))[0]


class Gen:
    DEFAULTS = dict(stamps=False, probe=None, diag=None, wflag="nt", oflag="sc1", prefetch=True, prio=True, psleep=2, win=24, dfirst=8, dlag=0,
                    drel="s1", gate=(C_C, 4), rel_zw="s1", rel_x0="s1", rel_x="hp", rel_zr="h", order="mzx", xearly=0, zwith=False,
                    nfpre=2, defer=False, near=True, dall=False, hpearly=8, tlb=True, touch=True, isleep=0, ygate=None, ywait=True, hold=False, hs=(0, 0), ys=(0, 0), local=False, cheat=0, xb=2, xc=2)

    def __init__(self, **kw):
        self.a = Asm()
        self.role = "all"
        self.nsync = 0
        assert set(kw) <= set(self.DEFAULTS), set(kw) - set(self.DEFAULTS)
        self.__dict__.update(self.DEFAULTS)
        self.__dict__.update(kw)

    def arrive(self, c):
        self.a(f"s_mov_b64 exec, 1\nds_add_u32 v0, v255 offset:{L_CNT + 4 * c}\ns_mov_b64 exec, -1")

    def wait(self, c, n):
        self.nsync += 1
        lb = f"L_sync{self.nsync}"
        self.a(f"{lb}:\nds_read_b32 v1, v0 offset:{L_CNT + 4 * c}\ns_waitcnt lgkmcnt(0)\nv_readfirstlane_b32 s31, v1\ns_cmp_ge_u32 s31, {n}\ns_cbranch_scc0 {lb}")

    def sync(self, c, n=4):
        self.arrive(c)
        self.wait(c, n)

    def release(self, name):
        if name:
            self.wait(*REL[name])

    def stamp(self, i):
        if self.probe == (self.role, i):
            self.a("s_memrealtime s[68:69]\ns_waitcnt lgkmcnt(0)")
        if self.stamps and (self.stamps is True or i == 15 or (self.role, i) in self.stamps):
            self.a(f"s_memrealtime s[70:71]\ns_waitcnt lgkmcnt(0)\nv_writelane_b32 v211, s70, {i}")

    def fine(self, i):
        if self.diag == "fine" and i not in (2, 3, 4, 5):
            self.a(f"s_memtime s[{76 + 2 * i}:{77 + 2 * i}]")

    def spin_guard(self, out, sleep=None):
        self.a(f"s_cmp_eq_u32 s35, 0\ns_cbranch_scc1 {out}\ns_sub_u32 s35, s35, 1")
        self.sleep(self.psleep if sleep is None else sleep)

    def setprio(self, p):
        if self.prio:
            self.a(f"s_setprio {p}")

    def mfma(self, ty, d, A, B, c=None):
        c = "0" if c is None else f"v[{c}:{c + 3}]"
        self.a(f"v_mfma_f32_16x16x32_{ty} v[{d}:{d + 3}], v[{A}:{A + 3}], v[{B}:{B + 3}], {c}")

    def prologue(self):
        a = self.a
        a.begin(NAME + "_kernel")
        if self.stamps:
            a("s_memrealtime s[68:69]")
        a(f"s_cmp_ge_u32 s2, {NWG}\ns_cbranch_scc1 L_exit")
        a("s_load_dwordx2 s[8:9], s[0:1], 0")
        a("s_load_dwordx4 s[36:39], s[0:1], 48")
        a("s_load_dwordx2 s[12:13], s[0:1], 96")
        if self.stamps:
            a("v_mov_b32 v211, 0")
        if self.probe:
            a("s_mov_b32 s68, 0")
            if self.probe == ("all", 0):
                a("s_memrealtime s[68:69]")
        if self.prefetch:
            a("s_getpc_b64 s[32:33]\nL_pc:\ns_bfe_u32 s31, s2, 0x30003\nv_subrev_u32 v3, 496, v0\nv_lshl_add_u32 v3, v3, 3, s31\nv_lshlrev_b32 v3, 7, v3")
            a("v_cmp_gt_u32 vcc, L_code_end-L_pc, v3\ns_and_saveexec_b64 s[46:47], vcc\ns_cbranch_execz L_nopf")
            a("global_load_dword v254, v3, s[32:33]")
            a("L_nopf:\ns_mov_b64 exec, -1")
        a("v_lshrrev_b32 v1, 6, v0\nv_and_b32 v2, 63, v0")
        a("v_readfirstlane_b32 s30, v1")
        a("s_mov_b32 s10, 0x400000\ns_mov_b32 s11, 0x00020000\ns_mov_b32 s14, 0x10000000\ns_mov_b32 s15, 0x00020000")
        a(f"s_mov_b32 s35, {SPIN}\nv_lshlrev_b32 v3, 4, v2")
        a("v_mov_b32 v0, 0\nv_mov_b32 v255, 1\ns_mov_b32 s3, s30\ns_and_b32 s30, s30, 3")
        a("s_cmp_ge_u32 s3, 4\ns_cbranch_scc1 L_moe")

    def tag_from_epoch(self):
        self.a("s_add_u32 s28, s28, 0x7f4a7c15\ns_addc_u32 s29, s29, 0x9e3779b9")

    def gran_issue(self, g):
        for j in range(4):
            self.a(f"buffer_load_dwordx4 v[{g + 4 * j}:{g + 4 * j + 3}], v3, s[12:15], s63 offen offset:{1024 * j} sc1")

    def gran_resolve(self, name, g, k):
        a = self.a
        a(f"L_{name}_check:")
        for j in range(4):
            a(f"v_cmp_ne_u64 s[{52 + 2 * j}:{53 + 2 * j}], s[28:29], v[{g + 4 * j + 2}:{g + 4 * j + 3}]")
        a(f"v_max_u32 v{k}, v{g + 1}, v{g + 5}\nv_max3_u32 v{k}, v{k}, v{g + 9}, v{g + 13}")
        a("s_or_b64 s[64:65], s[52:53], s[54:55]\ns_or_b64 vcc, s[56:57], s[58:59]\ns_or_b64 s[64:65], s[64:65], vcc")
        a(f"s_cbranch_scc0 L_{name}_got")
        self.spin_guard(f"L_{name}_got")
        for j in range(4):
            a(f"s_mov_b64 exec, s[{52 + 2 * j}:{53 + 2 * j}]\ns_cbranch_execz L_{name}_skip{j}")
            a(f"buffer_load_dwordx4 v[{g + 4 * j}:{g + 4 * j + 3}], v3, s[12:15], s63 offen offset:{1024 * j} sc1")
            a(f"L_{name}_skip{j}:")
        a(f"s_mov_b64 exec, -1\ns_waitcnt vmcnt(0)\ns_branch L_{name}_check")
        a(f"L_{name}_got:")
        a(f"v_max_u32_dpp v{k + 1}, v{k}, v{k} row_ror:1 row_mask:0xf bank_mask:0xf")
        for d in ("row_ror:2", "row_ror:4", "row_ror:8"):
            a(f"v_max_u32_dpp v{k + 1}, v{k + 1}, v{k + 1} {d} row_mask:0xf bank_mask:0xf")
        a(f"v_readlane_b32 s33, v{k + 1}, 0\nv_readlane_b32 s31, v{k + 1}, 16\nv_readlane_b32 s32, v{k + 1}, 32\nv_readlane_b32 s34, v{k + 1}, 48")
        a("s_max_u32 s33, s33, s31\ns_max_u32 s32, s32, s34\ns_max_u32 s33, s33, s32")

    def gran_stats(self, g, k):
        a = self.a
        for j in (1, 2, 3):
            a(f"v_cmp_eq_u32 s[{50 + 2 * j}:{51 + 2 * j}], s33, v{g + 4 * j + 1}")
        a(f"v_cmp_eq_u32 vcc, s33, v{k}")
        a(f"v_cndmask_b32 v{k + 1}, v{g}, v{g + 4}, s[52:53]\nv_cndmask_b32 v{k + 1}, v{k + 1}, v{g + 8}, s[54:55]\nv_cndmask_b32 v{k + 1}, v{k + 1}, v{g + 12}, s[56:57]")
        a("s_ff1_i32_b64 s32, vcc")
        a(f"v_readlane_b32 s34, v{k + 1}, s32")

    def p2_matrix(self, MM, T0, T1, T2):
        a = self.a
        a(f"v_and_b32 v{T0}, 15, v2\nv_add_u32 v{T0}, s53, v{T0}\nv_cvt_f32_u32 v{T0}, v{T0}\nv_add_f32 v{T0}, 0.5, v{T0}\nv_mul_f32 v{T0}, 0x3b800000, v{T0}")
        a(f"v_and_b32 v{T1}, 32, v2\nv_bfe_u32 v{T2}, v2, 4, 1\nv_lshl_add_u32 v{T1}, v{T2}, 3, v{T1}\nv_cvt_f32_u32 v{T1}, v{T1}\nv_mul_f32 v{T1}, v{T1}, v{T0}")
        for p in range(2):
            for hf in range(2):
                for dw in range(4):
                    c0 = 64 * hf + 16 * (dw // 2) + 4 * (dw % 2) + p
                    dc, ds = MM + 4 * (2 * p + hf) + dw, MM + 16 + 4 * (2 * p + hf) + dw
                    a(f"v_fmamk_f32 v{dc}, v{T0}, {fbits(c0):#x}, v{T1}\nv_fmamk_f32 v{T2}, v{T0}, {fbits(c0 + 2):#x}, v{T1}")
                    a(f"v_sin_f32 v{ds}, v{dc}\nv_sin_f32 v{T2 + 1}, v{T2}\nv_cos_f32 v{dc}, v{dc}\nv_cos_f32 v{T2}, v{T2}")
                    a(f"v_cvt_pk_f16_f32 v{ds}, v{ds}, v{T2 + 1}\nv_cvt_pk_f16_f32 v{dc}, v{dc}, v{T2}")
        a(f"v_cmp_gt_u32 vcc, 16, v2\nv_and_b32 v{T2}, 1, v2\nv_lshlrev_b32 v{T2}, 15, v{T2}\nv_or_b32 v{T2}, 0x3c00, v{T2}\nv_and_b32 v{T0}, 0xffff0000, v{MM + 16}\nv_or_b32 v{T2}, v{T2}, v{T0}")
        a(f"v_cndmask_b32 v{MM + 16}, v{MM + 16}, v{T2}, vcc")

    def tile_decode(self):
        self.a("s_and_b32 s31, s2, 7\ns_sub_u32 s32, 8, s31\ns_min_u32 s46, s31, s32\ns_cmp_gt_u32 s31, 4\ns_cselect_b32 s31, 16, 0")
        self.a("s_lshr_b32 s47, s2, 4\ns_add_u32 s47, s47, s31\ns_bfe_u32 s53, s2, 0x10003\ns_lshl_b32 s53, s53, 7\ns_add_u32 s53, s53, s31")

    XS_, VTA, XR, VTC, VSA = (112, 113, 114, 115), 116, 117, 118, 119

    def out_addresses(self):
        a = self.a
        XS_, VTA, XR, VTC, VSA = self.XS_, self.VTA, self.XR, self.VTC, self.VSA
        a("s_and_b32 s31, s2, 7\ns_sub_u32 s32, 8, s31\ns_min_u32 s76, s31, s32\ns_cmp_gt_u32 s31, 4\ns_cselect_b32 s31, 16, 0")
        a("s_lshr_b32 s77, s2, 4\ns_add_u32 s77, s77, s31\ns_bfe_u32 s78, s2, 0x10003\ns_lshl_b32 s78, s78, 7\ns_add_u32 s78, s78, s31")
        a("s_lshl_b32 s31, s30, 5\ns_add_u32 s78, s78, s31\ns_lshl_b32 s78, s78, 3\ns_add_u32 s78, s78, s76")
        a("s_lshl_b32 s77, s77, 6\ns_sub_u32 s79, 1984, s77\ns_lshl_b32 s76, s76, 1\ns_add_u32 s76, s76, 2040")
        a(f"v_and_b32 v{VTA}, 15, v2\nv_lshl_add_u32 v{VTA}, v{VTA}, 3, s78")
        a(f"s_mov_b32 vcc_lo, 0\ns_mov_b32 vcc_hi, -1\nv_sub_u32 v7, s76, v{VTA}\nv_cndmask_b32 v7, v{VTA}, v7, vcc")
        a("s_mov_b32 vcc_lo, 0xffff0000\ns_mov_b32 vcc_hi, 0xffff0000\nv_sub_u32 v6, 0, v7\nv_cndmask_b32 v7, v7, v6, vcc")
        a(f"v_and_b32 v6, 7, v7\nv_and_b32 v1, 1024, v7\nv_lshl_add_u32 v6, v6, 11, v1\nv_and_b32 v1, 0xf8, v7\nv_lshl_add_u32 v6, v1, 2, v6")
        a(f"v_bfe_u32 v1, v7, 9, 1\nv_lshl_add_u32 v{VSA}, v1, 4, v6\nv_and_b32 v1, 256, v7\nv_cmp_ne_u32 s[88:89], 0, v1")
        if self.cheat & 2:
            a(f"v_and_b32 v{VSA}, 0x1f0, v3")
        d, vt = XS_, VTC
        a(f"v_lshrrev_b32 v{vt}, 2, v2\nv_lshl_add_u32 v{vt}, v{vt}, 3, s78\nv_lshlrev_b32 v1, 1, v2\nv_xor_b32 v1, v1, v3\nv_and_b32 v1, 48, v1")
        a(f"v_sub_u32 v{d[1]}, 0, v{vt}\nv_sub_u32 v{d[2]}, s76, v{vt}\nv_and_b32 v{d[1]}, 2047, v{d[1]}\nv_sub_u32 v{d[3]}, 2048, v{d[2]}")
        a(f"v_add_u32 v{d[0]}, s77, v1\nv_lshl_add_u32 v{d[2]}, v{d[2]}, 11, v{d[0]}\nv_lshl_add_u32 v{d[0]}, v{vt}, 11, v{d[0]}")
        a(f"v_xor_b32 v1, 48, v1\nv_add_u32 v1, s79, v1\nv_lshl_add_u32 v{d[1]}, v{d[1]}, 11, v1\nv_lshl_add_u32 v{d[3]}, v{d[3]}, 11, v1")
        a(f"s_lshl_b32 s76, s30, 12\ns_add_u32 s76, s76, {L_XT}")
        a(f"v_and_b32 v1, 15, v2\nv_lshlrev_b32 v6, 6, v1\nv_lshlrev_b32 v1, 3, v2\nv_xor_b32 v1, v1, v2\nv_and_b32 v1, 48, v1\nv_add3_u32 v{XR}, v6, v1, s76")

    def x_loads(self, h0, h1):
        for h in range(h0, h1):
            self.a(f"s_add_u32 m0, s76, {1024 * h}")
            self.a(f"buffer_load_dwordx4 v{self.XS_[h]}, s[8:11], 0 offen lds")

    def park_move(self):
        new = dict(XS_=(4, 5, 249, 205), VTA=248, XR=208, VTC=7, VSA=6)
        for o, n in zip(self.XS_ + (self.VTA, self.XR, self.VTC, self.VSA), new["XS_"] + (new["VTA"], new["XR"], new["VTC"], new["VSA"])):
            self.a(f"v_mov_b32 v{n}, v{o}")
        self.__dict__.update(new)

    def sleep(self, n):
        while n > 0:
            self.a(f"s_sleep {min(n, 127)}")
            n -= 127

    def dft(self):
        a = self.a
        self.role = "dft"
        CV, M2, TW, M3, MM = 8, 16, 48, 80, 88
        RW, WR = 120, 152
        T = 160
        VPUB = 4

        a("s_and_b32 s31, s2, 7\ns_lshr_b32 s32, s2, 4\ns_sub_u32 s32, 15, s32\ns_lshl_b32 s32, s32, 3\ns_add_u32 s46, s32, s31\ns_bfe_u32 s47, s2, 0x10003")
        a("s_lshl_b32 s31, s47, 2\ns_add_u32 s51, s31, s30\ns_lshl_b32 s31, s51, 8\ns_add_u32 s52, s31, s46\ns_xor_b32 s54, s52, 1024")
        a("s_sub_u32 s53, 2048, s52\ns_add_u32 s31, s52, 128\ns_cmp_eq_u32 s46, 0\ns_cselect_b32 s53, s31, s53\ns_cselect_b32 s50, 1, 0\ns_xor_b32 s55, s53, 1024")
        for i in range(4):
            a(f"s_lshl_b32 s{56 + i}, s{52 + i}, 11")
        a("s_mov_b32 s22, 2048\ns_mov_b32 s23, 0x00020000")
        a(f"v_mov_b32 v1, 0\nv_and_b32 v6, 15, v2\nv_lshlrev_b32 v6, 2, v6\nds_write_b64 v0, v[0:1] offset:{L_ENT + 32}\nds_write_b32 v6, v0 offset:{L_CNT}")
        a("s_waitcnt lgkmcnt(0)")
        if self.diag == "start":
            a("s_memrealtime s[80:81]")
        a(f"s_load_dwordx2 s[28:29], s[12:13], {EPOCH}\ns_load_dwordx2 s[16:17], s[0:1], 80")
        for r in range(4):
            if r == 2:
                a("s_mov_b32 s20, s36\ns_mov_b32 s21, s37")
                a(f"buffer_load_dwordx4 v[{WR}:{WR + 3}], v3, s[20:23], 0 offen")
                a(f"buffer_load_dwordx4 v[{WR + 4}:{WR + 7}], v3, s[20:23], 0 offen offset:1024")
                if self.defer:
                    break
            a(f"buffer_load_dwordx4 v[{RW + 8 * r}:{RW + 8 * r + 3}], v3, s[8:11], s{56 + r} offen")
            a(f"buffer_load_dwordx4 v[{RW + 8 * r + 4}:{RW + 8 * r + 7}], v3, s[8:11], s{56 + r} offen offset:1024")
        if self.diag == "start":
            a("s_memrealtime s[82:83]")
        a("s_barrier")
        if self.near:
            a("s_branch L_dft_rest")
            self.moe_head()
            a("s_branch L_dma_done")
            a("L_dft_rest:")
            self.role = "dft"
        if self.diag == "start":
            a(f"s_memrealtime s[84:85]\ns_waitcnt vmcnt({2 if self.defer else 6})\ns_memrealtime s[86:87]\ns_waitcnt lgkmcnt(0)")
            for i in range(4):
                a(f"v_writelane_b32 v211, s{80 + 2 * i}, {1 + i}")
        a("s_mov_b32 s18, 0x400000\ns_mov_b32 s19, 0x00020000")
        VROW, VEN, VST, VLD, VLM, VTR, VEX, VSG = T + 40, T + 41, T + 42, T + 44, T + 45, T + 46, T + 47, T + 48
        a(f"s_sub_u32 s31, 2047, s52\ns_sub_u32 s32, 2047, s53\nv_mov_b32 v{VROW}, s31\nv_writelane_b32 v{VROW}, s32, 63")
        a(f"s_lshl_b32 s31, s30, 2\nv_mov_b32 v{VEN}, s31\ns_bfe_u32 s31, s53, 0x20008\ns_lshl_b32 s31, s31, 2\ns_add_u32 s31, s31, 16\nv_writelane_b32 v{VEN}, s31, 63")
        a(f"v_and_b32 v6, 32, v2\ns_lshl_b32 s31, s51, 2\nv_add_u32 v{VST + 1}, s31, v6\nv_lshrrev_b32 v{VST}, 1, v{VST + 1}")
        a(f"s_lshl_b32 s31, s2, 4\ns_add_u32 s31, s31, {GRAN}\nv_mov_b32 v{VPUB}, s31\nv_lshlrev_b32 v5, 3, v2")
        for t in range(2):
            a(f"s_and_b32 s31, s{52 + t}, 7\ns_lshl_b32 s31, s31, 11\ns_and_b32 s32, s{52 + t}, 1024\ns_add_u32 s31, s31, s32\ns_and_b32 s32, s{52 + t}, 0xf8\ns_lshl_b32 s32, s32, 2")
            a(f"s_add_u32 s31, s31, s32\ns_add_u32 s31, s31, {STAT}\nv_writelane_b32 v{VPUB}, s31, {2 * t}\ns_add_u32 s31, s31, 16\nv_writelane_b32 v{VPUB}, s31, {2 * t + 1}")
        a(f"s_mul_i32 s31, s51, {RS}\nv_and_b32 v{VLD}, 32, v2\nv_lshlrev_b32 v{VLD}, 2, v{VLD}\nv_add3_u32 v{VLD}, v{VLD}, v3, s31")
        a(f"s_lshl_b32 s32, s31, 1\ns_add_u32 s32, s32, {8 * RS + 63 * 16 + 128}\nv_sub_u32 v{VLM}, s32, v{VLD}")
        a(f"v_bfe_u32 v{VTR}, v2, 2, 2\nv_mul_u32_u24 v{VTR}, {RS}, v{VTR}\nv_lshrrev_b32 v6, 4, v2\nv_mul_u32_u24 v7, {QS}, v6\nv_add_u32 v{VTR}, v{VTR}, v7")
        a(f"v_and_b32 v7, 3, v2\nv_lshlrev_b32 v7, 3, v7\ns_lshl_b32 s31, s30, 7\nv_add3_u32 v{VTR}, v{VTR}, v7, s31")
        a(f"v_lshlrev_b32 v6, 12, v6\nv_and_b32 v7, 15, v2\nv_lshl_add_u32 v6, v7, 4, v6\ns_lshl_b32 s31, s30, 8\nv_add_u32 v{VEX}, s31, v6")
        a(f"v_bfe_i32 v{VSG}, v2, 4, 1\nv_and_b32 v{VSG}, 0x80008000, v{VSG}")

        T0, T1, T2 = T + 90, T + 91, T + 92
        a(f"s_cmp_eq_u32 s47, 0\ns_movk_i32 s48, 0x7403\ns_cselect_b32 s48, 0x7721, s48\nv_and_b32 v{T0}, 12, v2\nv_bfe_u32 v{T0}, s48, v{T0}, 4")
        a(f"v_lshrrev_b32 v{T1}, 4, v2\nv_bfe_u32 v{T2}, v2, 1, 1\nv_mul_u32_u24 v{T1}, v{T1}, v{T2}\nv_and_b32 v{T2}, 1, v2\nv_add_u32 v{T1}, v{T1}, v{T2}")
        a(f"v_cvt_f32_u32 v{T0}, v{T0}\nv_cvt_f32_u32 v{T1}, v{T1}\nv_mul_f32 v{T0}, 0x3e000000, v{T0}\nv_mul_f32 v{T1}, 0x3e800000, v{T1}")
        for j in range(8):
            a(f"v_cos_f32 v{CV + j}, v{T1}")
            if j < 7:
                a(f"v_add_f32 v{T1}, v{T1}, v{T0}")
        for j in range(8):
            a(f"v_mul_f32 v{CV + j}, 0xbf317218, v{CV + j}")
        BI = T + 52
        a(f"v_lshrrev_b32 v{T0}, 2, v2\nv_and_b32 v{T0}, 12, v{T0}\nv_and_b32 v{T1}, 15, v2\nv_lshlrev_b32 v{T1}, 2, v{T1}")
        a(f"v_cvt_f32_u32 v{T0}, v{T0}\nv_cvt_f32_u32 v{T1}, v{T1}\nv_mul_f32 v{BI}, 0x3c800000, v{T0}")
        a(f"s_lshl_b32 s31, s30, 2\ns_lshr_b32 s48, s48, s31\ns_and_b32 s48, s48, 15\ns_sub_u32 s31, s48, 4\ns_mul_i32 s31, s31, s46\nv_cvt_f32_i32 v{T2}, s31\nv_mul_f32 v{T2}, 0x3a000000, v{T2}")
        a(f"v_add_f32 v{BI + 1}, 0x3c800000, v{BI}\nv_add_f32 v{BI + 2}, 0x3d000000, v{BI}\nv_add_f32 v{BI + 3}, 0x3d400000, v{BI}")
        def consts(f0, f1):
            for f in range(f0, f1):
                for i in range(4):
                    re, im = M2 + 8 * f + i, M2 + 8 * f + 4 + i
                    tc, ts = TW + 8 * f + i, TW + 8 * f + 4 + i
                    a(f"v_mul_f32 v{T0}, v{BI + i}, v{T1}")
                    a(f"v_fmamk_f32 v{ts}, v{T0}, 0x3d800000, v{T2}")
                    a(f"v_sin_f32 v{im}, v{T0}\nv_cos_f32 v{T0}, v{T0}\nv_cos_f32 v{tc}, v{ts}\nv_sin_f32 v{ts}, v{ts}")
                    a(f"v_cvt_pk_f16_f32 v{re}, v{T0}, v{im}\nv_cvt_pk_f16_f32 v{im}, -v{im}, v{T0}")
                if f < 3:
                    a(f"v_add_f32 v{T1}, 1.0, v{T1}")

        VZ = T + 49

        def late_consts():
            consts(self.nfpre, 4)
            a("s_and_b32 s31, s46, 1\ns_lshl_b32 s31, s31, 6\ns_lshr_b32 s32, s46, 1\ns_add_u32 s49, s31, s32")
            a("s_bitcmp1_b32 s49, 2\ns_cselect_b64 vcc, -1, 0")
            for i in range(4):
                a(f"v_cndmask_b32 v{M3 + i}, v{M2 + i}, v{M2 + 4 + i}, vcc\nv_cndmask_b32 v{M3 + 4 + i}, v{M2 + 4 + i}, v{M2 + i}, vcc")
            a(f"s_bfe_u32 s31, s49, 0x10001\nv_and_b32 v6, 7, v2\nv_xor_b32 v6, s31, v6\nv_lshlrev_b32 v6, 4, v6")
            a(f"v_lshrrev_b32 v7, 4, v2\nv_lshlrev_b32 v7, 3, v7\nv_bfe_u32 v{VZ}, v2, 3, 1\nv_add_u32 v7, v7, v{VZ}\nv_mul_u32_u24 v7, {ZTS}, v7\nv_add_u32 v{VZ}, v6, v7")
            a(f"s_mul_i32 s31, s48, {32 * ZTS}\ns_lshl_b32 s32, s49, 7\ns_add_u32 s31, s31, s32\ns_add_u32 s60, s31, {ZB}")

        self.out_addresses()
        consts(0, self.nfpre)
        SS, QQ, DD, DC = T, T + 4, T + 8, T + 10
        PB, RST, MEAN, SH = T + 12, T + 16, T + 32, T + 56
        for r in range(11):
            a(f"v_mov_b32 v{T + r}, 0")
        if self.defer:
            a("s_mov_b32 s84, s58\ns_mov_b32 s85, s59")
        a("s_mov_b32 s57, 0x3f803f80\ns_mov_b32 s59, 0xffff\ns_brev_b32 s67, 1\ns_mov_b32 s66, 0\ns_brev_b32 s64, 1\ns_brev_b32 s65, 1")
        a(f"s_cmp_eq_u32 s47, 0\ns_movk_i32 s62, {-4 * RS}\ns_cselect_b32 s62, {4 * RS}, s62")
        a("s_waitcnt lgkmcnt(0)")
        self.tag_from_epoch()
        a(f"v_mov_b32 v{PB + 2}, s28\nv_mov_b32 v{PB + 3}, s29")
        a(f"s_cmp_lt_u32 s2, {0 if self.diag == 'nomoe' else 224}\ns_cbranch_scc1 L_epoch_ok")
        self.wait(C_E, 4)
        a("L_epoch_ok:")
        self.setprio(2)
        self.stamp(1)

        def sq(r):
            for i in range(8):
                x = RW + 8 * r + i
                a(f"v_dot2c_f32_bf16 v{SS + r}, s57, v{x}\nv_dot2c_f32_bf16 v{QQ + r}, v{x}, v{x}")

        def plain(r, off):
            a(f"ds_write_b128 v{VLD}, v[{RW + 8 * r}:{RW + 8 * r + 3}] offset:{off}\nds_write_b128 v{VLD}, v[{RW + 8 * r + 4}:{RW + 8 * r + 7}] offset:{off + 2 * QS}")

        def rotate(r):
            b = RW + 8 * r
            a(f"v_mov_b32_dpp v6, v{b} wave_rol:1 row_mask:0xf bank_mask:0xf\nv_mov_b32_dpp v7, v{b + 4} wave_rol:1 row_mask:0xf bank_mask:0xf")
            for half in range(2):
                for i in (1, 2, 3):
                    a(f"v_bfi_b32 v{SH + 4 * (1 - half) + i}, s59, v{b + 4 * half + 4 - i}, v{b + 4 * half + 3 - i}")
            a(f"v_cndmask_b32 v{SH + 4}, v6, v7, s[66:67]\nv_cndmask_b32 v{SH}, v7, v6, s[66:67]")
            a(f"v_bfi_b32 v{SH + 4}, s59, v{SH + 4}, v{b + 3}\nv_bfi_b32 v{SH}, s59, v{SH}, v{b + 7}")

        def second(r):
            a(f"s_cmp_lg_u32 s50, 0\ns_cbranch_scc1 L_plain{r}")
            a(f"ds_write_b128 v{VLM}, v[{SH}:{SH + 3}]\nds_write_b128 v{VLM}, v[{SH + 4}:{SH + 7}] offset:{2 * QS}\ns_branch L_second{r}")
            a(f"L_plain{r}:")
            plain(r, 8 * RS)
            a(f"L_second{r}:")

        def reduce(regs):
            for r in regs:
                a(f"v_permlane32_swap_b32 v{r}, v{r + 1}")
            for r in regs:
                a(f"v_add_f32 v{r}, v{r}, v{r + 1}")
            for d, m in [(d, 0xf) for d in SHR] + [("row_bcast:15", 0xa)]:
                for r in regs:
                    a(f"v_add_f32_dpp v{r}, v{r}, v{r} {d} row_mask:{m:#x} bank_mask:0xf")

        def tail(m_, q_, NM, st):
            a(f"v_mul_f32 v{m_}, 0x3a800000, v{m_}\nv_mul_f32 v{q_}, 0x3a800000, v{q_}")
            a(f"v_fma_f32 v{q_}, -v{m_}, v{m_}, v{q_}\nv_cvt_pk_bf16_f32 v{NM}, -v{m_}, -v{m_}\nv_max_f32 v{q_}, 0, v{q_}")
            a(f"v_cvt_pk_bf16_f32 v{q_}, v{q_}, v{q_}\nv_and_b32 v{q_}, 0xffff0000, v{q_}\nv_add_f32 v{q_}, 0x3727c5ac, v{q_}")
            a(f"v_cvt_pk_bf16_f32 v{q_}, v{q_}, v{q_}\nv_and_b32 v{q_}, 0xffff0000, v{q_}\nv_sqrt_f32 v{q_}, v{q_}\nv_and_b32 v{q_ + 1}, 0xffff0000, v{NM}")
            a(f"v_cvt_pk_bf16_f32 v{st}, v{m_}, v{q_}\nv_and_b32 v{q_}, 0xffff0000, v{st}\nv_rcp_f32 v{q_}, v{q_}")

        a(f"s_waitcnt vmcnt({4 if self.defer else 8})")
        if self.defer:
            for r in (2, 3):
                a(f"buffer_load_dwordx4 v[{RW + 8 * r}:{RW + 8 * r + 3}], v3, s[8:11], s{82 + r} offen")
                a(f"buffer_load_dwordx4 v[{RW + 8 * r + 4}:{RW + 8 * r + 7}], v3, s[8:11], s{82 + r} offen offset:1024")
        sq(0)
        a("s_waitcnt vmcnt(6)")
        sq(1)
        a("s_waitcnt vmcnt(4)")
        self.stamp(2)
        for i in range(8):
            a(f"v_dot2c_f32_bf16 v{DC}, s57, v{WR + i}")
        for i in range(8):
            a(f"v_dot2c_f32_bf16 v{DD}, v{WR + i}, v{RW + i}\nv_dot2c_f32_bf16 v{DD + 1}, v{WR + i}, v{RW + 8 + i}")
            if i == 3:
                a(f"v_mov_b32 v{DC + 1}, v{DC}")
        reduce((SS, QQ, DC, DD))
        t_, NM, st = DD, SS + 1, T + 88
        tail(SS, QQ, NM, st)
        a(f"v_fmac_f32 v{t_}, v{DC}, v{QQ + 1}\nv_mul_f32 v{t_}, v{t_}, v{QQ}")
        a(f"v_ashrrev_i32 v{DC}, 31, v{t_}\nv_or_b32 v{DC}, 0x80000000, v{DC}\nv_xor_b32 v{t_}, v{t_}, v{DC}")
        a(f"v_and_b32 v{t_}, 0xfffff800, v{t_}\nv_or_b32 v{st + 1}, v{VROW}, v{t_}")
        a("s_mov_b64 exec, s[64:65]")
        a(f"ds_write_b32 v{VEN}, v{st} offset:{L_ENT}\nds_max_u64 v0, v[{st}:{st + 1}] offset:{L_ENT + 32}")
        a(f"s_mov_b64 exec, 1\nds_add_rtn_u32 v1, v0, v255 offset:{L_CNT + 4 * C_A}\ns_mov_b64 exec, 31\nds_read_b64 v[{PB}:{PB + 1}], v5 offset:{L_ENT}")
        a("s_mov_b64 exec, s[64:65]")
        a(f"ds_write_b16 v{VST}, v{NM} offset:{L_MEAN}\nds_write_b32 v{VST + 1}, v{QQ} offset:{L_RST}")
        a("s_mov_b64 exec, -1")
        rotate(1)
        a("s_waitcnt lgkmcnt(2)\nv_readfirstlane_b32 s31, v1\ns_cmp_lg_u32 s31, 3\ns_cbranch_scc1 L_not_last")
        a(f"s_mov_b64 exec, 31\nbuffer_store_dwordx4 v[{PB}:{PB + 3}], v{VPUB}, s[12:15], 0 offen sc1\ns_mov_b64 exec, -1")
        self.stamp(3)
        a("s_waitcnt vmcnt(1)\ns_branch L_b_ready")
        a("L_not_last:")
        a("s_waitcnt vmcnt(0)")
        a("L_b_ready:")
        self.setprio(1)
        if self.diag == "pubonly":
            self.arrive(self.gate[0])
            self.arrive(C_ST3)
            a("s_branch L_fin")
        plain(0, 0)
        second(1)
        a(f"v_add_u32 v{VLD}, s62, v{VLD}\nv_add_u32 v{VLM}, s62, v{VLM}")
        sq(2)
        plain(2, 0)
        sq(3)
        a(f"v_xor_b32 v{VST}, 8, v{VST}\nv_xor_b32 v{VST + 1}, 16, v{VST + 1}\ns_waitcnt lgkmcnt(2)")
        rotate(3)
        second(3)
        reduce((SS + 2, QQ + 2))
        tail(SS + 2, QQ + 2, NM, st)
        a("s_mov_b64 exec, s[64:65]")
        a(f"ds_write_b16 v{VST}, v{NM} offset:{L_MEAN}\nds_write_b32 v{VST + 1}, v{QQ + 2} offset:{L_RST}")
        self.sync(C_B)
        self.stamp(4)
        self.x_loads(0, self.xb)
        AD, AM, C0 = T, WR, T + 8
        for k in range(4):
            a(f"ds_read_b128 v[{RST + 4 * k}:{RST + 4 * k + 3}], v0 offset:{L_RST + 16 * k}")
        a(f"ds_read_b128 v[{MEAN}:{MEAN + 3}], v0 offset:{L_MEAN}\nds_read_b128 v[{MEAN + 4}:{MEAN + 7}], v0 offset:{L_MEAN + 16}")
        FR, DA, EE = RW, T + 56, RST

        def trd(blk):
            for m in range(2):
                for v in range(2):
                    d = FR + 8 * blk + 4 * m + 2 * v
                    a(f"ds_read_b64_tr_b16 v[{d}:{d + 1}], v{VTR} offset:{(8 * m + 4 * v) * RS + 32 * blk}")

        def cvt_ex(blk):
            for f in range(4):
                a(f"v_cvt_pk_f16_f32 v{EE + 4 * f + blk}, v{DA + 8 * blk + 2 * f}, v{DA + 8 * blk + 2 * f + 1}")

        def cvt_f(f, area):
            for blk in range(4):
                a(f"v_cvt_pk_f16_f32 v{EE + 4 * f + blk}, v{DA + 8 * blk + 2 * f}, v{DA + 8 * blk + 2 * f + 1}")
            a(f"ds_write_b128 v{VEX}, v[{EE + 4 * f}:{EE + 4 * f + 3}] offset:{EX + area + 1024 * f}")

        def write_ex(area):
            for f in range(4):
                a(f"ds_write_b128 v{VEX}, v[{EE + 4 * f}:{EE + 4 * f + 3}] offset:{EX + area + 1024 * f}")

        trd(0); trd(1)
        a("s_waitcnt lgkmcnt(10)")
        trd(2)
        for k in range(8):
            a(f"v_pk_mul_f32 v[{RST + 2 * k}:{RST + 2 * k + 1}], v[{RST + 2 * k}:{RST + 2 * k + 1}], v[{CV + 2 * (k % 4)}:{CV + 2 * (k % 4) + 1}]")
        for k in range(4):
            a(f"v_cvt_pk_bf16_f32 v{AD + k}, v{RST + 2 * k}, v{RST + 2 * k + 1}\nv_cvt_pk_bf16_f32 v{AM + k}, v{RST + 8 + 2 * k}, v{RST + 9 + 2 * k}")
        for k in range(4):
            a(f"v_xor_b32 v{AD + 4 + k}, v{VSG}, v{AD + k}\nv_xor_b32 v{AM + 4 + k}, v{VSG}, v{AM + k}")
        a("s_waitcnt lgkmcnt(12)")
        a("s_cmp_lg_u32 s50, 0\ns_cbranch_scc1 L_st1_split")
        self.mfma("bf16", C0, AD, MEAN)
        self.mfma("bf16", C0, AM, MEAN + 4, C0)
        for blk in range(4):
            d, fr = DA + 8 * blk, FR + 8 * blk
            a(f"s_waitcnt lgkmcnt({(10, 10, 6, 2)[blk]})")
            if blk == 0:
                trd(3)
            self.mfma("bf16", d, AD, fr, C0)
            a(f"s_waitcnt lgkmcnt({(12, 8, 4, 0)[blk]})")
            self.mfma("bf16", d, AM, fr + 4, d)
        for blk in range(4):
            d, fr = DA + 8 * blk, FR + 8 * blk
            self.mfma("bf16", d + 4, AD + 4, fr)
            self.mfma("bf16", d + 4, AM + 4, fr + 4, d + 4)
            if blk in (1, 2):
                cvt_f(blk - 1, 0)
        cvt_f(2, 0)
        cvt_f(3, 0)
        a("s_branch L_st1_done")
        a("L_st1_split:")
        a("s_waitcnt lgkmcnt(8)")
        trd(3)
        a("s_waitcnt lgkmcnt(0)")
        for A, o, area in ((AD, 0, 0), (AM, 4, 16384)):
            self.mfma("bf16", C0, A, MEAN + o)
            for blk in range(4):
                self.mfma("bf16", DA + 8 * blk + 4, A + 4, FR + 8 * blk + o)
                self.mfma("bf16", DA + 8 * blk, A, FR + 8 * blk + o, C0)
            if area:
                a("s_waitcnt lgkmcnt(0)")
            for blk in range(4):
                cvt_ex(blk)
            write_ex(area)
        a("L_st1_done:")
        self.x_loads(self.xb, self.xc)
        self.arrive(C_C)
        PP, UU, TT, ZZ, VTAG = RW, RW + 16, WR, T + 56, T + 50
        a(f"s_lshl_b32 s31, s30, 12\nv_add_u32 v5, s31, v3\ns_and_b32 s31, s28, {ZMASK:#x}\nv_mov_b32 v{VTAG}, s31\ns_mov_b32 s58, {~ZMASK & 0xFFFFFFFF:#x}")
        a("s_and_b32 s32, s48, 3\ns_cselect_b32 s72, -1, 0xff\ns_cselect_b32 s73, -1, 0\ns_mov_b32 s74, s48")
        a(f"v_mov_b32 v{VZ}, {OOB}\ns_cmp_eq_u32 s48, 7\ns_cbranch_scc1 L_no_consts")
        late_consts()
        a("L_no_consts:")
        self.wait(C_C, 4)
        self.stamp(5)
        a("s_cmp_eq_u32 s48, 7\ns_cbranch_scc1 L_p1_done")
        a("L_st23:")
        for f in range(4):
            a(f"ds_read_b128 v[{PP + 4 * f}:{PP + 4 * f + 3}], v5 offset:{EX + 1024 * f}")
        for i in range(1, 4):
            a(f"s_add_u32 s{60 + i}, s{59 + i}, {2 * ZTS}")

        def st2(f):
            u = UU + 8 * (f % 2)
            a(f"s_waitcnt lgkmcnt({3 - f})")
            self.mfma("f16", u, PP + 4 * f, M2 + 8 * f)
            self.mfma("f16", u + 4, PP + 4 * f, M2 + 8 * f + 4)

        def tw(f):
            u = UU + 8 * (f % 2)
            tc, ts = TW + 8 * f, TW + 8 * f + 4
            for p in (0, 2):
                a(f"v_pk_mul_f32 v[{TT + p}:{TT + p + 1}], v[{tc + p}:{tc + p + 1}], v[{u + p}:{u + p + 1}]")
            for p in (0, 2):
                a(f"v_pk_mul_f32 v[{TT + 4 + p}:{TT + 5 + p}], v[{ts + p}:{ts + p + 1}], v[{u + p}:{u + p + 1}]")
            for p in (0, 2):
                a(f"v_pk_fma_f32 v[{TT + p}:{TT + p + 1}], v[{ts + p}:{ts + p + 1}], v[{u + 4 + p}:{u + 5 + p}], v[{TT + p}:{TT + p + 1}]")
                a(f"v_pk_fma_f32 v[{TT + 4 + p}:{TT + 5 + p}], v[{tc + p}:{tc + p + 1}], v[{u + 4 + p}:{u + 5 + p}], v[{TT + 4 + p}:{TT + 5 + p}] neg_lo:[0,0,1] neg_hi:[0,0,1]")
            for i in range(4):
                a(f"v_cvt_pk_f16_f32 v{PP + 4 * f + i}, v{TT + i}, v{TT + 4 + i}")

        def st3(f):
            self.mfma("f16", ZZ + 8 * f, M3, PP + 4 * f)
            self.mfma("f16", ZZ + 8 * f + 4, M3 + 4, PP + 4 * f)

        OO = T + 16

        def pack(lo):
            for i in range(4):
                o = OO + 4 * i + lo
                a(f"v_cvt_pk_f16_f32 v{o}, v{ZZ + 16 * lo + i}, v{ZZ + 16 * lo + 8 + i}\nv_cvt_pk_f16_f32 v{o + 2}, v{ZZ + 16 * lo + 4 + i}, v{ZZ + 16 * lo + 12 + i}")
                a(f"v_and_or_b32 v{o}, v{o}, s58, v{VTAG}\nv_and_or_b32 v{o + 2}, v{o + 2}, s58, v{VTAG}")

        def z_stores():
            for i in range(4):
                if i < 2:
                    a(f"s_mov_b32 exec_hi, s{72 + i}")
                a(f"buffer_store_dwordx4 v[{OO + 4 * i}:{OO + 4 * i + 3}], v{VZ}, s[12:15], s{60 + i} offen sc1")
            a("s_mov_b32 exec_hi, -1")

        st2(0); st2(1); tw(0); st2(2); st3(0); tw(1); st2(3); st3(1); tw(2); st3(2); tw(3); st3(3); pack(0); pack(1)
        a("s_cmp_eq_u32 s50, 0\ns_cbranch_scc1 L_p1_done")
        z_stores()
        a(f"s_mov_b32 s50, 0\ns_add_u32 s60, s60, 16384\nv_add_u32 v5, 16384, v5\ns_sub_u32 s31, s48, 4\nv_cvt_f32_i32 v{T2}, s31\nv_mul_f32 v{T2}, 0x3d800000, v{T2}")
        a(f"v_and_b32 v{T1}, 15, v2\nv_lshlrev_b32 v{T1}, 2, v{T1}\nv_cvt_f32_u32 v{T1}, v{T1}")
        for i in range(4):
            a(f"v_fma_f32 v{T0}, v{BI + i}, v{T1}, v{T2}\nv_sin_f32 v{M3 + 4 + i}, v{T0}\nv_cos_f32 v{T0}, v{T0}")
            a(f"v_cvt_pk_f16_f32 v{M3 + i}, v{T0}, v{M3 + 4 + i}\nv_cvt_pk_f16_f32 v{M3 + 4 + i}, -v{M3 + 4 + i}, v{T0}")
        a("s_branch L_st23")
        a("L_p1_done:")
        self.arrive(C_ST3)
        self.stamp(6)
        self.setprio(0)
        self.park_move()
        self.phase2(MM, VTAG, z_stores)

    def phase2(self, MM, VTAG, z_stores):
        a = self.a
        XP, SG, XF, GG = 8, 24, 40, 120
        AC, ZL, AF, GR = 216, 72, 152, 192
        ZN = 212
        XS_, VTA, XR, VTC, VSA = self.XS_, self.VTA, self.XR, self.VTC, self.VSA
        self.tile_decode()
        a(f"s_lshl_b32 s31, s30, 5\ns_add_u32 s53, s53, s31\ns_lshl_b32 s48, s46, 1\ns_add_u32 s48, s48, 2040\ns_mov_b32 s49, {STAT}")
        x_loads = self.x_loads

        def x_reads(h0, h1):
            for h in range(h0, h1):
                a(f"ds_read_b128 v[{XP + 4 * h}:{XP + 4 * h + 3}], v{XR} offset:{1024 * h}")
            a("s_waitcnt lgkmcnt(0)")

        XE = max(self.xearly, self.xc)

        def step(op):
            if op == "x":
                self.release(self.rel_x0)
                a(f"buffer_load_dwordx4 v[{SG}:{SG + 3}], v6, s[12:15], s49 offen")
                x_loads(self.xc, XE)
            elif op == "z":
                a("s_cmp_eq_u32 s74, 7\ns_cbranch_scc1 L_no_zst")
                self.release(self.rel_zw)
                z_stores()
                self.stamp(7)
                a("L_no_zst:")
                if self.cheat & 4:
                    a("s_branch L_fin")
            elif op == "m":
                self.p2_matrix(MM, 160, 161, 162)

        for op in self.order:
            step(op)
        a(f"s_mul_i32 s51, s46, {32 * ZTS}\ns_add_u32 s51, s51, {ZB}\ns_mul_i32 s54, s47, {ZTS}\ns_lshl_b32 s32, s30, 12\ns_add_u32 s50, s51, s54\ns_add_u32 s50, s50, s32")
        a(f"s_add_u32 s55, s47, 1\ns_and_b32 s55, s55, 31\ns_mul_i32 s55, s55, {ZTS}\nv_add_u32 v250, s32, v3\nv_add_u32 v199, s76, v3")
        a(f"v_lshl_add_u32 v200, v2, 7, s32\nv_and_b32 v1, 2, v2\nv_lshl_add_u32 v200, v1, 3, v200\nv_and_b32 v1, 0x70, v3\nv_add_u32 v1, 16384, v1")
        a(f"s_mov_b32 vcc_lo, 0\ns_mov_b32 vcc_hi, -1\nv_cndmask_b32 v200, v200, v1, vcc\ns_mov_b32 vcc_hi, 0xff\nv_mov_b32 v1, s55\nv_mov_b32 v201, s54")
        a(f"v_cndmask_b32 v1, v1, v201, vcc\nv_mov_b32 v201, {SHD}\nv_cndmask_b32 v201, v201, v0, vcc\nv_add_u32 v201, v201, v200\nv_add_u32 v200, v1, v200")
        if self.cheat & 1:
            a("v_and_b32 v200, 0x70, v3\nv_add_u32 v200, s54, v200")
        a("v_lshrrev_b32 v251, 5, v2\nv_lshlrev_b32 v251, 11, v251\nv_bfe_u32 v1, v2, 2, 3\nv_lshl_add_u32 v251, v1, 7, v251")
        a("v_and_b32 v1, 3, v2\nv_lshl_add_u32 v251, v1, 5, v251\nv_bfe_u32 v1, v2, 3, 1\nv_lshl_add_u32 v251, v1, 4, v251\nv_bfe_u32 v1, v2, 4, 1\nv_lshl_add_u32 v251, v1, 3, v251")
        a("v_xor_b32 v252, 16, v251\nv_xor_b32 v253, 8, v251\nv_xor_b32 v254, 24, v251\nv_cmp_gt_u32 vcc, 4, v2\nv_mov_b32 v1, 16384\nv_cndmask_b32 v1, v0, v1, vcc")
        a("v_add_u32 v206, v253, v1\nv_add_u32 v207, v254, v1")
        a(f"s_mov_b32 vcc_lo, 0x88888888\ns_mov_b32 vcc_hi, 0x88888888\nv_mov_b32 v1, {SHD - 96}\nv_cndmask_b32 v1, 32, v1, vcc")
        a("v_add_u32 v202, v251, v1\nv_add_u32 v203, v253, v1\nv_add_u32 v204, v206, v1")
        a("s_waitcnt vmcnt(0)")
        a("L_stat_check:")
        a(f"v_cmp_ne_u64 vcc, s[28:29], v[{SG + 2}:{SG + 3}]\ns_cbranch_vccz L_stat_got")
        self.spin_guard("L_stat_got")
        a(f"s_mov_b64 exec, vcc\nbuffer_load_dwordx4 v[{SG}:{SG + 3}], v6, s[12:15], s49 offen sc1")
        a("s_mov_b64 exec, -1\ns_waitcnt vmcnt(0)\ns_branch L_stat_check")
        a("L_stat_got:")
        a(f"v_cndmask_b32 v{SG}, v{SG}, v{SG + 1}, s[88:89]")
        a(f"v_mov_b32 v{SG + 8}, v{SG}\nv_permlane32_swap_b32 v{SG}, v{SG + 8}\nv_mov_b32 v{SG + 4}, v{SG}\nv_mov_b32 v{SG + 12}, v{SG + 8}")
        a(f"v_permlane16_swap_b32 v{SG}, v{SG + 4}\nv_permlane16_swap_b32 v{SG + 8}, v{SG + 12}")
        for h in range(4):
            s_ = SG + 4 * h
            a(f"v_lshlrev_b32 v{s_ + 2}, 16, v{s_}\nv_and_b32 v{s_}, 0xffff0000, v{s_}\nv_rcp_f32 v{s_}, v{s_}")
        for h in range(4):
            s_ = SG + 4 * h
            a(f"v_mul_f32 v{s_}, 0xbfb8aa3b, v{s_}\nv_mul_f32_e64 v{s_ + 2}, -v{s_ + 2}, v{s_}")

        def z_loads():
            for j in range(4):
                a(f"buffer_load_dwordx4 v[{ZL + 4 * j}:{ZL + 4 * j + 3}], v3, s[12:15], s50 offen offset:{1024 * j} sc1")
            a("s_mov_b32 exec_hi, 0x1ff")
            a(f"buffer_load_dwordx4 v[{ZN}:{ZN + 3}], v200, s[12:15], s51 offen sc1")
            a("s_mov_b32 exec_hi, -1")

        def slots(h, i):
            if h % 2 == 0:
                return 8 * h + 2 * i, 8 * h + 2 * i + 1
            return 8 * h + (8 - 2 * i) % 8, 8 * h + 7 - 2 * i

        def gate(h0, h1):
            rng = range(4 * h0, 4 * h1)
            for i in rng:
                lo, hi = slots(i // 4, i % 4)
                a(f"v_lshlrev_b32 v{XF + lo}, 16, v{XP + i}\nv_and_b32 v{XF + hi}, 0xffff0000, v{XP + i}")
            for i in rng:
                s_ = SG + 4 * (i // 4)
                a(f"v_pk_fma_f32 v[{GG + 2 * i}:{GG + 2 * i + 1}], v[{XF + 2 * i}:{XF + 2 * i + 1}], v[{s_}:{s_ + 1}], v[{s_ + 2}:{s_ + 3}] op_sel_hi:[1,0,0]")
            for i in rng:
                a(f"v_exp_f32 v{AC + 2 * i}, v{GG + 2 * i}\nv_exp_f32 v{AC + 2 * i + 1}, v{GG + 2 * i + 1}")
            for i in rng:
                a(f"v_pk_add_f32 v[{AC + 2 * i}:{AC + 2 * i + 1}], v[{AC + 2 * i}:{AC + 2 * i + 1}], 1.0 op_sel_hi:[1,0]")
            for i in rng:
                a(f"v_rcp_f32 v{AC + 2 * i}, v{AC + 2 * i}\nv_rcp_f32 v{AC + 2 * i + 1}, v{AC + 2 * i + 1}")
            for i in rng:
                a(f"v_pk_mul_f32 v[{GG + 2 * i}:{GG + 2 * i + 1}], v[{GG + 2 * i}:{GG + 2 * i + 1}], v[{AC + 2 * i}:{AC + 2 * i + 1}]")

        for i in range(4):
            a(f"v_mov_b32 v{ZN + i}, v{VTAG}")
        if XE:
            x_reads(0, XE)
            self.stamp(13)
            gate(0, XE)
        self.stamp(14)
        if XE < 4:
            self.release(self.rel_x)
            x_loads(XE, 4)
            if self.zwith:
                z_loads()
            a(f"s_waitcnt vmcnt({5 if self.zwith else 0})")
            x_reads(XE, 4)
        self.stamp(8)
        if not (XE < 4 and self.zwith):
            self.release(self.rel_zr)
            z_loads()
        gate(XE, 4)
        self.wait(C_S2, 1)
        a(f"ds_read_b32 v1, v0 offset:{L_KEY + 4}\nv_and_b32 v6, 48, v2\nv_lshlrev_b32 v6, 1, v6\nv_mov_b32 v209, {OOB}\ns_waitcnt lgkmcnt(0)\nv_readfirstlane_b32 s33, v1")
        a("s_andn2_b32 s33, 0x7ff, s33\ns_sub_u32 s31, 0, s33\ns_and_b32 s31, s31, 2047\ns_sub_u32 s32, s48, s33\ns_sub_u32 s34, s48, s31")
        for h, sr in enumerate((33, 31, 32, 34)):
            a(f"v_cmp_eq_u32 vcc, s{sr}, v{VTC}\nv_cmp_eq_u32 s[{54 + 2 * h}:{55 + 2 * h}], s{sr}, v{VTA}\nv_cndmask_b32 v{XS_[h]}, v{XS_[h]}, v209, vcc")
        a("s_or_b64 s[62:63], s[54:55], s[58:59]\ns_or_b64 s[64:65], s[56:57], s[60:61]")
        self.stamp(9)
        a("L_z_wait:")
        self.setprio(1)
        ZC = AF
        srcs = [ZL + i for i in range(16)] + [ZN + i for i in range(4)]
        for j in range(5):
            a(f"s_waitcnt vmcnt({4 - j})")
            for i in range(4):
                a(f"v_xor_b32 v{ZC + 4 * j + i}, v{VTAG}, v{srcs[4 * j + i]}")
            if j < 4:
                a(f"ds_write_b128 v250, v[{ZC + 4 * j}:{ZC + 4 * j + 3}] offset:{1024 * j}")
            else:
                a(f"s_mov_b32 exec_hi, 0x1ff\nds_write_b128 v201, v[{ZC + 16}:{ZC + 19}]\ns_mov_b32 exec_hi, -1")
            if j == 0:
                a(f"v_or3_b32 v1, v{ZC}, v{ZC + 1}, v{ZC + 2}\nv_or_b32 v1, v1, v{ZC + 3}")
            else:
                a(f"v_or3_b32 v1, v1, v{ZC + 4 * j}, v{ZC + 4 * j + 1}\nv_or3_b32 v1, v1, v{ZC + 4 * j + 2}, v{ZC + 4 * j + 3}")
        a(f"v_and_b32 v1, {ZMASK:#x}, v1\nv_cmp_ne_u32 vcc, 0, v1\ns_cbranch_vccz L_z_got")
        self.spin_guard("L_z_got")
        a("s_mov_b64 exec, vcc")
        for j in range(4):
            a(f"buffer_load_dwordx4 v[{ZL + 4 * j}:{ZL + 4 * j + 3}], v3, s[12:15], s50 offen offset:{1024 * j} sc1")
        a("s_and_b32 exec_hi, exec_hi, 0x1ff\ns_or_b32 exec_lo, exec_lo, 1")
        a(f"buffer_load_dwordx4 v[{ZN}:{ZN + 3}], v200, s[12:15], s51 offen sc1")
        a("s_mov_b64 exec, -1\ns_waitcnt lgkmcnt(0)\ns_branch L_z_wait")
        a("L_z_got:")
        self.stamp(10)
        self.fine(0)
        if self.hold:
            a(f"ds_read_b32 v198, v0 offset:{L_CNT + 4 * C_YG}")
        self.sync(C_D)
        if self.hold:
            a("v_readfirstlane_b32 s66, v198")
        self.stamp(11)
        self.fine(1)
        if self.diag == "fine":
            a("s_waitcnt lgkmcnt(0)")

        def rd(ks):
            c, ph = ks // 4, ks % 4
            b = AF + 8 * (ks % 4)
            for mb in range(2):
                for v in range(2):
                    ad = 206 + mb if (ks == 4 and v == 0) else 251 + mb + 2 * c
                    a(f"ds_read_b64_tr_b16 v[{b + 4 * mb + 2 * v}:{b + 4 * mb + 2 * v + 1}], v{ad} offset:{4096 * ph + 1024 * v}")

        def b3(ks):
            return (ZL if ks < 4 else 240 - 16 * (ks // 6) * 4) + 4 * (ks % 4)

        def rd3(ks):
            c, ph = ks // 4, ks % 4
            for v in range(2):
                ad = 204 if (ks == 4 and v == 0) else 202 + c
                a(f"ds_read_b64_tr_b16 v[{b3(ks) + 2 * v}:{b3(ks) + 2 * v + 1}], v{ad} offset:{4096 * ph + 1024 * v}")

        def mf3(ks):
            d = AC + 16 + 4 * (ks // 4)
            self.mfma("f16", d, b3(ks), MM + 4 * ks, None if ks % 4 == 0 else d)

        rd(0); rd(1); rd(2)
        for ks in range(8):
            b = AF + 8 * (ks % 4)
            a("s_waitcnt lgkmcnt(8)")
            for mb in range(2):
                d = AC + 8 * (ks // 4) + 4 * mb
                self.mfma("f16", d, b + 4 * mb, MM + 4 * ks, None if ks % 4 == 0 else d)
            if ks + 3 < 8:
                rd(ks + 3)
            else:
                rd3(2 * (ks - 5))
                rd3(2 * (ks - 5) + 1)
        a("s_waitcnt lgkmcnt(8)")
        rd3(6); rd3(7)
        mf3(0); mf3(1)
        a("s_waitcnt lgkmcnt(4)")
        mf3(2); mf3(3)
        SA = AF

        def combine(h):
            ng = " neg_lo:[0,1] neg_hi:[0,1]" if h else ""
            for i in range(4):
                e, o = AC + 2 * i, AC + 8 + 2 * i
                a(f"v_pk_add_f32 v[{SA + 8 * h + 2 * i}:{SA + 8 * h + 2 * i + 1}], v[{e}:{e + 1}], v[{o}:{o + 1}]{ng}")

        def emit(h, between=None):
            sa = SA + 8 * (h // 2)
            for i in range(4):
                k = 8 * h + 2 * i
                a(f"v_pk_fma_f32 v[{XF + k}:{XF + k + 1}], v[{sa + 2 * i}:{sa + 2 * i + 1}], v[{GG + k}:{GG + k + 1}], v[{XF + k}:{XF + k + 1}]")
            if between:
                between()
            for i in range(4):
                lo, hi = slots(h, i)
                a(f"v_cvt_pk_bf16_f32 v{XP + 4 * h + i}, v{XF + lo}, v{XF + hi}")
            a(f"ds_write_b128 v{XR}, v[{XP + 4 * h}:{XP + 4 * h + 3}] offset:{1024 * h}")
            a(f"ds_read_b128 v[{SG + 4 * h}:{SG + 4 * h + 3}], v199 offset:{1024 * h}")

        def store(h, left):
            a(f"s_waitcnt lgkmcnt({left})")
            if self.cheat & 16:
                return
            a(f"buffer_store_dwordx4 v[{SG + 4 * h}:{SG + 4 * h + 3}], v{XS_[h]}, s[16:19], 0 offen {self.oflag}")

        def dump(m, sfx=''):
            a(f"s_cmp_eq_u64 s[{62 + 2 * m}:{63 + 2 * m}], 0\ns_cbranch_scc1 L_nodump{m}{sfx}")
            for h in (m, m + 2):
                sa, o = SA + 8 * (h // 2), L_ROW + 128 * m
                a(f"s_mov_b64 exec, s[{54 + 2 * h}:{55 + 2 * h}]")
                a(f"ds_write_b128 v6, v[{sa}:{sa + 3}] offset:{o}\nds_write_b128 v6, v[{sa + 4}:{sa + 7}] offset:{o + 16}")
            self.arrive(C_ROW1 if m else C_ROW)
            a("s_waitcnt lgkmcnt(0)")
            a(f"L_nodump{m}{sfx}:")

        def tail_a():
            a("s_waitcnt lgkmcnt(0)")
            self.fine(2)
            mf3(6); mf3(7)

        combine(0)
        mf3(4); mf3(5)
        emit(0, tail_a)
        self.fine(3)
        combine(1)
        dump(0)
        emit(2)
        if self.hold:
            a("s_cmp_lt_u32 s66, 4\ns_cbranch_scc1 L_held")
        store(0, 2)
        self.fine(4)
        a(f"v_add_f32 v{SA}, v{AC + 16}, v{AC + 20}\nv_sub_f32 v{SA + 8}, v{AC + 16}, v{AC + 20}")
        dump(1)
        emit(1)
        store(2, 2)
        self.fine(5)
        emit(3)
        store(1, 2)
        store(3, 0)
        self.fine(6)
        if self.diag == "fine":
            a("s_waitcnt vmcnt(0)")
            self.fine(7)
            a("s_waitcnt lgkmcnt(0)")
            for i in range(1, 8):
                a(f"s_sub_u32 s31, s{76 + 2 * i}, s76\ns_add_u32 s31, s31, s68\nv_writelane_b32 v211, s31, {i}")
        self.stamp(12)
        a("s_branch L_fin")
        if self.hold:
            a("L_held:")
            a(f"v_add_f32 v{SA}, v{AC + 16}, v{AC + 20}\nv_sub_f32 v{SA + 8}, v{AC + 16}, v{AC + 20}")
            dump(1, "h")
            emit(1)
            emit(3)
            self.wait(C_YG, 4)
            for h in range(4):
                store(h, 0)
            self.stamp(12)
            a("s_branch L_fin")

    def moe_head(self):
        a = self.a
        a("L_moe:")
        self.role = "moe"
        a("s_load_dwordx2 s[20:21], s[0:1], 64")
        a("s_and_b32 s32, s2, 7\ns_mul_i32 s32, s32, 7\ns_lshr_b32 s31, s2, 6\ns_lshl_b32 s31, s31, 1\ns_add_u32 s46, s31, s32")
        a("s_bfe_u32 s47, s2, 0x30003\ns_cmp_ge_u32 s2, 192\ns_cselect_b32 s75, 1, 0\ns_lshl_b32 s47, s47, s75\ns_and_b32 s47, s47, 7")
        for d in (16, 20, 24):
            a(f"s_mov_b32 s{d + 2}, {WBYTES}\ns_mov_b32 s{d + 3}, 0x00020000")
        a("v_lshrrev_b32 v4, 4, v2\nv_lshlrev_b32 v5, 5, v4\nv_and_b32 v6, 0x70, v3\nv_xor_b32 v5, v5, v6\nv_mul_u32_u24 v4, 7168, v4")
        a(f"s_mul_i32 s31, s47, {128 * 7168}\ns_lshl_b32 s32, s46, 7\ns_add_u32 s31, s31, s32\nv_add3_u32 v4, v4, v5, s31")
        a(f"s_cmp_eq_u32 s75, 0\ns_mov_b32 s31, {128 * 7168}\ns_cselect_b32 s31, 128, s31\nv_add_u32 v6, s31, v4")
        a("s_mov_b32 vcc_lo, 0xff00ff00\ns_mov_b32 vcc_hi, 0xff00ff00\nv_cndmask_b32 v5, v6, v4, vcc\nv_cndmask_b32 v4, v4, v6, vcc")
        a(f"s_mov_b32 s48, 0\ns_mov_b32 s49, {M_G}")
        a("s_waitcnt lgkmcnt(0)")
        a("s_mov_b32 s16, s38\ns_mov_b32 s17, s39")
        if self.diag == "start":
            a("s_memrealtime s[80:81]\ns_waitcnt lgkmcnt(0)\nv_writelane_b32 v211, s80, 1")
        a(f"s_load_dwordx2 s[28:29], s[12:13], {EPOCH}\ns_load_dwordx2 s[24:25], s[0:1], 72\ns_load_dwordx2 s[44:45], s[0:1], 80")
        a("s_barrier")
        a(f"s_cmp_ge_u32 s2, {0 if self.diag == 'nomoe' else 224}\ns_cselect_b32 s66, 0, 1\ns_cbranch_scc1 L_dma_done")
        a("s_cmp_lg_u32 s30, 0\ns_cbranch_scc1 L_dma_done")
        self.setprio(3)
        a("L_dma:")
        for i in range(4):
            a(f"s_mov_b32 m0, s49\ns_waitcnt vmcnt({self.win - 2})")
            a(f"buffer_load_dwordx4 v{4 + i // 2}, s[16:19], s48 offen {self.wflag} lds")
            a("s_add_u32 m0, s49, 32768\ns_add_u32 s49, s49, 1024")
            a(f"buffer_load_dwordx4 v{4 + i // 2}, s[20:23], s48 offen {self.wflag} lds")
            a(f"s_add_u32 s48, s48, {4 * 7168}")
        a(f"s_cmp_lt_u32 s48, {128 * 7168}\ns_cbranch_scc1 L_dma")

    def moe(self):
        a = self.a
        if not self.near:
            self.moe_head()
        self.role = "moe"
        a("L_dma_done:")
        self.setprio(3)
        WD = 100
        a("s_lshr_b32 s31, s47, 2\ns_andn2_b32 s31, s31, s75\ns_add_u32 s50, s31, s46")
        a("s_lshl_b32 s31, s50, 17\ns_bfe_u32 s32, s2, 0x20003\ns_lshl_b32 s32, s32, 2\ns_add_u32 s51, s32, s30\ns_lshl_b32 s32, s51, 7\ns_add_u32 s31, s31, s32")
        a("v_lshrrev_b32 v6, 3, v2\nv_lshlrev_b32 v6, 14, v6\nv_and_b32 v7, 0x70, v3\nv_add3_u32 v6, v6, v7, s31")
        a("s_mov_b32 s60, 4096\ns_mov_b32 s61, 8192\ns_mov_b32 s62, 12288")

        def d_loads(j0, j1):
            for j in range(j0, j1):
                if self.cheat & 32:
                    a(f"buffer_load_dwordx4 v[{WD + 4 * j}:{WD + 4 * j + 3}], v7, s[24:27], 0 offen")
                    continue
                so = "0" if j < 2 else f"s{59 + j // 2}"
                a(f"buffer_load_dwordx4 v[{WD + 4 * j}:{WD + 4 * j + 3}], v6, s[24:27], {so} offen offset:{2048 * (j % 2)} {self.wflag}")

        a("v_bfe_u32 v8, v2, 2, 3\nv_lshlrev_b32 v9, 5, v8\ns_lshl_b32 s31, s30, 6\nv_xor_b32 v9, s31, v9")
        a(f"v_bfe_u32 v8, v2, 2, 2\nv_lshl_add_u32 v9, v8, 8, v9\nv_lshrrev_b32 v8, 4, v2\nv_lshl_add_u32 v9, v8, 11, v9\nv_and_b32 v10, 3, v2\nv_lshl_add_u32 v9, v10, 3, v9")
        a(f"v_add_u32 v9, {M_G}, v9\nv_xor_b32 v10, 32, v9\nv_lshlrev_b32 v8, 4, v8")
        a("s_lshr_b32 s31, s30, 1\ns_and_b32 s32, s31, s75\ns_lshl_b32 s32, s32, 8\nv_add_u32 v8, s32, v8\ns_cmp_eq_u32 s75, 0\ns_cselect_b32 s32, 12, 9\ns_lshl_b32 s31, s31, s32")
        a("s_lshl_b32 s32, s46, 3\ns_add_u32 s32, s32, s47\ns_lshl_b32 s32, s32, 9\ns_add_u32 s31, s31, s32")
        a(f"s_and_b32 s32, s30, 1\ns_lshl_b32 s32, s32, 8\ns_add_u32 s31, s31, s32\ns_add_u32 s31, s31, {HP}\nv_lshl_add_u32 v13, v2, 3, s31")
        a("s_waitcnt lgkmcnt(0)")
        self.tag_from_epoch()
        a(f"s_and_b32 s31, s28, {FMASK:#x}\nv_mov_b32 v14, s31\ns_mov_b32 s49, {~FMASK & 0xFFFFFFFF:#x}")
        DF = self.dfirst
        if self.tlb:
            a("s_cmp_lg_u32 s30, 2\ns_cbranch_scc1 L_no_tlb")
            a("s_mov_b32 s52, s44\ns_mov_b32 s53, s45\ns_mov_b32 s54, 0x400000\ns_mov_b32 s55, 0x00020000\nv_lshlrev_b32 v250, 20, v2\ns_mov_b64 exec, 0xff")
            a("buffer_load_dword v251, v250, s[12:15], 0 offen\nbuffer_load_dword v252, v250, s[52:55], 0 offen\nbuffer_load_dword v253, v250, s[24:27], 0 offen")
            a("s_mov_b64 exec, -1\nL_no_tlb:")
        a("s_cmp_lg_u32 s66, 0\ns_cbranch_scc1 L_tagged")
        self.arrive(C_E)
        a("L_tagged:")
        XA, BF, GA = 20, 36, 132
        order = [(ks, t) for ks in range(4) for t in range(4)]

        def b_reads(n0, n1):
            for n in range(n0, n1):
                ks, t = order[n]
                if n - n0 >= 7:
                    a("s_waitcnt lgkmcnt(12)")
                for v in range(2):
                    a(f"ds_read_b64_tr_b16 v[{BF + 4 * n + 2 * v}:{BF + 4 * n + 2 * v + 1}], v{9 + t % 2} offset:{32768 * (t // 2) + 8192 * ks + 1024 * v}")

        a("s_cmp_eq_u32 s30, 3\ns_cbranch_scc1 L_h1")
        a("s_cmp_eq_u32 s66, 0\ns_cbranch_scc1 L_key")
        a("s_cmp_lg_u32 s30, 0\ns_cbranch_scc1 L_follower")
        a("s_waitcnt vmcnt(16)")
        self.arrive(C_DMA)
        b_reads(0, 12)
        a("s_waitcnt vmcnt(8)")
        self.arrive(C_DMA)
        a("s_branch L_d_first" if self.dall else "s_branch L_key")
        a("L_follower:")
        if self.touch:
            a(f"s_and_b32 s32, s30, 1\ns_lshl_b32 s32, s32, 8\nv_subrev_u32 v250, s32, v13\nbuffer_load_dword v251, v250, s[12:15], 0 offen")
            a(f"s_lshl_b32 s31, s50, 12\ns_sub_u32 s31, s31, s32\ns_lshl_b32 s32, s51, 8\ns_add_u32 s31, s31, s32\ns_add_u32 s31, s31, {YP}\nv_lshl_add_u32 v250, v2, 3, s31")
            a("buffer_load_dword v252, v250, s[12:15], 0 offen")
        self.wait(C_DMA, 1)
        b_reads(0, 12)
        a(f"s_add_u32 s67, s30, {self.dlag}")
        self.wait(C_DMA, "s67")
        a("L_d_first:")
        self.release(self.drel)
        d_loads(0, DF)
        a("L_key:")
        self.wait(C_S2, 1)
        a(f"ds_read_b64 v[18:19], v0 offset:{L_KEY}\ns_cmp_eq_u32 s66, 0\ns_cbranch_scc1 L_idle")
        a("s_branch L_xs_ok")
        a("L_h1:")
        a(f"s_mov_b32 s63, {GRAN}\ns_lshl_b32 s31, s47, 8\nv_lshlrev_b32 v15, 3, v2\nv_add_u32 v16, s31, v15")
        a("s_cmp_lg_u32 s66, 0\ns_cbranch_scc1 L_gate")
        self.wait(C_ST3, 4)
        a("s_branch L_gate_open")
        a("L_gate:")
        self.wait(*self.gate)
        a("L_gate_open:")
        self.stamp(7)
        self.gran_issue(20)
        self.arrive(C_S0)
        a("s_waitcnt vmcnt(0)")
        self.stamp(8)
        self.gran_resolve("mi", 20, 18)
        a("s_andn2_b32 s31, 0x7ff, s33\ns_lshl_b32 s48, s31, 11")
        a("buffer_load_dwordx2 v[150:151], v16, s[8:11], s48 offen")
        self.arrive(C_S1)
        self.stamp(9)
        self.gran_stats(20, 18)
        a(f"v_mov_b32 v19, s33\nv_mov_b32 v18, s34\nds_write_b64 v0, v[18:19] offset:{L_KEY}")
        a("s_lshl_b32 s52, s34, 16\ns_and_b32 s32, s34, 0xffff0000\nv_rcp_f32 v148, s32")
        a("s_waitcnt vmcnt(0)")
        un = "v_lshlrev_b32 v20, 16, v150\nv_and_b32 v21, 0xffff0000, v150\nv_lshlrev_b32 v22, 16, v151\nv_and_b32 v23, 0xffff0000, v151"
        pk = "v_cvt_pk_bf16_f32 v150, v20, v21\nv_cvt_pk_bf16_f32 v151, v22, v23"
        a(un)
        for p in (20, 22):
            a(f"v_pk_add_f32 v[{p}:{p + 1}], v[{p}:{p + 1}], s[52:53] op_sel_hi:[1,0] neg_lo:[0,1] neg_hi:[0,1]")
        a(pk)
        a(un)
        for p in (20, 22):
            a(f"v_pk_mul_f32 v[{p}:{p + 1}], v[{p}:{p + 1}], v[148:149] op_sel_hi:[1,0]")
        a(pk)
        a(f"ds_write_b64 v15, v[150:151] offset:{M_XS}")
        self.arrive(C_S2)
        a("s_cmp_eq_u32 s66, 0\ns_cbranch_scc1 L_idle")
        self.wait(C_DMA, 1)
        b_reads(0, 12)
        if self.dall:
            d_loads(0, DF)
        a("s_waitcnt lgkmcnt(8)")
        a("L_xs_ok:")
        self.stamp(2)
        for ks in range(4):
            a(f"ds_read_b128 v[{XA + 4 * ks}:{XA + 4 * ks + 3}], v8 offset:{M_XS + 64 * ks}")
        for n, (ks, t) in enumerate(order[:12]):
            if t == 0:
                a(f"s_waitcnt lgkmcnt({3 - ks})")
            self.mfma("bf16", GA + 4 * t, XA + 4 * ks, BF + 4 * n, None if ks == 0 else GA + 4 * t)
        a("s_cmp_lg_u32 s30, 0\ns_cbranch_scc1 L_k3_wait")
        a(f"s_waitcnt vmcnt({DF if self.dall else 0})")
        self.arrive(C_DMA)
        self.stamp(1)
        a("s_branch L_k3_ok")
        a("L_k3_wait:")
        self.wait(C_DMA, 3)
        a("L_k3_ok:")
        b_reads(12, 16)
        a("v_readfirstlane_b32 s33, v19\nv_readfirstlane_b32 s34, v18")
        for n in range(12, 16):
            a(f"s_waitcnt lgkmcnt({2 * (15 - n)})")
            self.mfma("bf16", GA + 4 * (n % 4), XA + 12, BF + 4 * n, GA + 4 * (n % 4))
        a("s_mov_b32 vcc_lo, 0xffff0000\ns_mov_b32 vcc_hi, 0")
        a(f"s_lshl_b32 s31, s50, 12\ns_lshl_b32 s32, s30, 7\ns_add_u32 s31, s31, s32\ns_add_u32 s31, s31, {HP}")
        a("v_lshrrev_b32 v15, 3, v2\nv_lshlrev_b32 v15, 9, v15\nv_add3_u32 v15, v15, v7, s31")
        a(f"v_cndmask_b32 v26, v{GA}, v{GA + 4}, vcc\nv_cndmask_b32 v27, v{GA + 8}, v{GA + 12}, vcc")
        a("v_and_or_b32 v26, v26, s49, v14\nv_and_or_b32 v27, v27, s49, v14")
        a("s_mov_b32 exec_hi, 0")
        a(f"buffer_store_dwordx2 v[26:27], v13, s[12:15], 0 offen {'' if self.local else 'sc1'}")
        a("s_mov_b64 exec, -1")
        if not self.dall:
            a("s_sub_u32 s31, s30, 1\ns_cmp_lt_u32 s31, 2\ns_cbranch_scc1 L_d_rest")
            d_loads(0, DF)
            a("L_d_rest:")
        d_loads(DF, 8)
        self.arrive(C_HP)
        self.stamp(3)
        pair = {}
        free = [98]
        a("s_mov_b32 s52, 0x05040100\ns_mov_b32 s53, 0x07060302")
        YA = 36
        for i in range(8):
            a(f"v_mov_b32 v{YA + i}, 0")
        a("v_and_b32 v16, 7, v2\nv_lshlrev_b32 v16, 2, v16\nv_lshrrev_b32 v17, 5, v2\nv_lshl_add_u32 v16, v17, 1, v16\ns_lshl_b32 s31, s30, 5\nv_add_u32 v16, s31, v16")
        a("v_lshrrev_b32 v17, 3, v2\nv_lshlrev_b32 v17, 4, v17")
        a(f"s_lshl_b32 s31, s50, 12\ns_lshl_b32 s32, s51, 8\ns_add_u32 s31, s31, s32\ns_add_u32 s31, s31, {YP}")
        a("v_lshlrev_b32 v18, 1, v7\nv_lshrrev_b32 v19, 4, v2\nv_lshl_add_u32 v18, v19, 3, v18\nv_add_u32 v18, s31, v18")
        for j in range(0, 8, 2):
            if j == self.hpearly:
                a("buffer_load_dwordx4 v[20:23], v15, s[12:15], 0 offen sc1")
            a(f"s_waitcnt vmcnt({6 - j + (1 if self.dall and j + 2 <= DF else 0) + (1 if j >= self.hpearly else 0)})")
            for d in range(4):
                r0, r1 = WD + 4 * j + d, WD + 4 * j + 4 + d
                t = free.pop()
                a(f"v_perm_b32 v{t}, v{r1}, v{r0}, s52\nv_perm_b32 v{r1}, v{r1}, v{r0}, s53")
                pair[(j // 2, 2 * d)] = t
                pair[(j // 2, 2 * d + 1)] = r1
                free.append(r0)
        self.stamp(4)
        a("s_mov_b32 s54, 0")

        def fallback_store():
            a("s_mov_b32 exec_hi, 0\nbuffer_store_dwordx2 v[26:27], v13, s[12:15], 0 offen sc1\ns_mov_b32 exec_hi, -1")

        self.sleep(self.hs[0])
        if self.hpearly < 8:
            a("s_branch L_hp_wait")
        a("L_hp_poll:")
        a("buffer_load_dwordx4 v[20:23], v15, s[12:15], 0 offen sc1")
        a("L_hp_wait:")
        a("s_waitcnt vmcnt(0)")
        for i in range(4):
            a(f"v_xor_b32 v{20 + i}, v14, v{20 + i}")
        a(f"v_or3_b32 v24, v20, v21, v22\nv_or_b32 v24, v24, v23\nv_and_b32 v24, {FMASK:#x}, v24\nv_cmp_ne_u32 vcc, 0, v24")
        a("v_permlane16_swap_b32 v20, v21\nv_permlane16_swap_b32 v22, v23")
        a("s_cbranch_vccz L_hp_got")
        self.spin_guard("L_hp_got", self.hs[1])
        if self.local:
            a(f"s_add_u32 s54, s54, 1\ns_cmp_lg_u32 s54, {self.local}\ns_cbranch_scc1 L_hp_poll")
            fallback_store()
        a("s_branch L_hp_poll")
        a("L_hp_got:")
        self.stamp(5)
        a("v_add_f32 v20, v20, v21\nv_add_f32 v22, v22, v23\nv_permlane32_swap_b32 v20, v22\nv_add_f32 v20, v20, v22")
        a("v_add_f32_dpp v21, v20, v20 row_ror:8 row_mask:0xf bank_mask:0xf\nv_add_f32_dpp v20, v20, v20 row_ror:8 row_mask:0xf bank_mask:0xf")
        a("v_permlane16_swap_b32 v20, v21\nv_cvt_pk_bf16_f32 v20, v20, v21\nv_and_b32 v21, 0xffff0000, v20\nv_lshlrev_b32 v20, 16, v20")
        a("v_mul_f32 v22, 0xbfb8aa3b, v20\nv_exp_f32 v22, v22\nv_add_f32 v22, 1.0, v22\nv_rcp_f32 v22, v22\nv_mul_f32 v20, v20, v22")
        a("v_cvt_pk_bf16_f32 v20, v20, v20\nv_lshlrev_b32 v20, 16, v20\nv_mul_f32 v20, v20, v21\nv_cvt_pk_bf16_f32 v20, v20, v20")
        a(f"ds_write_b16 v16, v20 offset:{M_HS}")
        self.sync(C_H)
        a(f"ds_read_b128 v[20:23], v17 offset:{M_HS}\ns_waitcnt lgkmcnt(0)")
        for p in range(4):
            for c in range(8):
                a(f"v_dot2c_f32_bf16 v{YA + c}, v{20 + p}, v{pair[(p, c)]}")
        for c in range(4):
            a(f"v_permlane32_swap_b32 v{YA + c}, v{YA + c + 4}")
        for c in range(4):
            a(f"v_add_f32 v{YA + c}, v{YA + c}, v{YA + c + 4}")
        for c in range(2):
            a(f"v_permlane16_swap_b32 v{YA + c}, v{YA + c + 2}")
        for c in range(2):
            a(f"v_add_f32 v{YA + c}, v{YA + c}, v{YA + c + 2}")
        for c in range(2):
            a(f"v_add_f32_dpp v{YA + c}, v{YA + c}, v{YA + c} row_ror:8 row_mask:0xf bank_mask:0xf")
        a(f"v_and_or_b32 v{YA}, v{YA}, s49, v14\nv_and_or_b32 v{YA + 1}, v{YA + 1}, s49, v14")
        a("s_mov_b32 exec_lo, 0x00ff00ff\ns_mov_b32 exec_hi, 0x00ff00ff")
        a(f"buffer_store_dwordx2 v[{YA}:{YA + 1}], v18, s[12:15], 0 offen sc1")
        self.arrive(C_Y)
        if self.local:
            fallback_store()
        self.stamp(6)
        a("s_branch L_owner")
        a("L_idle:")
        for c in (C_DMA, C_HP, C_H, C_Y):
            self.arrive(c)
        a("s_waitcnt lgkmcnt(0)\nv_readfirstlane_b32 s33, v19\nv_readfirstlane_b32 s34, v18")
        self.sleep(self.isleep)
        a("L_owner:")
        if self.diag or self.cheat & 8:
            a("s_branch L_fin")
        YL, YC = 20, 28
        self.tile_decode()
        a("s_lshl_b32 s53, s53, 3\ns_add_u32 s53, s53, s46\ns_andn2_b32 s51, 0x7ff, s33\ns_mov_b32 s54, s51\ns_mov_b32 s55, 0\ns_mov_b32 s56, 0")
        a("s_mov_b32 s16, s44\ns_mov_b32 s17, s45\ns_mov_b32 s18, 0x400000\nv_and_b32 v8, 31, v2\nv_lshlrev_b32 v15, 2, v8\nv_lshlrev_b32 v8, 1, v8\nv_mov_b32 v16, 0")
        a("L_seg:")
        a("s_xor_b32 s31, s54, s53\ns_and_b32 s31, s31, 0x487\ns_cbranch_scc0 L_seg_own\ns_cmpk_lg_u32 s31, 0x480\ns_cbranch_scc1 L_seg_next")
        a("L_seg_own:")
        a("s_lshl_b32 s31, s51, 11\ns_lshl_b32 s32, s47, 6\ns_add_u32 s63, s31, s32")
        a("buffer_load_ushort v9, v8, s[8:11], s63 offen")
        a(f"v_lshrrev_b32 v4, 3, v2\ns_lshl_b32 s31, s30, 4\nv_add_u32 v4, s31, v4\nv_lshlrev_b32 v4, 12, v4")
        a(f"s_lshl_b32 s31, s47, 7\ns_add_u32 s31, s31, {YP}\nv_add3_u32 v4, v4, v7, s31\ns_mov_b32 s62, 32768")
        for i in range(4):
            a(f"v_mov_b32 v{YL + 4 + i}, v14")
        a("v_lshrrev_b32 v5, 4, v2\nv_lshl_add_u32 v6, v5, 2, v7\ns_lshl_b32 s31, s30, 7\ns_add_u32 s31, s31, s55\nv_add_u32 v6, s31, v6")
        a("s_ashr_i32 s31, s33, 31\ns_orn2_b32 s31, 0x80000000, s31\ns_xor_b32 s31, s31, s33\ns_and_b32 s31, s31, 0xfffff800")
        a("v_cvt_pk_bf16_f32 v11, s31, s31\nv_lshlrev_b32 v11, 16, v11\nv_mul_f32 v11, 0xbfb8aa3b, v11\nv_exp_f32 v11, v11\ns_and_b32 s32, s34, 0xffff0000\nv_add_f32 v11, 1.0, v11\nv_rcp_f32 v11, v11")
        a("v_rcp_f32 v12, s32\nv_cvt_pk_bf16_f32 v11, v11, v11\nv_lshlrev_b32 v11, 16, v11\ns_lshl_b32 s31, s34, 16")
        if self.ywait:
            a("s_waitcnt vmcnt(0)")
        a("v_lshl_add_u32 v13, v8, 1, s55\ns_mov_b64 vcc, -1\ns_mov_b32 s56, 1")
        if self.ygate and not self.cheat & 4:
            self.wait(*self.ygate)
        self.sleep(self.ys[0])
        self.stamp(11)
        if self.stamps:
            a(f"s_mov_b32 s35, {SPIN}")
        a("L_y_poll:")
        self.stamp(12)
        a("s_mov_b64 exec, vcc")
        a(f"buffer_load_dwordx4 v[{YL}:{YL + 3}], v4, s[12:15], 0 offen sc1")
        a("s_cmp_eq_u32 s30, 3\ns_cbranch_scc1 L_y_one")
        a(f"buffer_load_dwordx4 v[{YL + 4}:{YL + 7}], v4, s[12:15], s62 offen sc1")
        a("L_y_one:\ns_mov_b64 exec, -1\ns_waitcnt vmcnt(0)")
        for i in range(8):
            a(f"v_xor_b32 v{YC + i}, v14, v{YL + i}")
        a(f"v_or3_b32 v1, v{YC}, v{YC + 1}, v{YC + 2}\nv_or3_b32 v1, v1, v{YC + 3}, v{YC + 4}\nv_or3_b32 v1, v1, v{YC + 5}, v{YC + 6}\nv_or_b32 v1, v1, v{YC + 7}")
        a(f"v_and_b32 v1, {FMASK:#x}, v1\nv_cmp_ne_u32 vcc, 0, v1")
        for p in (0, 2):
            a(f"v_pk_add_f32 v[{YC + p}:{YC + p + 1}], v[{YC + p}:{YC + p + 1}], v[{YC + 4 + p}:{YC + 5 + p}]")
        a("s_cbranch_vccz L_y_got")
        self.spin_guard("L_y_got", self.ys[1])
        a("s_branch L_y_poll")
        a("L_y_got:")
        if self.hold:
            self.arrive(C_YG)
        a(f"v_permlane16_swap_b32 v{YC}, v{YC + 1}\nv_permlane16_swap_b32 v{YC + 2}, v{YC + 3}")
        a(f"v_add_f32 v{YC}, v{YC}, v{YC + 1}\nv_add_f32 v{YC + 2}, v{YC + 2}, v{YC + 3}")
        a(f"v_permlane32_swap_b32 v{YC}, v{YC + 2}\nv_add_f32 v{YC}, v{YC}, v{YC + 2}")
        a(f"v_add_f32_dpp v{YC}, v{YC}, v{YC} row_ror:8 row_mask:0xf bank_mask:0xf")
        a(f"ds_write_b32 v6, v{YC} offset:{L_YS}")
        a(f"s_mov_b64 exec, 1\nds_add_u32 v16, v255 offset:{L_CNT + 4 * C_ROW}\ns_mov_b64 exec, -1")
        self.stamp(13)
        a("s_cmp_lg_u32 s30, 0\ns_cbranch_scc1 L_seg_next")
        a(f"s_cmp_eq_u32 s47, 0\ns_cselect_b32 s32, {EPOCH}, {OOB}\nv_mov_b32 v5, {OOB}\nv_writelane_b32 v5, s32, 0\nv_mov_b32 v18, s28\nv_mov_b32 v19, s29")
        a("s_lshl_b32 s31, s34, 16\nv_lshlrev_b32 v9, 16, v9\nv_subrev_f32 v10, s31, v9\nv_cvt_pk_bf16_f32 v10, v10, v10\nv_lshlrev_b32 v10, 16, v10\nv_mul_f32 v10, v10, v12")
        a("v_cvt_pk_bf16_f32 v10, v10, v10\nv_lshlrev_b32 v10, 16, v10")
        a(f"L_rowsync:\nds_read_b32 v1, v16 offset:{L_CNT + 4 * C_ROW}\ns_waitcnt lgkmcnt(0)\nv_readfirstlane_b32 s31, v1\ns_cmp_ge_u32 s31, {4 if self.cheat & 4 else 5}\ns_cbranch_scc0 L_rowsync")
        for j in range(4):
            a(f"ds_read_b32 v{YL + j}, v13 offset:{L_YS + 128 * j}")
        a(f"ds_read_b32 v{YL + 4}, v15 offset:{L_ROW}")
        a("s_waitcnt lgkmcnt(0)")
        y = YL
        a(f"v_add_f32 v{y}, v{y}, v{y + 1}\nv_add_f32 v{y + 2}, v{y + 2}, v{y + 3}\nv_add_f32 v{y}, v{y}, v{y + 2}")
        a(f"v_cvt_pk_bf16_f32 v{y}, v{y}, v{y}\nv_lshlrev_b32 v{y}, 16, v{y}\nv_mul_f32 v{y}, v{y}, v11")
        a(f"v_cvt_pk_bf16_f32 v{y}, v{y}, v{y}\nv_lshlrev_b32 v{y}, 16, v{y}\nv_add_f32 v{y}, v{y}, v10")
        a(f"v_cvt_pk_bf16_f32 v{y}, v{y}, v{y}\nv_lshlrev_b32 v{y}, 16, v{y}\nv_mul_f32 v1, 0xbfb8aa3b, v{y}")
        a(f"v_mul_f32 v{y}, v1, v{YL + 4}\nv_exp_f32 v1, v1\nv_add_f32 v1, 1.0, v1\nv_rcp_f32 v1, v1")
        a(f"s_mov_b32 exec_hi, 0\nv_fma_f32 v{y}, v{y}, v1, v9\nv_cvt_pk_bf16_f32 v{y}, v{y}, v{y}")
        a(f"buffer_store_short v{y}, v8, s[16:19], s63 offen {self.oflag}")
        a("buffer_store_dwordx2 v[18:19], v5, s[12:15], 0 offen sc1")
        a("s_mov_b64 exec, -1")
        self.stamp(14)
        a("L_seg_next:")
        a("s_cmp_lg_u32 s55, 0\ns_cbranch_scc1 L_seg_end")
        a(f"s_mov_b32 s55, 512\ns_sub_u32 s54, 0, s51\ns_sub_u32 s47, 31, s47\nv_mov_b32 v16, {4 * (C_ROW1 - C_ROW)}")
        a("v_and_b32 v15, 24, v2\nv_xor_b32 v15, 24, v15\nv_sub_u32 v1, 0, v2\nv_and_b32 v1, 7, v1\nv_add_u32 v15, v15, v1\nv_lshlrev_b32 v15, 2, v15\nv_add_u32 v15, 128, v15")
        a("s_branch L_seg")
        a("L_seg_end:")
        if self.hold:
            a("s_cmp_lg_u32 s56, 0\ns_cbranch_scc1 L_fin")
            self.arrive(C_YG)

    def finish(self):
        a = self.a
        a("L_fin:")
        self.role = "all"
        if self.probe:
            if self.probe == ("all", 15):
                a("s_waitcnt vmcnt(0)")
                self.stamp(15)
            a("s_cmp_eq_u32 s68, 0\ns_cbranch_scc1 L_exit\ns_mov_b32 s35, 100000")
            a("L_probe:\ns_sleep 1\ns_memrealtime s[70:71]\ns_waitcnt lgkmcnt(0)\ns_sub_u32 s31, s70, s68\ns_cmp_ge_u32 s31, 4000\ns_cbranch_scc1 L_exit")
            a("s_cmp_eq_u32 s35, 0\ns_cbranch_scc1 L_exit\ns_sub_u32 s35, s35, 1\ns_branch L_probe")
        if self.stamps:
            a("s_waitcnt vmcnt(0)")
            self.stamp(15)
            if self.stamps is not True and ("cnt", 0) in self.stamps:
                a("v_writelane_b32 v211, s35, 10")
            a(f"v_writelane_b32 v211, s68, 0\ns_lshl_b32 s31, s2, 3\ns_add_u32 s31, s31, s3\ns_lshl_b32 s31, s31, 6\ns_add_u32 s31, s31, {STAMP}\nv_lshl_add_u32 v4, v2, 2, s31")
            a("s_mov_b64 exec, 0xffff\nbuffer_store_dword v211, v4, s[12:15], 0 offen")
        a("L_exit:")
        a("s_endpgm")
        a("L_code_end:")
        a.kernel_desc(NAME + "_kernel", 256, 92)
        a.add_launch(NAME + "_kernel", NWG, 64 * WAVES, LDS_BYTES)

    def build(self, path, verbose=False):
        self.prologue()
        self.dft()
        self.moe()
        self.finish()
        rep = []
        self.a.lines = hazard.fix(self.a.lines, rep)
        if verbose:
            for pad, s in rep:
                print("nop", pad, s)
        self.a.write(path, HEADER)


GROUPS = {"dft": (slice(0, 256), slice(0, 4)), "load": (slice(0, 224), slice(4, 7)), "h1": (slice(0, 224), slice(7, 8)), "idle": (slice(224, 256), slice(4, 8))}

if __name__ == "__main__":
    kw = eval(sys.argv[2]) if len(sys.argv) > 2 else {}
    Gen(**kw).build(sys.argv[1], verbose=True)
```

```python
import re

TRANS = ("v_exp_f32", "v_log_f32", "v_rcp_f32", "v_rsq_f32", "v_sqrt_f32", "v_sin_f32", "v_cos_f32")
REG = re.compile(r"(?<![\w.])(-?\|?(?:abs\()?)([vsa])(?:(\d+)|\[(\d+):(\d+)\])")


def regs(tok):
    out = set()
    for m in REG.finditer(tok):
        k = m.group(2)
        if m.group(3) is not None:
            out.add((k, int(m.group(3))))
        else:
            out.update((k, i) for i in range(int(m.group(4)), int(m.group(5)) + 1))
    if re.search(r"\bvcc(_lo|_hi)?\b", tok):
        out.add(("s", "vcc"))
    if re.search(r"\bexec(_lo|_hi)?\b", tok):
        out.add(("s", "exec"))
    if re.search(r"\bm0\b", tok):
        out.add(("s", "m0"))
    return out


class Ins:
    def __init__(self, text):
        self.text = text
        body = text.split(";")[0].strip()
        parts = body.split(None, 1)
        self.op = op = parts[0]
        rest = parts[1] if len(parts) > 1 else ""
        ops = [o.strip() for o in re.split(r",(?![^\[]*\])", rest)] if rest else []
        self.ops = ops
        self.valu = op.startswith("v_")
        self.mfma = op.startswith("v_mfma")
        self.dot = op.startswith("v_dot")
        self.trans = any(op.startswith(t) for t in TRANS)
        self.dpp = "_dpp" in op or " row_" in body or "quad_perm" in body or " wave_" in body
        self.perm = op.startswith("v_permlane")
        self.rdlane = op.startswith("v_readlane") or op.startswith("v_readfirstlane")
        self.lanesel = op.startswith("v_readlane") or op.startswith("v_writelane")
        self.vmem = op.startswith(("buffer_", "global_", "flat_"))
        self.ds = op.startswith("ds_")
        self.salu = op.startswith("s_")
        self.lds_dma = self.vmem and (" lds" in body or "_lds_" in op)
        w, r = set(), set()
        allr = [regs(o) for o in ops]
        if self.valu:
            nd = 1
            if op.startswith(("v_add_co", "v_sub_co", "v_addc_co", "v_subb_co", "v_mad_u64", "v_div_scale")):
                nd = 2
            if op.startswith(("v_swap", "v_permlane16_swap", "v_permlane32_swap")):
                w = allr[0] | allr[1]
                r = set(w)
            else:
                for o in allr[:nd]:
                    w |= o
                for o in allr[nd:]:
                    r |= o
                if op.startswith(("v_fmac", "v_dot2c", "v_writelane", "v_pk_fmac")) or self.dpp or "_sdwa" in op:
                    r |= allr[0]
                if op.startswith("v_cmpx"):
                    w.add(("s", "exec"))
        elif self.vmem:
            store = "store" in op or "atomic" in op
            if self.lds_dma:
                for o in allr:
                    r |= o
                r.add(("s", "m0"))
            elif store:
                for o in allr:
                    r |= o
            elif allr:
                w = allr[0]
                for o in allr[1:]:
                    r |= o
        elif self.ds:
            if op.startswith(("ds_read", "ds_bpermute", "ds_permute", "ds_swizzle")) or "_rtn" in op:
                w = allr[0]
                for o in allr[1:]:
                    r |= o
            else:
                for o in allr:
                    r |= o
        elif self.salu:
            if op.startswith(("s_cmp", "s_cbranch", "s_branch", "s_waitcnt", "s_nop", "s_barrier", "s_sleep", "s_endpgm", "s_setprio", "s_bitcmp")):
                for o in allr:
                    r |= o
            elif allr:
                w = allr[0]
                for o in allr[1:]:
                    r |= o
        self.w, self.r = w, r
        self.srcc = allr[3] if self.mfma and len(allr) > 3 else set()
        self.srcab = (allr[1] | allr[2]) if self.mfma else set()
        self.passes = 0
        if self.mfma:
            self.passes = 8 if "32x32" in op else 4
        self.widestore = self.vmem and "store" in op and ("x4" in op or "x3" in op)
        self.storedata = set()
        if self.widestore:
            self.storedata = allr[0] if op.startswith("buffer") else allr[1]
        self.states = 1
        if op == "s_nop":
            self.states = int(ops[0], 0) + 1


def vg(s):
    return {x for x in s if x[0] in "va"}


def sg(s):
    return {x for x in s if x[0] == "s"}


def need(p, c):
    n = 0
    if p.mfma:
        big = {4: 8, 8: 12}[p.passes]
        if c.mfma:
            if p.w & c.srcab:
                n = max(n, big)
            if p.w & c.srcc and not (p.w == c.srcc and p.passes == c.passes):
                n = max(n, {4: 6, 8: 10}[p.passes])
            if p.w & c.w and not (p.w == c.srcc):
                n = max(n, big)
        elif (c.valu or c.vmem or c.ds) and p.w & (c.r | c.w):
            n = max(n, big)
        if c.valu and not c.mfma and p.srcc & c.w:
            n = max(n, {4: 3, 8: 7}[p.passes])
        return n
    if p.valu:
        wv, ws = vg(p.w), sg(p.w)
        if c.mfma and wv & c.r:
            n = max(n, 2)
        if c.mfma and ("s", "exec") in ws:
            n = max(n, 4)
        if p.dot and c.valu and wv & (c.r | c.w):
            same = c.op == p.op
            accum_only = same and not (wv & (regs(c.ops[1]) | regs(c.ops[2])))
            if not accum_only:
                n = max(n, 3)
        if p.dot and (c.vmem or c.ds) and wv & c.r:
            n = max(n, 3)
        if p.trans and c.valu and not c.trans and wv & c.r:
            n = max(n, 1)
        if c.valu and c.dpp and wv & c.r:
            n = max(n, 2)
        if c.valu and c.dpp and ("s", "exec") in ws:
            n = max(n, 5)
        if c.perm and wv & c.r:
            n = max(n, 2)
        if c.rdlane and wv & c.r:
            n = max(n, 1)
        if c.valu and ws & c.r:
            n = max(n, 2)
        if c.lanesel and ws & regs(c.ops[-1]):
            n = max(n, 4)
        if c.vmem and ws & c.r:
            n = max(n, 5)
        if ("_sdwa" in p.op or "op_sel" in p.text) and c.valu and wv & c.r:
            n = max(n, 1)
        if c.salu and ws & c.r:
            n = max(n, 1)
        if c.op.startswith("s_cbranch_vcc") and ("s", "vcc") in ws:
            n = max(n, 1)
    if p.widestore and (c.valu or c.vmem or c.ds) and p.storedata & c.w:
        n = max(n, 2)
    if p.salu and ("s", "m0") in p.w and c.lds_dma:
        n = max(n, 1)
    return n


WINDOW = 14


def fix(lines, report=None):
    label_hist = {}
    for _ in range(3):
        out = []
        hist = []
        added = []
        for ln in lines:
            s = ln.strip()
            if not s or s.startswith((";", ".")):
                out.append(ln)
                continue
            if s.endswith(":"):
                out.append(ln)
                for h in label_hist.get(s[:-1], []):
                    hist = hist + h
                continue
            c = Ins(s)
            pad = 0
            for p, dist in hist:
                pad = max(pad, need(p, c) - dist)
            if pad > 0:
                out.append(f"    s_nop {pad - 1}")
                added.append((pad, s))
                hist = [(p, d + pad) for p, d in hist]
            out.append(ln)
            hist = [(p, d + c.states) for p, d in hist if d + c.states < WINDOW]
            hist.append((c, 0))
            if c.op.startswith(("s_cbranch", "s_branch")):
                label_hist.setdefault(c.ops[0], [])
                label_hist[c.ops[0]] = label_hist[c.ops[0]][-8:] + [list(hist)]
            if c.op in ("s_branch", "s_endpgm"):
                hist = []
    if report is not None:
        report.extend(added)
    return out


def align_runs(asm, minrun):
    import subprocess
    import tempfile
    with tempfile.TemporaryDirectory() as d:
        open(d + "/a.s", "w").write(asm.text())
        subprocess.run(["clang", "-x", "assembler", "-target", "amdgcn-amd-amdhsa", "-mcpu=gfx950", "-c", d + "/a.s", "-o", d + "/a.o"], check=True)
        dis = subprocess.run(["llvm-objdump", "-d", "--mcpu=gfx950", d + "/a.o"], capture_output=True, text=True).stdout
    sizes = [4 * len(m.group(1).split()) for m in re.finditer(r"// [0-9A-F]{12}: ((?:[0-9A-F]{8} ?)+)", dis)]
    idx = [i for i, ln in enumerate(asm.lines) if ln.strip() and not ln.strip().startswith((";", ".")) and not ln.strip().endswith(":")]
    assert len(sizes) == len(idx), (len(sizes), len(idx))
    widen = ("v_mov_b32", "v_add_f32", "v_sub_f32", "v_mul_f32", "v_xor_b32", "v_or_b32", "v_and_b32", "v_lshlrev_b32", "v_lshrrev_b32", "v_add_u32",
             "v_exp_f32", "v_rcp_f32", "v_sin_f32", "v_cos_f32")
    out = list(asm.lines)
    pos, k = 0, 0
    while k < len(idx):
        if sizes[k] == 8 and (k == 0 or sizes[k - 1] == 4):
            run = 0
            while k + run < len(idx) and sizes[k + run] == 8:
                run += 1
            if run >= minrun and pos % 8:
                prev = out[idx[k - 1]].strip()
                op = prev.split()[0]
                if op in widen:
                    out[idx[k - 1]] = "    " + prev.replace(op, op + "_e64", 1)
                else:
                    out[idx[k]] = "    s_nop 0\n" + out[idx[k]]
                pos += 4
        pos += sizes[k]
        k += 1
    return out
```

```python
import struct
import sys

sys.path.insert(0, "tools")
from asmgen import Asm, NAME
import hazard

EPOCH = 0
GRAN = 0x1000
HINT = 0x3000
STAT = 0x8000
HP = 0x40000
YP = 0x80000
ZB = 0x200000
ZTS = 129 * 128
STAMP = 0x1000000
OOB = 0x7FFFFF00
WBYTES = 1024 * 3584 * 2
ZMASK = 0x00030003
FMASK = 0x000000FF

RS, QS = 2592, 640
MISC = 16 * RS
EX = MISC + 2560
L_ENT = MISC
L_KEY = MISC + 80
L_MEAN = MISC + 96
L_YS = MISC + 1536
L_ROW = MISC + 1024
L_RST = MISC + 1280
L_CNT = MISC + 1344
M_XS = MISC + 128
M_HS = MISC + 896
M_G = EX + 32768
M_U = M_G + 32768
L_XT = M_U + 32768
LDS_BYTES = L_XT + 16384
C_A, C_B, C_C, C_ST3, C_D, C_ROW, C_S1, C_S2, C_HP, C_H, C_Y, C_S0, C_ROW1, C_DMA, C_E = range(15)
C_YG = 15
SHD = 16640
REL = {"p1": (C_YG, 1), "p4": (C_YG, 4), "k2": (C_DMA, 1), "k3": (C_DMA, 3), "s0": (C_S0, 1), "s1": (C_S1, 1), "s2": (C_S2, 1), "hp": (C_HP, 4), "h": (C_H, 4), "y": (C_Y, 4)}

SPIN = 1 << 16
NWG = 256
WAVES = 8

HEADER = """; Fused kernel: LayerNorm, Re(2-D DFT) as a folded mixed-radix transform on MFMA, routed-token SwiGLU, gating.
; Waves 0..3 of a workgroup run the transform, waves 4..7 the routed-token path."""

SHR = ("row_shr:1", "row_shr:2", "row_shr:4", "row_shr:8")


def fbits(x):
    return struct.unpack("<I", struct.pack("<f", float(x)))[0]


class Gen:
    DEFAULTS = dict(stamps=False, probe=None, diag=None, wflag="nt", oflag="sc1", prefetch=True, prio=True, psleep=2, win=24, dfirst=8, dlag=0,
                    drel="s1", gate=(C_C, 4), rel_zw="s1", rel_x0="s0", rel_x="hp", rel_zr=None, order="xzmawg", xearly=0, zwith=False,
                    nfpre=2, defer=False, near=True, dall=False, hpearly=8, tlb=False, w1=False, eo=False, pack=False, narrow=False, zfirst=True, align=0, spec=True, hint="hp", idelay=0, zflag="sc1", touch=True, isleep=0, ygate=None, ywait=True, hold=False, hs=(0, 0), ys=(0, 0), local=False, cheat=0, xb=2, xc=2)

    def __init__(self, **kw):
        self.a = Asm()
        self.role = "all"
        self.nsync = 0
        assert set(kw) <= set(self.DEFAULTS), set(kw) - set(self.DEFAULTS)
        self.__dict__.update(self.DEFAULTS)
        self.__dict__.update(kw)
        self.psig = bool({"p1", "p4"} & {self.rel_x, self.rel_zr})
        assert not (self.psig and self.hold)

    def arrive(self, c):
        self.a(f"s_mov_b64 exec, 1\nds_add_u32 v0, v255 offset:{L_CNT + 4 * c}\ns_mov_b64 exec, -1")

    def wait(self, c, n):
        self.nsync += 1
        lb = f"L_sync{self.nsync}"
        self.a(f"{lb}:\nds_read_b32 v1, v0 offset:{L_CNT + 4 * c}\ns_waitcnt lgkmcnt(0)\nv_readfirstlane_b32 s31, v1\ns_cmp_ge_u32 s31, {n}\ns_cbranch_scc0 {lb}")

    def wait_then(self, c, n, reads, count, addr="v0"):
        if not self.spec:
            self.nsync += 1
            lb = f"L_sync{self.nsync}"
            self.a(f"{lb}:\nds_read_b32 v1, {addr} offset:{L_CNT + 4 * c}\ns_waitcnt lgkmcnt(0)\nv_readfirstlane_b32 s31, v1\ns_cmp_ge_u32 s31, {n}\ns_cbranch_scc0 {lb}")
            reads()
            return
        self.nsync += 1
        lb = f"L_sync{self.nsync}"
        self.a(f"s_branch {lb}a\n{lb}:\ns_waitcnt lgkmcnt(0)\n{lb}a:" if count > 7 else f"{lb}:")
        self.a(f"ds_read_b32 v1, {addr} offset:{L_CNT + 4 * c}")
        reads()
        self.a(f"s_waitcnt lgkmcnt({count})\nv_readfirstlane_b32 s31, v1\ns_cmp_ge_u32 s31, {n}\ns_cbranch_scc0 {lb}")

    def sync(self, c, n=4):
        self.arrive(c)
        self.wait(c, n)

    def release(self, name):
        if name:
            self.wait(*REL[name])

    def stamp(self, i):
        if self.probe == (self.role, i):
            self.a("s_memrealtime s[68:69]\ns_waitcnt lgkmcnt(0)")
        if self.stamps and (self.stamps is True or i == 15 or (self.role, i) in self.stamps):
            self.a(f"s_memrealtime s[70:71]\ns_waitcnt lgkmcnt(0)\nv_writelane_b32 v211, s70, {i}")

    def fine(self, i):
        if self.diag == "fine" and i not in (2, 3, 4, 5):
            self.a(f"s_memtime s[{76 + 2 * i}:{77 + 2 * i}]")

    def spin_guard(self, out, sleep=None):
        self.a(f"s_cmp_eq_u32 s35, 0\ns_cbranch_scc1 {out}\ns_sub_u32 s35, s35, 1")
        self.sleep(self.psleep if sleep is None else sleep)

    def setprio(self, p):
        if self.prio:
            self.a(f"s_setprio {p}")

    def mfma(self, ty, d, A, B, c=None):
        c = "0" if c is None else f"v[{c}:{c + 3}]"
        self.a(f"v_mfma_f32_16x16x32_{ty} v[{d}:{d + 3}], v[{A}:{A + 3}], v[{B}:{B + 3}], {c}")

    def prologue(self):
        a = self.a
        a.begin(NAME + "_kernel")
        if self.stamps:
            a("s_memrealtime s[68:69]")
        a(f"s_cmp_ge_u32 s2, {NWG}\ns_cbranch_scc1 L_exit")
        a("s_load_dwordx2 s[8:9], s[0:1], 0")
        a("s_load_dwordx4 s[36:39], s[0:1], 48")
        a("s_load_dwordx2 s[12:13], s[0:1], 96")
        if self.stamps:
            a("v_mov_b32 v211, 0")
        if self.probe:
            a("s_mov_b32 s68, 0")
            if self.probe == ("all", 0):
                a("s_memrealtime s[68:69]")
        if self.prefetch:
            a("s_getpc_b64 s[32:33]\nL_pc:\ns_bfe_u32 s31, s2, 0x30003\nv_subrev_u32 v3, 496, v0\nv_lshl_add_u32 v3, v3, 3, s31\nv_lshlrev_b32 v3, 7, v3")
            a("v_cmp_gt_u32 vcc, L_code_end-L_pc, v3\ns_and_saveexec_b64 s[46:47], vcc\ns_cbranch_execz L_nopf")
            a("global_load_dword v254, v3, s[32:33]")
            a("L_nopf:\ns_mov_b64 exec, -1")
        a("v_lshrrev_b32 v1, 6, v0\nv_and_b32 v2, 63, v0")
        a("v_readfirstlane_b32 s30, v1")
        a("s_mov_b32 s10, 0x400000\ns_mov_b32 s11, 0x00020000\ns_mov_b32 s14, 0x10000000\ns_mov_b32 s15, 0x00020000")
        a(f"s_mov_b32 s35, {SPIN}\nv_lshlrev_b32 v3, 4, v2")
        a("v_mov_b32 v0, 0\nv_mov_b32 v255, 1\ns_mov_b32 s3, s30\ns_and_b32 s30, s30, 3")
        a("s_cmp_ge_u32 s3, 4\ns_cbranch_scc1 L_moe")

    def tag_from_epoch(self):
        self.a("s_add_u32 s28, s28, 0x7f4a7c15\ns_addc_u32 s29, s29, 0x9e3779b9")

    def gran_issue(self, g):
        for j in range(4):
            self.a(f"buffer_load_dwordx4 v[{g + 4 * j}:{g + 4 * j + 3}], v3, s[12:15], s63 offen offset:{1024 * j} sc1")

    def gran_resolve(self, name, g, k):
        a = self.a
        a(f"L_{name}_check:")
        for j in range(4):
            a(f"v_cmp_ne_u64 s[{52 + 2 * j}:{53 + 2 * j}], s[28:29], v[{g + 4 * j + 2}:{g + 4 * j + 3}]")
        a(f"v_max_u32 v{k}, v{g + 1}, v{g + 5}\nv_max3_u32 v{k}, v{k}, v{g + 9}, v{g + 13}")
        a("s_or_b64 s[64:65], s[52:53], s[54:55]\ns_or_b64 vcc, s[56:57], s[58:59]\ns_or_b64 s[64:65], s[64:65], vcc")
        a(f"s_cbranch_scc0 L_{name}_got")
        self.spin_guard(f"L_{name}_got")
        for j in range(4):
            a(f"s_mov_b64 exec, s[{52 + 2 * j}:{53 + 2 * j}]\ns_cbranch_execz L_{name}_skip{j}")
            a(f"buffer_load_dwordx4 v[{g + 4 * j}:{g + 4 * j + 3}], v3, s[12:15], s63 offen offset:{1024 * j} sc1")
            a(f"L_{name}_skip{j}:")
        a(f"s_mov_b64 exec, -1\ns_waitcnt vmcnt(0)\ns_branch L_{name}_check")
        a(f"L_{name}_got:")
        a(f"v_max_u32_dpp v{k + 1}, v{k}, v{k} row_ror:1 row_mask:0xf bank_mask:0xf")
        for d in ("row_ror:2", "row_ror:4", "row_ror:8"):
            a(f"v_max_u32_dpp v{k + 1}, v{k + 1}, v{k + 1} {d} row_mask:0xf bank_mask:0xf")
        a(f"v_readlane_b32 s33, v{k + 1}, 0\nv_readlane_b32 s31, v{k + 1}, 16\nv_readlane_b32 s32, v{k + 1}, 32\nv_readlane_b32 s34, v{k + 1}, 48")
        a("s_max_u32 s33, s33, s31\ns_max_u32 s32, s32, s34\ns_max_u32 s33, s33, s32")

    def gran_stats(self, g, k):
        a = self.a
        for j in (1, 2, 3):
            a(f"v_cmp_eq_u32 s[{50 + 2 * j}:{51 + 2 * j}], s33, v{g + 4 * j + 1}")
        a(f"v_cmp_eq_u32 vcc, s33, v{k}")
        a(f"v_cndmask_b32 v{k + 1}, v{g}, v{g + 4}, s[52:53]\nv_cndmask_b32 v{k + 1}, v{k + 1}, v{g + 8}, s[54:55]\nv_cndmask_b32 v{k + 1}, v{k + 1}, v{g + 12}, s[56:57]")
        a("s_ff1_i32_b64 s32, vcc")
        a(f"v_readlane_b32 s34, v{k + 1}, s32")

    def p2_matrix(self, MM, T0, T1, T2):
        a = self.a
        a(f"v_and_b32 v{T0}, 15, v2\nv_add_u32 v{T0}, s53, v{T0}\nv_cvt_f32_u32 v{T0}, v{T0}\nv_add_f32 v{T0}, 0.5, v{T0}\nv_mul_f32 v{T0}, 0x3b800000, v{T0}")
        a(f"v_and_b32 v{T1}, 32, v2\nv_bfe_u32 v{T2}, v2, 4, 1\nv_lshl_add_u32 v{T1}, v{T2}, 3, v{T1}\nv_cvt_f32_u32 v{T1}, v{T1}\nv_mul_f32 v{T1}, v{T1}, v{T0}")
        for p in range(2):
            for hf in range(2):
                for dw in range(4):
                    c0 = 64 * hf + 16 * (dw // 2) + 4 * (dw % 2) + p
                    dc, ds = MM + 4 * (2 * p + hf) + dw, MM + 16 + 4 * (2 * p + hf) + dw
                    a(f"v_fmamk_f32 v{dc}, v{T0}, {fbits(c0):#x}, v{T1}\nv_fmamk_f32 v{T2}, v{T0}, {fbits(c0 + 2):#x}, v{T1}")
                    a(f"v_sin_f32 v{ds}, v{dc}\nv_sin_f32 v{T2 + 1}, v{T2}\nv_cos_f32 v{dc}, v{dc}\nv_cos_f32 v{T2}, v{T2}")
                    a(f"v_cvt_pk_f16_f32 v{ds}, v{ds}, v{T2 + 1}\nv_cvt_pk_f16_f32 v{dc}, v{dc}, v{T2}")
        a(f"v_cmp_gt_u32 vcc, 16, v2\nv_and_b32 v{T2}, 1, v2\nv_lshlrev_b32 v{T2}, 15, v{T2}\nv_or_b32 v{T2}, 0x3c00, v{T2}\nv_and_b32 v{T0}, 0xffff0000, v{MM + 16}\nv_or_b32 v{T2}, v{T2}, v{T0}")
        a(f"v_cndmask_b32 v{MM + 16}, v{MM + 16}, v{T2}, vcc")

    def tile_decode(self, t1=46, tile=47, tau=53):
        if self.eo:
            self.a(f"s_and_b32 s31, s2, 7\ns_sub_u32 s32, 8, s31\ns_min_u32 s{t1}, s31, s32\ns_lshr_b32 s{tau}, s31, 2\ns_lshr_b32 s{tile}, s2, 3")
            self.a(f"s_and_b32 s32, s{tile}, 1\ns_and_b32 s31, s31, 3\ns_cselect_b32 s{tau}, s{tau}, s32\ns_cselect_b32 s31, 0, 1\ns_lshr_b32 s{tile}, s{tile}, s31\ns_lshl_b32 s{tau}, s{tau}, 4")
        else:
            self.a(f"s_and_b32 s31, s2, 7\ns_sub_u32 s32, 8, s31\ns_min_u32 s{t1}, s31, s32\ns_cmp_gt_u32 s31, 4\ns_cselect_b32 s31, 16, 0")
            self.a(f"s_lshr_b32 s{tile}, s2, 4\ns_add_u32 s{tile}, s{tile}, s31\ns_bfe_u32 s{tau}, s2, 0x10003\ns_lshl_b32 s{tau}, s{tau}, 7\ns_add_u32 s{tau}, s{tau}, s31")

    XS_, VTA, XR, VTC, VSA = (112, 113, 114, 115), 116, 117, 118, 119

    def out_addresses(self):
        a = self.a
        XS_, VTA, XR, VTC, VSA = self.XS_, self.VTA, self.XR, self.VTC, self.VSA
        self.tile_decode(76, 77, 78)
        a("s_lshl_b32 s31, s30, 5\ns_add_u32 s78, s78, s31\ns_lshl_b32 s78, s78, 3\ns_add_u32 s78, s78, s76")
        a("s_lshl_b32 s77, s77, 6\ns_sub_u32 s79, 1984, s77\ns_lshl_b32 s76, s76, 1\ns_add_u32 s76, s76, 2040")
        a(f"v_and_b32 v{VTA}, 15, v2\nv_lshl_add_u32 v{VTA}, v{VTA}, 3, s78")
        if self.eo:
            a(f"v_and_b32 v7, 32, v2\nv_lshl_add_u32 v7, v7, 5, v{VTA}")
        else:
            a(f"s_mov_b32 vcc_lo, 0\ns_mov_b32 vcc_hi, -1\nv_sub_u32 v7, s76, v{VTA}\nv_cndmask_b32 v7, v{VTA}, v7, vcc")
        a("s_mov_b32 vcc_lo, 0xffff0000\ns_mov_b32 vcc_hi, 0xffff0000\nv_sub_u32 v6, 0, v7\nv_cndmask_b32 v7, v7, v6, vcc")
        a(f"v_and_b32 v6, 7, v7\nv_and_b32 v1, 1024, v7\nv_lshl_add_u32 v6, v6, 11, v1\nv_and_b32 v1, 0xf8, v7\nv_lshl_add_u32 v6, v1, 2, v6")
        a(f"v_bfe_u32 v1, v7, 9, 1\nv_lshl_add_u32 v{VSA}, v1, 4, v6\nv_and_b32 v1, 256, v7\nv_cmp_ne_u32 s[88:89], 0, v1")
        if self.cheat & 2:
            a(f"v_and_b32 v{VSA}, 0x1f0, v3")
        d, vt = XS_, VTC
        a(f"v_lshrrev_b32 v{vt}, 2, v2\nv_lshl_add_u32 v{vt}, v{vt}, 3, s78\nv_lshlrev_b32 v1, 1, v2\nv_xor_b32 v1, v1, v3\nv_and_b32 v1, 48, v1")
        a(f"v_add_u32 v{d[2]}, 1024, v{vt}" if self.eo else f"v_sub_u32 v{d[2]}, s76, v{vt}")
        a(f"v_sub_u32 v{d[1]}, 0, v{vt}\nv_and_b32 v{d[1]}, 2047, v{d[1]}\nv_sub_u32 v{d[3]}, 2048, v{d[2]}")
        a(f"v_add_u32 v{d[0]}, s77, v1\nv_lshl_add_u32 v{d[2]}, v{d[2]}, 11, v{d[0]}\nv_lshl_add_u32 v{d[0]}, v{vt}, 11, v{d[0]}")
        a(f"v_xor_b32 v1, 48, v1\nv_add_u32 v1, s79, v1\nv_lshl_add_u32 v{d[1]}, v{d[1]}, 11, v1\nv_lshl_add_u32 v{d[3]}, v{d[3]}, 11, v1")
        a(f"s_lshl_b32 s76, s30, 12\ns_add_u32 s76, s76, {L_XT}")
        a(f"v_and_b32 v1, 15, v2\nv_lshlrev_b32 v6, 6, v1\nv_lshlrev_b32 v1, 3, v2\nv_xor_b32 v1, v1, v2\nv_and_b32 v1, 48, v1\nv_add3_u32 v{XR}, v6, v1, s76")

    def x_loads(self, h0, h1):
        for h in range(h0, h1):
            self.a(f"s_add_u32 m0, s76, {1024 * h}")
            self.a(f"buffer_load_dwordx4 v{self.XS_[h]}, s[8:11], 0 offen lds")

    def park_move(self):
        new = dict(XS_=(4, 5, 249, 205), VTA=248, XR=208, VTC=7, VSA=6)
        for o, n in zip(self.XS_ + (self.VTA, self.XR, self.VTC, self.VSA), new["XS_"] + (new["VTA"], new["XR"], new["VTC"], new["VSA"])):
            self.a(f"v_mov_b32 v{n}, v{o}")
        self.__dict__.update(new)

    def hint_store(self, at):
        if self.hint != at:
            return
        a = self.a
        a("s_cmp_eq_u32 s30, 1\ns_cselect_b32 s31, s2, 0\ns_cmp_lt_u32 s31, 192\ns_cbranch_scc1 L_no_hint")
        a(f"s_and_b32 s31, s2, 31\ns_lshl_b32 s31, s31, 7\ns_add_u32 s31, s31, {HINT}\nv_mov_b32 v250, s28\nv_mov_b32 v251, s29\ns_mov_b64 exec, 1")
        a("buffer_store_dwordx2 v[250:251], v0, s[12:15], s31 offen sc1\ns_mov_b64 exec, -1")
        a("L_no_hint:")

    def sleep(self, n):
        while n > 0:
            self.a(f"s_sleep {min(n, 127)}")
            n -= 127

    def dft(self):
        a = self.a
        self.role = "dft"
        CV, M2, TW, M3, MM = 8, 16, 48, 80, 88
        RW, WR = 120, 152
        T = 160
        VPUB = 4

        a("s_and_b32 s31, s2, 7\ns_lshr_b32 s32, s2, 4\ns_sub_u32 s32, 15, s32\ns_lshl_b32 s32, s32, 3\ns_add_u32 s46, s32, s31\ns_bfe_u32 s47, s2, 0x10003")
        a("s_lshl_b32 s31, s47, 2\ns_add_u32 s51, s31, s30\ns_lshl_b32 s31, s51, 8\ns_add_u32 s52, s31, s46\ns_xor_b32 s54, s52, 1024")
        a("s_sub_u32 s53, 2048, s52\ns_add_u32 s31, s52, 128\ns_cmp_eq_u32 s46, 0\ns_cselect_b32 s53, s31, s53\ns_cselect_b32 s50, 1, 0\ns_xor_b32 s55, s53, 1024")
        for i in range(4):
            a(f"s_lshl_b32 s{56 + i}, s{52 + i}, 11")
        a("s_mov_b32 s22, 2048\ns_mov_b32 s23, 0x00020000")
        a(f"v_mov_b32 v1, 0\nv_and_b32 v6, 15, v2\nv_lshlrev_b32 v6, 2, v6\nds_write_b64 v0, v[0:1] offset:{L_ENT + 32}\nds_write_b32 v6, v0 offset:{L_CNT}")
        a("s_waitcnt lgkmcnt(0)")
        if self.diag == "start":
            a("s_memrealtime s[80:81]")
        a(f"s_load_dwordx2 s[28:29], s[12:13], {EPOCH}\ns_load_dwordx2 s[16:17], s[0:1], 80")
        for r in range(4):
            if r == 2:
                a("s_mov_b32 s20, s36\ns_mov_b32 s21, s37")
                a(f"buffer_load_dwordx4 v[{WR}:{WR + 3}], v3, s[20:23], 0 offen")
                a(f"buffer_load_dwordx4 v[{WR + 4}:{WR + 7}], v3, s[20:23], 0 offen offset:1024")
                if self.defer:
                    break
            a(f"buffer_load_dwordx4 v[{RW + 8 * r}:{RW + 8 * r + 3}], v3, s[8:11], s{56 + r} offen")
            a(f"buffer_load_dwordx4 v[{RW + 8 * r + 4}:{RW + 8 * r + 7}], v3, s[8:11], s{56 + r} offen offset:1024")
        if self.diag == "start":
            a("s_memrealtime s[82:83]")
        a("s_barrier")
        if self.near:
            a("s_branch L_dft_rest")
            self.moe_head()
            a("s_branch L_dma_done")
            a("L_dft_rest:")
            self.role = "dft"
        if self.diag == "start":
            a(f"s_memrealtime s[84:85]\ns_waitcnt vmcnt({2 if self.defer else 6})\ns_memrealtime s[86:87]\ns_waitcnt lgkmcnt(0)")
            for i in range(4):
                a(f"v_writelane_b32 v211, s{80 + 2 * i}, {1 + i}")
        a("s_mov_b32 s18, 0x400000\ns_mov_b32 s19, 0x00020000")
        VROW, VEN, VST, VLD, VLM, VTR, VEX, VSG = T + 40, T + 41, T + 42, T + 44, T + 45, T + 46, T + 47, T + 48
        a(f"s_sub_u32 s31, 2047, s52\ns_sub_u32 s32, 2047, s53\nv_mov_b32 v{VROW}, s31\nv_writelane_b32 v{VROW}, s32, 63")
        a(f"s_lshl_b32 s31, s30, 2\nv_mov_b32 v{VEN}, s31\ns_bfe_u32 s31, s53, 0x20008\ns_lshl_b32 s31, s31, 2\ns_add_u32 s31, s31, 16\nv_writelane_b32 v{VEN}, s31, 63")
        a(f"v_and_b32 v6, 32, v2\ns_lshl_b32 s31, s51, 2\nv_add_u32 v{VST + 1}, s31, v6\nv_lshrrev_b32 v{VST}, 1, v{VST + 1}")
        a(f"s_lshl_b32 s31, s2, 4\ns_add_u32 s31, s31, {GRAN}\nv_mov_b32 v{VPUB}, s31\nv_lshlrev_b32 v5, 3, v2")
        for t in range(2):
            a(f"s_and_b32 s31, s{52 + t}, 7\ns_lshl_b32 s31, s31, 11\ns_and_b32 s32, s{52 + t}, 1024\ns_add_u32 s31, s31, s32\ns_and_b32 s32, s{52 + t}, 0xf8\ns_lshl_b32 s32, s32, 2")
            a(f"s_add_u32 s31, s31, s32\ns_add_u32 s31, s31, {STAT}\nv_writelane_b32 v{VPUB}, s31, {2 * t}\ns_add_u32 s31, s31, 16\nv_writelane_b32 v{VPUB}, s31, {2 * t + 1}")
        a(f"s_mul_i32 s31, s51, {RS}\nv_and_b32 v{VLD}, 32, v2\nv_lshlrev_b32 v{VLD}, 2, v{VLD}\nv_add3_u32 v{VLD}, v{VLD}, v3, s31")
        a(f"s_lshl_b32 s32, s31, 1\ns_add_u32 s32, s32, {8 * RS + 63 * 16 + 128}\nv_sub_u32 v{VLM}, s32, v{VLD}")
        a(f"v_bfe_u32 v{VTR}, v2, 2, 2\nv_mul_u32_u24 v{VTR}, {RS}, v{VTR}\nv_lshrrev_b32 v6, 4, v2\nv_mul_u32_u24 v7, {QS}, v6\nv_add_u32 v{VTR}, v{VTR}, v7")
        a(f"v_and_b32 v7, 3, v2\nv_lshlrev_b32 v7, 3, v7\ns_lshl_b32 s31, s30, 7\nv_add3_u32 v{VTR}, v{VTR}, v7, s31")
        a(f"v_lshlrev_b32 v6, 12, v6\nv_and_b32 v7, 15, v2\nv_lshl_add_u32 v6, v7, 4, v6\ns_lshl_b32 s31, s30, 8\nv_add_u32 v{VEX}, s31, v6")
        a(f"v_bfe_i32 v{VSG}, v2, 4, 1\nv_and_b32 v{VSG}, 0x80008000, v{VSG}")

        T0, T1, T2 = T + 90, T + 91, T + 92
        a(f"s_cmp_eq_u32 s47, 0\ns_movk_i32 s48, 0x7403\ns_cselect_b32 s48, 0x7721, s48\nv_and_b32 v{T0}, 12, v2\nv_bfe_u32 v{T0}, s48, v{T0}, 4")
        a(f"v_lshrrev_b32 v{T1}, 4, v2\nv_bfe_u32 v{T2}, v2, 1, 1\nv_mul_u32_u24 v{T1}, v{T1}, v{T2}\nv_and_b32 v{T2}, 1, v2\nv_add_u32 v{T1}, v{T1}, v{T2}")
        a(f"v_cvt_f32_u32 v{T0}, v{T0}\nv_cvt_f32_u32 v{T1}, v{T1}\nv_mul_f32 v{T0}, 0x3e000000, v{T0}\nv_mul_f32 v{T1}, 0x3e800000, v{T1}")
        for j in range(8):
            a(f"v_cos_f32 v{CV + j}, v{T1}")
            if j < 7:
                a(f"v_add_f32 v{T1}, v{T1}, v{T0}")
        for j in range(8):
            a(f"v_mul_f32 v{CV + j}, 0xbf317218, v{CV + j}")
        BI = T + 52
        a(f"v_lshrrev_b32 v{T0}, 2, v2\nv_and_b32 v{T0}, 12, v{T0}\nv_and_b32 v{T1}, 15, v2\nv_lshlrev_b32 v{T1}, 2, v{T1}")
        a(f"v_cvt_f32_u32 v{T0}, v{T0}\nv_cvt_f32_u32 v{T1}, v{T1}\nv_mul_f32 v{BI}, 0x3c800000, v{T0}")
        a(f"s_lshl_b32 s31, s30, 2\ns_lshr_b32 s48, s48, s31\ns_and_b32 s48, s48, 15\ns_sub_u32 s31, s48, 4\ns_mul_i32 s31, s31, s46\nv_cvt_f32_i32 v{T2}, s31\nv_mul_f32 v{T2}, 0x3a000000, v{T2}")
        a(f"v_add_f32 v{BI + 1}, 0x3c800000, v{BI}\nv_add_f32 v{BI + 2}, 0x3d000000, v{BI}\nv_add_f32 v{BI + 3}, 0x3d400000, v{BI}")
        def consts(f0, f1):
            for f in range(f0, f1):
                for i in range(4):
                    re, im = M2 + 8 * f + i, M2 + 8 * f + 4 + i
                    tc, ts = TW + 8 * f + i, TW + 8 * f + 4 + i
                    a(f"v_mul_f32 v{T0}, v{BI + i}, v{T1}")
                    a(f"v_fmamk_f32 v{ts}, v{T0}, 0x3d800000, v{T2}")
                    a(f"v_sin_f32 v{im}, v{T0}\nv_cos_f32 v{T0}, v{T0}\nv_cos_f32 v{tc}, v{ts}\nv_sin_f32 v{ts}, v{ts}")
                    a(f"v_cvt_pk_f16_f32 v{re}, v{T0}, v{im}\nv_cvt_pk_f16_f32 v{im}, -v{im}, v{T0}")
                if f < 3:
                    a(f"v_add_f32 v{T1}, 1.0, v{T1}")

        VZ = T + 49

        def late_consts():
            consts(self.nfpre, 4)
            a("s_and_b32 s31, s46, 1\ns_lshl_b32 s31, s31, 6\ns_lshr_b32 s32, s46, 1\ns_add_u32 s49, s31, s32")
            a("s_bitcmp1_b32 s49, 2\ns_cselect_b64 vcc, -1, 0")
            for i in range(4):
                a(f"v_cndmask_b32 v{M3 + i}, v{M2 + i}, v{M2 + 4 + i}, vcc\nv_cndmask_b32 v{M3 + 4 + i}, v{M2 + 4 + i}, v{M2 + i}, vcc")
            a(f"s_bfe_u32 s31, s49, 0x10001\nv_and_b32 v6, 7, v2\nv_xor_b32 v6, s31, v6\nv_lshlrev_b32 v6, 4, v6")
            a(f"v_lshrrev_b32 v7, 4, v2\nv_lshlrev_b32 v7, 3, v7\nv_bfe_u32 v{VZ}, v2, 3, 1\nv_add_u32 v7, v7, v{VZ}\nv_mul_u32_u24 v7, {ZTS}, v7\nv_add_u32 v{VZ}, v6, v7")
            a(f"s_mul_i32 s31, s48, {32 * ZTS}\ns_lshl_b32 s32, s49, 7\ns_add_u32 s31, s31, s32\ns_add_u32 s60, s31, {ZB}")

        self.out_addresses()
        consts(0, self.nfpre)
        SS, QQ, DD, DC = T, T + 4, T + 8, T + 10
        PB, RST, MEAN, SH = T + 12, T + 16, T + 32, T + 56
        for r in range(11):
            a(f"v_mov_b32 v{T + r}, 0")
        if self.defer:
            a("s_mov_b32 s84, s58\ns_mov_b32 s85, s59")
        a("s_mov_b32 s57, 0x3f803f80\ns_mov_b32 s59, 0xffff\ns_brev_b32 s67, 1\ns_mov_b32 s66, 0\ns_brev_b32 s64, 1\ns_brev_b32 s65, 1")
        a(f"s_cmp_eq_u32 s47, 0\ns_movk_i32 s62, {-4 * RS}\ns_cselect_b32 s62, {4 * RS}, s62")
        a("s_waitcnt lgkmcnt(0)")
        self.tag_from_epoch()
        a(f"v_mov_b32 v{PB + 2}, s28\nv_mov_b32 v{PB + 3}, s29")
        a(f"s_cmp_lt_u32 s2, {0 if self.diag == 'nomoe' else 224}\ns_cbranch_scc1 L_epoch_ok")
        self.wait(C_E, 4)
        a("L_epoch_ok:")
        self.setprio(2)
        self.stamp(1)

        def sq(r):
            for i in range(8):
                x = RW + 8 * r + i
                a(f"v_dot2c_f32_bf16 v{SS + r}, s57, v{x}\nv_dot2c_f32_bf16 v{QQ + r}, v{x}, v{x}")

        def plain(r, off):
            a(f"ds_write_b128 v{VLD}, v[{RW + 8 * r}:{RW + 8 * r + 3}] offset:{off}\nds_write_b128 v{VLD}, v[{RW + 8 * r + 4}:{RW + 8 * r + 7}] offset:{off + 2 * QS}")

        def rotate(r):
            b = RW + 8 * r
            a(f"v_mov_b32_dpp v6, v{b} wave_rol:1 row_mask:0xf bank_mask:0xf\nv_mov_b32_dpp v7, v{b + 4} wave_rol:1 row_mask:0xf bank_mask:0xf")
            for half in range(2):
                for i in (1, 2, 3):
                    a(f"v_bfi_b32 v{SH + 4 * (1 - half) + i}, s59, v{b + 4 * half + 4 - i}, v{b + 4 * half + 3 - i}")
            a(f"v_cndmask_b32 v{SH + 4}, v6, v7, s[66:67]\nv_cndmask_b32 v{SH}, v7, v6, s[66:67]")
            a(f"v_bfi_b32 v{SH + 4}, s59, v{SH + 4}, v{b + 3}\nv_bfi_b32 v{SH}, s59, v{SH}, v{b + 7}")

        def second(r):
            a(f"s_cmp_lg_u32 s50, 0\ns_cbranch_scc1 L_plain{r}")
            a(f"ds_write_b128 v{VLM}, v[{SH}:{SH + 3}]\nds_write_b128 v{VLM}, v[{SH + 4}:{SH + 7}] offset:{2 * QS}\ns_branch L_second{r}")
            a(f"L_plain{r}:")
            plain(r, 8 * RS)
            a(f"L_second{r}:")

        def reduce(regs):
            for r in regs:
                a(f"v_permlane32_swap_b32 v{r}, v{r + 1}")
            for r in regs:
                a(f"v_add_f32 v{r}, v{r}, v{r + 1}")
            for d, m in [(d, 0xf) for d in SHR] + [("row_bcast:15", 0xa)]:
                for r in regs:
                    a(f"v_add_f32_dpp v{r}, v{r}, v{r} {d} row_mask:{m:#x} bank_mask:0xf")

        def tail(m_, q_, NM, st):
            a(f"v_mul_f32 v{m_}, 0x3a800000, v{m_}\nv_mul_f32 v{q_}, 0x3a800000, v{q_}")
            a(f"v_fma_f32 v{q_}, -v{m_}, v{m_}, v{q_}\nv_cvt_pk_bf16_f32 v{NM}, -v{m_}, -v{m_}\nv_max_f32 v{q_}, 0, v{q_}")
            a(f"v_cvt_pk_bf16_f32 v{q_}, v{q_}, v{q_}\nv_and_b32 v{q_}, 0xffff0000, v{q_}\nv_add_f32 v{q_}, 0x3727c5ac, v{q_}")
            a(f"v_cvt_pk_bf16_f32 v{q_}, v{q_}, v{q_}\nv_and_b32 v{q_}, 0xffff0000, v{q_}\nv_sqrt_f32 v{q_}, v{q_}\nv_and_b32 v{q_ + 1}, 0xffff0000, v{NM}")
            a(f"v_cvt_pk_bf16_f32 v{st}, v{m_}, v{q_}\nv_and_b32 v{q_}, 0xffff0000, v{st}\nv_rcp_f32 v{q_}, v{q_}")

        a(f"s_waitcnt vmcnt({4 if self.defer else 8})")
        if self.defer:
            for r in (2, 3):
                a(f"buffer_load_dwordx4 v[{RW + 8 * r}:{RW + 8 * r + 3}], v3, s[8:11], s{82 + r} offen")
                a(f"buffer_load_dwordx4 v[{RW + 8 * r + 4}:{RW + 8 * r + 7}], v3, s[8:11], s{82 + r} offen offset:1024")
        sq(0)
        a("s_waitcnt vmcnt(6)")
        sq(1)
        a("s_waitcnt vmcnt(4)")
        self.stamp(2)
        for i in range(8):
            a(f"v_dot2c_f32_bf16 v{DC}, s57, v{WR + i}")
        for i in range(8):
            a(f"v_dot2c_f32_bf16 v{DD}, v{WR + i}, v{RW + i}\nv_dot2c_f32_bf16 v{DD + 1}, v{WR + i}, v{RW + 8 + i}")
            if i == 3:
                a(f"v_mov_b32 v{DC + 1}, v{DC}")
        reduce((SS, QQ, DC, DD))
        t_, NM, st = DD, SS + 1, T + 88
        tail(SS, QQ, NM, st)
        a(f"v_fmac_f32 v{t_}, v{DC}, v{QQ + 1}\nv_mul_f32 v{t_}, v{t_}, v{QQ}")
        a(f"v_ashrrev_i32 v{DC}, 31, v{t_}\nv_or_b32 v{DC}, 0x80000000, v{DC}\nv_xor_b32 v{t_}, v{t_}, v{DC}")
        a(f"v_and_b32 v{t_}, 0xfffff800, v{t_}\nv_or_b32 v{st + 1}, v{VROW}, v{t_}")
        a("s_mov_b64 exec, s[64:65]")
        a(f"ds_write_b32 v{VEN}, v{st} offset:{L_ENT}\nds_max_u64 v0, v[{st}:{st + 1}] offset:{L_ENT + 32}")
        a(f"s_mov_b64 exec, 1\nds_add_rtn_u32 v1, v0, v255 offset:{L_CNT + 4 * C_A}\ns_mov_b64 exec, 31\nds_read_b64 v[{PB}:{PB + 1}], v5 offset:{L_ENT}")
        a("s_mov_b64 exec, s[64:65]")
        a(f"ds_write_b16 v{VST}, v{NM} offset:{L_MEAN}\nds_write_b32 v{VST + 1}, v{QQ} offset:{L_RST}")
        a("s_mov_b64 exec, -1")
        rotate(1)
        a("s_waitcnt lgkmcnt(2)\nv_readfirstlane_b32 s31, v1\ns_cmp_lg_u32 s31, 3\ns_cbranch_scc1 L_not_last")
        a(f"s_mov_b64 exec, 31\nbuffer_store_dwordx4 v[{PB}:{PB + 3}], v{VPUB}, s[12:15], 0 offen sc1\ns_mov_b64 exec, -1")
        self.stamp(3)
        a("s_waitcnt vmcnt(1)\ns_branch L_b_ready")
        a("L_not_last:")
        a("s_waitcnt vmcnt(0)")
        a("L_b_ready:")
        self.setprio(1)
        if self.diag == "pubonly":
            self.arrive(self.gate[0])
            self.arrive(C_ST3)
            a("s_branch L_fin")
        plain(0, 0)
        second(1)
        a(f"v_add_u32 v{VLD}, s62, v{VLD}\nv_add_u32 v{VLM}, s62, v{VLM}")
        sq(2)
        plain(2, 0)
        sq(3)
        a(f"v_xor_b32 v{VST}, 8, v{VST}\nv_xor_b32 v{VST + 1}, 16, v{VST + 1}\ns_waitcnt lgkmcnt(2)")
        rotate(3)
        second(3)
        reduce((SS + 2, QQ + 2))
        tail(SS + 2, QQ + 2, NM, st)
        a("s_mov_b64 exec, s[64:65]")
        a(f"ds_write_b16 v{VST}, v{NM} offset:{L_MEAN}\nds_write_b32 v{VST + 1}, v{QQ + 2} offset:{L_RST}")
        self.arrive(C_B)
        AD, AM, C0 = T, WR, T + 8

        def stat_reads():
            for k in range(4):
                a(f"ds_read_b128 v[{RST + 4 * k}:{RST + 4 * k + 3}], v0 offset:{L_RST + 16 * k}")
            a(f"ds_read_b128 v[{MEAN}:{MEAN + 3}], v0 offset:{L_MEAN}\nds_read_b128 v[{MEAN + 4}:{MEAN + 7}], v0 offset:{L_MEAN + 16}")

        self.wait_then(C_B, 4, stat_reads, 6)
        self.stamp(4)
        FR, DA, EE = RW, T + 56, RST

        def trd(blk):
            for m in range(2):
                for v in range(2):
                    d = FR + 8 * blk + 4 * m + 2 * v
                    a(f"ds_read_b64_tr_b16 v[{d}:{d + 1}], v{VTR} offset:{(8 * m + 4 * v) * RS + 32 * blk}")

        def cvt_ex(blk):
            for f in range(4):
                a(f"v_cvt_pk_f16_f32 v{EE + 4 * f + blk}, v{DA + 8 * blk + 2 * f}, v{DA + 8 * blk + 2 * f + 1}")

        def cvt_f(f, area):
            for blk in range(4):
                a(f"v_cvt_pk_f16_f32 v{EE + 4 * f + blk}, v{DA + 8 * blk + 2 * f}, v{DA + 8 * blk + 2 * f + 1}")
            a(f"ds_write_b128 v{VEX}, v[{EE + 4 * f}:{EE + 4 * f + 3}] offset:{EX + area + 1024 * f}")

        def write_ex(area):
            for f in range(4):
                a(f"ds_write_b128 v{VEX}, v[{EE + 4 * f}:{EE + 4 * f + 3}] offset:{EX + area + 1024 * f}")

        trd(0); trd(1)
        self.x_loads(0, self.xb)
        a("s_waitcnt lgkmcnt(10)")
        trd(2)
        for k in range(8):
            a(f"v_pk_mul_f32 v[{RST + 2 * k}:{RST + 2 * k + 1}], v[{RST + 2 * k}:{RST + 2 * k + 1}], v[{CV + 2 * (k % 4)}:{CV + 2 * (k % 4) + 1}]")
        for k in range(4):
            a(f"v_cvt_pk_bf16_f32 v{AD + k}, v{RST + 2 * k}, v{RST + 2 * k + 1}\nv_cvt_pk_bf16_f32 v{AM + k}, v{RST + 8 + 2 * k}, v{RST + 9 + 2 * k}")
        for k in range(4):
            a(f"v_xor_b32 v{AD + 4 + k}, v{VSG}, v{AD + k}\nv_xor_b32 v{AM + 4 + k}, v{VSG}, v{AM + k}")
        a("s_waitcnt lgkmcnt(12)")
        a("s_cmp_lg_u32 s50, 0\ns_cbranch_scc1 L_st1_split")
        self.mfma("bf16", C0, AD, MEAN)
        self.mfma("bf16", C0, AM, MEAN + 4, C0)
        for blk in range(4):
            d, fr = DA + 8 * blk, FR + 8 * blk
            a(f"s_waitcnt lgkmcnt({(10, 10, 6, 2)[blk]})")
            if blk == 0:
                trd(3)
            self.mfma("bf16", d, AD, fr, C0)
            a(f"s_waitcnt lgkmcnt({(12, 8, 4, 0)[blk]})")
            self.mfma("bf16", d, AM, fr + 4, d)
        for blk in range(4):
            d, fr = DA + 8 * blk, FR + 8 * blk
            self.mfma("bf16", d + 4, AD + 4, fr)
            self.mfma("bf16", d + 4, AM + 4, fr + 4, d + 4)
            if blk in (1, 2):
                cvt_f(blk - 1, 0)
        cvt_f(2, 0)
        cvt_f(3, 0)
        a("s_branch L_st1_done")
        a("L_st1_split:")
        a("s_waitcnt lgkmcnt(8)")
        trd(3)
        a("s_waitcnt lgkmcnt(0)")
        for A, o, area in ((AD, 0, 0), (AM, 4, 16384)):
            self.mfma("bf16", C0, A, MEAN + o)
            for blk in range(4):
                self.mfma("bf16", DA + 8 * blk + 4, A + 4, FR + 8 * blk + o)
                self.mfma("bf16", DA + 8 * blk, A, FR + 8 * blk + o, C0)
            if area:
                a("s_waitcnt lgkmcnt(0)")
            for blk in range(4):
                cvt_ex(blk)
            write_ex(area)
        a("L_st1_done:")
        self.x_loads(self.xb, self.xc)
        self.arrive(C_C)
        PP, UU, TT, ZZ, VTAG = RW, RW + 16, WR, T + 56, T + 50
        a(f"s_lshl_b32 s31, s30, 12\nv_add_u32 v5, s31, v3\ns_and_b32 s31, s28, {ZMASK:#x}\nv_mov_b32 v{VTAG}, s31\ns_mov_b32 s58, {~ZMASK & 0xFFFFFFFF:#x}")
        a("s_and_b32 s32, s48, 3\ns_cselect_b32 s72, -1, 0xff\ns_cselect_b32 s73, -1, 0\ns_mov_b32 s74, s48")
        a(f"v_mov_b32 v{VZ}, {OOB}\ns_cmp_eq_u32 s48, 7\ns_cbranch_scc1 L_no_consts")
        late_consts()
        a("L_no_consts:")

        def ex_reads():
            for f in range(4):
                a(f"ds_read_b128 v[{PP + 4 * f}:{PP + 4 * f + 3}], v5 offset:{EX + 1024 * f}")

        a("L_st23:")
        self.wait_then(C_C, 4, ex_reads, 4)
        self.stamp(5)
        a("s_cmp_eq_u32 s48, 7\ns_cbranch_scc1 L_p1_done")
        for i in range(1, 4):
            a(f"s_add_u32 s{60 + i}, s{59 + i}, {2 * ZTS}")

        def st2(f):
            u = UU + 8 * (f % 2)
            a(f"s_waitcnt lgkmcnt({3 - f})")
            self.mfma("f16", u, PP + 4 * f, M2 + 8 * f)
            self.mfma("f16", u + 4, PP + 4 * f, M2 + 8 * f + 4)

        def tw(f):
            u = UU + 8 * (f % 2)
            tc, ts = TW + 8 * f, TW + 8 * f + 4
            for p in (0, 2):
                a(f"v_pk_mul_f32 v[{TT + p}:{TT + p + 1}], v[{tc + p}:{tc + p + 1}], v[{u + p}:{u + p + 1}]")
            for p in (0, 2):
                a(f"v_pk_mul_f32 v[{TT + 4 + p}:{TT + 5 + p}], v[{ts + p}:{ts + p + 1}], v[{u + p}:{u + p + 1}]")
            for p in (0, 2):
                a(f"v_pk_fma_f32 v[{TT + p}:{TT + p + 1}], v[{ts + p}:{ts + p + 1}], v[{u + 4 + p}:{u + 5 + p}], v[{TT + p}:{TT + p + 1}]")
                a(f"v_pk_fma_f32 v[{TT + 4 + p}:{TT + 5 + p}], v[{tc + p}:{tc + p + 1}], v[{u + 4 + p}:{u + 5 + p}], v[{TT + 4 + p}:{TT + 5 + p}] neg_lo:[0,0,1] neg_hi:[0,0,1]")
            for i in range(4):
                a(f"v_cvt_pk_f16_f32 v{PP + 4 * f + i}, v{TT + i}, v{TT + 4 + i}")

        def st3(f):
            self.mfma("f16", ZZ + 8 * f, M3, PP + 4 * f)
            self.mfma("f16", ZZ + 8 * f + 4, M3 + 4, PP + 4 * f)

        OO = T + 16

        def pack(lo):
            for i in range(4):
                o = OO + 4 * i + lo
                a(f"v_cvt_pk_f16_f32 v{o}, v{ZZ + 16 * lo + i}, v{ZZ + 16 * lo + 8 + i}\nv_cvt_pk_f16_f32 v{o + 2}, v{ZZ + 16 * lo + 4 + i}, v{ZZ + 16 * lo + 12 + i}")
                a(f"v_and_or_b32 v{o}, v{o}, s58, v{VTAG}\nv_and_or_b32 v{o + 2}, v{o + 2}, s58, v{VTAG}")

        def z_stores():
            for i in range(4):
                if i < 2:
                    a(f"s_mov_b32 exec_hi, s{72 + i}")
                a(f"buffer_store_dwordx4 v[{OO + 4 * i}:{OO + 4 * i + 3}], v{VZ}, s[12:15], s{60 + i} offen {self.zflag}")
            a("s_mov_b32 exec_hi, -1")

        st2(0); st2(1); tw(0); st2(2); st3(0); tw(1); st2(3); st3(1); tw(2); st3(2); tw(3); st3(3); pack(0); pack(1)
        a("s_cmp_eq_u32 s50, 0\ns_cbranch_scc1 L_p1_done")
        z_stores()
        a(f"s_mov_b32 s50, 0\ns_add_u32 s60, s60, 16384\nv_add_u32 v5, 16384, v5\ns_sub_u32 s31, s48, 4\nv_cvt_f32_i32 v{T2}, s31\nv_mul_f32 v{T2}, 0x3d800000, v{T2}")
        a(f"v_and_b32 v{T1}, 15, v2\nv_lshlrev_b32 v{T1}, 2, v{T1}\nv_cvt_f32_u32 v{T1}, v{T1}")
        for i in range(4):
            a(f"v_fma_f32 v{T0}, v{BI + i}, v{T1}, v{T2}\nv_sin_f32 v{M3 + 4 + i}, v{T0}\nv_cos_f32 v{T0}, v{T0}")
            a(f"v_cvt_pk_f16_f32 v{M3 + i}, v{T0}, v{M3 + 4 + i}\nv_cvt_pk_f16_f32 v{M3 + 4 + i}, -v{M3 + 4 + i}, v{T0}")
        a("s_branch L_st23")
        a("L_p1_done:")
        if self.zfirst:
            a("s_cmp_lt_u32 s2, 224\ns_cbranch_scc1 L_zst_later\ns_cmp_eq_u32 s74, 7\ns_cbranch_scc1 L_zst_later")
            z_stores()
            self.stamp(7)
            a("s_mov_b32 s74, 7\nL_zst_later:")
        self.arrive(C_ST3)
        self.stamp(6)
        self.setprio(0)
        self.park_move()
        self.phase2(MM, VTAG, z_stores)

    def phase2(self, MM, VTAG, z_stores):
        a = self.a
        XP, SG, XF, GG = 8, 24, 40, 120
        AC, ZL, AF, GR = 216, 72, 152, 192
        ZN = 212
        XS_, VTA, XR, VTC, VSA = self.XS_, self.VTA, self.XR, self.VTC, self.VSA
        self.tile_decode()
        a(f"s_lshl_b32 s31, s30, 5\ns_add_u32 s53, s53, s31\ns_lshl_b32 s48, s46, 1\ns_add_u32 s48, s48, 2040\ns_mov_b32 s49, {STAT}")
        x_loads = self.x_loads

        def x_reads(h0, h1):
            for h in range(h0, h1):
                a(f"ds_read_b128 v[{XP + 4 * h}:{XP + 4 * h + 3}], v{XR} offset:{1024 * h}")
            a("s_waitcnt lgkmcnt(0)")

        XE = max(self.xearly, self.xc)

        def step(op):
            if op == "x":
                self.release(self.rel_x0)
                a(f"buffer_load_dwordx4 v[{SG}:{SG + 3}], v6, s[12:15], s49 offen")
                x_loads(self.xc, XE)
            elif op == "z":
                a("s_cmp_eq_u32 s74, 7\ns_cbranch_scc1 L_no_zst")
                if self.rel_zw:
                    a("s_cmp_ge_u32 s2, 224\ns_cbranch_scc1 L_zst_go")
                    self.release(self.rel_zw)
                    a("L_zst_go:")
                if not self.cheat & 64:
                    z_stores()
                self.stamp(7)
                a("L_no_zst:")
                if self.cheat & 4:
                    a("s_branch L_fin")
            elif op == "m":
                self.p2_matrix(MM, 160, 161, 162)
            elif op == "a":
                addresses()
            elif op == "w":
                stat_wait()
            elif op == "g":
                x_reads(0, XE)
                self.stamp(13)
                gate(0, XE)

        def addresses():
            a(f"s_mul_i32 s51, s46, {32 * ZTS}\ns_add_u32 s51, s51, {ZB}\ns_mul_i32 s54, s47, {ZTS}\ns_lshl_b32 s32, s30, 12\ns_add_u32 s50, s51, s54\ns_add_u32 s50, s50, s32")
            a(f"s_add_u32 s55, s47, 1\ns_and_b32 s55, s55, 31\ns_mul_i32 s55, s55, {ZTS}\nv_add_u32 v250, s32, v3\nv_add_u32 v199, s76, v3")
            a(f"v_lshl_add_u32 v200, v2, 7, s32\nv_and_b32 v1, 2, v2\nv_lshl_add_u32 v200, v1, 3, v200\nv_and_b32 v1, 0x70, v3\nv_add_u32 v1, 16384, v1")
            a(f"s_mov_b32 vcc_lo, 0\ns_mov_b32 vcc_hi, -1\nv_cndmask_b32 v200, v200, v1, vcc\ns_mov_b32 vcc_hi, 0xff\nv_mov_b32 v1, s55\nv_mov_b32 v201, s54")
            a(f"v_cndmask_b32 v1, v1, v201, vcc\nv_mov_b32 v201, {SHD}\nv_cndmask_b32 v201, v201, v0, vcc\nv_add_u32 v201, v201, v200\nv_add_u32 v200, v1, v200")
            if self.cheat & 1:
                a("v_and_b32 v200, 0x70, v3\nv_add_u32 v200, s54, v200")
            a("v_lshrrev_b32 v251, 5, v2\nv_lshlrev_b32 v251, 11, v251\nv_bfe_u32 v1, v2, 2, 3\nv_lshl_add_u32 v251, v1, 7, v251")
            a("v_and_b32 v1, 3, v2\nv_lshl_add_u32 v251, v1, 5, v251\nv_bfe_u32 v1, v2, 3, 1\nv_lshl_add_u32 v251, v1, 4, v251\nv_bfe_u32 v1, v2, 4, 1\nv_lshl_add_u32 v251, v1, 3, v251")
            a("v_xor_b32 v252, 16, v251\nv_xor_b32 v253, 8, v251\nv_xor_b32 v254, 24, v251\nv_cmp_gt_u32 vcc, 4, v2\nv_mov_b32 v1, 16384\nv_cndmask_b32 v1, v0, v1, vcc")
            a("v_add_u32 v206, v253, v1\nv_add_u32 v207, v254, v1")
            a(f"s_mov_b32 vcc_lo, 0x88888888\ns_mov_b32 vcc_hi, 0x88888888\nv_mov_b32 v1, {SHD - 96}\nv_cndmask_b32 v1, 32, v1, vcc")
            a("v_add_u32 v202, v251, v1\nv_add_u32 v203, v253, v1\nv_add_u32 v204, v206, v1")

        def stat_wait():
            a("s_waitcnt vmcnt(0)")
            a("L_stat_check:")
            a(f"v_cmp_ne_u64 vcc, s[28:29], v[{SG + 2}:{SG + 3}]\ns_cbranch_vccz L_stat_got")
            self.spin_guard("L_stat_got")
            a(f"s_mov_b64 exec, vcc\nbuffer_load_dwordx4 v[{SG}:{SG + 3}], v6, s[12:15], s49 offen sc1")
            a("s_mov_b64 exec, -1\ns_waitcnt vmcnt(0)\ns_branch L_stat_check")
            a("L_stat_got:")
            a(f"v_cndmask_b32 v{SG}, v{SG}, v{SG + 1}, s[88:89]")
            a(f"v_mov_b32 v{SG + 8}, v{SG}\nv_permlane32_swap_b32 v{SG}, v{SG + 8}\nv_mov_b32 v{SG + 4}, v{SG}\nv_mov_b32 v{SG + 12}, v{SG + 8}")
            a(f"v_permlane16_swap_b32 v{SG}, v{SG + 4}\nv_permlane16_swap_b32 v{SG + 8}, v{SG + 12}")
            for h in range(4):
                s_ = SG + 4 * h
                a(f"v_lshlrev_b32 v{s_ + 2}, 16, v{s_}\nv_and_b32 v{s_}, 0xffff0000, v{s_}\nv_rcp_f32 v{s_}, v{s_}")
            for h in range(4):
                s_ = SG + 4 * h
                a(f"v_mul_f32 v{s_}, 0xbfb8aa3b, v{s_}\nv_mul_f32_e64 v{s_ + 2}, -v{s_ + 2}, v{s_}")

        def z_loads():
            for j in range(4):
                a(f"buffer_load_dwordx4 v[{ZL + 4 * j}:{ZL + 4 * j + 3}], v3, s[12:15], s50 offen offset:{1024 * j} sc1")
            a("s_mov_b32 exec_hi, 0x1ff")
            a(f"buffer_load_dwordx4 v[{ZN}:{ZN + 3}], v200, s[12:15], s51 offen sc1")
            a("s_mov_b32 exec_hi, -1")

        def slots(h, i):
            if h % 2 == 0:
                return 8 * h + 2 * i, 8 * h + 2 * i + 1
            return 8 * h + (8 - 2 * i) % 8, 8 * h + 7 - 2 * i

        def gate(h0, h1):
            rng = range(4 * h0, 4 * h1)
            for i in rng:
                lo, hi = slots(i // 4, i % 4)
                a(f"v_lshlrev_b32 v{XF + lo}, 16, v{XP + i}\nv_and_b32 v{XF + hi}, 0xffff0000, v{XP + i}")
            for i in rng:
                s_ = SG + 4 * (i // 4)
                a(f"v_pk_fma_f32 v[{GG + 2 * i}:{GG + 2 * i + 1}], v[{XF + 2 * i}:{XF + 2 * i + 1}], v[{s_}:{s_ + 1}], v[{s_ + 2}:{s_ + 3}] op_sel_hi:[1,0,0]")
            for i in rng:
                a(f"v_exp_f32 v{AC + 2 * i}, v{GG + 2 * i}\nv_exp_f32 v{AC + 2 * i + 1}, v{GG + 2 * i + 1}")
            for i in rng:
                a(f"v_pk_add_f32 v[{AC + 2 * i}:{AC + 2 * i + 1}], v[{AC + 2 * i}:{AC + 2 * i + 1}], 1.0 op_sel_hi:[1,0]")
            for i in rng:
                a(f"v_rcp_f32 v{AC + 2 * i}, v{AC + 2 * i}\nv_rcp_f32 v{AC + 2 * i + 1}, v{AC + 2 * i + 1}")
            for i in rng:
                a(f"v_pk_mul_f32 v[{GG + 2 * i}:{GG + 2 * i + 1}], v[{GG + 2 * i}:{GG + 2 * i + 1}], v[{AC + 2 * i}:{AC + 2 * i + 1}]")

        for i in range(4):
            a(f"v_mov_b32 v{ZN + i}, v{VTAG}")
        for op in self.order:
            step(op)
        self.stamp(14)
        def masks():
            self.wait_then(C_S2, 1, lambda: a(f"ds_read_b32 v198, v0 offset:{L_KEY + 4}"), 1)
            a(f"v_and_b32 v6, 48, v2\nv_lshlrev_b32 v6, 1, v6\nv_mov_b32 v209, {OOB}\ns_waitcnt lgkmcnt(0)\nv_readfirstlane_b32 s33, v198")
            a("s_andn2_b32 s33, 0x7ff, s33\ns_sub_u32 s31, 0, s33\ns_and_b32 s31, s31, 2047")
            a("s_sub_u32 s32, s33, 1024\ns_sub_u32 s34, s31, 1024" if self.eo else "s_sub_u32 s32, s48, s33\ns_sub_u32 s34, s48, s31")
            for h, sr in enumerate((33, 31, 32, 34)):
                a(f"v_cmp_eq_u32 vcc, s{sr}, v{VTC}\nv_cmp_eq_u32 s[{54 + 2 * h}:{55 + 2 * h}], s{sr}, v{VTA}\nv_cndmask_b32 v{XS_[h]}, v{XS_[h]}, v209, vcc")
            a("s_or_b64 s[62:63], s[54:55], s[58:59]\ns_or_b64 s[64:65], s[56:57], s[60:61]")

        if XE < 4:
            self.release(self.rel_x)
            x_loads(XE, 4)
            masks()
            if self.zwith:
                self.release(self.rel_zr)
                z_loads()
            a(f"s_waitcnt vmcnt({5 if self.zwith else 0})")
            if not self.zwith:
                self.release(self.rel_zr)
                z_loads()
            x_reads(XE, 4)
            self.stamp(8)
            gate(XE, 4)
        else:
            masks()
            self.release(self.rel_zr)
            z_loads()
            self.stamp(8)
        self.stamp(9)
        a("L_z_wait:")
        self.setprio(1)
        ZC = AF + 8
        srcs = [ZL + i for i in range(16)] + [ZN + i for i in range(4)]
        for j in range(5):
            a(f"s_waitcnt vmcnt({4 - j})")
            for i in range(4):
                a(f"v_xor_b32 v{ZC + 4 * j + i}, v{VTAG}, v{srcs[4 * j + i]}")
            if j < 4:
                a(f"ds_write_b128 v250, v[{ZC + 4 * j}:{ZC + 4 * j + 3}] offset:{1024 * j}")
            else:
                a(f"s_mov_b32 exec_hi, 0x1ff\nds_write_b128 v201, v[{ZC + 16}:{ZC + 19}]\ns_mov_b32 exec_hi, -1")
            if j == 0:
                a(f"v_or3_b32 v1, v{ZC}, v{ZC + 1}, v{ZC + 2}\nv_or_b32 v1, v1, v{ZC + 3}")
            else:
                a(f"v_or3_b32 v1, v1, v{ZC + 4 * j}, v{ZC + 4 * j + 1}\nv_or3_b32 v1, v1, v{ZC + 4 * j + 2}, v{ZC + 4 * j + 3}")
        a(f"v_and_b32 v1, {ZMASK:#x}, v1\nv_cmp_ne_u32 vcc, 0, v1\ns_cbranch_vccz L_z_got")
        self.spin_guard("L_z_got")
        a("s_mov_b64 exec, vcc")
        for j in range(4):
            a(f"buffer_load_dwordx4 v[{ZL + 4 * j}:{ZL + 4 * j + 3}], v3, s[12:15], s50 offen offset:{1024 * j} sc1")
        a("s_and_b32 exec_hi, exec_hi, 0x1ff\ns_or_b32 exec_lo, exec_lo, 1")
        a(f"buffer_load_dwordx4 v[{ZN}:{ZN + 3}], v200, s[12:15], s51 offen sc1")
        a("s_mov_b64 exec, -1\ns_waitcnt lgkmcnt(0)\ns_branch L_z_wait")
        a("L_z_got:")
        self.stamp(10)
        self.fine(0)
        if self.hold:
            a(f"ds_read_b32 v198, v0 offset:{L_CNT + 4 * C_YG}")
        self.arrive(C_D)
        self.fine(1)
        if self.diag == "fine":
            a("s_waitcnt lgkmcnt(0)")

        def rd(ks):
            c, ph = ks // 4, ks % 4
            b = AF + 8 * (ks % 4)
            for mb in range(2):
                for v in range(2):
                    ad = 206 + mb if (ks == 4 and v == 0) else 251 + mb + 2 * c
                    a(f"ds_read_b64_tr_b16 v[{b + 4 * mb + 2 * v}:{b + 4 * mb + 2 * v + 1}], v{ad} offset:{4096 * ph + 1024 * v}")

        def half(ks):
            return (ks % 4) // 2 if self.eo else ks // 4

        def first(ks):
            return ks in ((0, 2) if self.eo else (0, 4))

        def b3(ks):
            return (ZL if ks < 4 else 240 - 16 * (ks // 6) * 4) + 4 * (ks % 4)

        def rd3(ks):
            c, ph = ks // 4, ks % 4
            for v in range(2):
                ad = 204 if (ks == 4 and v == 0) else 202 + c
                a(f"ds_read_b64_tr_b16 v[{b3(ks) + 2 * v}:{b3(ks) + 2 * v + 1}], v{ad} offset:{4096 * ph + 1024 * v}")

        def mf3(ks):
            d = AC + 16 + 4 * half(ks)
            self.mfma("f16", d, b3(ks), MM + 4 * ks, None if first(ks) else d)

        self.wait_then(C_D, 4, lambda: rd(0), 4)
        if self.hold:
            a("v_readfirstlane_b32 s66, v198")
        self.stamp(11)
        rd(1); rd(2)
        for ks in range(8):
            b = AF + 8 * (ks % 4)
            a("s_waitcnt lgkmcnt(8)")
            for mb in range(2):
                d = AC + 8 * half(ks) + 4 * mb
                self.mfma("f16", d, b + 4 * mb, MM + 4 * ks, None if first(ks) else d)
            if ks + 3 < 8:
                rd(ks + 3)
            else:
                rd3(2 * (ks - 5))
                rd3(2 * (ks - 5) + 1)
        a("s_waitcnt lgkmcnt(8)")
        rd3(6); rd3(7)
        mf3(0); mf3(1)
        a("s_waitcnt lgkmcnt(4)")
        mf3(2); mf3(3)
        SA = AF

        def combine(h):
            ng = " neg_lo:[0,1] neg_hi:[0,1]" if h else ""
            for i in range(4):
                e, o = AC + 2 * i, AC + 8 + 2 * i
                a(f"v_pk_add_f32 v[{SA + 8 * h + 2 * i}:{SA + 8 * h + 2 * i + 1}], v[{e}:{e + 1}], v[{o}:{o + 1}]{ng}")

        def emit(h, between=None):
            sa = SA + 8 * (h // 2)
            for i in range(4):
                k = 8 * h + 2 * i
                a(f"v_pk_fma_f32 v[{XF + k}:{XF + k + 1}], v[{sa + 2 * i}:{sa + 2 * i + 1}], v[{GG + k}:{GG + k + 1}], v[{XF + k}:{XF + k + 1}]")
            if between:
                between()
            for i in range(4):
                lo, hi = slots(h, i)
                a(f"v_cvt_pk_bf16_f32 v{XP + 4 * h + i}, v{XF + lo}, v{XF + hi}")
            a(f"ds_write_b128 v{XR}, v[{XP + 4 * h}:{XP + 4 * h + 3}] offset:{1024 * h}")
            a(f"ds_read_b128 v[{SG + 4 * h}:{SG + 4 * h + 3}], v199 offset:{1024 * h}")

        def store(h, left):
            a(f"s_waitcnt lgkmcnt({left})")
            if self.cheat & 16:
                return
            a(f"buffer_store_dwordx4 v[{SG + 4 * h}:{SG + 4 * h + 3}], v{XS_[h]}, s[16:19], 0 offen {self.oflag}")

        def dump(m, sfx=''):
            a(f"s_cmp_eq_u64 s[{62 + 2 * m}:{63 + 2 * m}], 0\ns_cbranch_scc1 L_nodump{m}{sfx}")
            for h in (m, m + 2):
                sa, o = SA + 8 * (h // 2), L_ROW + 128 * m
                a(f"s_mov_b64 exec, s[{54 + 2 * h}:{55 + 2 * h}]")
                a(f"ds_write_b128 v6, v[{sa}:{sa + 3}] offset:{o}\nds_write_b128 v6, v[{sa + 4}:{sa + 7}] offset:{o + 16}")
            self.arrive(C_ROW1 if m else C_ROW)
            a("s_waitcnt lgkmcnt(0)")
            a(f"L_nodump{m}{sfx}:")

        def tail_a():
            a("s_waitcnt lgkmcnt(0)")
            self.fine(2)
            mf3(6); mf3(7)

        combine(0)
        mf3(4); mf3(5)
        emit(0, tail_a)
        self.fine(3)
        combine(1)
        dump(0)
        emit(2)
        if self.hold:
            a("s_cmp_lt_u32 s66, 4\ns_cbranch_scc1 L_held")
        store(0, 2)
        self.fine(4)
        a(f"v_add_f32 v{SA}, v{AC + 16}, v{AC + 20}\nv_sub_f32 v{SA + 8}, v{AC + 16}, v{AC + 20}")
        dump(1)
        emit(1)
        store(2, 2)
        self.fine(5)
        emit(3)
        store(1, 2)
        store(3, 0)
        self.fine(6)
        if self.diag == "fine":
            a("s_waitcnt vmcnt(0)")
            self.fine(7)
            a("s_waitcnt lgkmcnt(0)")
            for i in range(1, 8):
                a(f"s_sub_u32 s31, s{76 + 2 * i}, s76\ns_add_u32 s31, s31, s68\nv_writelane_b32 v211, s31, {i}")
        self.stamp(12)
        a("s_branch L_fin")
        if self.hold:
            a("L_held:")
            a(f"v_add_f32 v{SA}, v{AC + 16}, v{AC + 20}\nv_sub_f32 v{SA + 8}, v{AC + 16}, v{AC + 20}")
            dump(1, "h")
            emit(1)
            emit(3)
            self.wait(C_YG, 4)
            for h in range(4):
                store(h, 0)
            self.stamp(12)
            a("s_branch L_fin")

    def moe_head(self):
        a = self.a
        a("L_moe:")
        self.role = "moe"
        a("s_load_dwordx2 s[20:21], s[0:1], 64")
        if self.narrow:
            a("s_and_b32 s32, s2, 7\ns_mul_i32 s32, s32, 7\ns_lshr_b32 s31, s2, 6\ns_lshl_b32 s31, s31, 1\ns_add_u32 s46, s31, s32")
            a("s_bfe_u32 s47, s2, 0x30003\ns_cmp_ge_u32 s2, 192\ns_cselect_b32 s75, 1, 0\ns_lshl_b32 s47, s47, s75\ns_and_b32 s47, s47, 7")
        else:
            a("s_and_b32 s32, s2, 7\ns_mul_i32 s32, s32, 28\ns_lshr_b32 s31, s2, 3\ns_add_u32 s31, s31, s32\ns_lshr_b32 s46, s31, 3\ns_lshl_b32 s46, s46, 1\ns_and_b32 s47, s31, 7\ns_mov_b32 s75, 0")
        for d in (16, 20, 24):
            a(f"s_mov_b32 s{d + 2}, {WBYTES}\ns_mov_b32 s{d + 3}, 0x00020000")
        a("v_lshrrev_b32 v4, 4, v2\nv_lshlrev_b32 v5, 5, v4\nv_and_b32 v6, 0x70, v3\nv_xor_b32 v5, v5, v6\nv_mul_u32_u24 v4, 7168, v4")
        a(f"s_mul_i32 s31, s47, {128 * 7168}\ns_lshl_b32 s32, s46, 7\ns_add_u32 s31, s31, s32\nv_add3_u32 v4, v4, v5, s31")
        a(f"s_cmp_eq_u32 s75, 0\ns_mov_b32 s31, {128 * 7168}\ns_cselect_b32 s31, 128, s31\nv_add_u32 v6, s31, v4")
        a("s_mov_b32 vcc_lo, 0xff00ff00\ns_mov_b32 vcc_hi, 0xff00ff00\nv_cndmask_b32 v5, v6, v4, vcc\nv_cndmask_b32 v4, v4, v6, vcc")
        a(f"s_mov_b32 s48, 0\ns_mov_b32 s49, {M_G}")
        a("s_waitcnt lgkmcnt(0)")
        a("s_mov_b32 s16, s38\ns_mov_b32 s17, s39")
        if self.diag == "start":
            a("s_memrealtime s[80:81]\ns_waitcnt lgkmcnt(0)\nv_writelane_b32 v211, s80, 1")
        a(f"s_load_dwordx2 s[28:29], s[12:13], {EPOCH}\ns_load_dwordx2 s[24:25], s[0:1], 72\ns_load_dwordx2 s[44:45], s[0:1], 80")
        a("s_barrier")
        a(f"s_cmp_ge_u32 s2, {0 if self.diag == 'nomoe' else 224}\ns_cselect_b32 s66, 0, 1\ns_cbranch_scc1 L_dma_done")
        a("s_cmp_lg_u32 s30, 0\ns_cbranch_scc1 L_dma_done")
        self.setprio(3)
        a("L_dma:")
        for i in range(4):
            a(f"s_mov_b32 m0, s49\ns_waitcnt vmcnt({self.win - (1 if self.w1 else 2)})")
            a(f"buffer_load_dwordx4 v{4 + i // 2}, s[16:19], s48 offen {self.wflag} lds")
            a("s_add_u32 m0, s49, 32768\ns_add_u32 s49, s49, 1024")
            if self.w1:
                a(f"s_waitcnt vmcnt({self.win - 1})")
            a(f"buffer_load_dwordx4 v{4 + i // 2}, s[20:23], s48 offen {self.wflag} lds")
            a(f"s_add_u32 s48, s48, {4 * 7168}")
        a(f"s_cmp_lt_u32 s48, {128 * 7168}\ns_cbranch_scc1 L_dma")

    def moe(self):
        a = self.a
        if not self.near:
            self.moe_head()
        self.role = "moe"
        a("L_dma_done:")
        self.setprio(3)
        WD = 100
        a("s_lshr_b32 s31, s47, 2\ns_andn2_b32 s31, s31, s75\ns_add_u32 s50, s31, s46")
        a("s_lshl_b32 s31, s50, 17\ns_bfe_u32 s32, s2, 0x20003\ns_lshl_b32 s32, s32, 2\ns_add_u32 s51, s32, s30\ns_lshl_b32 s32, s51, 7\ns_add_u32 s31, s31, s32")
        a("v_lshrrev_b32 v6, 3, v2\nv_lshlrev_b32 v6, 14, v6\nv_and_b32 v7, 0x70, v3\nv_add3_u32 v6, v6, v7, s31")
        a("s_mov_b32 s60, 4096\ns_mov_b32 s61, 8192\ns_mov_b32 s62, 12288")

        def d_loads(j0, j1):
            for j in range(j0, j1):
                if self.cheat & 32:
                    a(f"buffer_load_dwordx4 v[{WD + 4 * j}:{WD + 4 * j + 3}], v7, s[24:27], 0 offen")
                    continue
                so = "0" if j < 2 else f"s{59 + j // 2}"
                a(f"buffer_load_dwordx4 v[{WD + 4 * j}:{WD + 4 * j + 3}], v6, s[24:27], {so} offen offset:{2048 * (j % 2)} {self.wflag}")

        a("v_bfe_u32 v8, v2, 2, 3\nv_lshlrev_b32 v9, 5, v8\ns_lshl_b32 s31, s30, 6\nv_xor_b32 v9, s31, v9")
        a(f"v_bfe_u32 v8, v2, 2, 2\nv_lshl_add_u32 v9, v8, 8, v9\nv_lshrrev_b32 v8, 4, v2\nv_lshl_add_u32 v9, v8, 11, v9\nv_and_b32 v10, 3, v2\nv_lshl_add_u32 v9, v10, 3, v9")
        a(f"v_add_u32 v9, {M_G}, v9\nv_xor_b32 v10, 32, v9\nv_lshlrev_b32 v8, 4, v8")
        a("s_lshr_b32 s31, s30, 1\ns_and_b32 s32, s31, s75\ns_lshl_b32 s32, s32, 8\nv_add_u32 v8, s32, v8\ns_cmp_eq_u32 s75, 0\ns_cselect_b32 s32, 12, 9\ns_lshl_b32 s31, s31, s32")
        a("s_lshl_b32 s32, s46, 3\ns_add_u32 s32, s32, s47\ns_lshl_b32 s32, s32, 9\ns_add_u32 s31, s31, s32")
        a(f"s_and_b32 s32, s30, 1\ns_lshl_b32 s32, s32, 8\ns_add_u32 s31, s31, s32\ns_add_u32 s31, s31, {HP}\nv_lshl_add_u32 v13, v2, 3, s31")
        a("s_waitcnt lgkmcnt(0)")
        self.tag_from_epoch()
        a(f"s_and_b32 s31, s28, {FMASK:#x}\nv_mov_b32 v14, s31\ns_mov_b32 s49, {~FMASK & 0xFFFFFFFF:#x}")
        DF = self.dfirst
        if self.tlb:
            a("s_cmp_lg_u32 s30, 2\ns_cbranch_scc1 L_no_tlb")
            if self.tlb == "i":
                a("s_cmp_lg_u32 s66, 0\ns_cbranch_scc1 L_no_tlb")
            a("s_mov_b32 s52, s44\ns_mov_b32 s53, s45\ns_mov_b32 s54, 0x400000\ns_mov_b32 s55, 0x00020000\nv_lshlrev_b32 v250, 20, v2\ns_mov_b64 exec, 0xff")
            a("buffer_load_dword v251, v250, s[12:15], 0 offen\nbuffer_load_dword v252, v250, s[52:55], 0 offen\nbuffer_load_dword v253, v250, s[24:27], 0 offen")
            a("s_mov_b64 exec, -1\nL_no_tlb:")
        a("s_cmp_lg_u32 s66, 0\ns_cbranch_scc1 L_tagged")
        self.arrive(C_E)
        a("L_tagged:")
        XA, BF, GA = 20, 36, 132
        order = [(ks, t) for ks in range(4) for t in range(4)]

        def b_reads(n0, n1):
            for n in range(n0, n1):
                ks, t = order[n]
                if n - n0 >= 7:
                    a("s_waitcnt lgkmcnt(12)")
                for v in range(2):
                    a(f"ds_read_b64_tr_b16 v[{BF + 4 * n + 2 * v}:{BF + 4 * n + 2 * v + 1}], v{9 + t % 2} offset:{32768 * (t // 2) + 8192 * ks + 1024 * v}")

        a("s_cmp_eq_u32 s30, 3\ns_cbranch_scc1 L_h1")
        a("s_cmp_eq_u32 s66, 0\ns_cbranch_scc1 L_key")
        a("s_cmp_lg_u32 s30, 0\ns_cbranch_scc1 L_follower")
        a("s_waitcnt vmcnt(16)")
        self.arrive(C_DMA)
        b_reads(0, 12)
        a("s_waitcnt vmcnt(8)")
        self.arrive(C_DMA)
        self.stamp(10)
        a("s_branch L_d_first" if self.dall else "s_branch L_key")
        a("L_follower:")
        if self.touch == "s":
            a("v_readfirstlane_b32 s52, v13\ns_and_b32 s32, s30, 1\ns_lshl_b32 s32, s32, 8\ns_sub_u32 s52, s52, s32")
            a(f"s_lshl_b32 s31, s50, 12\ns_sub_u32 s31, s31, s32\ns_lshl_b32 s32, s51, 8\ns_add_u32 s31, s31, s32\ns_add_u32 s53, s31, {YP}")
            for k in range(8):
                a("s_load_dword s54, s[12:13], s52\ns_load_dword s54, s[12:13], s53")
                if k < 7:
                    a("s_add_u32 s52, s52, 64\ns_add_u32 s53, s53, 64")
                if k == 3:
                    a("s_waitcnt lgkmcnt(0)")
        elif self.touch:
            a(f"s_and_b32 s32, s30, 1\ns_lshl_b32 s32, s32, 8\nv_subrev_u32 v250, s32, v13\nbuffer_load_dword v251, v250, s[12:15], 0 offen")
            a(f"s_lshl_b32 s31, s50, 12\ns_sub_u32 s31, s31, s32\ns_lshl_b32 s32, s51, 8\ns_add_u32 s31, s31, s32\ns_add_u32 s31, s31, {YP}\nv_lshl_add_u32 v250, v2, 3, s31")
            a("buffer_load_dword v252, v250, s[12:15], 0 offen")
        self.wait(C_DMA, 1)
        b_reads(0, 12)
        a(f"s_add_u32 s67, s30, {self.dlag}")
        self.wait(C_DMA, "s67")
        a("L_d_first:")
        self.release(self.drel)
        d_loads(0, DF)
        a("L_key:")

        def a_reads():
            for ks in range(4):
                a(f"ds_read_b128 v[{XA + 4 * ks}:{XA + 4 * ks + 3}], v8 offset:{M_XS + 64 * ks}")

        def key_and_a():
            a(f"ds_read_b64 v[18:19], v0 offset:{L_KEY}")
            a_reads()

        a("s_waitcnt lgkmcnt(0)")
        self.wait_then(C_S2, 1, key_and_a, 5)
        a("s_cmp_eq_u32 s66, 0\ns_cbranch_scc1 L_idle")
        a("s_branch L_xs_ok")
        a("L_h1:")
        a(f"s_mov_b32 s63, {GRAN}\ns_lshl_b32 s31, s47, 8\nv_lshlrev_b32 v15, 3, v2\nv_add_u32 v16, s31, v15")
        a("s_cmp_lg_u32 s66, 0\ns_cbranch_scc1 L_gate")
        self.wait(C_ST3, 4)
        a("s_branch L_gate_open")
        a("L_gate:")
        self.wait(*self.gate)
        a("L_gate_open:")
        self.stamp(7)
        self.gran_issue(20)
        self.arrive(C_S0)
        a("s_waitcnt vmcnt(0)")
        self.stamp(8)
        self.gran_resolve("mi", 20, 18)
        a("s_andn2_b32 s31, 0x7ff, s33\ns_lshl_b32 s48, s31, 11")
        a("buffer_load_dwordx2 v[150:151], v16, s[8:11], s48 offen")
        self.arrive(C_S1)
        self.stamp(9)
        self.gran_stats(20, 18)
        a(f"v_mov_b32 v19, s33\nv_mov_b32 v18, s34\nds_write_b64 v0, v[18:19] offset:{L_KEY}")
        a("s_lshl_b32 s52, s34, 16\ns_and_b32 s32, s34, 0xffff0000\nv_rcp_f32 v148, s32")
        a("s_waitcnt vmcnt(0)")
        un = "v_lshlrev_b32 v20, 16, v150\nv_and_b32 v21, 0xffff0000, v150\nv_lshlrev_b32 v22, 16, v151\nv_and_b32 v23, 0xffff0000, v151"
        pk = "v_cvt_pk_bf16_f32 v150, v20, v21\nv_cvt_pk_bf16_f32 v151, v22, v23"
        a(un)
        for p in (20, 22):
            a(f"v_pk_add_f32 v[{p}:{p + 1}], v[{p}:{p + 1}], s[52:53] op_sel_hi:[1,0] neg_lo:[0,1] neg_hi:[0,1]")
        a(pk)
        a(un)
        for p in (20, 22):
            a(f"v_pk_mul_f32 v[{p}:{p + 1}], v[{p}:{p + 1}], v[148:149] op_sel_hi:[1,0]")
        a(pk)
        a(f"ds_write_b64 v15, v[150:151] offset:{M_XS}")
        self.arrive(C_S2)
        a("s_cmp_eq_u32 s66, 0\ns_cbranch_scc1 L_idle")
        self.wait(C_DMA, 1)
        b_reads(0, 12)
        if self.dall:
            d_loads(0, DF)
        a("s_waitcnt lgkmcnt(8)")
        a_reads()
        a("L_xs_ok:")
        self.stamp(2)
        for n, (ks, t) in enumerate(order[:12]):
            if t == 0:
                a(f"s_waitcnt lgkmcnt({3 - ks})")
            self.mfma("bf16", GA + 4 * t, XA + 4 * ks, BF + 4 * n, None if ks == 0 else GA + 4 * t)
        a("s_cmp_lg_u32 s30, 0\ns_cbranch_scc1 L_k3_wait")
        a(f"s_waitcnt vmcnt({DF if self.dall else 0})")
        self.arrive(C_DMA)
        self.stamp(1)
        a("L_k3_wait:")
        self.wait_then(C_DMA, 3, lambda: b_reads(12, 16), 8)
        a("v_readfirstlane_b32 s33, v19\nv_readfirstlane_b32 s34, v18")
        for n in range(12, 16):
            a(f"s_waitcnt lgkmcnt({2 * (15 - n)})")
            self.mfma("bf16", GA + 4 * (n % 4), XA + 12, BF + 4 * n, GA + 4 * (n % 4))
        a("s_mov_b32 vcc_lo, 0xffff0000\ns_mov_b32 vcc_hi, 0")
        a(f"s_lshl_b32 s31, s50, 12\ns_lshl_b32 s32, s30, 7\ns_add_u32 s31, s31, s32\ns_add_u32 s31, s31, {HP}")
        a("v_lshrrev_b32 v15, 3, v2\nv_lshlrev_b32 v15, 9, v15\nv_add3_u32 v15, v15, v7, s31")
        a(f"v_cndmask_b32 v26, v{GA}, v{GA + 4}, vcc\nv_cndmask_b32 v27, v{GA + 8}, v{GA + 12}, vcc")
        a("v_and_or_b32 v26, v26, s49, v14\nv_and_or_b32 v27, v27, s49, v14")
        a("s_mov_b32 exec_hi, 0")
        a(f"buffer_store_dwordx2 v[26:27], v13, s[12:15], 0 offen {'' if self.local else 'sc1'}")
        a("s_mov_b64 exec, -1")
        if not self.dall:
            a("s_sub_u32 s31, s30, 1\ns_cmp_lt_u32 s31, 2\ns_cbranch_scc1 L_d_rest")
            d_loads(0, DF)
            a("L_d_rest:")
        d_loads(DF, 8)
        self.arrive(C_HP)
        self.hint_store("hp")
        self.stamp(3)
        pair = {}
        free = [98]
        a("s_mov_b32 s52, 0x05040100\ns_mov_b32 s53, 0x07060302")
        YA = 36
        for i in range(8):
            a(f"v_mov_b32 v{YA + i}, 0")
        a("v_and_b32 v16, 7, v2\nv_lshlrev_b32 v16, 2, v16\nv_lshrrev_b32 v17, 5, v2\nv_lshl_add_u32 v16, v17, 1, v16\ns_lshl_b32 s31, s30, 5\nv_add_u32 v16, s31, v16")
        a("v_lshrrev_b32 v17, 3, v2\nv_lshlrev_b32 v17, 4, v17")
        a(f"s_lshl_b32 s31, s50, 12\ns_lshl_b32 s32, s51, 8\ns_add_u32 s31, s31, s32\ns_add_u32 s31, s31, {YP}")
        a("v_lshlrev_b32 v18, 1, v7\nv_lshrrev_b32 v19, 4, v2\nv_lshl_add_u32 v18, v19, 3, v18\nv_add_u32 v18, s31, v18")
        if self.pack:
            if self.dall:
                a(f"s_waitcnt vmcnt({8 - DF})")
            else:
                a(f"s_waitcnt vmcnt(8)\ns_sub_u32 s31, s30, 1\ns_cmp_ge_u32 s31, 2\ns_cbranch_scc1 L_acked\ns_waitcnt vmcnt({8 - DF})\nL_acked:")
            a("buffer_load_dwordx4 v[20:23], v15, s[12:15], 0 offen sc1")
            self.arrive(C_YG)
        for j in range(0, 8, 2):
            if j == self.hpearly:
                a("buffer_load_dwordx4 v[20:23], v15, s[12:15], 0 offen sc1")
            a(f"s_waitcnt vmcnt({6 - j + (1 if self.dall and j + 2 <= DF else 0) + (1 if j >= self.hpearly or self.pack else 0)})")
            for d in range(4):
                r0, r1 = WD + 4 * j + d, WD + 4 * j + 4 + d
                t = free.pop()
                a(f"v_perm_b32 v{t}, v{r1}, v{r0}, s52\nv_perm_b32 v{r1}, v{r1}, v{r0}, s53")
                pair[(j // 2, 2 * d)] = t
                pair[(j // 2, 2 * d + 1)] = r1
                free.append(r0)
        self.hint_store("d")
        self.stamp(4)
        a("s_mov_b32 s54, 0")

        def fallback_store():
            a("s_mov_b32 exec_hi, 0\nbuffer_store_dwordx2 v[26:27], v13, s[12:15], 0 offen sc1\ns_mov_b32 exec_hi, -1")

        self.sleep(self.hs[0])
        if self.hpearly < 8 or self.pack:
            a("s_branch L_hp_wait")
        elif self.psig:
            a("buffer_load_dwordx4 v[20:23], v15, s[12:15], 0 offen sc1")
            self.arrive(C_YG)
            a("s_branch L_hp_wait")
        a("L_hp_poll:")
        a("buffer_load_dwordx4 v[20:23], v15, s[12:15], 0 offen sc1")
        a("L_hp_wait:")
        a("s_waitcnt vmcnt(0)")
        for i in range(4):
            a(f"v_xor_b32 v{20 + i}, v14, v{20 + i}")
        a(f"v_or3_b32 v24, v20, v21, v22\nv_or_b32 v24, v24, v23\nv_and_b32 v24, {FMASK:#x}, v24\nv_cmp_ne_u32 vcc, 0, v24")
        a("v_permlane16_swap_b32 v20, v21\nv_permlane16_swap_b32 v22, v23")
        a("s_cbranch_vccz L_hp_got")
        self.spin_guard("L_hp_got", self.hs[1])
        if self.local:
            a(f"s_add_u32 s54, s54, 1\ns_cmp_lg_u32 s54, {self.local}\ns_cbranch_scc1 L_hp_poll")
            fallback_store()
        a("s_branch L_hp_poll")
        a("L_hp_got:")
        self.stamp(5)
        a("v_add_f32 v20, v20, v21\nv_add_f32 v22, v22, v23\nv_permlane32_swap_b32 v20, v22\nv_add_f32 v20, v20, v22")
        a("v_add_f32_dpp v21, v20, v20 row_ror:8 row_mask:0xf bank_mask:0xf\nv_add_f32_dpp v20, v20, v20 row_ror:8 row_mask:0xf bank_mask:0xf")
        a("v_permlane16_swap_b32 v20, v21\nv_cvt_pk_bf16_f32 v20, v20, v21\nv_and_b32 v21, 0xffff0000, v20\nv_lshlrev_b32 v20, 16, v20")
        a("v_mul_f32 v22, 0xbfb8aa3b, v20\nv_exp_f32 v22, v22\nv_add_f32 v22, 1.0, v22\nv_rcp_f32 v22, v22\nv_mul_f32 v20, v20, v22")
        a("v_cvt_pk_bf16_f32 v20, v20, v20\nv_lshlrev_b32 v20, 16, v20\nv_mul_f32 v20, v20, v21\nv_cvt_pk_bf16_f32 v20, v20, v20")
        a(f"ds_write_b16 v16, v20 offset:{M_HS}")
        self.arrive(C_H)
        self.wait_then(C_H, 4, lambda: a(f"ds_read_b128 v[28:31], v17 offset:{M_HS}"), 1)
        a("s_waitcnt lgkmcnt(0)")
        for p in range(4):
            for c in range(8):
                a(f"v_dot2c_f32_bf16 v{YA + c}, v{28 + p}, v{pair[(p, c)]}")
        for c in range(4):
            a(f"v_permlane32_swap_b32 v{YA + c}, v{YA + c + 4}")
        for c in range(4):
            a(f"v_add_f32 v{YA + c}, v{YA + c}, v{YA + c + 4}")
        for c in range(2):
            a(f"v_permlane16_swap_b32 v{YA + c}, v{YA + c + 2}")
        for c in range(2):
            a(f"v_add_f32 v{YA + c}, v{YA + c}, v{YA + c + 2}")
        for c in range(2):
            a(f"v_add_f32_dpp v{YA + c}, v{YA + c}, v{YA + c} row_ror:8 row_mask:0xf bank_mask:0xf")
        a(f"v_and_or_b32 v{YA}, v{YA}, s49, v14\nv_and_or_b32 v{YA + 1}, v{YA + 1}, s49, v14")
        a("s_mov_b32 exec_lo, 0x00ff00ff\ns_mov_b32 exec_hi, 0x00ff00ff")
        a(f"buffer_store_dwordx2 v[{YA}:{YA + 1}], v18, s[12:15], 0 offen sc1")
        self.arrive(C_Y)
        if self.local:
            fallback_store()
        self.stamp(6)
        a("s_branch L_owner")
        a("L_idle:")
        for c in (C_DMA, C_HP, C_H, C_Y) + ((C_YG,) if self.psig else ()):
            if c == C_HP:
                self.sleep(self.idelay)
                if self.hint is not None and self.diag != "nomoe":
                    a(f"s_and_b32 s52, s2, 31\ns_lshl_b32 s52, s52, 7\ns_add_u32 s52, s52, {HINT}")
                    a("L_hint:\ns_load_dwordx2 s[54:55], s[12:13], s52 glc\ns_waitcnt lgkmcnt(0)\ns_cmp_eq_u64 s[54:55], s[28:29]\ns_cbranch_scc1 L_hint_ok")
                    self.spin_guard("L_hint_ok", 4)
                    a("s_branch L_hint\nL_hint_ok:")
            self.arrive(c)
        a("s_waitcnt lgkmcnt(0)\nv_readfirstlane_b32 s33, v19\nv_readfirstlane_b32 s34, v18")
        self.sleep(self.isleep)
        a("L_owner:")
        if self.diag or self.cheat & 8:
            a("s_branch L_fin")
        YL, YC = 20, 28
        self.tile_decode()
        a("s_lshl_b32 s53, s53, 3\ns_add_u32 s53, s53, s46\ns_andn2_b32 s51, 0x7ff, s33\ns_mov_b32 s54, s51\ns_mov_b32 s55, 0\ns_mov_b32 s56, 0")
        a("s_mov_b32 s16, s44\ns_mov_b32 s17, s45\ns_mov_b32 s18, 0x400000\nv_and_b32 v8, 31, v2\nv_lshlrev_b32 v15, 2, v8\nv_lshlrev_b32 v8, 1, v8\nv_mov_b32 v16, 0")
        a("L_seg:")
        if self.eo:
            a("s_xor_b32 s31, s54, s53\ns_and_b32 s31, s31, 0x87\ns_cbranch_scc1 L_seg_next")
        else:
            a("s_xor_b32 s31, s54, s53\ns_and_b32 s31, s31, 0x487\ns_cbranch_scc0 L_seg_own\ns_cmpk_lg_u32 s31, 0x480\ns_cbranch_scc1 L_seg_next")
            a("L_seg_own:")
        a("s_lshl_b32 s31, s51, 11\ns_lshl_b32 s32, s47, 6\ns_add_u32 s63, s31, s32")
        a("buffer_load_ushort v9, v8, s[8:11], s63 offen")
        a(f"v_lshrrev_b32 v4, 3, v2\ns_lshl_b32 s31, s30, 4\nv_add_u32 v4, s31, v4\nv_lshlrev_b32 v4, 12, v4")
        a(f"s_lshl_b32 s31, s47, 7\ns_add_u32 s31, s31, {YP}\nv_add3_u32 v4, v4, v7, s31\ns_mov_b32 s62, 32768")
        for i in range(4):
            a(f"v_mov_b32 v{YL + 4 + i}, v14")
        a("v_lshrrev_b32 v5, 4, v2\nv_lshl_add_u32 v6, v5, 2, v7\ns_lshl_b32 s31, s30, 7\ns_add_u32 s31, s31, s55\nv_add_u32 v6, s31, v6")
        a("s_ashr_i32 s31, s33, 31\ns_orn2_b32 s31, 0x80000000, s31\ns_xor_b32 s31, s31, s33\ns_and_b32 s31, s31, 0xfffff800")
        a("v_cvt_pk_bf16_f32 v11, s31, s31\nv_lshlrev_b32 v11, 16, v11\nv_mul_f32 v11, 0xbfb8aa3b, v11\nv_exp_f32 v11, v11\ns_and_b32 s32, s34, 0xffff0000\nv_add_f32 v11, 1.0, v11\nv_rcp_f32 v11, v11")
        a("v_rcp_f32 v12, s32\nv_cvt_pk_bf16_f32 v11, v11, v11\nv_lshlrev_b32 v11, 16, v11\ns_lshl_b32 s31, s34, 16")
        if self.ywait:
            a("s_waitcnt vmcnt(0)")
        a("v_lshl_add_u32 v13, v8, 1, s55\ns_mov_b64 vcc, -1\ns_mov_b32 s56, 1")
        if self.ygate and not self.cheat & 4:
            self.wait(*self.ygate)
        self.sleep(self.ys[0])
        self.stamp(11)
        if self.stamps:
            a(f"s_mov_b32 s35, {SPIN}")
        a("L_y_poll:")
        self.stamp(12)
        a("s_mov_b64 exec, vcc")
        a(f"buffer_load_dwordx4 v[{YL}:{YL + 3}], v4, s[12:15], 0 offen sc1")
        a("s_cmp_eq_u32 s30, 3\ns_cbranch_scc1 L_y_one")
        a(f"buffer_load_dwordx4 v[{YL + 4}:{YL + 7}], v4, s[12:15], s62 offen sc1")
        a("L_y_one:\ns_mov_b64 exec, -1\ns_waitcnt vmcnt(0)")
        for i in range(8):
            a(f"v_xor_b32 v{YC + i}, v14, v{YL + i}")
        a(f"v_or3_b32 v1, v{YC}, v{YC + 1}, v{YC + 2}\nv_or3_b32 v1, v1, v{YC + 3}, v{YC + 4}\nv_or3_b32 v1, v1, v{YC + 5}, v{YC + 6}\nv_or_b32 v1, v1, v{YC + 7}")
        a(f"v_and_b32 v1, {FMASK:#x}, v1\nv_cmp_ne_u32 vcc, 0, v1")
        for p in (0, 2):
            a(f"v_pk_add_f32 v[{YC + p}:{YC + p + 1}], v[{YC + p}:{YC + p + 1}], v[{YC + 4 + p}:{YC + 5 + p}]")
        a("s_cbranch_vccz L_y_got")
        self.spin_guard("L_y_got", self.ys[1])
        a("s_branch L_y_poll")
        a("L_y_got:")
        if self.hold:
            self.arrive(C_YG)
        a(f"v_permlane16_swap_b32 v{YC}, v{YC + 1}\nv_permlane16_swap_b32 v{YC + 2}, v{YC + 3}")
        a(f"v_add_f32 v{YC}, v{YC}, v{YC + 1}\nv_add_f32 v{YC + 2}, v{YC + 2}, v{YC + 3}")
        a(f"v_permlane32_swap_b32 v{YC}, v{YC + 2}\nv_add_f32 v{YC}, v{YC}, v{YC + 2}")
        a(f"v_add_f32_dpp v{YC}, v{YC}, v{YC} row_ror:8 row_mask:0xf bank_mask:0xf")
        a(f"ds_write_b32 v6, v{YC} offset:{L_YS}")
        a(f"s_mov_b64 exec, 1\nds_add_u32 v16, v255 offset:{L_CNT + 4 * C_ROW}\ns_mov_b64 exec, -1")
        self.stamp(13)
        a("s_cmp_lg_u32 s30, 0\ns_cbranch_scc1 L_seg_next")
        a(f"s_cmp_eq_u32 s47, 0\ns_cselect_b32 s32, {EPOCH}, {OOB}\nv_mov_b32 v5, {OOB}\nv_writelane_b32 v5, s32, 0\nv_mov_b32 v18, s28\nv_mov_b32 v19, s29")
        a("s_lshl_b32 s31, s34, 16\nv_lshlrev_b32 v9, 16, v9\nv_subrev_f32 v10, s31, v9\nv_cvt_pk_bf16_f32 v10, v10, v10\nv_lshlrev_b32 v10, 16, v10\nv_mul_f32 v10, v10, v12")
        a("v_cvt_pk_bf16_f32 v10, v10, v10\nv_lshlrev_b32 v10, 16, v10")

        def row_reads():
            for j in range(4):
                a(f"ds_read_b32 v{YL + j}, v13 offset:{L_YS + 128 * j}")
            a(f"ds_read_b32 v{YL + 4}, v15 offset:{L_ROW}")

        self.wait_then(C_ROW, 4 if self.cheat & 4 else 5, row_reads, 5, "v16")
        a("s_waitcnt lgkmcnt(0)")
        y = YL
        a(f"v_add_f32 v{y}, v{y}, v{y + 1}\nv_add_f32 v{y + 2}, v{y + 2}, v{y + 3}\nv_add_f32 v{y}, v{y}, v{y + 2}")
        a(f"v_cvt_pk_bf16_f32 v{y}, v{y}, v{y}\nv_lshlrev_b32 v{y}, 16, v{y}\nv_mul_f32 v{y}, v{y}, v11")
        a(f"v_cvt_pk_bf16_f32 v{y}, v{y}, v{y}\nv_lshlrev_b32 v{y}, 16, v{y}\nv_add_f32 v{y}, v{y}, v10")
        a(f"v_cvt_pk_bf16_f32 v{y}, v{y}, v{y}\nv_lshlrev_b32 v{y}, 16, v{y}\nv_mul_f32 v1, 0xbfb8aa3b, v{y}")
        a(f"v_mul_f32 v{y}, v1, v{YL + 4}\nv_exp_f32 v1, v1\nv_add_f32 v1, 1.0, v1\nv_rcp_f32 v1, v1")
        a(f"s_mov_b32 exec_hi, 0\nv_fma_f32 v{y}, v{y}, v1, v9\nv_cvt_pk_bf16_f32 v{y}, v{y}, v{y}")
        a(f"buffer_store_short v{y}, v8, s[16:19], s63 offen {self.oflag}")
        a("buffer_store_dwordx2 v[18:19], v5, s[12:15], 0 offen sc1")
        a("s_mov_b64 exec, -1")
        self.stamp(14)
        a("L_seg_next:")
        a("s_cmp_lg_u32 s55, 0\ns_cbranch_scc1 L_seg_end")
        a(f"s_mov_b32 s55, 512\ns_sub_u32 s54, 0, s51\ns_sub_u32 s47, 31, s47\nv_mov_b32 v16, {4 * (C_ROW1 - C_ROW)}")
        a("v_and_b32 v15, 24, v2\nv_xor_b32 v15, 24, v15\nv_sub_u32 v1, 0, v2\nv_and_b32 v1, 7, v1\nv_add_u32 v15, v15, v1\nv_lshlrev_b32 v15, 2, v15\nv_add_u32 v15, 128, v15")
        a("s_branch L_seg")
        a("L_seg_end:")
        if self.hold:
            a("s_cmp_lg_u32 s56, 0\ns_cbranch_scc1 L_fin")
            self.arrive(C_YG)

    def finish(self):
        a = self.a
        a("L_fin:")
        self.role = "all"
        if self.probe:
            if self.probe == ("all", 15):
                a("s_waitcnt vmcnt(0)")
                self.stamp(15)
            a("s_cmp_eq_u32 s68, 0\ns_cbranch_scc1 L_exit\ns_mov_b32 s35, 100000")
            a("L_probe:\ns_sleep 1\ns_memrealtime s[70:71]\ns_waitcnt lgkmcnt(0)\ns_sub_u32 s31, s70, s68\ns_cmp_ge_u32 s31, 4000\ns_cbranch_scc1 L_exit")
            a("s_cmp_eq_u32 s35, 0\ns_cbranch_scc1 L_exit\ns_sub_u32 s35, s35, 1\ns_branch L_probe")
        if self.stamps:
            a("s_waitcnt vmcnt(0)")
            self.stamp(15)
            if self.stamps is not True and ("cnt", 0) in self.stamps:
                a("v_writelane_b32 v211, s35, 10")
            a(f"v_writelane_b32 v211, s68, 0\ns_lshl_b32 s31, s2, 3\ns_add_u32 s31, s31, s3\ns_lshl_b32 s31, s31, 6\ns_add_u32 s31, s31, {STAMP}\nv_lshl_add_u32 v4, v2, 2, s31")
            a("s_mov_b64 exec, 0xffff\nbuffer_store_dword v211, v4, s[12:15], 0 offen")
        a("L_exit:")
        a("s_endpgm")
        a("L_code_end:")
        a.kernel_desc(NAME + "_kernel", 256, 92)
        a.add_launch(NAME + "_kernel", NWG, 64 * WAVES, LDS_BYTES)

    def build(self, path, verbose=False):
        self.prologue()
        self.dft()
        self.moe()
        self.finish()
        rep = []
        self.a.lines = hazard.fix(self.a.lines, rep)
        if verbose:
            for pad, s in rep:
                print("nop", pad, s)
        if self.align:
            self.a.lines = hazard.align_runs(self.a, self.align)
        self.a.write(path, HEADER)


GROUPS = {"dft": (slice(0, 256), slice(0, 4)), "load": (slice(0, 224), slice(4, 7)), "h1": (slice(0, 224), slice(7, 8)), "idle": (slice(224, 256), slice(4, 8))}

if __name__ == "__main__":
    kw = eval(sys.argv[2]) if len(sys.argv) > 2 else {}
    Gen(**kw).build(sys.argv[1], verbose=True)
```

```python
import struct
import sys

sys.path.insert(0, "tools")
from asmgen import Asm, NAME
import hazard

EPOCH = 0
GRAN = 0x1000
HINT = 0x3000
STAT = 0x8000
HP = 0x40000
YP = 0x80000
ZB = 0x200000
ZTS = 129 * 128
STAMP = 0x1000000
OOB = 0x7FFFFF00
WBYTES = 1024 * 3584 * 2
ZMASK = 0x00030003
FMASK = 0x000000FF

RS, QS = 2592, 640
MISC = 16 * RS
EX = MISC + 2560
L_ENT = MISC
L_KEY = MISC + 80
L_MEAN = MISC + 96
L_YS = MISC + 1536
L_ROW = MISC + 1024
L_RST = MISC + 1280
L_CNT = MISC + 1344
M_XS = MISC + 128
M_HS = MISC + 896
M_G = EX + 32768
M_U = M_G + 32768
L_XT = M_U + 32768
LDS_BYTES = L_XT + 16384
C_A, C_B, C_C, C_ST3, C_D, C_ROW, C_S1, C_S2, C_HP, C_H, C_Y, C_S0, C_ROW1, C_DMA, C_E = range(15)
C_YG = 15
SHD = 16640
REL = {"p1": (C_YG, 1), "p4": (C_YG, 4), "k2": (C_DMA, 1), "k3": (C_DMA, 3), "s0": (C_S0, 1), "s1": (C_S1, 1), "s2": (C_S2, 1), "hp": (C_HP, 4), "h": (C_H, 4), "y": (C_Y, 4)}

SPIN = 1 << 16
NWG = 256
WAVES = 8

HEADER = """; Fused kernel: LayerNorm, Re(2-D DFT) as a folded mixed-radix transform on MFMA, routed-token SwiGLU, gating.
; Waves 0..3 of a workgroup run the transform, waves 4..7 the routed-token path."""

SHR = ("row_shr:1", "row_shr:2", "row_shr:4", "row_shr:8")


def fbits(x):
    return struct.unpack("<I", struct.pack("<f", float(x)))[0]


class Gen:
    DEFAULTS = dict(stamps=False, probe=None, diag=None, wflag="nt", oflag="sc1", prefetch=True, prio=True, psleep=2, win=20, dfirst=5, dlag=0,
                    drel=None, gate=(C_C, 4), rel_zw="s1", rel_x0="s0", rel_x="hp", rel_zr=None, order="zxmawg", xearly=2, zwith=False,
                    nfpre=2, defer=False, near=True, dall=True, hpearly=8, tlb=(18, "OZD"), tmask=1, pre3=True, h1pre=2, win0=None, u64=False, dlds=True, pr={}, nap=0, tgate=0, dpf=None, w1=True, eo=True, pack=False, narrow=False, counted=True, align=9, bounded=True, hint=None, idelay=0, zflag="sc1", touch="s", isleep=0, ygate=None, ywait=True, hold=False, hs=(0, 0), ys=(0, 0), local=False, cheat=0, xb=0, xc=0)

    def __init__(self, **kw):
        self.a = Asm()
        self.role = "all"
        self.nsync = 0
        assert set(kw) <= set(self.DEFAULTS), set(kw) - set(self.DEFAULTS)
        self.__dict__.update(self.DEFAULTS)
        self.__dict__.update(kw)
        self.P = dict(dict(wait=0, dma=3, moe=3, moe2=3, own=1, stat=3, p1=3, mid=0, gate=2, tail=2), **self.pr)
        self.psig = bool({"p1", "p4"} & {self.rel_x, self.rel_zr})
        assert not (self.psig and self.hold)

    def arrive(self, c):
        self.a(f"s_mov_b64 exec, 1\nds_add_u32 v0, v255 offset:{L_CNT + 4 * c}\ns_mov_b64 exec, -1")

    def wait(self, c, n, nap=0):
        self.wait_then(c, n, None, 0, nap=nap)

    def wait_then(self, c, n, reads, count, addr="v0", nap=0):
        self.nsync += 1
        lb = f"L_sync{self.nsync}"
        self.a(f"s_branch {lb}a\n{lb}:\ns_waitcnt lgkmcnt(0)\n{lb}a:" if count > 7 else f"{lb}:")
        self.sleep(nap)
        self.a(f"ds_read_b32 v1, {addr} offset:{L_CNT + 4 * c}")
        if reads:
            reads()
        if self.bounded:
            self.a(f"s_add_u32 s92, s92, 1\ns_bitcmp1_b32 s92, 20\ns_cbranch_scc1 {lb}x")
        self.a(f"s_waitcnt lgkmcnt({count})\nv_readfirstlane_b32 s31, v1\ns_cmp_ge_u32 s31, {n}\ns_cbranch_scc0 {lb}\n{lb}x:")

    def sync(self, c, n=4):
        self.arrive(c)
        self.wait(c, n)

    def release(self, name):
        if name:
            self.wait(*REL[name])

    def stamp(self, i):
        if self.probe == (self.role, i):
            self.a("s_memrealtime s[68:69]\ns_waitcnt lgkmcnt(0)")
        if self.stamps and (self.stamps is True or i == 15 or (self.role, i) in self.stamps):
            self.a(f"s_memrealtime s[70:71]\ns_waitcnt lgkmcnt(0)\nv_writelane_b32 v211, s70, {i}")

    def fine(self, i):
        if self.diag == "fine" and i not in (2, 3, 4, 5):
            self.a(f"s_memtime s[{76 + 2 * i}:{77 + 2 * i}]")

    def spin_guard(self, out, sleep=None):
        self.a(f"s_cmp_eq_u32 s35, 0\ns_cbranch_scc1 {out}\ns_sub_u32 s35, s35, 1")
        self.sleep(self.psleep if sleep is None else sleep)

    def setprio(self, p):
        if self.prio:
            self.a(f"s_setprio {p}")

    def mfma(self, ty, d, A, B, c=None):
        c = "0" if c is None else f"v[{c}:{c + 3}]"
        self.a(f"v_mfma_f32_16x16x32_{ty} v[{d}:{d + 3}], v[{A}:{A + 3}], v[{B}:{B + 3}], {c}")

    def prologue(self):
        a = self.a
        a.begin(NAME + "_kernel")
        if self.stamps:
            a("s_memrealtime s[68:69]")
        if self.tgate:
            a("s_memrealtime s[90:91]")
        a(f"s_cmp_ge_u32 s2, {NWG}\ns_cbranch_scc1 L_exit")
        a("s_load_dwordx2 s[8:9], s[0:1], 0")
        a("s_load_dwordx4 s[36:39], s[0:1], 48")
        a("s_load_dwordx2 s[12:13], s[0:1], 96")
        if self.stamps:
            a("v_mov_b32 v211, 0")
        if self.probe:
            a("s_mov_b32 s68, 0")
            if self.probe == ("all", 0):
                a("s_memrealtime s[68:69]")
        if self.prefetch:
            a("s_getpc_b64 s[32:33]\nL_pc:\ns_bfe_u32 s31, s2, 0x30003\nv_subrev_u32 v3, 492, v0\nv_lshl_add_u32 v3, v3, 3, s31\nv_lshlrev_b32 v3, 7, v3")
            a("v_cmp_gt_u32 vcc, L_code_end-L_pc, v3\ns_and_saveexec_b64 s[46:47], vcc\ns_cbranch_execz L_nopf")
            a("global_load_dword v254, v3, s[32:33]")
            a("L_nopf:\ns_mov_b64 exec, -1")
        a("v_lshrrev_b32 v1, 6, v0\nv_and_b32 v2, 63, v0")
        a("v_readfirstlane_b32 s30, v1")
        a("s_mov_b32 s10, 0x400000\ns_mov_b32 s11, 0x00020000\ns_mov_b32 s14, 0x10000000\ns_mov_b32 s15, 0x00020000")
        a(f"s_mov_b32 s35, {SPIN}\ns_mov_b32 s92, 0\nv_lshlrev_b32 v3, 4, v2")
        a("v_mov_b32 v0, 0\nv_mov_b32 v255, 1\ns_mov_b32 s3, s30\ns_and_b32 s30, s30, 3")
        a("s_cmp_ge_u32 s3, 4\ns_cbranch_scc1 L_moe")

    def tag_from_epoch(self):
        self.a("s_add_u32 s28, s28, 0x7f4a7c15\ns_addc_u32 s29, s29, 0x9e3779b9")

    def gran_issue(self, g):
        for j in range(4):
            self.a(f"buffer_load_dwordx4 v[{g + 4 * j}:{g + 4 * j + 3}], v3, s[12:15], s63 offen offset:{1024 * j} sc1")

    def gran_resolve(self, name, g, k):
        a = self.a
        a(f"L_{name}_check:")
        for j in range(4):
            a(f"v_cmp_ne_u64 s[{52 + 2 * j}:{53 + 2 * j}], s[28:29], v[{g + 4 * j + 2}:{g + 4 * j + 3}]")
        a(f"v_max_u32 v{k}, v{g + 1}, v{g + 5}\nv_max3_u32 v{k}, v{k}, v{g + 9}, v{g + 13}")
        a("s_or_b64 s[64:65], s[52:53], s[54:55]\ns_or_b64 vcc, s[56:57], s[58:59]\ns_or_b64 s[64:65], s[64:65], vcc")
        a(f"s_cbranch_scc0 L_{name}_got")
        self.spin_guard(f"L_{name}_got")
        for j in range(4):
            a(f"s_mov_b64 exec, s[{52 + 2 * j}:{53 + 2 * j}]\ns_cbranch_execz L_{name}_skip{j}")
            a(f"buffer_load_dwordx4 v[{g + 4 * j}:{g + 4 * j + 3}], v3, s[12:15], s63 offen offset:{1024 * j} sc1")
            a(f"L_{name}_skip{j}:")
        a(f"s_mov_b64 exec, -1\ns_waitcnt vmcnt(0)\ns_branch L_{name}_check")
        a(f"L_{name}_got:")
        a(f"v_max_u32_dpp v{k + 1}, v{k}, v{k} row_ror:1 row_mask:0xf bank_mask:0xf")
        for d in ("row_ror:2", "row_ror:4", "row_ror:8"):
            a(f"v_max_u32_dpp v{k + 1}, v{k + 1}, v{k + 1} {d} row_mask:0xf bank_mask:0xf")
        a(f"v_readlane_b32 s33, v{k + 1}, 0\nv_readlane_b32 s31, v{k + 1}, 16\nv_readlane_b32 s32, v{k + 1}, 32\nv_readlane_b32 s34, v{k + 1}, 48")
        a("s_max_u32 s33, s33, s31\ns_max_u32 s32, s32, s34\ns_max_u32 s33, s33, s32")

    def gran_stats(self, g, k):
        a = self.a
        for j in (1, 2, 3):
            a(f"v_cmp_eq_u32 s[{50 + 2 * j}:{51 + 2 * j}], s33, v{g + 4 * j + 1}")
        a(f"v_cmp_eq_u32 vcc, s33, v{k}")
        a(f"v_cndmask_b32 v{k + 1}, v{g}, v{g + 4}, s[52:53]\nv_cndmask_b32 v{k + 1}, v{k + 1}, v{g + 8}, s[54:55]\nv_cndmask_b32 v{k + 1}, v{k + 1}, v{g + 12}, s[56:57]")
        a("s_ff1_i32_b64 s32, vcc")
        a(f"v_readlane_b32 s34, v{k + 1}, s32")

    def p2_matrix(self, MM, T0, T1, T2):
        a = self.a
        a(f"v_and_b32 v{T0}, 15, v2\nv_add_u32 v{T0}, s53, v{T0}\nv_cvt_f32_u32 v{T0}, v{T0}\nv_add_f32 v{T0}, 0.5, v{T0}\nv_mul_f32 v{T0}, 0x3b800000, v{T0}")
        a(f"v_and_b32 v{T1}, 32, v2\nv_bfe_u32 v{T2}, v2, 4, 1\nv_lshl_add_u32 v{T1}, v{T2}, 3, v{T1}\nv_cvt_f32_u32 v{T1}, v{T1}\nv_mul_f32 v{T1}, v{T1}, v{T0}")
        for p in range(2):
            for hf in range(2):
                for dw in range(4):
                    c0 = 64 * hf + 16 * (dw // 2) + 4 * (dw % 2) + p
                    dc, ds = MM + 4 * (2 * p + hf) + dw, MM + 16 + 4 * (2 * p + hf) + dw
                    a(f"v_fmamk_f32 v{dc}, v{T0}, {fbits(c0):#x}, v{T1}\nv_fmamk_f32 v{T2}, v{T0}, {fbits(c0 + 2):#x}, v{T1}")
                    a(f"v_sin_f32 v{ds}, v{dc}\nv_sin_f32 v{T2 + 1}, v{T2}\nv_cos_f32 v{dc}, v{dc}\nv_cos_f32 v{T2}, v{T2}")
                    a(f"v_cvt_pk_f16_f32 v{ds}, v{ds}, v{T2 + 1}\nv_cvt_pk_f16_f32 v{dc}, v{dc}, v{T2}")
        a(f"v_cmp_gt_u32 vcc, 16, v2\nv_and_b32 v{T2}, 1, v2\nv_lshlrev_b32 v{T2}, 15, v{T2}\nv_or_b32 v{T2}, 0x3c00, v{T2}\nv_and_b32 v{T0}, 0xffff0000, v{MM + 16}\nv_or_b32 v{T2}, v{T2}, v{T0}")
        a(f"v_cndmask_b32 v{MM + 16}, v{MM + 16}, v{T2}, vcc")

    def tile_decode(self, t1=46, tile=47, tau=53):
        if self.eo:
            self.a(f"s_and_b32 s31, s2, 7\ns_sub_u32 s32, 8, s31\ns_min_u32 s{t1}, s31, s32\ns_lshr_b32 s{tau}, s31, 2\ns_lshr_b32 s{tile}, s2, 3")
            self.a(f"s_and_b32 s32, s{tile}, 1\ns_and_b32 s31, s31, 3\ns_cselect_b32 s{tau}, s{tau}, s32\ns_cselect_b32 s31, 0, 1\ns_lshr_b32 s{tile}, s{tile}, s31\ns_lshl_b32 s{tau}, s{tau}, 4")
        else:
            self.a(f"s_and_b32 s31, s2, 7\ns_sub_u32 s32, 8, s31\ns_min_u32 s{t1}, s31, s32\ns_cmp_gt_u32 s31, 4\ns_cselect_b32 s31, 16, 0")
            self.a(f"s_lshr_b32 s{tile}, s2, 4\ns_add_u32 s{tile}, s{tile}, s31\ns_bfe_u32 s{tau}, s2, 0x10003\ns_lshl_b32 s{tau}, s{tau}, 7\ns_add_u32 s{tau}, s{tau}, s31")

    XS_, VTA, XR, VTC, VSA = (112, 113, 114, 115), 116, 117, 118, 119

    def out_addresses(self):
        a = self.a
        XS_, VTA, XR, VTC, VSA = self.XS_, self.VTA, self.XR, self.VTC, self.VSA
        self.tile_decode(76, 77, 78)
        a("s_lshl_b32 s31, s30, 5\ns_add_u32 s78, s78, s31\ns_lshl_b32 s78, s78, 3\ns_add_u32 s78, s78, s76")
        a("s_lshl_b32 s77, s77, 6\ns_sub_u32 s79, 1984, s77\ns_lshl_b32 s76, s76, 1\ns_add_u32 s76, s76, 2040")
        a(f"v_and_b32 v{VTA}, 15, v2\nv_lshl_add_u32 v{VTA}, v{VTA}, 3, s78")
        if self.eo:
            a(f"v_and_b32 v7, 32, v2\nv_lshl_add_u32 v7, v7, 5, v{VTA}")
        else:
            a(f"s_mov_b32 vcc_lo, 0\ns_mov_b32 vcc_hi, -1\nv_sub_u32 v7, s76, v{VTA}\nv_cndmask_b32 v7, v{VTA}, v7, vcc")
        a("s_mov_b32 vcc_lo, 0xffff0000\ns_mov_b32 vcc_hi, 0xffff0000\nv_sub_u32 v6, 0, v7\nv_cndmask_b32 v7, v7, v6, vcc")
        a(f"v_and_b32 v6, 7, v7\nv_and_b32 v1, 1024, v7\nv_lshl_add_u32 v6, v6, 11, v1\nv_and_b32 v1, 0xf8, v7\nv_lshl_add_u32 v6, v1, 2, v6")
        a(f"v_bfe_u32 v1, v7, 9, 1\nv_lshl_add_u32 v{VSA}, v1, 4, v6\nv_and_b32 v1, 256, v7\nv_cmp_ne_u32 s[88:89], 0, v1")
        if self.cheat & 2:
            a(f"v_and_b32 v{VSA}, 0x1f0, v3")
        d, vt = XS_, VTC
        a(f"v_lshrrev_b32 v{vt}, 2, v2\nv_lshl_add_u32 v{vt}, v{vt}, 3, s78\nv_lshlrev_b32 v1, 1, v2\nv_xor_b32 v1, v1, v3\nv_and_b32 v1, 48, v1")
        a(f"v_add_u32 v{d[2]}, 1024, v{vt}" if self.eo else f"v_sub_u32 v{d[2]}, s76, v{vt}")
        a(f"v_sub_u32 v{d[1]}, 0, v{vt}\nv_and_b32 v{d[1]}, 2047, v{d[1]}\nv_sub_u32 v{d[3]}, 2048, v{d[2]}")
        a(f"v_add_u32 v{d[0]}, s77, v1\nv_lshl_add_u32 v{d[2]}, v{d[2]}, 11, v{d[0]}\nv_lshl_add_u32 v{d[0]}, v{vt}, 11, v{d[0]}")
        a(f"v_xor_b32 v1, 48, v1\nv_add_u32 v1, s79, v1\nv_lshl_add_u32 v{d[1]}, v{d[1]}, 11, v1\nv_lshl_add_u32 v{d[3]}, v{d[3]}, 11, v1")
        a(f"s_lshl_b32 s76, s30, 12\ns_add_u32 s76, s76, {EX if self.dlds else L_XT}")
        a(f"v_and_b32 v1, 15, v2\nv_lshlrev_b32 v6, 6, v1\nv_lshlrev_b32 v1, 3, v2\nv_xor_b32 v1, v1, v2\nv_and_b32 v1, 48, v1\nv_add3_u32 v{XR}, v6, v1, s76")

    def x_loads(self, h0, h1):
        for h in range(h0, h1):
            self.a(f"s_add_u32 m0, s76, {1024 * h}")
            self.a(f"buffer_load_dwordx4 v{self.XS_[h]}, s[8:11], 0 offen lds")

    def park_move(self):
        new = dict(XS_=(4, 5, 249, 205), VTA=248, XR=208, VTC=7, VSA=6)
        for o, n in zip(self.XS_ + (self.VTA, self.XR, self.VTC, self.VSA), new["XS_"] + (new["VTA"], new["XR"], new["VTC"], new["VSA"])):
            self.a(f"v_mov_b32 v{n}, v{o}")
        self.__dict__.update(new)

    def hint_store(self, at):
        if self.hint != at:
            return
        a = self.a
        a("s_cmp_eq_u32 s30, 1\ns_cselect_b32 s31, s2, 0\ns_cmp_lt_u32 s31, 192\ns_cbranch_scc1 L_no_hint")
        a(f"s_and_b32 s31, s2, 31\ns_lshl_b32 s31, s31, 7\ns_add_u32 s31, s31, {HINT}\nv_mov_b32 v250, s28\nv_mov_b32 v251, s29\ns_mov_b64 exec, 1")
        a("buffer_store_dwordx2 v[250:251], v0, s[12:15], s31 offen sc1\ns_mov_b64 exec, -1")
        a("L_no_hint:")

    def sleep(self, n):
        while n > 0:
            self.a(f"s_sleep {min(n, 127)}")
            n -= 127

    def dft(self):
        a = self.a
        self.role = "dft"
        CV, M2, TW, M3, MM = 8, 16, 48, 80, 88
        RW, WR = 120, 152
        T = 160
        VPUB = 4

        a("s_and_b32 s31, s2, 7\ns_lshr_b32 s32, s2, 4\ns_sub_u32 s32, 15, s32\ns_lshl_b32 s32, s32, 3\ns_add_u32 s46, s32, s31\ns_bfe_u32 s47, s2, 0x10003")
        a("s_lshl_b32 s31, s47, 2\ns_add_u32 s51, s31, s30\ns_lshl_b32 s31, s51, 8\ns_add_u32 s52, s31, s46\ns_xor_b32 s54, s52, 1024")
        a("s_sub_u32 s53, 2048, s52\ns_add_u32 s31, s52, 128\ns_cmp_eq_u32 s46, 0\ns_cselect_b32 s53, s31, s53\ns_cselect_b32 s50, 1, 0\ns_xor_b32 s55, s53, 1024")
        for i in range(4):
            a(f"s_lshl_b32 s{56 + i}, s{52 + i}, 11")
        a("s_mov_b32 s22, 2048\ns_mov_b32 s23, 0x00020000")
        a(f"v_mov_b32 v1, 0\nv_and_b32 v6, 15, v2\nv_lshlrev_b32 v6, 2, v6\nds_write_b64 v0, v[0:1] offset:{L_ENT + 32}\nds_write_b32 v6, v0 offset:{L_CNT}")
        a("s_waitcnt lgkmcnt(0)")
        if self.diag == "start":
            a("s_memrealtime s[80:81]")
        a(f"s_load_dwordx2 s[28:29], s[12:13], {EPOCH}\ns_load_dwordx2 s[16:17], s[0:1], 80")
        for r in range(4):
            if r == 2:
                a("s_mov_b32 s20, s36\ns_mov_b32 s21, s37")
                a(f"buffer_load_dwordx4 v[{WR}:{WR + 3}], v3, s[20:23], 0 offen")
                a(f"buffer_load_dwordx4 v[{WR + 4}:{WR + 7}], v3, s[20:23], 0 offen offset:1024")
                if self.defer:
                    break
            a(f"buffer_load_dwordx4 v[{RW + 8 * r}:{RW + 8 * r + 3}], v3, s[8:11], s{56 + r} offen")
            a(f"buffer_load_dwordx4 v[{RW + 8 * r + 4}:{RW + 8 * r + 7}], v3, s[8:11], s{56 + r} offen offset:1024")
        if self.diag == "start":
            a("s_memrealtime s[82:83]")
        a("s_barrier")
        if self.near:
            a("s_branch L_dft_rest")
            self.moe_head()
            a("s_branch L_dma_done")
            a("L_dft_rest:")
            self.role = "dft"
        if self.diag == "start":
            a(f"s_memrealtime s[84:85]\ns_waitcnt vmcnt({2 if self.defer else 6})\ns_memrealtime s[86:87]\ns_waitcnt lgkmcnt(0)")
            for i in range(4):
                a(f"v_writelane_b32 v211, s{80 + 2 * i}, {1 + i}")
        a("s_mov_b32 s18, 0x400000\ns_mov_b32 s19, 0x00020000")
        VROW, VEN, VST, VLD, VLM, VTR, VEX, VSG = T + 40, T + 41, T + 42, T + 44, T + 45, T + 46, T + 47, T + 48
        a(f"s_sub_u32 s31, 2047, s52\ns_sub_u32 s32, 2047, s53\nv_mov_b32 v{VROW}, s31\nv_writelane_b32 v{VROW}, s32, 63")
        a(f"s_lshl_b32 s31, s30, 2\nv_mov_b32 v{VEN}, s31\ns_bfe_u32 s31, s53, 0x20008\ns_lshl_b32 s31, s31, 2\ns_add_u32 s31, s31, 16\nv_writelane_b32 v{VEN}, s31, 63")
        a(f"v_and_b32 v6, 32, v2\ns_lshl_b32 s31, s51, 2\nv_add_u32 v{VST + 1}, s31, v6\nv_lshrrev_b32 v{VST}, 1, v{VST + 1}")
        a(f"s_lshl_b32 s31, s2, 4\ns_add_u32 s31, s31, {GRAN}\nv_mov_b32 v{VPUB}, s31\nv_lshlrev_b32 v5, 3, v2")
        for t in range(2):
            a(f"s_and_b32 s31, s{52 + t}, 7\ns_lshl_b32 s31, s31, 11\ns_and_b32 s32, s{52 + t}, 1024\ns_add_u32 s31, s31, s32\ns_and_b32 s32, s{52 + t}, 0xf8\ns_lshl_b32 s32, s32, 2")
            a(f"s_add_u32 s31, s31, s32\ns_add_u32 s31, s31, {STAT}\nv_writelane_b32 v{VPUB}, s31, {2 * t}\ns_add_u32 s31, s31, 16\nv_writelane_b32 v{VPUB}, s31, {2 * t + 1}")
        a(f"s_mul_i32 s31, s51, {RS}\nv_and_b32 v{VLD}, 32, v2\nv_lshlrev_b32 v{VLD}, 2, v{VLD}\nv_add3_u32 v{VLD}, v{VLD}, v3, s31")
        a(f"s_lshl_b32 s32, s31, 1\ns_add_u32 s32, s32, {8 * RS + 63 * 16 + 128}\nv_sub_u32 v{VLM}, s32, v{VLD}")
        a(f"v_bfe_u32 v{VTR}, v2, 2, 2\nv_mul_u32_u24 v{VTR}, {RS}, v{VTR}\nv_lshrrev_b32 v6, 4, v2\nv_mul_u32_u24 v7, {QS}, v6\nv_add_u32 v{VTR}, v{VTR}, v7")
        a(f"v_and_b32 v7, 3, v2\nv_lshlrev_b32 v7, 3, v7\ns_lshl_b32 s31, s30, 7\nv_add3_u32 v{VTR}, v{VTR}, v7, s31")
        a(f"v_lshlrev_b32 v6, 12, v6\nv_and_b32 v7, 15, v2\nv_lshl_add_u32 v6, v7, 4, v6\ns_lshl_b32 s31, s30, 8\nv_add_u32 v{VEX}, s31, v6")
        a(f"v_bfe_i32 v{VSG}, v2, 4, 1\nv_and_b32 v{VSG}, 0x80008000, v{VSG}")

        T0, T1, T2 = T + 90, T + 91, T + 92
        a(f"s_cmp_eq_u32 s47, 0\ns_movk_i32 s48, 0x7403\ns_cselect_b32 s48, 0x7721, s48\nv_and_b32 v{T0}, 12, v2\nv_bfe_u32 v{T0}, s48, v{T0}, 4")
        a(f"v_lshrrev_b32 v{T1}, 4, v2\nv_bfe_u32 v{T2}, v2, 1, 1\nv_mul_u32_u24 v{T1}, v{T1}, v{T2}\nv_and_b32 v{T2}, 1, v2\nv_add_u32 v{T1}, v{T1}, v{T2}")
        a(f"v_cvt_f32_u32 v{T0}, v{T0}\nv_cvt_f32_u32 v{T1}, v{T1}\nv_mul_f32 v{T0}, 0x3e000000, v{T0}\nv_mul_f32 v{T1}, 0x3e800000, v{T1}")
        for j in range(8):
            a(f"v_cos_f32 v{CV + j}, v{T1}")
            if j < 7:
                a(f"v_add_f32 v{T1}, v{T1}, v{T0}")
        for j in range(8):
            a(f"v_mul_f32 v{CV + j}, 0xbf317218, v{CV + j}")
        BI = T + 52
        a(f"v_lshrrev_b32 v{T0}, 2, v2\nv_and_b32 v{T0}, 12, v{T0}\nv_and_b32 v{T1}, 15, v2\nv_lshlrev_b32 v{T1}, 2, v{T1}")
        a(f"v_cvt_f32_u32 v{T0}, v{T0}\nv_cvt_f32_u32 v{T1}, v{T1}\nv_mul_f32 v{BI}, 0x3c800000, v{T0}")
        a(f"s_lshl_b32 s31, s30, 2\ns_lshr_b32 s48, s48, s31\ns_and_b32 s48, s48, 15\ns_sub_u32 s31, s48, 4\ns_mul_i32 s31, s31, s46\nv_cvt_f32_i32 v{T2}, s31\nv_mul_f32 v{T2}, 0x3a000000, v{T2}")
        a(f"v_add_f32 v{BI + 1}, 0x3c800000, v{BI}\nv_add_f32 v{BI + 2}, 0x3d000000, v{BI}\nv_add_f32 v{BI + 3}, 0x3d400000, v{BI}")
        def consts(f0, f1):
            for f in range(f0, f1):
                for i in range(4):
                    re, im = M2 + 8 * f + i, M2 + 8 * f + 4 + i
                    tc, ts = TW + 8 * f + i, TW + 8 * f + 4 + i
                    a(f"v_mul_f32 v{T0}, v{BI + i}, v{T1}")
                    a(f"v_fmamk_f32 v{ts}, v{T0}, 0x3d800000, v{T2}")
                    a(f"v_sin_f32 v{im}, v{T0}\nv_cos_f32 v{T0}, v{T0}\nv_cos_f32 v{tc}, v{ts}\nv_sin_f32 v{ts}, v{ts}")
                    a(f"v_cvt_pk_f16_f32 v{re}, v{T0}, v{im}\nv_cvt_pk_f16_f32 v{im}, -v{im}, v{T0}")
                if f < 3:
                    a(f"v_add_f32 v{T1}, 1.0, v{T1}")

        VZ = T + 49

        def late_consts():
            consts(self.nfpre, 4)
            a("s_and_b32 s31, s46, 1\ns_lshl_b32 s31, s31, 6\ns_lshr_b32 s32, s46, 1\ns_add_u32 s49, s31, s32")
            a("s_bitcmp1_b32 s49, 2\ns_cselect_b64 vcc, -1, 0")
            for i in range(4):
                a(f"v_cndmask_b32 v{M3 + i}, v{M2 + i}, v{M2 + 4 + i}, vcc\nv_cndmask_b32 v{M3 + 4 + i}, v{M2 + 4 + i}, v{M2 + i}, vcc")
            a(f"s_bfe_u32 s31, s49, 0x10001\nv_and_b32 v6, 7, v2\nv_xor_b32 v6, s31, v6\nv_lshlrev_b32 v6, 4, v6")
            a(f"v_lshrrev_b32 v7, 4, v2\nv_lshlrev_b32 v7, 3, v7\nv_bfe_u32 v{VZ}, v2, 3, 1\nv_add_u32 v7, v7, v{VZ}\nv_mul_u32_u24 v7, {ZTS}, v7\nv_add_u32 v{VZ}, v6, v7")
            a(f"s_mul_i32 s31, s48, {32 * ZTS}\ns_lshl_b32 s32, s49, 7\ns_add_u32 s31, s31, s32\ns_add_u32 s60, s31, {ZB}")

        self.out_addresses()
        consts(0, self.nfpre)
        SS, QQ, DD, DC = T, T + 4, T + 8, T + 10
        PB, RST, MEAN, SH = T + 12, T + 16, T + 32, T + 56
        for r in range(11):
            a(f"v_mov_b32 v{T + r}, 0")
        if self.defer:
            a("s_mov_b32 s84, s58\ns_mov_b32 s85, s59")
        a("s_mov_b32 s57, 0x3f803f80\ns_mov_b32 s59, 0xffff\ns_brev_b32 s67, 1\ns_mov_b32 s66, 0\ns_brev_b32 s64, 1\ns_brev_b32 s65, 1")
        a(f"s_cmp_eq_u32 s47, 0\ns_movk_i32 s62, {-4 * RS}\ns_cselect_b32 s62, {4 * RS}, s62")
        a("s_waitcnt lgkmcnt(0)")
        self.tag_from_epoch()
        a(f"v_mov_b32 v{PB + 2}, s28\nv_mov_b32 v{PB + 3}, s29")
        a(f"s_cmp_lt_u32 s2, {0 if self.diag == 'nomoe' else 224}\ns_cbranch_scc1 L_epoch_ok")
        self.wait(C_E, 4)
        a("L_epoch_ok:")
        self.setprio(self.P["stat"])
        self.stamp(1)

        def sq(r):
            for i in range(8):
                x = RW + 8 * r + i
                a(f"v_dot2c_f32_bf16 v{SS + r}, s57, v{x}\nv_dot2c_f32_bf16 v{QQ + r}, v{x}, v{x}")

        def plain(r, off):
            a(f"ds_write_b128 v{VLD}, v[{RW + 8 * r}:{RW + 8 * r + 3}] offset:{off}\nds_write_b128 v{VLD}, v[{RW + 8 * r + 4}:{RW + 8 * r + 7}] offset:{off + 2 * QS}")

        def rotate(r):
            b = RW + 8 * r
            a(f"v_mov_b32_dpp v6, v{b} wave_rol:1 row_mask:0xf bank_mask:0xf\nv_mov_b32_dpp v7, v{b + 4} wave_rol:1 row_mask:0xf bank_mask:0xf")
            for half in range(2):
                for i in (1, 2, 3):
                    a(f"v_bfi_b32 v{SH + 4 * (1 - half) + i}, s59, v{b + 4 * half + 4 - i}, v{b + 4 * half + 3 - i}")
            a(f"v_cndmask_b32 v{SH + 4}, v6, v7, s[66:67]\nv_cndmask_b32 v{SH}, v7, v6, s[66:67]")
            a(f"v_bfi_b32 v{SH + 4}, s59, v{SH + 4}, v{b + 3}\nv_bfi_b32 v{SH}, s59, v{SH}, v{b + 7}")

        def second(r):
            a(f"s_cmp_lg_u32 s50, 0\ns_cbranch_scc1 L_plain{r}")
            a(f"ds_write_b128 v{VLM}, v[{SH}:{SH + 3}]\nds_write_b128 v{VLM}, v[{SH + 4}:{SH + 7}] offset:{2 * QS}\ns_branch L_second{r}")
            a(f"L_plain{r}:")
            plain(r, 8 * RS)
            a(f"L_second{r}:")

        def reduce(regs):
            for r in regs:
                a(f"v_permlane32_swap_b32 v{r}, v{r + 1}")
            for r in regs:
                a(f"v_add_f32 v{r}, v{r}, v{r + 1}")
            for d, m in [(d, 0xf) for d in SHR] + [("row_bcast:15", 0xa)]:
                for r in regs:
                    a(f"v_add_f32_dpp v{r}, v{r}, v{r} {d} row_mask:{m:#x} bank_mask:0xf")

        def tail(m_, q_, NM, st):
            a(f"v_mul_f32 v{m_}, 0x3a800000, v{m_}\nv_mul_f32 v{q_}, 0x3a800000, v{q_}")
            a(f"v_fma_f32 v{q_}, -v{m_}, v{m_}, v{q_}\nv_cvt_pk_bf16_f32 v{NM}, -v{m_}, -v{m_}\nv_max_f32 v{q_}, 0, v{q_}")
            a(f"v_cvt_pk_bf16_f32 v{q_}, v{q_}, v{q_}\nv_and_b32 v{q_}, 0xffff0000, v{q_}\nv_add_f32 v{q_}, 0x3727c5ac, v{q_}")
            a(f"v_cvt_pk_bf16_f32 v{q_}, v{q_}, v{q_}\nv_and_b32 v{q_}, 0xffff0000, v{q_}\nv_sqrt_f32 v{q_}, v{q_}\nv_and_b32 v{q_ + 1}, 0xffff0000, v{NM}")
            a(f"v_cvt_pk_bf16_f32 v{st}, v{m_}, v{q_}\nv_and_b32 v{q_}, 0xffff0000, v{st}\nv_rcp_f32 v{q_}, v{q_}")

        a(f"s_waitcnt vmcnt({4 if self.defer else 8})")
        if self.defer:
            for r in (2, 3):
                a(f"buffer_load_dwordx4 v[{RW + 8 * r}:{RW + 8 * r + 3}], v3, s[8:11], s{82 + r} offen")
                a(f"buffer_load_dwordx4 v[{RW + 8 * r + 4}:{RW + 8 * r + 7}], v3, s[8:11], s{82 + r} offen offset:1024")
        sq(0)
        a("s_waitcnt vmcnt(6)")
        sq(1)
        a("s_waitcnt vmcnt(4)")
        self.stamp(2)
        for i in range(8):
            a(f"v_dot2c_f32_bf16 v{DC}, s57, v{WR + i}")
        for i in range(8):
            a(f"v_dot2c_f32_bf16 v{DD}, v{WR + i}, v{RW + i}\nv_dot2c_f32_bf16 v{DD + 1}, v{WR + i}, v{RW + 8 + i}")
            if i == 3:
                a(f"v_mov_b32 v{DC + 1}, v{DC}")
        reduce((SS, QQ, DC, DD))
        t_, NM, st = DD, SS + 1, T + 88
        tail(SS, QQ, NM, st)
        a(f"v_fmac_f32 v{t_}, v{DC}, v{QQ + 1}\nv_mul_f32 v{t_}, v{t_}, v{QQ}")
        a(f"v_ashrrev_i32 v{DC}, 31, v{t_}\nv_or_b32 v{DC}, 0x80000000, v{DC}\nv_xor_b32 v{t_}, v{t_}, v{DC}")
        a(f"v_and_b32 v{t_}, 0xfffff800, v{t_}\nv_or_b32 v{st + 1}, v{VROW}, v{t_}")
        a("s_mov_b64 exec, s[64:65]")
        a(f"ds_write_b32 v{VEN}, v{st} offset:{L_ENT}\nds_max_u64 v0, v[{st}:{st + 1}] offset:{L_ENT + 32}")
        a(f"s_mov_b64 exec, 1\nds_add_rtn_u32 v1, v0, v255 offset:{L_CNT + 4 * C_A}\ns_mov_b64 exec, 31\nds_read_b64 v[{PB}:{PB + 1}], v5 offset:{L_ENT}")
        a("s_mov_b64 exec, s[64:65]")
        a(f"ds_write_b16 v{VST}, v{NM} offset:{L_MEAN}\nds_write_b32 v{VST + 1}, v{QQ} offset:{L_RST}")
        a("s_mov_b64 exec, -1")
        rotate(1)
        a("s_waitcnt lgkmcnt(2)\nv_readfirstlane_b32 s31, v1\ns_cmp_lg_u32 s31, 3\ns_cbranch_scc1 L_not_last")
        a(f"s_mov_b64 exec, 31\nbuffer_store_dwordx4 v[{PB}:{PB + 3}], v{VPUB}, s[12:15], 0 offen sc1\ns_mov_b64 exec, -1")
        self.stamp(3)
        a("s_waitcnt vmcnt(1)\ns_branch L_b_ready")
        a("L_not_last:")
        a("s_waitcnt vmcnt(0)")
        a("L_b_ready:")
        self.setprio(self.P["p1"])
        if self.diag == "pubonly":
            self.arrive(self.gate[0])
            self.arrive(C_ST3)
            a("s_branch L_fin")
        plain(0, 0)
        second(1)
        a(f"v_add_u32 v{VLD}, s62, v{VLD}\nv_add_u32 v{VLM}, s62, v{VLM}")
        sq(2)
        plain(2, 0)
        sq(3)
        a(f"v_xor_b32 v{VST}, 8, v{VST}\nv_xor_b32 v{VST + 1}, 16, v{VST + 1}\ns_waitcnt lgkmcnt(2)")
        rotate(3)
        second(3)
        reduce((SS + 2, QQ + 2))
        tail(SS + 2, QQ + 2, NM, st)
        a("s_mov_b64 exec, s[64:65]")
        a(f"ds_write_b16 v{VST}, v{NM} offset:{L_MEAN}\nds_write_b32 v{VST + 1}, v{QQ + 2} offset:{L_RST}")
        self.arrive(C_B)
        AD, AM, C0 = T, WR, T + 8

        def stat_reads():
            for k in range(4):
                a(f"ds_read_b128 v[{RST + 4 * k}:{RST + 4 * k + 3}], v0 offset:{L_RST + 16 * k}")
            a(f"ds_read_b128 v[{MEAN}:{MEAN + 3}], v0 offset:{L_MEAN}\nds_read_b128 v[{MEAN + 4}:{MEAN + 7}], v0 offset:{L_MEAN + 16}")

        self.wait_then(C_B, 4, stat_reads, 6)
        self.stamp(4)
        FR, DA, EE = RW, T + 56, RST

        def trd(blk):
            for m in range(2):
                for v in range(2):
                    d = FR + 8 * blk + 4 * m + 2 * v
                    a(f"ds_read_b64_tr_b16 v[{d}:{d + 1}], v{VTR} offset:{(8 * m + 4 * v) * RS + 32 * blk}")

        def cvt_ex(blk):
            for f in range(4):
                a(f"v_cvt_pk_f16_f32 v{EE + 4 * f + blk}, v{DA + 8 * blk + 2 * f}, v{DA + 8 * blk + 2 * f + 1}")

        def cvt_f(f, area):
            for blk in range(4):
                a(f"v_cvt_pk_f16_f32 v{EE + 4 * f + blk}, v{DA + 8 * blk + 2 * f}, v{DA + 8 * blk + 2 * f + 1}")
            a(f"ds_write_b128 v{VEX}, v[{EE + 4 * f}:{EE + 4 * f + 3}] offset:{EX + area + 1024 * f}")

        def write_ex(area):
            for f in range(4):
                a(f"ds_write_b128 v{VEX}, v[{EE + 4 * f}:{EE + 4 * f + 3}] offset:{EX + area + 1024 * f}")

        trd(0); trd(1)
        self.x_loads(0, self.xb)
        a("s_waitcnt lgkmcnt(10)")
        trd(2)
        for k in range(8):
            a(f"v_pk_mul_f32 v[{RST + 2 * k}:{RST + 2 * k + 1}], v[{RST + 2 * k}:{RST + 2 * k + 1}], v[{CV + 2 * (k % 4)}:{CV + 2 * (k % 4) + 1}]")
        for k in range(4):
            a(f"v_cvt_pk_bf16_f32 v{AD + k}, v{RST + 2 * k}, v{RST + 2 * k + 1}\nv_cvt_pk_bf16_f32 v{AM + k}, v{RST + 8 + 2 * k}, v{RST + 9 + 2 * k}")
        for k in range(4):
            a(f"v_xor_b32 v{AD + 4 + k}, v{VSG}, v{AD + k}\nv_xor_b32 v{AM + 4 + k}, v{VSG}, v{AM + k}")
        a("s_waitcnt lgkmcnt(12)")
        a("s_cmp_lg_u32 s50, 0\ns_cbranch_scc1 L_st1_split")
        self.mfma("bf16", C0, AD, MEAN)
        self.mfma("bf16", C0, AM, MEAN + 4, C0)
        for blk in range(4):
            d, fr = DA + 8 * blk, FR + 8 * blk
            a(f"s_waitcnt lgkmcnt({(10, 10, 6, 2)[blk]})")
            if blk == 0:
                trd(3)
            self.mfma("bf16", d, AD, fr, C0)
            a(f"s_waitcnt lgkmcnt({(12, 8, 4, 0)[blk]})")
            self.mfma("bf16", d, AM, fr + 4, d)
        for blk in range(4):
            d, fr = DA + 8 * blk, FR + 8 * blk
            self.mfma("bf16", d + 4, AD + 4, fr)
            self.mfma("bf16", d + 4, AM + 4, fr + 4, d + 4)
            if blk in (1, 2):
                cvt_f(blk - 1, 0)
        cvt_f(2, 0)
        cvt_f(3, 0)
        a("s_branch L_st1_done")
        a("L_st1_split:")
        a("s_waitcnt lgkmcnt(8)")
        trd(3)
        a("s_waitcnt lgkmcnt(0)")
        for A, o, area in ((AD, 0, 0), (AM, 4, 16384)):
            self.mfma("bf16", C0, A, MEAN + o)
            for blk in range(4):
                self.mfma("bf16", DA + 8 * blk + 4, A + 4, FR + 8 * blk + o)
                self.mfma("bf16", DA + 8 * blk, A, FR + 8 * blk + o, C0)
            if area:
                a("s_waitcnt lgkmcnt(0)")
            for blk in range(4):
                cvt_ex(blk)
            write_ex(area)
        a("L_st1_done:")
        self.x_loads(self.xb, self.xc)
        self.arrive(C_C)
        PP, UU, TT, ZZ, VTAG = RW, RW + 16, WR, T + 56, T + 50
        a(f"s_lshl_b32 s31, s30, 12\nv_add_u32 v5, s31, v3\ns_and_b32 s31, s28, {ZMASK:#x}\nv_mov_b32 v{VTAG}, s31\ns_mov_b32 s58, {~ZMASK & 0xFFFFFFFF:#x}")
        a("s_and_b32 s32, s48, 3\ns_cselect_b32 s72, -1, 0xff\ns_cselect_b32 s73, -1, 0\ns_mov_b32 s74, s48")
        a("s_mov_b64 s[60:61], 0\ns_mov_b64 s[62:63], 0")
        a(f"v_mov_b32 v{VZ}, {OOB}\ns_cmp_eq_u32 s48, 7\ns_cbranch_scc1 L_no_consts")
        late_consts()
        a("L_no_consts:")

        def ex_reads():
            for f in range(4):
                a(f"ds_read_b128 v[{PP + 4 * f}:{PP + 4 * f + 3}], v5 offset:{EX + 1024 * f}")

        a("L_st23:")
        self.wait_then(C_C, 4, ex_reads, 4)
        self.stamp(5)
        a("s_cmp_eq_u32 s48, 7\ns_cbranch_scc1 L_p1_done")
        for i in range(1, 4):
            a(f"s_add_u32 s{60 + i}, s{59 + i}, {2 * ZTS}")

        def st2(f):
            u = UU + 8 * (f % 2)
            a(f"s_waitcnt lgkmcnt({3 - f})")
            self.mfma("f16", u, PP + 4 * f, M2 + 8 * f)
            self.mfma("f16", u + 4, PP + 4 * f, M2 + 8 * f + 4)

        def tw(f):
            u = UU + 8 * (f % 2)
            tc, ts = TW + 8 * f, TW + 8 * f + 4
            for p in (0, 2):
                a(f"v_pk_mul_f32 v[{TT + p}:{TT + p + 1}], v[{tc + p}:{tc + p + 1}], v[{u + p}:{u + p + 1}]")
            for p in (0, 2):
                a(f"v_pk_mul_f32 v[{TT + 4 + p}:{TT + 5 + p}], v[{ts + p}:{ts + p + 1}], v[{u + p}:{u + p + 1}]")
            for p in (0, 2):
                a(f"v_pk_fma_f32 v[{TT + p}:{TT + p + 1}], v[{ts + p}:{ts + p + 1}], v[{u + 4 + p}:{u + 5 + p}], v[{TT + p}:{TT + p + 1}]")
                a(f"v_pk_fma_f32 v[{TT + 4 + p}:{TT + 5 + p}], v[{tc + p}:{tc + p + 1}], v[{u + 4 + p}:{u + 5 + p}], v[{TT + 4 + p}:{TT + 5 + p}] neg_lo:[0,0,1] neg_hi:[0,0,1]")
            for i in range(4):
                a(f"v_cvt_pk_f16_f32 v{PP + 4 * f + i}, v{TT + i}, v{TT + 4 + i}")

        def st3(f):
            self.mfma("f16", ZZ + 8 * f, M3, PP + 4 * f)
            self.mfma("f16", ZZ + 8 * f + 4, M3 + 4, PP + 4 * f)

        OO = T + 16

        def pack(lo):
            for i in range(4):
                o = OO + 4 * i + lo
                a(f"v_cvt_pk_f16_f32 v{o}, v{ZZ + 16 * lo + i}, v{ZZ + 16 * lo + 8 + i}\nv_cvt_pk_f16_f32 v{o + 2}, v{ZZ + 16 * lo + 4 + i}, v{ZZ + 16 * lo + 12 + i}")
                a(f"v_and_or_b32 v{o}, v{o}, s58, v{VTAG}\nv_and_or_b32 v{o + 2}, v{o + 2}, s58, v{VTAG}")

        def z_stores():
            for i in range(4):
                if i < 2:
                    a(f"s_mov_b32 exec_hi, s{72 + i}")
                a(f"buffer_store_dwordx4 v[{OO + 4 * i}:{OO + 4 * i + 3}], v{VZ}, s[12:15], s{60 + i} offen {self.zflag}")
            a("s_mov_b32 exec_hi, -1")

        st2(0); st2(1); tw(0); st2(2); st3(0); tw(1); st2(3); st3(1); tw(2); st3(2); tw(3); st3(3); pack(0); pack(1)
        a("s_cmp_eq_u32 s50, 0\ns_cbranch_scc1 L_p1_done")
        z_stores()
        a(f"s_mov_b32 s50, 0\ns_add_u32 s60, s60, 16384\nv_add_u32 v5, 16384, v5\ns_sub_u32 s31, s48, 4\nv_cvt_f32_i32 v{T2}, s31\nv_mul_f32 v{T2}, 0x3d800000, v{T2}")
        a(f"v_and_b32 v{T1}, 15, v2\nv_lshlrev_b32 v{T1}, 2, v{T1}\nv_cvt_f32_u32 v{T1}, v{T1}")
        for i in range(4):
            a(f"v_fma_f32 v{T0}, v{BI + i}, v{T1}, v{T2}\nv_sin_f32 v{M3 + 4 + i}, v{T0}\nv_cos_f32 v{T0}, v{T0}")
            a(f"v_cvt_pk_f16_f32 v{M3 + i}, v{T0}, v{M3 + 4 + i}\nv_cvt_pk_f16_f32 v{M3 + 4 + i}, -v{M3 + 4 + i}, v{T0}")
        a("s_branch L_st23")
        a("L_p1_done:")
        self.arrive(C_ST3)
        self.stamp(6)
        self.setprio(self.P["mid"])
        self.park_move()
        self.phase2(MM, VTAG, z_stores)

    def phase2(self, MM, VTAG, z_stores):
        a = self.a
        XP, SG, XF, GG = 8, 24, 40, 120
        AC, ZL, AF, GR = 216, 72, 152, 192
        ZN = 212
        XS_, VTA, XR, VTC, VSA = self.XS_, self.VTA, self.XR, self.VTC, self.VSA
        self.tile_decode()
        a(f"s_lshl_b32 s31, s30, 5\ns_add_u32 s53, s53, s31\ns_lshl_b32 s48, s46, 1\ns_add_u32 s48, s48, 2040\ns_mov_b32 s49, {STAT}")
        x_loads = self.x_loads

        def x_reads(h0, h1):
            for h in range(h0, h1):
                a(f"ds_read_b128 v[{XP + 4 * h}:{XP + 4 * h + 3}], v{XR} offset:{1024 * h}")
            a("s_waitcnt lgkmcnt(0)")

        XE = max(self.xearly, self.xc)

        ledger = []

        def younger(tag):
            return len(ledger) - 1 - max(i for i, t in enumerate(ledger) if t == tag)

        def step(op):
            if op == "x":
                self.release(self.rel_x0)
                a(f"buffer_load_dwordx4 v[{SG}:{SG + 3}], v6, s[12:15], s49 offen")
                x_loads(self.xc, XE)
                ledger.extend("x" * (1 + XE - self.xc))
            elif op == "z":
                if self.rel_zw:
                    a("s_cmp_ge_u32 s2, 224\ns_cbranch_scc1 L_zst_go")
                    self.release(self.rel_zw)
                    a("L_zst_go:")
                z_stores()
                ledger.extend("zzzz")
                self.stamp(7)
                if self.cheat & 4:
                    a("s_branch L_fin")
            elif op == "m":
                self.p2_matrix(MM, 160, 161, 162)
            elif op == "a":
                addresses()
            elif op == "w":
                stat_wait()
            elif op == "g":
                x_reads(0, XE)
                self.stamp(13)
                gate(0, XE)
                self.stamp(14)
            elif op == "y" and XE < 4:
                self.release(self.rel_x)
                x_loads(XE, 4)
                ledger.extend("y" * (4 - XE))
            elif op == "t":
                a(f"s_mov_b32 exec_lo, {self.tmask & 0xFFFFFFFF:#x}\ns_mov_b32 exec_hi, {self.tmask >> 32:#x}")
                for h in range(4):
                    a(f"buffer_load_dword v197, v{XS_[h]}, s[16:19], 0 offen")
                a("s_mov_b64 exec, -1")
                ledger.extend("tttt")
            elif op == "k":
                masks()
            elif op == "v" and XE < 4:
                a(f"s_waitcnt vmcnt({younger('y')})")
            elif op == "r":
                self.release(self.rel_zr)
                z_loads()
                ledger.extend("rrrrr")
            elif op == "h":
                self.setprio(self.P["gate"])
                x_reads(XE, 4)
                self.stamp(8)
                gate(XE, 4)

        def addresses():
            a(f"s_mul_i32 s51, s46, {32 * ZTS}\ns_add_u32 s51, s51, {ZB}\ns_mul_i32 s54, s47, {ZTS}\ns_lshl_b32 s32, s30, 12\ns_add_u32 s50, s51, s54\ns_add_u32 s50, s50, s32")
            a(f"s_add_u32 s55, s47, 1\ns_and_b32 s55, s55, 31\ns_mul_i32 s55, s55, {ZTS}\nv_add_u32 v250, s32, v3\nv_add_u32 v199, s76, v3")
            a(f"v_lshl_add_u32 v200, v2, 7, s32\nv_and_b32 v1, 2, v2\nv_lshl_add_u32 v200, v1, 3, v200\nv_and_b32 v1, 0x70, v3\nv_add_u32 v1, 16384, v1")
            a(f"s_mov_b32 vcc_lo, 0\ns_mov_b32 vcc_hi, -1\nv_cndmask_b32 v200, v200, v1, vcc\ns_mov_b32 vcc_hi, 0xff\nv_mov_b32 v1, s55\nv_mov_b32 v201, s54")
            a(f"v_cndmask_b32 v1, v1, v201, vcc\nv_mov_b32 v201, {SHD}\nv_cndmask_b32 v201, v201, v0, vcc\nv_add_u32 v201, v201, v200\nv_add_u32 v200, v1, v200")
            if self.cheat & 1:
                a("v_and_b32 v200, 0x70, v3\nv_add_u32 v200, s54, v200")
            a("v_lshrrev_b32 v251, 5, v2\nv_lshlrev_b32 v251, 11, v251\nv_bfe_u32 v1, v2, 2, 3\nv_lshl_add_u32 v251, v1, 7, v251")
            a("v_and_b32 v1, 3, v2\nv_lshl_add_u32 v251, v1, 5, v251\nv_bfe_u32 v1, v2, 3, 1\nv_lshl_add_u32 v251, v1, 4, v251\nv_bfe_u32 v1, v2, 4, 1\nv_lshl_add_u32 v251, v1, 3, v251")
            a("v_xor_b32 v252, 16, v251\nv_xor_b32 v253, 8, v251\nv_xor_b32 v254, 24, v251\nv_cmp_gt_u32 vcc, 4, v2\nv_mov_b32 v1, 16384\nv_cndmask_b32 v1, v0, v1, vcc")
            a("v_add_u32 v206, v253, v1\nv_add_u32 v207, v254, v1")
            a(f"s_mov_b32 vcc_lo, 0x88888888\ns_mov_b32 vcc_hi, 0x88888888\nv_mov_b32 v1, {SHD - 96}\nv_cndmask_b32 v1, 32, v1, vcc")
            a("v_add_u32 v202, v251, v1\nv_add_u32 v203, v253, v1\nv_add_u32 v204, v206, v1")

        def stat_wait():
            a(f"s_waitcnt vmcnt({younger('x') if self.counted else 0})")
            a("L_stat_check:")
            a(f"v_cmp_ne_u64 vcc, s[28:29], v[{SG + 2}:{SG + 3}]\ns_cbranch_vccz L_stat_got")
            self.spin_guard("L_stat_got")
            a(f"s_mov_b64 exec, vcc\nbuffer_load_dwordx4 v[{SG}:{SG + 3}], v6, s[12:15], s49 offen sc1")
            a("s_mov_b64 exec, -1\ns_waitcnt vmcnt(0)\ns_branch L_stat_check")
            a("L_stat_got:")
            a(f"v_cndmask_b32 v{SG}, v{SG}, v{SG + 1}, s[88:89]")
            a(f"v_mov_b32 v{SG + 8}, v{SG}\nv_permlane32_swap_b32 v{SG}, v{SG + 8}\nv_mov_b32 v{SG + 4}, v{SG}\nv_mov_b32 v{SG + 12}, v{SG + 8}")
            a(f"v_permlane16_swap_b32 v{SG}, v{SG + 4}\nv_permlane16_swap_b32 v{SG + 8}, v{SG + 12}")
            for h in range(4):
                s_ = SG + 4 * h
                a(f"v_lshlrev_b32 v{s_ + 2}, 16, v{s_}\nv_and_b32 v{s_}, 0xffff0000, v{s_}\nv_rcp_f32 v{s_}, v{s_}")
            for h in range(4):
                s_ = SG + 4 * h
                a(f"v_mul_f32 v{s_}, 0xbfb8aa3b, v{s_}\nv_mul_f32_e64 v{s_ + 2}, -v{s_ + 2}, v{s_}")

        def z_loads():
            for j in range(4):
                a(f"buffer_load_dwordx4 v[{ZL + 4 * j}:{ZL + 4 * j + 3}], v3, s[12:15], s50 offen offset:{1024 * j} sc1")
            a("s_mov_b32 exec_hi, 0x1ff")
            a(f"buffer_load_dwordx4 v[{ZN}:{ZN + 3}], v200, s[12:15], s51 offen sc1")
            a("s_mov_b32 exec_hi, -1")

        def slots(h, i):
            if h % 2 == 0:
                return 8 * h + 2 * i, 8 * h + 2 * i + 1
            return 8 * h + (8 - 2 * i) % 8, 8 * h + 7 - 2 * i

        def gate(h0, h1):
            rng = range(4 * h0, 4 * h1)
            for i in rng:
                lo, hi = slots(i // 4, i % 4)
                a(f"v_lshlrev_b32 v{XF + lo}, 16, v{XP + i}\nv_and_b32 v{XF + hi}, 0xffff0000, v{XP + i}")
            for i in rng:
                s_ = SG + 4 * (i // 4)
                a(f"v_pk_fma_f32 v[{GG + 2 * i}:{GG + 2 * i + 1}], v[{XF + 2 * i}:{XF + 2 * i + 1}], v[{s_}:{s_ + 1}], v[{s_ + 2}:{s_ + 3}] op_sel_hi:[1,0,0]")
            for i in rng:
                a(f"v_exp_f32 v{AC + 2 * i}, v{GG + 2 * i}\nv_exp_f32 v{AC + 2 * i + 1}, v{GG + 2 * i + 1}")
            for i in rng:
                a(f"v_pk_add_f32 v[{AC + 2 * i}:{AC + 2 * i + 1}], v[{AC + 2 * i}:{AC + 2 * i + 1}], 1.0 op_sel_hi:[1,0]")
            for i in rng:
                a(f"v_rcp_f32 v{AC + 2 * i}, v{AC + 2 * i}\nv_rcp_f32 v{AC + 2 * i + 1}, v{AC + 2 * i + 1}")
            for i in rng:
                a(f"v_pk_mul_f32 v[{GG + 2 * i}:{GG + 2 * i + 1}], v[{GG + 2 * i}:{GG + 2 * i + 1}], v[{AC + 2 * i}:{AC + 2 * i + 1}]")

        for i in range(4):
            a(f"v_mov_b32 v{ZN + i}, v{VTAG}")
        def masks():
            self.wait_then(C_S2, 1, lambda: a(f"ds_read_b32 v198, v0 offset:{L_KEY + 4}"), 1)
            a(f"v_and_b32 v6, 48, v2\nv_lshlrev_b32 v6, 1, v6\nv_mov_b32 v209, {OOB}\ns_waitcnt lgkmcnt(0)\nv_readfirstlane_b32 s33, v198")
            a("s_andn2_b32 s33, 0x7ff, s33\ns_sub_u32 s31, 0, s33\ns_and_b32 s31, s31, 2047")
            a("s_sub_u32 s32, s33, 1024\ns_sub_u32 s34, s31, 1024" if self.eo else "s_sub_u32 s32, s48, s33\ns_sub_u32 s34, s48, s31")
            for h, sr in enumerate((33, 31, 32, 34)):
                a(f"v_cmp_eq_u32 vcc, s{sr}, v{VTC}\nv_cmp_eq_u32 s[{54 + 2 * h}:{55 + 2 * h}], s{sr}, v{VTA}\nv_cndmask_b32 v{XS_[h]}, v{XS_[h]}, v209, vcc")
            a("s_or_b64 s[62:63], s[54:55], s[58:59]\ns_or_b64 s[64:65], s[56:57], s[60:61]")

        order = self.order if "r" in self.order else self.order + ("ykrvh" if self.zwith else "ykvrh")
        assert sorted(order.replace("t", "")) == sorted("xzmawgykvrh") and order.find("t") < order.index("r")
        for first, second in ("xw", "wg", "yk", "zk", "wk", "yv", "vh", "wh", "ar", "xr", "yr", "zr", "ak"):
            assert order.index(first) < order.index(second), (first, second)
        for op in order:
            step(op)
        if self.u64:
            a(f"s_and_b32 s31, s28, {ZMASK:#x}\ns_sub_u32 s66, 0, s31\ns_subb_u32 s67, 0, s31")
        self.stamp(9)
        a("L_z_wait:")
        self.setprio(self.P["tail"])
        ZC = AF + 8
        srcs = [ZL + i for i in range(16)] + [ZN + i for i in range(4)]
        for j in range(5):
            a(f"s_waitcnt vmcnt({4 - j})")
            for i in range(4):
                if not self.u64:
                    a(f"v_xor_b32 v{ZC + 4 * j + i}, v{VTAG}, v{srcs[4 * j + i]}")
                elif i % 2 == 0:
                    a(f"v_lshl_add_u64 v[{ZC + 4 * j + i}:{ZC + 4 * j + i + 1}], v[{srcs[4 * j + i]}:{srcs[4 * j + i] + 1}], 0, s[66:67]")
            if j < 4:
                a(f"ds_write_b128 v250, v[{ZC + 4 * j}:{ZC + 4 * j + 3}] offset:{1024 * j}")
            else:
                a(f"s_mov_b32 exec_hi, 0x1ff\nds_write_b128 v201, v[{ZC + 16}:{ZC + 19}]\ns_mov_b32 exec_hi, -1")
            if j == 0:
                a(f"v_or3_b32 v1, v{ZC}, v{ZC + 1}, v{ZC + 2}\nv_or_b32 v1, v1, v{ZC + 3}")
            else:
                a(f"v_or3_b32 v1, v1, v{ZC + 4 * j}, v{ZC + 4 * j + 1}\nv_or3_b32 v1, v1, v{ZC + 4 * j + 2}, v{ZC + 4 * j + 3}")
        a(f"v_and_b32 v1, {ZMASK:#x}, v1\nv_cmp_ne_u32 vcc, 0, v1\ns_cbranch_vccz L_z_got")
        self.spin_guard("L_z_got")
        a("s_mov_b64 exec, vcc")
        for j in range(4):
            a(f"buffer_load_dwordx4 v[{ZL + 4 * j}:{ZL + 4 * j + 3}], v3, s[12:15], s50 offen offset:{1024 * j} sc1")
        a("s_and_b32 exec_hi, exec_hi, 0x1ff\ns_or_b32 exec_lo, exec_lo, 1")
        a(f"buffer_load_dwordx4 v[{ZN}:{ZN + 3}], v200, s[12:15], s51 offen sc1")
        a("s_mov_b64 exec, -1\ns_waitcnt lgkmcnt(0)\ns_branch L_z_wait")
        a("L_z_got:")
        self.stamp(10)
        self.fine(0)
        if self.hold:
            a(f"ds_read_b32 v198, v0 offset:{L_CNT + 4 * C_YG}")
        self.arrive(C_D)
        self.fine(1)
        if self.diag == "fine":
            a("s_waitcnt lgkmcnt(0)")

        def rd(ks):
            c, ph = ks // 4, ks % 4
            b = AF + 8 * (ks % 4)
            for mb in range(2):
                for v in range(2):
                    ad = 206 + mb if (ks == 4 and v == 0) else 251 + mb + 2 * c
                    a(f"ds_read_b64_tr_b16 v[{b + 4 * mb + 2 * v}:{b + 4 * mb + 2 * v + 1}], v{ad} offset:{4096 * ph + 1024 * v}")

        def half(ks):
            return (ks % 4) // 2 if self.eo else ks // 4

        def first(ks):
            return ks in ((0, 2) if self.eo else (0, 4))

        def b3(ks):
            return (ZL if ks < 4 else 240 - 16 * (ks // 6) * 4) + 4 * (ks % 4)

        def rd3(ks):
            c, ph = ks // 4, ks % 4
            for v in range(2):
                ad = 204 if (ks == 4 and v == 0) else 202 + c
                a(f"ds_read_b64_tr_b16 v[{b3(ks) + 2 * v}:{b3(ks) + 2 * v + 1}], v{ad} offset:{4096 * ph + 1024 * v}")

        def mf3(ks):
            d = AC + 16 + 4 * half(ks)
            self.mfma("f16", d, b3(ks), MM + 4 * ks, None if first(ks) else d)

        self.wait_then(C_D, 4, lambda: rd(0), 4)
        if self.hold:
            a("v_readfirstlane_b32 s66, v198")
        self.stamp(11)
        rd(1); rd(2)
        for ks in range(8):
            b = AF + 8 * (ks % 4)
            a("s_waitcnt lgkmcnt(8)")
            for mb in range(2):
                d = AC + 8 * half(ks) + 4 * mb
                self.mfma("f16", d, b + 4 * mb, MM + 4 * ks, None if first(ks) else d)
            if ks + 3 < 8:
                rd(ks + 3)
            else:
                rd3(2 * (ks - 5))
                rd3(2 * (ks - 5) + 1)
        a("s_waitcnt lgkmcnt(8)")
        rd3(6); rd3(7)
        mf3(0); mf3(1)
        a("s_waitcnt lgkmcnt(4)")
        mf3(2); mf3(3)
        SA = AF

        def combine(h):
            ng = " neg_lo:[0,1] neg_hi:[0,1]" if h else ""
            for i in range(4):
                e, o = AC + 2 * i, AC + 8 + 2 * i
                a(f"v_pk_add_f32 v[{SA + 8 * h + 2 * i}:{SA + 8 * h + 2 * i + 1}], v[{e}:{e + 1}], v[{o}:{o + 1}]{ng}")

        def emit(h, between=None):
            sa = SA + 8 * (h // 2)
            for i in range(4):
                k = 8 * h + 2 * i
                a(f"v_pk_fma_f32 v[{XF + k}:{XF + k + 1}], v[{sa + 2 * i}:{sa + 2 * i + 1}], v[{GG + k}:{GG + k + 1}], v[{XF + k}:{XF + k + 1}]")
            if between:
                between()
            for i in range(4):
                lo, hi = slots(h, i)
                a(f"v_cvt_pk_bf16_f32 v{XP + 4 * h + i}, v{XF + lo}, v{XF + hi}")
            a(f"ds_write_b128 v{XR}, v[{XP + 4 * h}:{XP + 4 * h + 3}] offset:{1024 * h}")
            a(f"ds_read_b128 v[{SG + 4 * h}:{SG + 4 * h + 3}], v199 offset:{1024 * h}")

        def store(h, left):
            a(f"s_waitcnt lgkmcnt({left})")
            if self.cheat & 16:
                return
            a(f"buffer_store_dwordx4 v[{SG + 4 * h}:{SG + 4 * h + 3}], v{XS_[h]}, s[16:19], 0 offen {self.oflag}")

        def dump(m, sfx=''):
            a(f"s_cmp_eq_u64 s[{62 + 2 * m}:{63 + 2 * m}], 0\ns_cbranch_scc1 L_nodump{m}{sfx}")
            for h in (m, m + 2):
                sa, o = SA + 8 * (h // 2), L_ROW + 128 * m
                a(f"s_mov_b64 exec, s[{54 + 2 * h}:{55 + 2 * h}]")
                a(f"ds_write_b128 v6, v[{sa}:{sa + 3}] offset:{o}\nds_write_b128 v6, v[{sa + 4}:{sa + 7}] offset:{o + 16}")
            self.arrive(C_ROW1 if m else C_ROW)
            a("s_waitcnt lgkmcnt(0)")
            a(f"L_nodump{m}{sfx}:")

        def tail_a():
            a("s_waitcnt lgkmcnt(0)")
            self.fine(2)
            mf3(6); mf3(7)

        combine(0)
        mf3(4); mf3(5)
        emit(0, tail_a)
        self.fine(3)
        combine(1)
        dump(0)
        emit(2)
        if self.hold:
            a("s_cmp_lt_u32 s66, 4\ns_cbranch_scc1 L_held")
        store(0, 2)
        self.fine(4)
        a(f"v_add_f32 v{SA}, v{AC + 16}, v{AC + 20}\nv_sub_f32 v{SA + 8}, v{AC + 16}, v{AC + 20}")
        dump(1)
        emit(1)
        store(2, 2)
        self.fine(5)
        emit(3)
        store(1, 2)
        store(3, 0)
        self.fine(6)
        if self.diag == "fine":
            a("s_waitcnt vmcnt(0)")
            self.fine(7)
            a("s_waitcnt lgkmcnt(0)")
            for i in range(1, 8):
                a(f"s_sub_u32 s31, s{76 + 2 * i}, s76\ns_add_u32 s31, s31, s68\nv_writelane_b32 v211, s31, {i}")
        self.stamp(12)
        a("s_branch L_fin")
        if self.hold:
            a("L_held:")
            a(f"v_add_f32 v{SA}, v{AC + 16}, v{AC + 20}\nv_sub_f32 v{SA + 8}, v{AC + 16}, v{AC + 20}")
            dump(1, "h")
            emit(1)
            emit(3)
            self.wait(C_YG, 4)
            for h in range(4):
                store(h, 0)
            self.stamp(12)
            a("s_branch L_fin")

    def moe_head(self):
        a = self.a
        a("L_moe:")
        self.role = "moe"
        a("s_load_dwordx2 s[20:21], s[0:1], 64")
        if self.narrow:
            a("s_and_b32 s32, s2, 7\ns_mul_i32 s32, s32, 7\ns_lshr_b32 s31, s2, 6\ns_lshl_b32 s31, s31, 1\ns_add_u32 s46, s31, s32")
            a("s_bfe_u32 s47, s2, 0x30003\ns_cmp_ge_u32 s2, 192\ns_cselect_b32 s75, 1, 0\ns_lshl_b32 s47, s47, s75\ns_and_b32 s47, s47, 7")
        else:
            a("s_and_b32 s32, s2, 7\ns_mul_i32 s32, s32, 28\ns_lshr_b32 s31, s2, 3\ns_add_u32 s31, s31, s32\ns_lshr_b32 s46, s31, 3\ns_lshl_b32 s46, s46, 1\ns_and_b32 s47, s31, 7\ns_mov_b32 s75, 0")
        for d in (16, 20, 24):
            a(f"s_mov_b32 s{d + 2}, {WBYTES}\ns_mov_b32 s{d + 3}, 0x00020000")
        a("v_lshrrev_b32 v4, 4, v2\nv_lshlrev_b32 v5, 5, v4\nv_and_b32 v6, 0x70, v3\nv_xor_b32 v5, v5, v6\nv_mul_u32_u24 v4, 7168, v4")
        a(f"s_mul_i32 s31, s47, {128 * 7168}\ns_lshl_b32 s32, s46, 7\ns_add_u32 s31, s31, s32\nv_add3_u32 v4, v4, v5, s31")
        a(f"s_cmp_eq_u32 s75, 0\ns_mov_b32 s31, {128 * 7168}\ns_cselect_b32 s31, 128, s31\nv_add_u32 v6, s31, v4")
        a("s_mov_b32 vcc_lo, 0xff00ff00\ns_mov_b32 vcc_hi, 0xff00ff00\nv_cndmask_b32 v5, v6, v4, vcc\nv_cndmask_b32 v4, v4, v6, vcc")
        a(f"s_mov_b32 s48, 0\ns_mov_b32 s49, {M_G}")
        a("s_waitcnt lgkmcnt(0)")
        a("s_mov_b32 s16, s38\ns_mov_b32 s17, s39")
        if self.diag == "start":
            a("s_memrealtime s[80:81]\ns_waitcnt lgkmcnt(0)\nv_writelane_b32 v211, s80, 1")
        a(f"s_load_dwordx2 s[28:29], s[12:13], {EPOCH}\ns_load_dwordx2 s[24:25], s[0:1], 72\ns_load_dwordx2 s[44:45], s[0:1], 80")
        a("s_barrier")
        a(f"s_cmp_ge_u32 s2, {0 if self.diag == 'nomoe' else 224}\ns_cselect_b32 s66, 0, 1\ns_cbranch_scc1 L_dma_done")
        a("s_cmp_lg_u32 s30, 0\ns_cbranch_scc1 L_dma_done")
        self.setprio(self.P["dma"])
        phases = [(self.win, 128)] if not self.win0 else [self.win0, (self.win, 128)]
        for n, (win, rows) in enumerate(phases):
            a(f"L_dma{n}:")
            for i in range(4):
                a(f"s_mov_b32 m0, s49\ns_waitcnt vmcnt({win - (1 if self.w1 else 2)})")
                a(f"buffer_load_dwordx4 v{4 + i // 2}, s[16:19], s48 offen {self.wflag} lds")
                a("s_add_u32 m0, s49, 32768\ns_add_u32 s49, s49, 1024")
                if self.w1:
                    a(f"s_waitcnt vmcnt({win - 1})")
                a(f"buffer_load_dwordx4 v{4 + i // 2}, s[20:23], s48 offen {self.wflag} lds")
                a(f"s_add_u32 s48, s48, {4 * 7168}")
            a(f"s_cmp_lt_u32 s48, {rows * 7168}\ns_cbranch_scc1 L_dma{n}")

    def moe(self):
        a = self.a
        if not self.near:
            self.moe_head()
        self.role = "moe"
        a("L_dma_done:")
        self.setprio(self.P["wait"])
        WD = 100
        a("s_lshr_b32 s31, s47, 2\ns_andn2_b32 s31, s31, s75\ns_add_u32 s50, s31, s46")
        a("s_lshl_b32 s31, s50, 17\ns_bfe_u32 s32, s2, 0x20003\ns_lshl_b32 s32, s32, 2\ns_add_u32 s51, s32, s30\ns_lshl_b32 s32, s51, 7\ns_add_u32 s31, s31, s32")
        if self.dlds:
            assert self.xc == 0
            a("v_lshrrev_b32 v6, 3, v2\nv_lshlrev_b32 v6, 11, v6\nv_and_b32 v7, 0x70, v3\nv_and_b32 v11, 16, v2\nv_lshlrev_b32 v11, 1, v11\nv_xor_b32 v11, v11, v7")
            a("v_add3_u32 v6, v6, v11, s31\nv_xor_b32 v11, 64, v6")
            a(f"s_lshl_b32 s74, s30, 13\ns_cmp_lt_u32 s30, 2\ns_mov_b32 s31, {L_XT - 16384}\ns_cselect_b32 s31, {EX + 16384}, s31\ns_add_u32 s74, s74, s31")
        else:
            a("v_lshrrev_b32 v6, 3, v2\nv_lshlrev_b32 v6, 14, v6\nv_and_b32 v7, 0x70, v3\nv_add3_u32 v6, v6, v7, s31")
        a("s_mov_b32 s60, 4096\ns_mov_b32 s61, 8192\ns_mov_b32 s62, 12288")
        if self.cheat & 128:
            a("s_lshl_b32 s31, s50, 4\ns_add_u32 s31, s31, s51\ns_lshl_b32 s31, s31, 13\nv_add_u32 v6, s31, v3\ns_mov_b32 s60, 1024\ns_mov_b32 s61, 4096\ns_mov_b32 s62, 5120")
        if self.cheat & 256:
            a("s_lshl_b32 s31, s50, 17\ns_lshl_b32 s32, s30, 15\ns_add_u32 s31, s31, s32\ns_bfe_u32 s32, s2, 0x20003\ns_lshl_b32 s32, s32, 9\ns_add_u32 s31, s31, s32")
            a("v_lshrrev_b32 v6, 5, v2\nv_lshlrev_b32 v6, 14, v6\nv_and_b32 v250, 0x1f0, v3\nv_add3_u32 v6, v6, v250, s31")

        def d_loads(j0, j1):
            for j in range(j0, j1):
                if self.cheat & 32:
                    a(f"buffer_load_dwordx4 v[{WD + 4 * j}:{WD + 4 * j + 3}], v7, s[24:27], 0 offen")
                    continue
                if self.dlds:
                    a(f"s_add_u32 m0, s74, {1024 * j}\ns_mov_b32 s31, {16384 * j}")
                    a(f"buffer_load_dwordx4 v{11 if j % 2 else 6}, s[24:27], s31 offen {self.wflag} lds")
                    continue
                so = "0" if j < 2 else f"s{59 + j // 2}"
                a(f"buffer_load_dwordx4 v[{WD + 4 * j}:{WD + 4 * j + 3}], v6, s[24:27], {so} offen offset:{2048 * (j % 2)} {self.wflag}")

        a("v_bfe_u32 v8, v2, 2, 3\nv_lshlrev_b32 v9, 5, v8\ns_lshl_b32 s31, s30, 6\nv_xor_b32 v9, s31, v9")
        a(f"v_bfe_u32 v8, v2, 2, 2\nv_lshl_add_u32 v9, v8, 8, v9\nv_lshrrev_b32 v8, 4, v2\nv_lshl_add_u32 v9, v8, 11, v9\nv_and_b32 v10, 3, v2\nv_lshl_add_u32 v9, v10, 3, v9")
        a(f"v_add_u32 v9, {M_G}, v9\nv_xor_b32 v10, 32, v9\nv_lshlrev_b32 v8, 4, v8")
        a("s_lshr_b32 s31, s30, 1\ns_and_b32 s32, s31, s75\ns_lshl_b32 s32, s32, 8\nv_add_u32 v8, s32, v8\ns_cmp_eq_u32 s75, 0\ns_cselect_b32 s32, 12, 9\ns_lshl_b32 s31, s31, s32")
        a("s_lshl_b32 s32, s46, 3\ns_add_u32 s32, s32, s47\ns_lshl_b32 s32, s32, 9\ns_add_u32 s31, s31, s32")
        a(f"s_and_b32 s32, s30, 1\ns_lshl_b32 s32, s32, 8\ns_add_u32 s31, s31, s32\ns_add_u32 s31, s31, {HP}\nv_lshl_add_u32 v13, v2, 3, s31")
        a("s_waitcnt lgkmcnt(0)")
        self.tag_from_epoch()
        a(f"s_and_b32 s31, s28, {FMASK:#x}\nv_mov_b32 v14, s31\ns_mov_b32 s49, {~FMASK & 0xFFFFFFFF:#x}")
        DF = self.dfirst
        if isinstance(self.tlb, tuple):
            shift, parts = self.tlb
            a("s_cmp_lg_u32 s30, 2\ns_cbranch_scc1 L_no_tlb")
            a(f"s_mov_b32 s52, s44\ns_mov_b32 s53, s45\ns_mov_b32 s54, 0x400000\ns_mov_b32 s55, 0x00020000\nv_lshlrev_b32 v250, {shift}, v2")
            if "o" in parts:
                a("buffer_load_dword v252, v250, s[52:55], 0 offen")
            if "O" in parts:
                m = (2 << (1 << (22 - shift))) - 1
                a(f"v_min_u32 v250, 0x3ffffc, v250\ns_mov_b32 exec_lo, {m & 0xFFFFFFFF:#x}\ns_mov_b32 exec_hi, {m >> 32:#x}\nbuffer_load_dword v252, v250, s[52:55], 0 offen")
            if "Z" in parts:
                a(f"s_mov_b64 exec, 0x3f\nv_lshlrev_b32 v250, 20, v2\nv_add_u32 v250, {YP + 0x38000}, v250\nv_min_u32 v250, {ZB + (4 * 32 + 17) * ZTS}, v250")
                a("buffer_load_dword v251, v250, s[12:15], 0 offen")
            if "D" in parts:
                a("s_mov_b64 exec, 3\nv_mul_u32_u24 v250, 0x1f800, v2\nv_add_u32 v250, v250, v6\nbuffer_load_dword v253, v250, s[24:27], 0 offen")
            if "G" in parts:
                a(f"s_mov_b64 exec, 1\ns_mov_b32 s31, {127 * 7168}\nbuffer_load_dword v249, v4, s[16:19], s31 offen\nbuffer_load_dword v248, v4, s[20:23], s31 offen")
            if "z" in parts:
                a(f"s_mov_b64 exec, 3\nv_lshlrev_b32 v250, 21, v2\ns_mov_b32 s31, {ZB + 16384 + 31 * ZTS}\nbuffer_load_dword v251, v250, s[12:15], s31 offen")
            if "d" in parts:
                a("s_mov_b64 exec, 1\nbuffer_load_dword v253, v6, s[24:27], 0 offen")
            a("s_mov_b64 exec, -1\nL_no_tlb:")
        elif self.tlb:
            a("s_cmp_lg_u32 s30, 2\ns_cbranch_scc1 L_no_tlb")
            if self.tlb == "i":
                a("s_cmp_lg_u32 s66, 0\ns_cbranch_scc1 L_no_tlb")
            a("s_mov_b32 s52, s44\ns_mov_b32 s53, s45\ns_mov_b32 s54, 0x400000\ns_mov_b32 s55, 0x00020000\nv_lshlrev_b32 v250, 20, v2\ns_mov_b64 exec, 0xff")
            if self.tlb == 2:
                a("s_bfe_u32 s31, s2, 0x40003\ns_lshl_b32 s31, s31, 16\nv_add_u32 v250, s31, v250")
            a("buffer_load_dword v251, v250, s[12:15], 0 offen\nbuffer_load_dword v252, v250, s[52:55], 0 offen\nbuffer_load_dword v253, v250, s[24:27], 0 offen")
            a("s_mov_b64 exec, -1\nL_no_tlb:")
        a("s_cmp_lg_u32 s66, 0\ns_cbranch_scc1 L_tagged")
        self.arrive(C_E)
        if self.dpf:
            gate, win, chunks = self.dpf
            a("s_cmp_lg_u32 s30, 0\ns_cbranch_scc1 L_tagged")
            if gate:
                self.wait(*gate)
            a("s_and_b32 s32, s2, 7\ns_mul_i32 s32, s32, 28\ns_bfe_u32 s31, s2, 0x20003\ns_mul_i32 s31, s31, 7\ns_add_u32 s52, s31, s32\ns_add_u32 s53, s52, 7\nv_lshlrev_b32 v250, 11, v2")
            a("L_dpf:\ns_lshr_b32 s31, s52, 2\ns_lshl_b32 s31, s31, 17\ns_and_b32 s32, s52, 3\ns_lshl_b32 s32, s32, 9\ns_add_u32 s31, s31, s32")
            for c in chunks:
                a(f"s_waitcnt vmcnt({win - 1})\nbuffer_load_dword v251, v250, s[24:27], s31 offen offset:{128 * c}")
            a("s_add_u32 s52, s52, 1\ns_cmp_lt_u32 s52, s53\ns_cbranch_scc1 L_dpf")
        a("L_tagged:")
        XA, BF, GA = 20, 36, 132
        order = [(ks, t) for ks in range(4) for t in range(4)]

        def b_reads(n0, n1):
            for n in range(n0, n1):
                ks, t = order[n]
                if n - n0 >= 7:
                    a("s_waitcnt lgkmcnt(12)")
                for v in range(2):
                    a(f"ds_read_b64_tr_b16 v[{BF + 4 * n + 2 * v}:{BF + 4 * n + 2 * v + 1}], v{9 + t % 2} offset:{32768 * (t // 2) + 8192 * ks + 1024 * v}")

        def last_k(sfx, loader=True):
            if loader:
                a(f"s_cmp_lg_u32 s30, 0\ns_cbranch_scc1 L_k3_wait{sfx}")
                a(f"s_waitcnt vmcnt({DF if self.dall else 0})")
                self.arrive(C_DMA)
                self.stamp(1)
                a(f"L_k3_wait{sfx}:")
            if sfx:
                a("s_waitcnt lgkmcnt(4)")
            self.wait_then(C_DMA, 3, lambda: b_reads(12, 16), 8)

        a("s_cmp_eq_u32 s30, 3\ns_cbranch_scc1 L_h1")
        a("s_cmp_eq_u32 s66, 0\ns_cbranch_scc1 L_key")
        a("s_cmp_lg_u32 s30, 0\ns_cbranch_scc1 L_follower")
        self.setprio(self.P["moe"])
        a("s_waitcnt vmcnt(16)")
        self.arrive(C_DMA)
        b_reads(0, 12)
        a("s_waitcnt vmcnt(8)")
        self.arrive(C_DMA)
        self.stamp(10)
        a("s_branch L_d_first" if self.dall else "s_branch L_key")
        a("L_follower:")
        if self.touch == "s":
            a("v_readfirstlane_b32 s52, v13\ns_and_b32 s32, s30, 1\ns_lshl_b32 s32, s32, 8\ns_sub_u32 s52, s52, s32")
            a(f"s_lshl_b32 s31, s50, 12\ns_sub_u32 s31, s31, s32\ns_lshl_b32 s32, s51, 8\ns_add_u32 s31, s31, s32\ns_add_u32 s53, s31, {YP}")
            for k in range(8):
                a("s_load_dword s54, s[12:13], s52\ns_load_dword s54, s[12:13], s53")
                if k < 7:
                    a("s_add_u32 s52, s52, 64\ns_add_u32 s53, s53, 64")
                if k == 3:
                    a("s_waitcnt lgkmcnt(0)")
        elif self.touch:
            a(f"s_and_b32 s32, s30, 1\ns_lshl_b32 s32, s32, 8\nv_subrev_u32 v250, s32, v13\nbuffer_load_dword v251, v250, s[12:15], 0 offen")
            a(f"s_lshl_b32 s31, s50, 12\ns_sub_u32 s31, s31, s32\ns_lshl_b32 s32, s51, 8\ns_add_u32 s31, s31, s32\ns_add_u32 s31, s31, {YP}\nv_lshl_add_u32 v250, v2, 3, s31")
            a("buffer_load_dword v252, v250, s[12:15], 0 offen")
        self.wait(C_DMA, 1, self.nap)
        self.setprio(self.P["moe"])
        b_reads(0, 12)
        a(f"s_add_u32 s67, s30, {self.dlag}")
        self.wait(C_DMA, "s67")
        a("L_d_first:")
        self.release(self.drel)
        d_loads(0, DF)
        if self.pre3:
            assert self.dall
            last_k("p")
        a("L_key:")

        def a_reads():
            for ks in range(4):
                a(f"ds_read_b128 v[{XA + 4 * ks}:{XA + 4 * ks + 3}], v8 offset:{M_XS + 64 * ks}")

        def key_and_a():
            a(f"ds_read_b64 v[18:19], v0 offset:{L_KEY}")
            a_reads()

        a("s_waitcnt lgkmcnt(0)")
        self.wait_then(C_S2, 1, key_and_a, 5)
        a("s_cmp_eq_u32 s66, 0\ns_cbranch_scc1 L_idle")
        a("s_branch L_xs_ok")
        a("L_h1:")
        a(f"s_mov_b32 s63, {GRAN}\ns_lshl_b32 s31, s47, 8\nv_lshlrev_b32 v15, 3, v2\nv_add_u32 v16, s31, v15")
        a("s_cmp_lg_u32 s66, 0\ns_cbranch_scc1 L_gate")
        self.wait(C_ST3, 4, self.nap)
        a("s_branch L_gate_open")
        a("L_gate:")
        if self.tgate:
            a(f"L_tg:\ns_memrealtime s[52:53]\ns_waitcnt lgkmcnt(0)\ns_sub_u32 s31, s52, s90\ns_cmp_lt_u32 s31, {self.tgate}\ns_cbranch_scc1 L_tg")
        else:
            self.wait(*self.gate, self.nap)
        a("L_gate_open:")
        self.setprio(self.P["moe"])
        self.stamp(7)
        self.gran_issue(20)
        self.arrive(C_S0)
        a("s_waitcnt vmcnt(0)")
        self.stamp(8)
        self.gran_resolve("mi", 20, 18)
        a("s_andn2_b32 s31, 0x7ff, s33\ns_lshl_b32 s48, s31, 11")
        a("buffer_load_dwordx2 v[150:151], v16, s[8:11], s48 offen")
        self.arrive(C_S1)
        self.stamp(9)
        self.gran_stats(20, 18)
        a(f"v_mov_b32 v19, s33\nv_mov_b32 v18, s34\nds_write_b64 v0, v[18:19] offset:{L_KEY}")
        a("s_lshl_b32 s52, s34, 16\ns_and_b32 s32, s34, 0xffff0000\nv_rcp_f32 v148, s32")
        if self.h1pre:
            a("s_cmp_eq_u32 s66, 0\ns_cbranch_scc1 L_h1_idle")
            self.wait(C_DMA, 1)
            if self.h1pre == 1:
                d_loads(0, DF)
            b_reads(0, 12)
            if self.pre3:
                last_k("h", False)
            a(f"s_waitcnt vmcnt({DF if self.h1pre == 1 else 0}) lgkmcnt(0)\ns_branch L_h1_x\nL_h1_idle:")
        a("s_waitcnt vmcnt(0)")
        a("L_h1_x:")
        un = "v_lshlrev_b32 v20, 16, v150\nv_and_b32 v21, 0xffff0000, v150\nv_lshlrev_b32 v22, 16, v151\nv_and_b32 v23, 0xffff0000, v151"
        pk = "v_cvt_pk_bf16_f32 v150, v20, v21\nv_cvt_pk_bf16_f32 v151, v22, v23"
        a(un)
        for p in (20, 22):
            a(f"v_pk_add_f32 v[{p}:{p + 1}], v[{p}:{p + 1}], s[52:53] op_sel_hi:[1,0] neg_lo:[0,1] neg_hi:[0,1]")
        a(pk)
        a(un)
        for p in (20, 22):
            a(f"v_pk_mul_f32 v[{p}:{p + 1}], v[{p}:{p + 1}], v[148:149] op_sel_hi:[1,0]")
        a(pk)
        a(f"ds_write_b64 v15, v[150:151] offset:{M_XS}")
        self.arrive(C_S2)
        a("s_cmp_eq_u32 s66, 0\ns_cbranch_scc1 L_idle")
        if not self.h1pre:
            self.wait(C_DMA, 1)
            b_reads(0, 12)
            if self.dall:
                d_loads(0, DF)
            if self.pre3:
                last_k("h", False)
            a("s_waitcnt lgkmcnt(8)")
        a_reads()
        if self.h1pre == 2:
            d_loads(0, DF)
        a("L_xs_ok:")
        self.stamp(2)
        for n, (ks, t) in enumerate(order[:12]):
            if t == 0:
                a(f"s_waitcnt lgkmcnt({3 - ks})")
            self.mfma("bf16", GA + 4 * t, XA + 4 * ks, BF + 4 * n, None if ks == 0 else GA + 4 * t)
        if not self.pre3:
            last_k("")
        a("v_readfirstlane_b32 s33, v19\nv_readfirstlane_b32 s34, v18")
        for n in range(12, 16):
            if not self.pre3 or n == 12:
                a(f"s_waitcnt lgkmcnt({0 if self.pre3 else 2 * (15 - n)})")
            self.mfma("bf16", GA + 4 * (n % 4), XA + 12, BF + 4 * n, GA + 4 * (n % 4))
        a("s_mov_b32 vcc_lo, 0xffff0000\ns_mov_b32 vcc_hi, 0")
        a(f"s_lshl_b32 s31, s50, 12\ns_lshl_b32 s32, s30, 7\ns_add_u32 s31, s31, s32\ns_add_u32 s31, s31, {HP}")
        a("v_lshrrev_b32 v15, 3, v2\nv_lshlrev_b32 v15, 9, v15\nv_add3_u32 v15, v15, v7, s31")
        a(f"v_cndmask_b32 v26, v{GA}, v{GA + 4}, vcc\nv_cndmask_b32 v27, v{GA + 8}, v{GA + 12}, vcc")
        a("v_and_or_b32 v26, v26, s49, v14\nv_and_or_b32 v27, v27, s49, v14")
        a("s_mov_b32 exec_hi, 0")
        a(f"buffer_store_dwordx2 v[26:27], v13, s[12:15], 0 offen {'' if self.local else 'sc1'}")
        a("s_mov_b64 exec, -1")
        if not self.dall:
            a("s_sub_u32 s31, s30, 1\ns_cmp_lt_u32 s31, 2\ns_cbranch_scc1 L_d_rest")
            d_loads(0, DF)
            a("L_d_rest:")
        d_loads(DF, 8)
        self.arrive(C_HP)
        self.hint_store("hp")
        self.setprio(self.P["moe2"])
        self.stamp(3)
        pair = {}
        free = [98]
        YA = 36
        if not self.dlds:
            a("s_mov_b32 s52, 0x05040100\ns_mov_b32 s53, 0x07060302")
            for i in range(8):
                a(f"v_mov_b32 v{YA + i}, 0")
        a("v_and_b32 v16, 7, v2\nv_lshlrev_b32 v16, 2, v16\nv_lshrrev_b32 v17, 5, v2\nv_lshl_add_u32 v16, v17, 1, v16\ns_lshl_b32 s31, s30, 5\nv_add_u32 v16, s31, v16")
        if self.dlds:
            a("v_and_b32 v17, 48, v2\nv_bfe_u32 v9, v2, 3, 2\nv_lshlrev_b32 v9, 5, v9\nv_bfe_u32 v10, v2, 2, 2\nv_lshl_add_u32 v9, v10, 7, v9")
            a("v_lshl_add_u32 v9, v17, 6, v9\nv_and_b32 v10, 3, v2\nv_lshlrev_b32 v10, 3, v10\nv_add3_u32 v9, v9, v10, s74")
            a("v_xor_b32 v10, 32, v9\nv_xor_b32 v12, 96, v9\nv_xor_b32 v8, 64, v9")
        else:
            a("v_lshrrev_b32 v17, 3, v2\nv_lshlrev_b32 v17, 4, v17")
        a(f"s_lshl_b32 s31, s50, 12\ns_lshl_b32 s32, s51, 8\ns_add_u32 s31, s31, s32\ns_add_u32 s31, s31, {YP}")
        if self.dlds:
            a("v_lshl_add_u32 v18, v2, 2, s31")
        else:
            a("v_lshlrev_b32 v18, 1, v7\nv_lshrrev_b32 v19, 4, v2\nv_lshl_add_u32 v18, v19, 3, v18\nv_add_u32 v18, s31, v18")
        if self.pack:
            if self.dall:
                a(f"s_waitcnt vmcnt({8 - DF})")
            else:
                a(f"s_waitcnt vmcnt(8)\ns_sub_u32 s31, s30, 1\ns_cmp_ge_u32 s31, 2\ns_cbranch_scc1 L_acked\ns_waitcnt vmcnt({8 - DF})\nL_acked:")
            a("buffer_load_dwordx4 v[20:23], v15, s[12:15], 0 offen sc1")
            self.arrive(C_YG)
        for j in range(0, 8, 2):
            if self.dlds and j % 4 == 0:
                continue
            if j == self.hpearly:
                a("buffer_load_dwordx4 v[20:23], v15, s[12:15], 0 offen sc1")
            a(f"s_waitcnt vmcnt({6 - j + (1 if self.dall and j + 2 <= DF else 0) + (1 if j >= self.hpearly or self.pack else 0)})")
            if self.dlds:
                if j == 6 and not self.pack:
                    a("buffer_load_dwordx4 v[20:23], v15, s[12:15], 0 offen sc1")
                    if self.psig:
                        self.arrive(C_YG)
                a("s_waitcnt lgkmcnt(4)")
                for b in range(4):
                    for v in range(2):
                        r = WD + 16 * (j // 4) + 4 * b + 2 * v
                        a(f"ds_read_b64_tr_b16 v[{r}:{r + 1}], v{(9, 10, 8, 12)[b]} offset:{4096 * (j // 4) + 512 * v}")
                continue
            for d in range(4):
                r0, r1 = WD + 4 * j + d, WD + 4 * j + 4 + d
                t = free.pop()
                a(f"v_perm_b32 v{t}, v{r1}, v{r0}, s52\nv_perm_b32 v{r1}, v{r1}, v{r0}, s53")
                pair[(j // 2, 2 * d)] = t
                pair[(j // 2, 2 * d + 1)] = r1
                free.append(r0)
        self.hint_store("d")
        self.stamp(4)
        a("s_mov_b32 s54, 0")

        def fallback_store():
            a("s_mov_b32 exec_hi, 0\nbuffer_store_dwordx2 v[26:27], v13, s[12:15], 0 offen sc1\ns_mov_b32 exec_hi, -1")

        self.sleep(self.hs[0])
        if self.hpearly < 8 or self.pack or self.dlds:
            a("s_branch L_hp_wait")
        elif self.psig:
            a("buffer_load_dwordx4 v[20:23], v15, s[12:15], 0 offen sc1")
            self.arrive(C_YG)
            a("s_branch L_hp_wait")
        a("L_hp_poll:")
        a("buffer_load_dwordx4 v[20:23], v15, s[12:15], 0 offen sc1")
        a("L_hp_wait:")
        a("s_waitcnt vmcnt(0)")
        for i in range(4):
            a(f"v_xor_b32 v{20 + i}, v14, v{20 + i}")
        a(f"v_or3_b32 v24, v20, v21, v22\nv_or_b32 v24, v24, v23\nv_and_b32 v24, {FMASK:#x}, v24\nv_cmp_ne_u32 vcc, 0, v24")
        a("v_permlane16_swap_b32 v20, v21\nv_permlane16_swap_b32 v22, v23")
        a("s_cbranch_vccz L_hp_got")
        self.spin_guard("L_hp_got", self.hs[1])
        if self.local:
            a(f"s_add_u32 s54, s54, 1\ns_cmp_lg_u32 s54, {self.local}\ns_cbranch_scc1 L_hp_poll")
            fallback_store()
        a("s_branch L_hp_poll")
        a("L_hp_got:")
        self.stamp(5)
        a("v_add_f32 v20, v20, v21\nv_add_f32 v22, v22, v23\nv_permlane32_swap_b32 v20, v22\nv_add_f32 v20, v20, v22")
        a("v_add_f32_dpp v21, v20, v20 row_ror:8 row_mask:0xf bank_mask:0xf\nv_add_f32_dpp v20, v20, v20 row_ror:8 row_mask:0xf bank_mask:0xf")
        a("v_permlane16_swap_b32 v20, v21\nv_cvt_pk_bf16_f32 v20, v20, v21\nv_and_b32 v21, 0xffff0000, v20\nv_lshlrev_b32 v20, 16, v20")
        a("v_mul_f32 v22, 0xbfb8aa3b, v20\nv_exp_f32 v22, v22\nv_add_f32 v22, 1.0, v22\nv_rcp_f32 v22, v22\nv_mul_f32 v20, v20, v22")
        a("v_cvt_pk_bf16_f32 v20, v20, v20\nv_lshlrev_b32 v20, 16, v20\nv_mul_f32 v20, v20, v21\nv_cvt_pk_bf16_f32 v20, v20, v20")
        a(f"ds_write_b16 v16, v20 offset:{M_HS}")
        self.arrive(C_H)
        if self.dlds:
            self.wait_then(C_H, 4, lambda: a(f"ds_read_b128 v[28:31], v17 offset:{M_HS}\nds_read_b128 v[32:35], v17 offset:{M_HS + 64}"), 2)
            for ks in range(2):
                a(f"s_waitcnt lgkmcnt({1 - ks})")
                for b in range(4):
                    self.mfma("bf16", YA + 4 * b, 28 + 4 * ks, WD + 16 * ks + 4 * b, YA + 4 * b if ks else None)
            a("s_mov_b32 vcc_lo, 0xffff0000\ns_mov_b32 vcc_hi, 0xffff0000\ns_mov_b32 s52, 0\ns_mov_b32 s53, -1")
            a(f"v_cndmask_b32 v{YA}, v{YA}, v{YA + 4}, vcc\nv_cndmask_b32 v{YA + 8}, v{YA + 8}, v{YA + 12}, vcc\nv_cndmask_b32 v{YA}, v{YA}, v{YA + 8}, s[52:53]")
            a(f"v_and_or_b32 v{YA}, v{YA}, s49, v14\nbuffer_store_dword v{YA}, v18, s[12:15], 0 offen sc1")
        else:
            self.wait_then(C_H, 4, lambda: a(f"ds_read_b128 v[28:31], v17 offset:{M_HS}"), 1)
            a("s_waitcnt lgkmcnt(0)")
            for p in range(4):
                for c in range(8):
                    a(f"v_dot2c_f32_bf16 v{YA + c}, v{28 + p}, v{pair[(p, c)]}")
            for c in range(4):
                a(f"v_permlane32_swap_b32 v{YA + c}, v{YA + c + 4}")
            for c in range(4):
                a(f"v_add_f32 v{YA + c}, v{YA + c}, v{YA + c + 4}")
            for c in range(2):
                a(f"v_permlane16_swap_b32 v{YA + c}, v{YA + c + 2}")
            for c in range(2):
                a(f"v_add_f32 v{YA + c}, v{YA + c}, v{YA + c + 2}")
            for c in range(2):
                a(f"v_add_f32_dpp v{YA + c}, v{YA + c}, v{YA + c} row_ror:8 row_mask:0xf bank_mask:0xf")
            a(f"v_and_or_b32 v{YA}, v{YA}, s49, v14\nv_and_or_b32 v{YA + 1}, v{YA + 1}, s49, v14")
            a("s_mov_b32 exec_lo, 0x00ff00ff\ns_mov_b32 exec_hi, 0x00ff00ff")
            a(f"buffer_store_dwordx2 v[{YA}:{YA + 1}], v18, s[12:15], 0 offen sc1")
        self.arrive(C_Y)
        if self.local:
            fallback_store()
        self.stamp(6)
        a("s_branch L_owner")
        a("L_idle:")
        for c in (C_DMA, C_HP, C_H, C_Y) + ((C_YG,) if self.psig else ()):
            if c == C_HP:
                self.sleep(self.idelay)
                if self.hint is not None and self.diag != "nomoe":
                    a(f"s_and_b32 s52, s2, 31\ns_lshl_b32 s52, s52, 7\ns_add_u32 s52, s52, {HINT}")
                    a("L_hint:\ns_load_dwordx2 s[54:55], s[12:13], s52 glc\ns_waitcnt lgkmcnt(0)\ns_cmp_eq_u64 s[54:55], s[28:29]\ns_cbranch_scc1 L_hint_ok")
                    self.spin_guard("L_hint_ok", 4)
                    a("s_branch L_hint\nL_hint_ok:")
            self.arrive(c)
        a("s_waitcnt lgkmcnt(0)\nv_readfirstlane_b32 s33, v19\nv_readfirstlane_b32 s34, v18")
        self.sleep(self.isleep)
        a("L_owner:")
        self.setprio(self.P["own"])
        if self.diag or self.cheat & 8:
            a("s_branch L_fin")
        YL, YC = 20, 28
        self.tile_decode()
        a("s_lshl_b32 s53, s53, 3\ns_add_u32 s53, s53, s46\ns_andn2_b32 s51, 0x7ff, s33\ns_mov_b32 s54, s51\ns_mov_b32 s55, 0\ns_mov_b32 s56, 0")
        a("s_mov_b32 s16, s44\ns_mov_b32 s17, s45\ns_mov_b32 s18, 0x400000\nv_and_b32 v8, 31, v2\nv_lshlrev_b32 v15, 2, v8\nv_lshlrev_b32 v8, 1, v8\nv_mov_b32 v16, 0")
        a("L_seg:")
        if self.eo:
            a("s_xor_b32 s31, s54, s53\ns_and_b32 s31, s31, 0x87\ns_cbranch_scc1 L_seg_next")
        else:
            a("s_xor_b32 s31, s54, s53\ns_and_b32 s31, s31, 0x487\ns_cbranch_scc0 L_seg_own\ns_cmpk_lg_u32 s31, 0x480\ns_cbranch_scc1 L_seg_next")
            a("L_seg_own:")
        a("s_lshl_b32 s31, s51, 11\ns_lshl_b32 s32, s47, 6\ns_add_u32 s63, s31, s32")
        a("buffer_load_ushort v9, v8, s[8:11], s63 offen")
        a(f"v_lshrrev_b32 v4, 3, v2\ns_lshl_b32 s31, s30, 4\nv_add_u32 v4, s31, v4\nv_lshlrev_b32 v4, 12, v4")
        a(f"s_lshl_b32 s31, s47, 7\ns_add_u32 s31, s31, {YP}\nv_add3_u32 v4, v4, v7, s31\ns_mov_b32 s62, 32768")
        for i in range(4):
            a(f"v_mov_b32 v{YL + 4 + i}, v14")
        a("v_lshrrev_b32 v5, 4, v2\nv_lshl_add_u32 v6, v5, 2, v7\ns_lshl_b32 s31, s30, 7\ns_add_u32 s31, s31, s55\nv_add_u32 v6, s31, v6")
        a("s_ashr_i32 s31, s33, 31\ns_orn2_b32 s31, 0x80000000, s31\ns_xor_b32 s31, s31, s33\ns_and_b32 s31, s31, 0xfffff800")
        a("v_cvt_pk_bf16_f32 v11, s31, s31\nv_lshlrev_b32 v11, 16, v11\nv_mul_f32 v11, 0xbfb8aa3b, v11\nv_exp_f32 v11, v11\ns_and_b32 s32, s34, 0xffff0000\nv_add_f32 v11, 1.0, v11\nv_rcp_f32 v11, v11")
        a("v_rcp_f32 v12, s32\nv_cvt_pk_bf16_f32 v11, v11, v11\nv_lshlrev_b32 v11, 16, v11\ns_lshl_b32 s31, s34, 16")
        if self.ywait:
            a("s_waitcnt vmcnt(0)")
        a("v_lshl_add_u32 v13, v8, 1, s55\ns_mov_b64 vcc, -1\ns_mov_b32 s56, 1")
        if self.ygate and not self.cheat & 4:
            self.wait(*self.ygate)
        self.sleep(self.ys[0])
        self.stamp(11)
        if self.stamps:
            a(f"s_mov_b32 s35, {SPIN}")
        a("L_y_poll:")
        self.stamp(12)
        a("s_mov_b64 exec, vcc")
        a(f"buffer_load_dwordx4 v[{YL}:{YL + 3}], v4, s[12:15], 0 offen sc1")
        a("s_cmp_eq_u32 s30, 3\ns_cbranch_scc1 L_y_one")
        a(f"buffer_load_dwordx4 v[{YL + 4}:{YL + 7}], v4, s[12:15], s62 offen sc1")
        a("L_y_one:\ns_mov_b64 exec, -1\ns_waitcnt vmcnt(0)")
        for i in range(8):
            a(f"v_xor_b32 v{YC + i}, v14, v{YL + i}")
        a(f"v_or3_b32 v1, v{YC}, v{YC + 1}, v{YC + 2}\nv_or3_b32 v1, v1, v{YC + 3}, v{YC + 4}\nv_or3_b32 v1, v1, v{YC + 5}, v{YC + 6}\nv_or_b32 v1, v1, v{YC + 7}")
        a(f"v_and_b32 v1, {FMASK:#x}, v1\nv_cmp_ne_u32 vcc, 0, v1")
        for p in (0, 2):
            a(f"v_pk_add_f32 v[{YC + p}:{YC + p + 1}], v[{YC + p}:{YC + p + 1}], v[{YC + 4 + p}:{YC + 5 + p}]")
        a("s_cbranch_vccz L_y_got")
        self.spin_guard("L_y_got", self.ys[1])
        a("s_branch L_y_poll")
        a("L_y_got:")
        if self.hold:
            self.arrive(C_YG)
        a(f"v_permlane16_swap_b32 v{YC}, v{YC + 1}\nv_permlane16_swap_b32 v{YC + 2}, v{YC + 3}")
        a(f"v_add_f32 v{YC}, v{YC}, v{YC + 1}\nv_add_f32 v{YC + 2}, v{YC + 2}, v{YC + 3}")
        a(f"v_permlane32_swap_b32 v{YC}, v{YC + 2}\nv_add_f32 v{YC}, v{YC}, v{YC + 2}")
        a(f"v_add_f32_dpp v{YC}, v{YC}, v{YC} row_ror:8 row_mask:0xf bank_mask:0xf")
        a(f"ds_write_b32 v6, v{YC} offset:{L_YS}")
        a(f"s_mov_b64 exec, 1\nds_add_u32 v16, v255 offset:{L_CNT + 4 * C_ROW}\ns_mov_b64 exec, -1")
        self.stamp(13)
        a("s_cmp_lg_u32 s30, 0\ns_cbranch_scc1 L_seg_next")
        a(f"s_cmp_eq_u32 s47, 0\ns_cselect_b32 s32, {EPOCH}, {OOB}\nv_mov_b32 v5, {OOB}\nv_writelane_b32 v5, s32, 0\nv_mov_b32 v18, s28\nv_mov_b32 v19, s29")
        a("s_lshl_b32 s31, s34, 16\nv_lshlrev_b32 v9, 16, v9\nv_subrev_f32 v10, s31, v9\nv_cvt_pk_bf16_f32 v10, v10, v10\nv_lshlrev_b32 v10, 16, v10\nv_mul_f32 v10, v10, v12")
        a("v_cvt_pk_bf16_f32 v10, v10, v10\nv_lshlrev_b32 v10, 16, v10")

        def row_reads():
            for j in range(4):
                a(f"ds_read_b32 v{YL + j}, v13 offset:{L_YS + 128 * j}")
            a(f"ds_read_b32 v{YL + 4}, v15 offset:{L_ROW}")

        self.wait_then(C_ROW, 4 if self.cheat & 4 else 5, row_reads, 5, "v16")
        a("s_waitcnt lgkmcnt(0)")
        y = YL
        a(f"v_add_f32 v{y}, v{y}, v{y + 1}\nv_add_f32 v{y + 2}, v{y + 2}, v{y + 3}\nv_add_f32 v{y}, v{y}, v{y + 2}")
        a(f"v_cvt_pk_bf16_f32 v{y}, v{y}, v{y}\nv_lshlrev_b32 v{y}, 16, v{y}\nv_mul_f32 v{y}, v{y}, v11")
        a(f"v_cvt_pk_bf16_f32 v{y}, v{y}, v{y}\nv_lshlrev_b32 v{y}, 16, v{y}\nv_add_f32 v{y}, v{y}, v10")
        a(f"v_cvt_pk_bf16_f32 v{y}, v{y}, v{y}\nv_lshlrev_b32 v{y}, 16, v{y}\nv_mul_f32 v1, 0xbfb8aa3b, v{y}")
        a(f"v_mul_f32 v{y}, v1, v{YL + 4}\nv_exp_f32 v1, v1\nv_add_f32 v1, 1.0, v1\nv_rcp_f32 v1, v1")
        a(f"s_mov_b32 exec_hi, 0\nv_fma_f32 v{y}, v{y}, v1, v9\nv_cvt_pk_bf16_f32 v{y}, v{y}, v{y}")
        a(f"buffer_store_short v{y}, v8, s[16:19], s63 offen {self.oflag}")
        a("buffer_store_dwordx2 v[18:19], v5, s[12:15], 0 offen sc1")
        a("s_mov_b64 exec, -1")
        self.stamp(14)
        a("L_seg_next:")
        a("s_cmp_lg_u32 s55, 0\ns_cbranch_scc1 L_seg_end")
        a(f"s_mov_b32 s55, 512\ns_sub_u32 s54, 0, s51\ns_sub_u32 s47, 31, s47\nv_mov_b32 v16, {4 * (C_ROW1 - C_ROW)}")
        a("v_and_b32 v15, 24, v2\nv_xor_b32 v15, 24, v15\nv_sub_u32 v1, 0, v2\nv_and_b32 v1, 7, v1\nv_add_u32 v15, v15, v1\nv_lshlrev_b32 v15, 2, v15\nv_add_u32 v15, 128, v15")
        a("s_branch L_seg")
        a("L_seg_end:")
        if self.hold:
            a("s_cmp_lg_u32 s56, 0\ns_cbranch_scc1 L_fin")
            self.arrive(C_YG)

    def finish(self):
        a = self.a
        a("L_fin:")
        self.role = "all"
        if self.probe:
            if self.probe == ("all", 15):
                a("s_waitcnt vmcnt(0)")
                self.stamp(15)
            a("s_cmp_eq_u32 s68, 0\ns_cbranch_scc1 L_exit\ns_mov_b32 s35, 100000")
            a("L_probe:\ns_sleep 1\ns_memrealtime s[70:71]\ns_waitcnt lgkmcnt(0)\ns_sub_u32 s31, s70, s68\ns_cmp_ge_u32 s31, 4000\ns_cbranch_scc1 L_exit")
            a("s_cmp_eq_u32 s35, 0\ns_cbranch_scc1 L_exit\ns_sub_u32 s35, s35, 1\ns_branch L_probe")
        if self.stamps:
            a("s_waitcnt vmcnt(0)")
            self.stamp(15)
            if self.stamps is not True and ("cnt", 0) in self.stamps:
                a("v_writelane_b32 v211, s35, 10")
            a(f"v_writelane_b32 v211, s68, 0\ns_lshl_b32 s31, s2, 3\ns_add_u32 s31, s31, s3\ns_lshl_b32 s31, s31, 6\ns_add_u32 s31, s31, {STAMP}\nv_lshl_add_u32 v4, v2, 2, s31")
            a("s_mov_b64 exec, 0xffff\nbuffer_store_dword v211, v4, s[12:15], 0 offen")
        a("L_exit:")
        a("s_endpgm")
        a("L_code_end:")
        a.kernel_desc(NAME + "_kernel", 256, 94)
        a.add_launch(NAME + "_kernel", NWG, 64 * WAVES, LDS_BYTES)

    def build(self, path, verbose=False):
        self.prologue()
        self.dft()
        self.moe()
        self.finish()
        rep = []
        self.a.lines = hazard.fix(self.a.lines, rep)
        if verbose:
            for pad, s in rep:
                print("nop", pad, s)
        if self.align:
            self.a.lines = hazard.align_runs(self.a, self.align)
        self.a.write(path, HEADER)


GROUPS = {"dft": (slice(0, 256), slice(0, 4)), "load": (slice(0, 224), slice(4, 7)), "h1": (slice(0, 224), slice(7, 8)), "idle": (slice(224, 256), slice(4, 8))}

if __name__ == "__main__":
    kw = eval(sys.argv[2]) if len(sys.argv) > 2 else {}
    Gen(**kw).build(sys.argv[1], verbose=True)
```

```python
import struct
import sys

sys.path.insert(0, "tools")
from asmgen import Asm, NAME
import hazard

EPOCH = 0
GRAN = 0x1000
HINT = 0x3000
STAT = 0x8000
HP = 0x40000
YP = 0x80000
ZB = 0x200000
ZTS = 129 * 128
STAMP = 0x1000000
OOB = 0x7FFFFF00
WBYTES = 1024 * 3584 * 2
ZMASK = 0x00030003
FMASK = 0x000000FF

RS, QS = 2592, 640
MISC = 16 * RS
EX = MISC + 2560
L_ENT = MISC
L_KEY = MISC + 80
L_MEAN = MISC + 96
L_YS = MISC + 1536
L_ROW = MISC + 1024
L_RST = MISC + 1280
L_CNT = MISC + 1344
M_XS = MISC + 128
M_HS = MISC + 896
M_G = EX + 32768
M_U = M_G + 32768
L_XT = M_U + 32768
LDS_BYTES = L_XT + 16384
C_A, C_B, C_C, C_ST3, C_D, C_ROW, C_S1, C_S2, C_HP, C_H, C_Y, C_S0, C_ROW1, C_DMA, C_E = range(15)
C_YG = 15
SHD = 16640
REL = {"k1": (C_DMA, 2), "p1": (C_YG, 1), "p4": (C_YG, 4), "k2": (C_DMA, 1), "k3": (C_DMA, 3), "s0": (C_S0, 1), "s1": (C_S1, 1), "s2": (C_S2, 1), "hp": (C_HP, 4), "h": (C_H, 4), "y": (C_Y, 4)}

SPIN = 1 << 16
NWG = 256
WAVES = 8

HEADER = """; Fused kernel: LayerNorm, Re(2-D DFT) as a folded mixed-radix transform on MFMA, routed-token SwiGLU, gating.
; Waves 0..3 of a workgroup run the transform, waves 4..7 the routed-token path."""

SHR = ("row_shr:1", "row_shr:2", "row_shr:4", "row_shr:8")


def fbits(x):
    return struct.unpack("<I", struct.pack("<f", float(x)))[0]


class Gen:
    DEFAULTS = dict(stamps=False, probe=None, diag=None, wflag="nt", oflag="sc1", prefetch=True, prio=True, psleep=2, win=21, dfirst=5, dlag=0,
                    drel=None, gate=(C_ST3, 1), rel_zw="s1", rel_x0="s0", rel_x="hp", rel_zr=None, order="zxmawg", xearly=2, zwith=False,
                    nfpre=3, defer=False, near=True, dall=True, hpearly=8, tlb=(18, "OZD"), tmask=1, gslot=True, gtouch=False, walk=None, uoff=False, droll=None, pre3=True, h1pre=2, win0=None, u64=False, dlds=True, pr={}, nap=0, tgate=0, dpf=None, w1=True, eo=True, pack=False, narrow=False, counted=True, align=9, bounded=True, hint="hp", idelay=0, zflag="sc1", touch="s", isleep=0, ygate=None, ywait=True, hold=False, hs=(0, 0), ys=(0, 0), local=False, cheat=0, xb=0, xc=0)

    def __init__(self, **kw):
        self.a = Asm()
        self.role = "all"
        self.nsync = 0
        assert set(kw) <= set(self.DEFAULTS), set(kw) - set(self.DEFAULTS)
        self.__dict__.update(self.DEFAULTS)
        self.__dict__.update(kw)
        self.P = dict(dict(wait=0, dma=3, moe=3, moe2=3, own=1, stat=3, p1=3, mid=0, gate=2, tail=2), **self.pr)
        self.psig = bool({"p1", "p4"} & {self.rel_x, self.rel_zr})
        assert not (self.psig and self.hold)

    def arrive(self, c):
        self.a(f"s_mov_b64 exec, 1\nds_add_u32 v0, v255 offset:{L_CNT + 4 * c}\ns_mov_b64 exec, -1")

    def wait(self, c, n, nap=0):
        self.wait_then(c, n, None, 0, nap=nap)

    def wait_then(self, c, n, reads, count, addr="v0", nap=0):
        self.nsync += 1
        lb = f"L_sync{self.nsync}"
        self.a(f"s_branch {lb}a\n{lb}:\ns_waitcnt lgkmcnt(0)\n{lb}a:" if count > 7 else f"{lb}:")
        self.sleep(nap)
        self.a(f"ds_read_b32 v1, {addr} offset:{L_CNT + 4 * c}")
        if reads:
            reads()
        if self.bounded:
            self.a(f"s_add_u32 s92, s92, 1\ns_bitcmp1_b32 s92, 20\ns_cbranch_scc1 {lb}x")
        self.a(f"s_waitcnt lgkmcnt({count})\nv_readfirstlane_b32 s31, v1\ns_cmp_ge_u32 s31, {n}\ns_cbranch_scc0 {lb}\n{lb}x:")

    def sync(self, c, n=4):
        self.arrive(c)
        self.wait(c, n)

    def release(self, name):
        for part in name.split("+") if name else ():
            self.wait(*REL[part])

    def stamp(self, i):
        if self.probe == (self.role, i):
            self.a("s_memrealtime s[68:69]\ns_waitcnt lgkmcnt(0)")
        if self.stamps and (self.stamps is True or i == 15 or (self.role, i) in self.stamps):
            self.a(f"s_memrealtime s[70:71]\ns_waitcnt lgkmcnt(0)\nv_writelane_b32 v211, s70, {i}")

    def fine(self, i):
        if self.diag == "fine" and i not in (2, 3, 4, 5):
            self.a(f"s_memtime s[{76 + 2 * i}:{77 + 2 * i}]")

    def spin_guard(self, out, sleep=None):
        self.a(f"s_cmp_eq_u32 s35, 0\ns_cbranch_scc1 {out}\ns_sub_u32 s35, s35, 1")
        self.sleep(self.psleep if sleep is None else sleep)

    def setprio(self, p):
        if self.prio:
            self.a(f"s_setprio {p}")

    def mfma(self, ty, d, A, B, c=None):
        c = "0" if c is None else f"v[{c}:{c + 3}]"
        self.a(f"v_mfma_f32_16x16x32_{ty} v[{d}:{d + 3}], v[{A}:{A + 3}], v[{B}:{B + 3}], {c}")

    def prologue(self):
        a = self.a
        a.begin(NAME + "_kernel")
        if self.stamps:
            a("s_memrealtime s[68:69]")
        if self.tgate:
            a("s_memrealtime s[90:91]")
        a(f"s_cmp_ge_u32 s2, {NWG}\ns_cbranch_scc1 L_exit")
        a("s_load_dwordx2 s[8:9], s[0:1], 0")
        a("s_load_dwordx4 s[36:39], s[0:1], 48")
        a("s_load_dwordx2 s[12:13], s[0:1], 96")
        if self.stamps:
            a("v_mov_b32 v211, 0")
        if self.probe:
            a("s_mov_b32 s68, 0")
            if self.probe == ("all", 0):
                a("s_memrealtime s[68:69]")
        if self.prefetch:
            a("s_getpc_b64 s[32:33]\nL_pc:\ns_bfe_u32 s31, s2, 0x30003\nv_subrev_u32 v3, 492, v0\nv_lshl_add_u32 v3, v3, 3, s31\nv_lshlrev_b32 v3, 7, v3")
            a("v_cmp_gt_u32 vcc, L_code_end-L_pc, v3\ns_and_saveexec_b64 s[46:47], vcc\ns_cbranch_execz L_nopf")
            a("global_load_dword v254, v3, s[32:33]")
            a("L_nopf:\ns_mov_b64 exec, -1")
        a("v_lshrrev_b32 v1, 6, v0\nv_and_b32 v2, 63, v0")
        a("v_readfirstlane_b32 s30, v1")
        a("s_mov_b32 s10, 0x400000\ns_mov_b32 s11, 0x00020000\ns_mov_b32 s14, 0x10000000\ns_mov_b32 s15, 0x00020000")
        a(f"s_mov_b32 s35, {SPIN}\ns_mov_b32 s92, 0\nv_lshlrev_b32 v3, 4, v2")
        a("v_mov_b32 v0, 0\nv_mov_b32 v255, 1\ns_mov_b32 s3, s30\ns_and_b32 s30, s30, 3")
        a("s_cmp_ge_u32 s3, 4\ns_cbranch_scc1 L_moe")

    def tag_from_epoch(self):
        self.a("s_add_u32 s28, s28, 0x7f4a7c15\ns_addc_u32 s29, s29, 0x9e3779b9")

    def gran_slot(self):
        if self.gslot:
            self.a(f"s_and_b32 s31, s2, 7\ns_lshl_b32 s31, s31, 9\ns_lshr_b32 s32, s2, 3\ns_lshl_b32 s32, s32, 4\ns_add_u32 s31, s31, s32\ns_add_u32 s31, s31, {GRAN}")
        else:
            self.a(f"s_lshl_b32 s31, s2, 4\ns_add_u32 s31, s31, {GRAN}")

    def gran_issue(self, g):
        for j in range(4):
            self.a(f"buffer_load_dwordx4 v[{g + 4 * j}:{g + 4 * j + 3}], v3, s[12:15], s63 offen offset:{1024 * j} sc1")

    def gran_resolve(self, name, g, k):
        a = self.a
        a(f"L_{name}_check:")
        for j in range(4):
            a(f"v_cmp_ne_u64 s[{52 + 2 * j}:{53 + 2 * j}], s[28:29], v[{g + 4 * j + 2}:{g + 4 * j + 3}]")
        a(f"v_max_u32 v{k}, v{g + 1}, v{g + 5}\nv_max3_u32 v{k}, v{k}, v{g + 9}, v{g + 13}")
        a("s_or_b64 s[64:65], s[52:53], s[54:55]\ns_or_b64 vcc, s[56:57], s[58:59]\ns_or_b64 s[64:65], s[64:65], vcc")
        a(f"s_cbranch_scc0 L_{name}_got")
        self.spin_guard(f"L_{name}_got")
        for j in range(4):
            a(f"s_mov_b64 exec, s[{52 + 2 * j}:{53 + 2 * j}]\ns_cbranch_execz L_{name}_skip{j}")
            a(f"buffer_load_dwordx4 v[{g + 4 * j}:{g + 4 * j + 3}], v3, s[12:15], s63 offen offset:{1024 * j} sc1")
            a(f"L_{name}_skip{j}:")
        a(f"s_mov_b64 exec, -1\ns_waitcnt vmcnt(0)\ns_branch L_{name}_check")
        a(f"L_{name}_got:")
        a(f"v_max_u32_dpp v{k + 1}, v{k}, v{k} row_ror:1 row_mask:0xf bank_mask:0xf")
        for d in ("row_ror:2", "row_ror:4", "row_ror:8"):
            a(f"v_max_u32_dpp v{k + 1}, v{k + 1}, v{k + 1} {d} row_mask:0xf bank_mask:0xf")
        a(f"v_readlane_b32 s33, v{k + 1}, 0\nv_readlane_b32 s31, v{k + 1}, 16\nv_readlane_b32 s32, v{k + 1}, 32\nv_readlane_b32 s34, v{k + 1}, 48")
        a("s_max_u32 s33, s33, s31\ns_max_u32 s32, s32, s34\ns_max_u32 s33, s33, s32")

    def gran_stats(self, g, k):
        a = self.a
        for j in (1, 2, 3):
            a(f"v_cmp_eq_u32 s[{50 + 2 * j}:{51 + 2 * j}], s33, v{g + 4 * j + 1}")
        a(f"v_cmp_eq_u32 vcc, s33, v{k}")
        a(f"v_cndmask_b32 v{k + 1}, v{g}, v{g + 4}, s[52:53]\nv_cndmask_b32 v{k + 1}, v{k + 1}, v{g + 8}, s[54:55]\nv_cndmask_b32 v{k + 1}, v{k + 1}, v{g + 12}, s[56:57]")
        a("s_ff1_i32_b64 s32, vcc")
        a(f"v_readlane_b32 s34, v{k + 1}, s32")

    def p2_matrix(self, MM, T0, T1, T2):
        a = self.a
        a(f"v_and_b32 v{T0}, 15, v2\nv_add_u32 v{T0}, s53, v{T0}\nv_cvt_f32_u32 v{T0}, v{T0}\nv_add_f32 v{T0}, 0.5, v{T0}\nv_mul_f32 v{T0}, 0x3b800000, v{T0}")
        a(f"v_and_b32 v{T1}, 32, v2\nv_bfe_u32 v{T2}, v2, 4, 1\nv_lshl_add_u32 v{T1}, v{T2}, 3, v{T1}\nv_cvt_f32_u32 v{T1}, v{T1}\nv_mul_f32 v{T1}, v{T1}, v{T0}")
        for p in range(2):
            for hf in range(2):
                for dw in range(4):
                    c0 = 64 * hf + 16 * (dw // 2) + 4 * (dw % 2) + p
                    dc, ds = MM + 4 * (2 * p + hf) + dw, MM + 16 + 4 * (2 * p + hf) + dw
                    a(f"v_fmamk_f32 v{dc}, v{T0}, {fbits(c0):#x}, v{T1}\nv_fmamk_f32 v{T2}, v{T0}, {fbits(c0 + 2):#x}, v{T1}")
                    a(f"v_sin_f32 v{ds}, v{dc}\nv_sin_f32 v{T2 + 1}, v{T2}\nv_cos_f32 v{dc}, v{dc}\nv_cos_f32 v{T2}, v{T2}")
                    a(f"v_cvt_pk_f16_f32 v{ds}, v{ds}, v{T2 + 1}\nv_cvt_pk_f16_f32 v{dc}, v{dc}, v{T2}")
        a(f"v_cmp_gt_u32 vcc, 16, v2\nv_and_b32 v{T2}, 1, v2\nv_lshlrev_b32 v{T2}, 15, v{T2}\nv_or_b32 v{T2}, 0x3c00, v{T2}\nv_and_b32 v{T0}, 0xffff0000, v{MM + 16}\nv_or_b32 v{T2}, v{T2}, v{T0}")
        a(f"v_cndmask_b32 v{MM + 16}, v{MM + 16}, v{T2}, vcc")

    def tile_decode(self, t1=46, tile=47, tau=53):
        if self.eo:
            self.a(f"s_and_b32 s31, s2, 7\ns_sub_u32 s32, 8, s31\ns_min_u32 s{t1}, s31, s32\ns_lshr_b32 s{tau}, s31, 2\ns_lshr_b32 s{tile}, s2, 3")
            self.a(f"s_and_b32 s32, s{tile}, 1\ns_and_b32 s31, s31, 3\ns_cselect_b32 s{tau}, s{tau}, s32\ns_cselect_b32 s31, 0, 1\ns_lshr_b32 s{tile}, s{tile}, s31\ns_lshl_b32 s{tau}, s{tau}, 4")
        else:
            self.a(f"s_and_b32 s31, s2, 7\ns_sub_u32 s32, 8, s31\ns_min_u32 s{t1}, s31, s32\ns_cmp_gt_u32 s31, 4\ns_cselect_b32 s31, 16, 0")
            self.a(f"s_lshr_b32 s{tile}, s2, 4\ns_add_u32 s{tile}, s{tile}, s31\ns_bfe_u32 s{tau}, s2, 0x10003\ns_lshl_b32 s{tau}, s{tau}, 7\ns_add_u32 s{tau}, s{tau}, s31")

    XS_, VTA, XR, VTC, VSA = (112, 113, 114, 115), 116, 117, 118, 119

    def out_addresses(self):
        a = self.a
        XS_, VTA, XR, VTC, VSA = self.XS_, self.VTA, self.XR, self.VTC, self.VSA
        self.tile_decode(76, 77, 78)
        a("s_lshl_b32 s31, s30, 5\ns_add_u32 s78, s78, s31\ns_lshl_b32 s78, s78, 3\ns_add_u32 s78, s78, s76")
        a("s_lshl_b32 s77, s77, 6\ns_sub_u32 s79, 1984, s77\ns_lshl_b32 s76, s76, 1\ns_add_u32 s76, s76, 2040")
        a(f"v_and_b32 v{VTA}, 15, v2\nv_lshl_add_u32 v{VTA}, v{VTA}, 3, s78")
        if self.eo:
            a(f"v_and_b32 v7, 32, v2\nv_lshl_add_u32 v7, v7, 5, v{VTA}")
        else:
            a(f"s_mov_b32 vcc_lo, 0\ns_mov_b32 vcc_hi, -1\nv_sub_u32 v7, s76, v{VTA}\nv_cndmask_b32 v7, v{VTA}, v7, vcc")
        a("s_mov_b32 vcc_lo, 0xffff0000\ns_mov_b32 vcc_hi, 0xffff0000\nv_sub_u32 v6, 0, v7\nv_cndmask_b32 v7, v7, v6, vcc")
        a(f"v_and_b32 v6, 7, v7\nv_and_b32 v1, 1024, v7\nv_lshl_add_u32 v6, v6, 11, v1\nv_and_b32 v1, 0xf8, v7\nv_lshl_add_u32 v6, v1, 2, v6")
        a(f"v_bfe_u32 v1, v7, 9, 1\nv_lshl_add_u32 v{VSA}, v1, 4, v6\nv_and_b32 v1, 256, v7\nv_cmp_ne_u32 s[88:89], 0, v1")
        if self.cheat & 2:
            a(f"v_and_b32 v{VSA}, 0x1f0, v3")
        d, vt = XS_, VTC
        a(f"v_lshrrev_b32 v{vt}, 2, v2\nv_lshl_add_u32 v{vt}, v{vt}, 3, s78\nv_lshlrev_b32 v1, 1, v2\nv_xor_b32 v1, v1, v3\nv_and_b32 v1, 48, v1")
        a(f"v_add_u32 v{d[2]}, 1024, v{vt}" if self.eo else f"v_sub_u32 v{d[2]}, s76, v{vt}")
        a(f"v_sub_u32 v{d[1]}, 0, v{vt}\nv_and_b32 v{d[1]}, 2047, v{d[1]}\nv_sub_u32 v{d[3]}, 2048, v{d[2]}")
        a(f"v_add_u32 v{d[0]}, s77, v1\nv_lshl_add_u32 v{d[2]}, v{d[2]}, 11, v{d[0]}\nv_lshl_add_u32 v{d[0]}, v{vt}, 11, v{d[0]}")
        a(f"v_xor_b32 v1, 48, v1\nv_add_u32 v1, s79, v1\nv_lshl_add_u32 v{d[1]}, v{d[1]}, 11, v1\nv_lshl_add_u32 v{d[3]}, v{d[3]}, 11, v1")
        a(f"s_lshl_b32 s76, s30, 12\ns_add_u32 s76, s76, {EX if self.dlds else L_XT}")
        a(f"v_and_b32 v1, 15, v2\nv_lshlrev_b32 v6, 6, v1\nv_lshlrev_b32 v1, 3, v2\nv_xor_b32 v1, v1, v2\nv_and_b32 v1, 48, v1\nv_add3_u32 v{XR}, v6, v1, s76")

    def x_loads(self, h0, h1):
        for h in range(h0, h1):
            self.a(f"s_add_u32 m0, s76, {1024 * h}")
            self.a(f"buffer_load_dwordx4 v{self.XS_[h]}, s[8:11], 0 offen lds")

    def park_move(self):
        new = dict(XS_=(4, 5, 249, 205), VTA=248, XR=208, VTC=7, VSA=6)
        for o, n in zip(self.XS_ + (self.VTA, self.XR, self.VTC, self.VSA), new["XS_"] + (new["VTA"], new["XR"], new["VTC"], new["VSA"])):
            self.a(f"v_mov_b32 v{n}, v{o}")
        self.__dict__.update(new)

    def hint_store(self, at):
        if self.hint != at:
            return
        a = self.a
        a("s_cmp_eq_u32 s30, 1\ns_cselect_b32 s31, s2, 0\ns_cmp_lt_u32 s31, 192\ns_cbranch_scc1 L_no_hint")
        a(f"s_and_b32 s31, s2, 31\ns_lshl_b32 s31, s31, 7\ns_add_u32 s31, s31, {HINT}\nv_mov_b32 v250, s28\nv_mov_b32 v251, s29\ns_mov_b64 exec, 1")
        a("buffer_store_dwordx2 v[250:251], v0, s[12:15], s31 offen sc1\ns_mov_b64 exec, -1")
        a("L_no_hint:")

    def sleep(self, n):
        while n > 0:
            self.a(f"s_sleep {min(n, 127)}")
            n -= 127

    def dft(self):
        a = self.a
        self.role = "dft"
        CV, M2, TW, M3, MM = 8, 16, 48, 80, 88
        RW, WR = 120, 152
        T = 160
        VPUB = 4

        a("s_and_b32 s31, s2, 7\ns_lshr_b32 s32, s2, 4\ns_sub_u32 s32, 15, s32\ns_lshl_b32 s32, s32, 3\ns_add_u32 s46, s32, s31\ns_bfe_u32 s47, s2, 0x10003")
        a("s_lshl_b32 s31, s47, 2\ns_add_u32 s51, s31, s30\ns_lshl_b32 s31, s51, 8\ns_add_u32 s52, s31, s46\ns_xor_b32 s54, s52, 1024")
        a("s_sub_u32 s53, 2048, s52\ns_add_u32 s31, s52, 128\ns_cmp_eq_u32 s46, 0\ns_cselect_b32 s53, s31, s53\ns_cselect_b32 s50, 1, 0\ns_xor_b32 s55, s53, 1024")
        for i in range(4):
            a(f"s_lshl_b32 s{56 + i}, s{52 + i}, 11")
        a("s_mov_b32 s22, 2048\ns_mov_b32 s23, 0x00020000")
        a(f"v_mov_b32 v1, 0\nv_and_b32 v6, 15, v2\nv_lshlrev_b32 v6, 2, v6\nds_write_b64 v0, v[0:1] offset:{L_ENT + 32}\nds_write_b32 v6, v0 offset:{L_CNT}")
        a("s_waitcnt lgkmcnt(0)")
        if self.diag == "start":
            a("s_memrealtime s[80:81]")
        a(f"s_load_dwordx2 s[28:29], s[12:13], {EPOCH}\ns_load_dwordx2 s[16:17], s[0:1], 80")
        for r in range(4):
            if r == 2:
                a("s_mov_b32 s20, s36\ns_mov_b32 s21, s37")
                a(f"buffer_load_dwordx4 v[{WR}:{WR + 3}], v3, s[20:23], 0 offen")
                a(f"buffer_load_dwordx4 v[{WR + 4}:{WR + 7}], v3, s[20:23], 0 offen offset:1024")
                if self.defer:
                    break
            a(f"buffer_load_dwordx4 v[{RW + 8 * r}:{RW + 8 * r + 3}], v3, s[8:11], s{56 + r} offen")
            a(f"buffer_load_dwordx4 v[{RW + 8 * r + 4}:{RW + 8 * r + 7}], v3, s[8:11], s{56 + r} offen offset:1024")
        if self.diag == "start":
            a("s_memrealtime s[82:83]")
        a("s_barrier")
        if self.near:
            a("s_branch L_dft_rest")
            self.moe_head()
            a("s_branch L_dma_done")
            a("L_dft_rest:")
            self.role = "dft"
        if self.diag == "start":
            a(f"s_memrealtime s[84:85]\ns_waitcnt vmcnt({2 if self.defer else 6})\ns_memrealtime s[86:87]\ns_waitcnt lgkmcnt(0)")
            for i in range(4):
                a(f"v_writelane_b32 v211, s{80 + 2 * i}, {1 + i}")
        a("s_mov_b32 s18, 0x400000\ns_mov_b32 s19, 0x00020000")
        VROW, VEN, VST, VLD, VLM, VTR, VEX, VSG = T + 40, T + 41, T + 42, T + 44, T + 45, T + 46, T + 47, T + 48
        a(f"s_sub_u32 s31, 2047, s52\ns_sub_u32 s32, 2047, s53\nv_mov_b32 v{VROW}, s31\nv_writelane_b32 v{VROW}, s32, 63")
        a(f"s_lshl_b32 s31, s30, 2\nv_mov_b32 v{VEN}, s31\ns_bfe_u32 s31, s53, 0x20008\ns_lshl_b32 s31, s31, 2\ns_add_u32 s31, s31, 16\nv_writelane_b32 v{VEN}, s31, 63")
        a(f"v_and_b32 v6, 32, v2\ns_lshl_b32 s31, s51, 2\nv_add_u32 v{VST + 1}, s31, v6\nv_lshrrev_b32 v{VST}, 1, v{VST + 1}")
        self.gran_slot()
        a(f"v_mov_b32 v{VPUB}, s31\nv_lshlrev_b32 v5, 3, v2")
        for t in range(2):
            a(f"s_and_b32 s31, s{52 + t}, 7\ns_lshl_b32 s31, s31, 11\ns_and_b32 s32, s{52 + t}, 1024\ns_add_u32 s31, s31, s32\ns_and_b32 s32, s{52 + t}, 0xf8\ns_lshl_b32 s32, s32, 2")
            a(f"s_add_u32 s31, s31, s32\ns_add_u32 s31, s31, {STAT}\nv_writelane_b32 v{VPUB}, s31, {2 * t}\ns_add_u32 s31, s31, 16\nv_writelane_b32 v{VPUB}, s31, {2 * t + 1}")
        a(f"s_mul_i32 s31, s51, {RS}\nv_and_b32 v{VLD}, 32, v2\nv_lshlrev_b32 v{VLD}, 2, v{VLD}\nv_add3_u32 v{VLD}, v{VLD}, v3, s31")
        a(f"s_lshl_b32 s32, s31, 1\ns_add_u32 s32, s32, {8 * RS + 63 * 16 + 128}\nv_sub_u32 v{VLM}, s32, v{VLD}")
        a(f"v_bfe_u32 v{VTR}, v2, 2, 2\nv_mul_u32_u24 v{VTR}, {RS}, v{VTR}\nv_lshrrev_b32 v6, 4, v2\nv_mul_u32_u24 v7, {QS}, v6\nv_add_u32 v{VTR}, v{VTR}, v7")
        a(f"v_and_b32 v7, 3, v2\nv_lshlrev_b32 v7, 3, v7\ns_lshl_b32 s31, s30, 7\nv_add3_u32 v{VTR}, v{VTR}, v7, s31")
        a(f"v_lshlrev_b32 v6, 12, v6\nv_and_b32 v7, 15, v2\nv_lshl_add_u32 v6, v7, 4, v6\ns_lshl_b32 s31, s30, 8\nv_add_u32 v{VEX}, s31, v6")
        a(f"v_bfe_i32 v{VSG}, v2, 4, 1\nv_and_b32 v{VSG}, 0x80008000, v{VSG}")

        T0, T1, T2 = T + 90, T + 91, T + 92
        a(f"s_cmp_eq_u32 s47, 0\ns_movk_i32 s48, 0x7403\ns_cselect_b32 s48, 0x7721, s48\nv_and_b32 v{T0}, 12, v2\nv_bfe_u32 v{T0}, s48, v{T0}, 4")
        a(f"v_lshrrev_b32 v{T1}, 4, v2\nv_bfe_u32 v{T2}, v2, 1, 1\nv_mul_u32_u24 v{T1}, v{T1}, v{T2}\nv_and_b32 v{T2}, 1, v2\nv_add_u32 v{T1}, v{T1}, v{T2}")
        a(f"v_cvt_f32_u32 v{T0}, v{T0}\nv_cvt_f32_u32 v{T1}, v{T1}\nv_mul_f32 v{T0}, 0x3e000000, v{T0}\nv_mul_f32 v{T1}, 0x3e800000, v{T1}")
        for j in range(8):
            a(f"v_cos_f32 v{CV + j}, v{T1}")
            if j < 7:
                a(f"v_add_f32 v{T1}, v{T1}, v{T0}")
        for j in range(8):
            a(f"v_mul_f32 v{CV + j}, 0xbf317218, v{CV + j}")
        BI = T + 52
        a(f"v_lshrrev_b32 v{T0}, 2, v2\nv_and_b32 v{T0}, 12, v{T0}\nv_and_b32 v{T1}, 15, v2\nv_lshlrev_b32 v{T1}, 2, v{T1}")
        a(f"v_cvt_f32_u32 v{T0}, v{T0}\nv_cvt_f32_u32 v{T1}, v{T1}\nv_mul_f32 v{BI}, 0x3c800000, v{T0}")
        a(f"s_lshl_b32 s31, s30, 2\ns_lshr_b32 s48, s48, s31\ns_and_b32 s48, s48, 15\ns_sub_u32 s31, s48, 4\ns_mul_i32 s31, s31, s46\nv_cvt_f32_i32 v{T2}, s31\nv_mul_f32 v{T2}, 0x3a000000, v{T2}")
        a(f"v_add_f32 v{BI + 1}, 0x3c800000, v{BI}\nv_add_f32 v{BI + 2}, 0x3d000000, v{BI}\nv_add_f32 v{BI + 3}, 0x3d400000, v{BI}")
        def consts(f0, f1):
            for f in range(f0, f1):
                for i in range(4):
                    re, im = M2 + 8 * f + i, M2 + 8 * f + 4 + i
                    tc, ts = TW + 8 * f + i, TW + 8 * f + 4 + i
                    a(f"v_mul_f32 v{T0}, v{BI + i}, v{T1}")
                    a(f"v_fmamk_f32 v{ts}, v{T0}, 0x3d800000, v{T2}")
                    a(f"v_sin_f32 v{im}, v{T0}\nv_cos_f32 v{T0}, v{T0}\nv_cos_f32 v{tc}, v{ts}\nv_sin_f32 v{ts}, v{ts}")
                    a(f"v_cvt_pk_f16_f32 v{re}, v{T0}, v{im}\nv_cvt_pk_f16_f32 v{im}, -v{im}, v{T0}")
                if f < 3:
                    a(f"v_add_f32 v{T1}, 1.0, v{T1}")

        VZ = T + 49

        def late_consts():
            consts(self.nfpre, 4)
            a("s_and_b32 s31, s46, 1\ns_lshl_b32 s31, s31, 6\ns_lshr_b32 s32, s46, 1\ns_add_u32 s49, s31, s32")
            a("s_bitcmp1_b32 s49, 2\ns_cselect_b64 vcc, -1, 0")
            for i in range(4):
                a(f"v_cndmask_b32 v{M3 + i}, v{M2 + i}, v{M2 + 4 + i}, vcc\nv_cndmask_b32 v{M3 + 4 + i}, v{M2 + 4 + i}, v{M2 + i}, vcc")
            a(f"s_bfe_u32 s31, s49, 0x10001\nv_and_b32 v6, 7, v2\nv_xor_b32 v6, s31, v6\nv_lshlrev_b32 v6, 4, v6")
            a(f"v_lshrrev_b32 v7, 4, v2\nv_lshlrev_b32 v7, 3, v7\nv_bfe_u32 v{VZ}, v2, 3, 1\nv_add_u32 v7, v7, v{VZ}\nv_mul_u32_u24 v7, {ZTS}, v7\nv_add_u32 v{VZ}, v6, v7")
            a(f"s_mul_i32 s31, s48, {32 * ZTS}\ns_lshl_b32 s32, s49, 7\ns_add_u32 s31, s31, s32\ns_add_u32 s60, s31, {ZB}")

        self.out_addresses()
        consts(0, self.nfpre)
        SS, QQ, DD, DC = T, T + 4, T + 8, T + 10
        PB, RST, MEAN, SH = T + 12, T + 16, T + 32, T + 56
        for r in range(11):
            a(f"v_mov_b32 v{T + r}, 0")
        if self.defer:
            a("s_mov_b32 s84, s58\ns_mov_b32 s85, s59")
        a("s_mov_b32 s57, 0x3f803f80\ns_mov_b32 s59, 0xffff\ns_brev_b32 s67, 1\ns_mov_b32 s66, 0\ns_brev_b32 s64, 1\ns_brev_b32 s65, 1")
        a(f"s_cmp_eq_u32 s47, 0\ns_movk_i32 s62, {-4 * RS}\ns_cselect_b32 s62, {4 * RS}, s62")
        a("s_waitcnt lgkmcnt(0)")
        self.tag_from_epoch()
        a(f"v_mov_b32 v{PB + 2}, s28\nv_mov_b32 v{PB + 3}, s29")
        a(f"s_cmp_lt_u32 s2, {0 if self.diag == 'nomoe' else 224}\ns_cbranch_scc1 L_epoch_ok")
        self.wait(C_E, 4)
        a("L_epoch_ok:")
        self.setprio(self.P["stat"])
        self.stamp(1)

        def sq(r):
            for i in range(8):
                x = RW + 8 * r + i
                a(f"v_dot2c_f32_bf16 v{SS + r}, s57, v{x}\nv_dot2c_f32_bf16 v{QQ + r}, v{x}, v{x}")

        def plain(r, off):
            a(f"ds_write_b128 v{VLD}, v[{RW + 8 * r}:{RW + 8 * r + 3}] offset:{off}\nds_write_b128 v{VLD}, v[{RW + 8 * r + 4}:{RW + 8 * r + 7}] offset:{off + 2 * QS}")

        def rotate(r):
            b = RW + 8 * r
            a(f"v_mov_b32_dpp v6, v{b} wave_rol:1 row_mask:0xf bank_mask:0xf\nv_mov_b32_dpp v7, v{b + 4} wave_rol:1 row_mask:0xf bank_mask:0xf")
            for half in range(2):
                for i in (1, 2, 3):
                    a(f"v_bfi_b32 v{SH + 4 * (1 - half) + i}, s59, v{b + 4 * half + 4 - i}, v{b + 4 * half + 3 - i}")
            a(f"v_cndmask_b32 v{SH + 4}, v6, v7, s[66:67]\nv_cndmask_b32 v{SH}, v7, v6, s[66:67]")
            a(f"v_bfi_b32 v{SH + 4}, s59, v{SH + 4}, v{b + 3}\nv_bfi_b32 v{SH}, s59, v{SH}, v{b + 7}")

        def second(r):
            a(f"s_cmp_lg_u32 s50, 0\ns_cbranch_scc1 L_plain{r}")
            a(f"ds_write_b128 v{VLM}, v[{SH}:{SH + 3}]\nds_write_b128 v{VLM}, v[{SH + 4}:{SH + 7}] offset:{2 * QS}\ns_branch L_second{r}")
            a(f"L_plain{r}:")
            plain(r, 8 * RS)
            a(f"L_second{r}:")

        def reduce(regs):
            for r in regs:
                a(f"v_permlane32_swap_b32 v{r}, v{r + 1}")
            for r in regs:
                a(f"v_add_f32 v{r}, v{r}, v{r + 1}")
            for d, m in [(d, 0xf) for d in SHR] + [("row_bcast:15", 0xa)]:
                for r in regs:
                    a(f"v_add_f32_dpp v{r}, v{r}, v{r} {d} row_mask:{m:#x} bank_mask:0xf")

        def tail(m_, q_, NM, st):
            a(f"v_mul_f32 v{m_}, 0x3a800000, v{m_}\nv_mul_f32 v{q_}, 0x3a800000, v{q_}")
            a(f"v_fma_f32 v{q_}, -v{m_}, v{m_}, v{q_}\nv_cvt_pk_bf16_f32 v{NM}, -v{m_}, -v{m_}\nv_max_f32 v{q_}, 0, v{q_}")
            a(f"v_cvt_pk_bf16_f32 v{q_}, v{q_}, v{q_}\nv_and_b32 v{q_}, 0xffff0000, v{q_}\nv_add_f32 v{q_}, 0x3727c5ac, v{q_}")
            a(f"v_cvt_pk_bf16_f32 v{q_}, v{q_}, v{q_}\nv_and_b32 v{q_}, 0xffff0000, v{q_}\nv_sqrt_f32 v{q_}, v{q_}\nv_and_b32 v{q_ + 1}, 0xffff0000, v{NM}")
            a(f"v_cvt_pk_bf16_f32 v{st}, v{m_}, v{q_}\nv_and_b32 v{q_}, 0xffff0000, v{st}\nv_rcp_f32 v{q_}, v{q_}")

        a(f"s_waitcnt vmcnt({4 if self.defer else 8})")
        if self.defer:
            for r in (2, 3):
                a(f"buffer_load_dwordx4 v[{RW + 8 * r}:{RW + 8 * r + 3}], v3, s[8:11], s{82 + r} offen")
                a(f"buffer_load_dwordx4 v[{RW + 8 * r + 4}:{RW + 8 * r + 7}], v3, s[8:11], s{82 + r} offen offset:1024")
        sq(0)
        a("s_waitcnt vmcnt(6)")
        sq(1)
        a("s_waitcnt vmcnt(4)")
        self.stamp(2)
        for i in range(8):
            a(f"v_dot2c_f32_bf16 v{DC}, s57, v{WR + i}")
        for i in range(8):
            a(f"v_dot2c_f32_bf16 v{DD}, v{WR + i}, v{RW + i}\nv_dot2c_f32_bf16 v{DD + 1}, v{WR + i}, v{RW + 8 + i}")
            if i == 3:
                a(f"v_mov_b32 v{DC + 1}, v{DC}")
        reduce((SS, QQ, DC, DD))
        t_, NM, st = DD, SS + 1, T + 88
        tail(SS, QQ, NM, st)
        a(f"v_fmac_f32 v{t_}, v{DC}, v{QQ + 1}\nv_mul_f32 v{t_}, v{t_}, v{QQ}")
        a(f"v_ashrrev_i32 v{DC}, 31, v{t_}\nv_or_b32 v{DC}, 0x80000000, v{DC}\nv_xor_b32 v{t_}, v{t_}, v{DC}")
        a(f"v_and_b32 v{t_}, 0xfffff800, v{t_}\nv_or_b32 v{st + 1}, v{VROW}, v{t_}")
        a("s_mov_b64 exec, s[64:65]")
        a(f"ds_write_b32 v{VEN}, v{st} offset:{L_ENT}\nds_max_u64 v0, v[{st}:{st + 1}] offset:{L_ENT + 32}")
        a(f"s_mov_b64 exec, 1\nds_add_rtn_u32 v1, v0, v255 offset:{L_CNT + 4 * C_A}\ns_mov_b64 exec, 31\nds_read_b64 v[{PB}:{PB + 1}], v5 offset:{L_ENT}")
        a("s_mov_b64 exec, s[64:65]")
        a(f"ds_write_b16 v{VST}, v{NM} offset:{L_MEAN}\nds_write_b32 v{VST + 1}, v{QQ} offset:{L_RST}")
        a("s_mov_b64 exec, -1")
        rotate(1)
        a("s_waitcnt lgkmcnt(2)\nv_readfirstlane_b32 s31, v1\ns_cmp_lg_u32 s31, 3\ns_cbranch_scc1 L_not_last")
        a(f"s_mov_b64 exec, 31\nbuffer_store_dwordx4 v[{PB}:{PB + 3}], v{VPUB}, s[12:15], 0 offen sc1\ns_mov_b64 exec, -1")
        self.stamp(3)
        a("s_waitcnt vmcnt(1)\ns_branch L_b_ready")
        a("L_not_last:")
        a("s_waitcnt vmcnt(0)")
        a("L_b_ready:")
        self.setprio(self.P["p1"])
        if self.diag == "pubonly":
            self.arrive(self.gate[0])
            self.arrive(C_ST3)
            a("s_branch L_fin")
        plain(0, 0)
        second(1)
        a(f"v_add_u32 v{VLD}, s62, v{VLD}\nv_add_u32 v{VLM}, s62, v{VLM}")
        sq(2)
        plain(2, 0)
        sq(3)
        a(f"v_xor_b32 v{VST}, 8, v{VST}\nv_xor_b32 v{VST + 1}, 16, v{VST + 1}\ns_waitcnt lgkmcnt(2)")
        rotate(3)
        second(3)
        reduce((SS + 2, QQ + 2))
        tail(SS + 2, QQ + 2, NM, st)
        a("s_mov_b64 exec, s[64:65]")
        a(f"ds_write_b16 v{VST}, v{NM} offset:{L_MEAN}\nds_write_b32 v{VST + 1}, v{QQ + 2} offset:{L_RST}")
        self.arrive(C_B)
        AD, AM, C0 = T, WR, T + 8

        def stat_reads():
            for k in range(4):
                a(f"ds_read_b128 v[{RST + 4 * k}:{RST + 4 * k + 3}], v0 offset:{L_RST + 16 * k}")
            a(f"ds_read_b128 v[{MEAN}:{MEAN + 3}], v0 offset:{L_MEAN}\nds_read_b128 v[{MEAN + 4}:{MEAN + 7}], v0 offset:{L_MEAN + 16}")

        self.wait_then(C_B, 4, stat_reads, 6)
        self.stamp(4)
        FR, DA, EE = RW, T + 56, RST

        def trd(blk):
            for m in range(2):
                for v in range(2):
                    d = FR + 8 * blk + 4 * m + 2 * v
                    a(f"ds_read_b64_tr_b16 v[{d}:{d + 1}], v{VTR} offset:{(8 * m + 4 * v) * RS + 32 * blk}")

        def cvt_ex(blk):
            for f in range(4):
                a(f"v_cvt_pk_f16_f32 v{EE + 4 * f + blk}, v{DA + 8 * blk + 2 * f}, v{DA + 8 * blk + 2 * f + 1}")

        def cvt_f(f, area):
            for blk in range(4):
                a(f"v_cvt_pk_f16_f32 v{EE + 4 * f + blk}, v{DA + 8 * blk + 2 * f}, v{DA + 8 * blk + 2 * f + 1}")
            a(f"ds_write_b128 v{VEX}, v[{EE + 4 * f}:{EE + 4 * f + 3}] offset:{EX + area + 1024 * f}")

        def write_ex(area):
            for f in range(4):
                a(f"ds_write_b128 v{VEX}, v[{EE + 4 * f}:{EE + 4 * f + 3}] offset:{EX + area + 1024 * f}")

        trd(0); trd(1)
        self.x_loads(0, self.xb)
        a("s_waitcnt lgkmcnt(10)")
        trd(2)
        for k in range(8):
            a(f"v_pk_mul_f32 v[{RST + 2 * k}:{RST + 2 * k + 1}], v[{RST + 2 * k}:{RST + 2 * k + 1}], v[{CV + 2 * (k % 4)}:{CV + 2 * (k % 4) + 1}]")
        for k in range(4):
            a(f"v_cvt_pk_bf16_f32 v{AD + k}, v{RST + 2 * k}, v{RST + 2 * k + 1}\nv_cvt_pk_bf16_f32 v{AM + k}, v{RST + 8 + 2 * k}, v{RST + 9 + 2 * k}")
        for k in range(4):
            a(f"v_xor_b32 v{AD + 4 + k}, v{VSG}, v{AD + k}\nv_xor_b32 v{AM + 4 + k}, v{VSG}, v{AM + k}")
        a("s_waitcnt lgkmcnt(12)")
        a("s_cmp_lg_u32 s50, 0\ns_cbranch_scc1 L_st1_split")
        self.mfma("bf16", C0, AD, MEAN)
        self.mfma("bf16", C0, AM, MEAN + 4, C0)
        for blk in range(4):
            d, fr = DA + 8 * blk, FR + 8 * blk
            a(f"s_waitcnt lgkmcnt({(10, 10, 6, 2)[blk]})")
            if blk == 0:
                trd(3)
            self.mfma("bf16", d, AD, fr, C0)
            a(f"s_waitcnt lgkmcnt({(12, 8, 4, 0)[blk]})")
            self.mfma("bf16", d, AM, fr + 4, d)
        for blk in range(4):
            d, fr = DA + 8 * blk, FR + 8 * blk
            self.mfma("bf16", d + 4, AD + 4, fr)
            self.mfma("bf16", d + 4, AM + 4, fr + 4, d + 4)
            if blk in (1, 2):
                cvt_f(blk - 1, 0)
        cvt_f(2, 0)
        cvt_f(3, 0)
        a("s_branch L_st1_done")
        a("L_st1_split:")
        a("s_waitcnt lgkmcnt(8)")
        trd(3)
        a("s_waitcnt lgkmcnt(0)")
        for A, o, area in ((AD, 0, 0), (AM, 4, 16384)):
            self.mfma("bf16", C0, A, MEAN + o)
            for blk in range(4):
                self.mfma("bf16", DA + 8 * blk + 4, A + 4, FR + 8 * blk + o)
                self.mfma("bf16", DA + 8 * blk, A, FR + 8 * blk + o, C0)
            if area:
                a("s_waitcnt lgkmcnt(0)")
            for blk in range(4):
                cvt_ex(blk)
            write_ex(area)
        a("L_st1_done:")
        self.x_loads(self.xb, self.xc)
        self.arrive(C_C)
        PP, UU, TT, ZZ, VTAG = RW, RW + 16, WR, T + 56, T + 50
        a(f"s_lshl_b32 s31, s30, 12\nv_add_u32 v5, s31, v3\ns_and_b32 s31, s28, {ZMASK:#x}\nv_mov_b32 v{VTAG}, s31\ns_mov_b32 s58, {~ZMASK & 0xFFFFFFFF:#x}")
        a("s_and_b32 s32, s48, 3\ns_cselect_b32 s72, -1, 0xff\ns_cselect_b32 s73, -1, 0\ns_mov_b32 s74, s48")
        a("s_mov_b64 s[60:61], 0\ns_mov_b64 s[62:63], 0")
        a(f"v_mov_b32 v{VZ}, {OOB}\ns_cmp_eq_u32 s48, 7\ns_cbranch_scc1 L_no_consts")
        late_consts()
        a("L_no_consts:")

        def ex_reads():
            for f in range(4):
                a(f"ds_read_b128 v[{PP + 4 * f}:{PP + 4 * f + 3}], v5 offset:{EX + 1024 * f}")

        a("L_st23:")
        self.wait_then(C_C, 4, ex_reads, 4)
        self.stamp(5)
        a("s_cmp_eq_u32 s48, 7\ns_cbranch_scc1 L_p1_done")
        for i in range(1, 4):
            a(f"s_add_u32 s{60 + i}, s{59 + i}, {2 * ZTS}")

        def st2(f):
            u = UU + 8 * (f % 2)
            a(f"s_waitcnt lgkmcnt({3 - f})")
            self.mfma("f16", u, PP + 4 * f, M2 + 8 * f)
            self.mfma("f16", u + 4, PP + 4 * f, M2 + 8 * f + 4)

        def tw(f):
            u = UU + 8 * (f % 2)
            tc, ts = TW + 8 * f, TW + 8 * f + 4
            for p in (0, 2):
                a(f"v_pk_mul_f32 v[{TT + p}:{TT + p + 1}], v[{tc + p}:{tc + p + 1}], v[{u + p}:{u + p + 1}]")
            for p in (0, 2):
                a(f"v_pk_mul_f32 v[{TT + 4 + p}:{TT + 5 + p}], v[{ts + p}:{ts + p + 1}], v[{u + p}:{u + p + 1}]")
            for p in (0, 2):
                a(f"v_pk_fma_f32 v[{TT + p}:{TT + p + 1}], v[{ts + p}:{ts + p + 1}], v[{u + 4 + p}:{u + 5 + p}], v[{TT + p}:{TT + p + 1}]")
                a(f"v_pk_fma_f32 v[{TT + 4 + p}:{TT + 5 + p}], v[{tc + p}:{tc + p + 1}], v[{u + 4 + p}:{u + 5 + p}], v[{TT + 4 + p}:{TT + 5 + p}] neg_lo:[0,0,1] neg_hi:[0,0,1]")
            for i in range(4):
                a(f"v_cvt_pk_f16_f32 v{PP + 4 * f + i}, v{TT + i}, v{TT + 4 + i}")

        def st3(f):
            self.mfma("f16", ZZ + 8 * f, M3, PP + 4 * f)
            self.mfma("f16", ZZ + 8 * f + 4, M3 + 4, PP + 4 * f)

        OO = T + 16

        def pack(lo):
            for i in range(4):
                o = OO + 4 * i + lo
                a(f"v_cvt_pk_f16_f32 v{o}, v{ZZ + 16 * lo + i}, v{ZZ + 16 * lo + 8 + i}\nv_cvt_pk_f16_f32 v{o + 2}, v{ZZ + 16 * lo + 4 + i}, v{ZZ + 16 * lo + 12 + i}")
                a(f"v_and_or_b32 v{o}, v{o}, s58, v{VTAG}\nv_and_or_b32 v{o + 2}, v{o + 2}, s58, v{VTAG}")

        def z_stores():
            for i in range(4):
                if i < 2:
                    a(f"s_mov_b32 exec_hi, s{72 + i}")
                a(f"buffer_store_dwordx4 v[{OO + 4 * i}:{OO + 4 * i + 3}], v{VZ}, s[12:15], s{60 + i} offen {self.zflag}")
            a("s_mov_b32 exec_hi, -1")

        st2(0); st2(1); tw(0); st2(2); st3(0); tw(1); st2(3); st3(1); tw(2); st3(2); tw(3); st3(3); pack(0); pack(1)
        a("s_cmp_eq_u32 s50, 0\ns_cbranch_scc1 L_p1_done")
        z_stores()
        a(f"s_mov_b32 s50, 0\ns_add_u32 s60, s60, 16384\nv_add_u32 v5, 16384, v5\ns_sub_u32 s31, s48, 4\nv_cvt_f32_i32 v{T2}, s31\nv_mul_f32 v{T2}, 0x3d800000, v{T2}")
        a(f"v_and_b32 v{T1}, 15, v2\nv_lshlrev_b32 v{T1}, 2, v{T1}\nv_cvt_f32_u32 v{T1}, v{T1}")
        for i in range(4):
            a(f"v_fma_f32 v{T0}, v{BI + i}, v{T1}, v{T2}\nv_sin_f32 v{M3 + 4 + i}, v{T0}\nv_cos_f32 v{T0}, v{T0}")
            a(f"v_cvt_pk_f16_f32 v{M3 + i}, v{T0}, v{M3 + 4 + i}\nv_cvt_pk_f16_f32 v{M3 + 4 + i}, -v{M3 + 4 + i}, v{T0}")
        a("s_branch L_st23")
        a("L_p1_done:")
        self.arrive(C_ST3)
        self.stamp(6)
        self.setprio(self.P["mid"])
        self.park_move()
        self.phase2(MM, VTAG, z_stores)

    def phase2(self, MM, VTAG, z_stores):
        a = self.a
        XP, SG, XF, GG = 8, 24, 40, 120
        AC, ZL, AF, GR = 216, 72, 152, 192
        ZN = 212
        XS_, VTA, XR, VTC, VSA = self.XS_, self.VTA, self.XR, self.VTC, self.VSA
        self.tile_decode()
        a(f"s_lshl_b32 s31, s30, 5\ns_add_u32 s53, s53, s31\ns_lshl_b32 s48, s46, 1\ns_add_u32 s48, s48, 2040\ns_mov_b32 s49, {STAT}")
        x_loads = self.x_loads

        def x_reads(h0, h1):
            for h in range(h0, h1):
                a(f"ds_read_b128 v[{XP + 4 * h}:{XP + 4 * h + 3}], v{XR} offset:{1024 * h}")
            a("s_waitcnt lgkmcnt(0)")

        XE = max(self.xearly, self.xc)

        ledger = []

        def younger(tag):
            return len(ledger) - 1 - max(i for i, t in enumerate(ledger) if t == tag)

        def step(op):
            if op == "x":
                self.release(self.rel_x0)
                a(f"buffer_load_dwordx4 v[{SG}:{SG + 3}], v6, s[12:15], s49 offen")
                x_loads(self.xc, XE)
                ledger.extend("x" * (1 + XE - self.xc))
            elif op == "z":
                if self.rel_zw:
                    a("s_cmp_ge_u32 s2, 224\ns_cbranch_scc1 L_zst_go")
                    self.release(self.rel_zw)
                    a("L_zst_go:")
                z_stores()
                ledger.extend("zzzz")
                self.stamp(7)
                if self.cheat & 4:
                    a("s_branch L_fin")
            elif op == "m":
                self.p2_matrix(MM, 160, 161, 162)
            elif op == "a":
                addresses()
            elif op == "w":
                stat_wait()
            elif op == "g":
                x_reads(0, XE)
                self.stamp(13)
                gate(0, XE)
                self.stamp(14)
            elif op == "y" and XE < 4:
                self.release(self.rel_x)
                x_loads(XE, 4)
                ledger.extend("y" * (4 - XE))
            elif op == "t":
                a(f"s_mov_b32 exec_lo, {self.tmask & 0xFFFFFFFF:#x}\ns_mov_b32 exec_hi, {self.tmask >> 32:#x}")
                for h in range(4):
                    a(f"buffer_load_dword v197, v{XS_[h]}, s[16:19], 0 offen")
                a("s_mov_b64 exec, -1")
                ledger.extend("tttt")
            elif op == "k":
                masks()
            elif op == "v" and XE < 4:
                a(f"s_waitcnt vmcnt({younger('y')})")
            elif op == "r":
                self.release(self.rel_zr)
                z_loads()
                ledger.extend("rrrrr")
            elif op == "h":
                self.setprio(self.P["gate"])
                x_reads(XE, 4)
                self.stamp(8)
                gate(XE, 4)

        def addresses():
            a(f"s_mul_i32 s51, s46, {32 * ZTS}\ns_add_u32 s51, s51, {ZB}\ns_mul_i32 s54, s47, {ZTS}\ns_lshl_b32 s32, s30, 12\ns_add_u32 s50, s51, s54\ns_add_u32 s50, s50, s32")
            a(f"s_add_u32 s55, s47, 1\ns_and_b32 s55, s55, 31\ns_mul_i32 s55, s55, {ZTS}\nv_add_u32 v250, s32, v3\nv_add_u32 v199, s76, v3")
            a(f"v_lshl_add_u32 v200, v2, 7, s32\nv_and_b32 v1, 2, v2\nv_lshl_add_u32 v200, v1, 3, v200\nv_and_b32 v1, 0x70, v3\nv_add_u32 v1, 16384, v1")
            a(f"s_mov_b32 vcc_lo, 0\ns_mov_b32 vcc_hi, -1\nv_cndmask_b32 v200, v200, v1, vcc\ns_mov_b32 vcc_hi, 0xff\nv_mov_b32 v1, s55\nv_mov_b32 v201, s54")
            a(f"v_cndmask_b32 v1, v1, v201, vcc\nv_mov_b32 v201, {SHD}\nv_cndmask_b32 v201, v201, v0, vcc\nv_add_u32 v201, v201, v200\nv_add_u32 v200, v1, v200")
            if self.cheat & 1:
                a("v_and_b32 v200, 0x70, v3\nv_add_u32 v200, s54, v200")
            a("v_lshrrev_b32 v251, 5, v2\nv_lshlrev_b32 v251, 11, v251\nv_bfe_u32 v1, v2, 2, 3\nv_lshl_add_u32 v251, v1, 7, v251")
            a("v_and_b32 v1, 3, v2\nv_lshl_add_u32 v251, v1, 5, v251\nv_bfe_u32 v1, v2, 3, 1\nv_lshl_add_u32 v251, v1, 4, v251\nv_bfe_u32 v1, v2, 4, 1\nv_lshl_add_u32 v251, v1, 3, v251")
            a("v_xor_b32 v252, 16, v251\nv_xor_b32 v253, 8, v251\nv_xor_b32 v254, 24, v251\nv_cmp_gt_u32 vcc, 4, v2\nv_mov_b32 v1, 16384\nv_cndmask_b32 v1, v0, v1, vcc")
            a("v_add_u32 v206, v253, v1\nv_add_u32 v207, v254, v1")
            a(f"s_mov_b32 vcc_lo, 0x88888888\ns_mov_b32 vcc_hi, 0x88888888\nv_mov_b32 v1, {SHD - 96}\nv_cndmask_b32 v1, 32, v1, vcc")
            a("v_add_u32 v202, v251, v1\nv_add_u32 v203, v253, v1\nv_add_u32 v204, v206, v1")

        def stat_wait():
            a(f"s_waitcnt vmcnt({younger('x') if self.counted else 0})")
            a("L_stat_check:")
            a(f"v_cmp_ne_u64 vcc, s[28:29], v[{SG + 2}:{SG + 3}]\ns_cbranch_vccz L_stat_got")
            self.spin_guard("L_stat_got")
            a(f"s_mov_b64 exec, vcc\nbuffer_load_dwordx4 v[{SG}:{SG + 3}], v6, s[12:15], s49 offen sc1")
            a("s_mov_b64 exec, -1\ns_waitcnt vmcnt(0)\ns_branch L_stat_check")
            a("L_stat_got:")
            a(f"v_cndmask_b32 v{SG}, v{SG}, v{SG + 1}, s[88:89]")
            a(f"v_mov_b32 v{SG + 8}, v{SG}\nv_permlane32_swap_b32 v{SG}, v{SG + 8}\nv_mov_b32 v{SG + 4}, v{SG}\nv_mov_b32 v{SG + 12}, v{SG + 8}")
            a(f"v_permlane16_swap_b32 v{SG}, v{SG + 4}\nv_permlane16_swap_b32 v{SG + 8}, v{SG + 12}")
            for h in range(4):
                s_ = SG + 4 * h
                a(f"v_lshlrev_b32 v{s_ + 2}, 16, v{s_}\nv_and_b32 v{s_}, 0xffff0000, v{s_}\nv_rcp_f32 v{s_}, v{s_}")
            for h in range(4):
                s_ = SG + 4 * h
                a(f"v_mul_f32 v{s_}, 0xbfb8aa3b, v{s_}\nv_mul_f32_e64 v{s_ + 2}, -v{s_ + 2}, v{s_}")

        def z_loads():
            for j in range(4):
                a(f"buffer_load_dwordx4 v[{ZL + 4 * j}:{ZL + 4 * j + 3}], v3, s[12:15], s50 offen offset:{1024 * j} sc1")
            a("s_mov_b32 exec_hi, 0x1ff")
            a(f"buffer_load_dwordx4 v[{ZN}:{ZN + 3}], v200, s[12:15], s51 offen sc1")
            a("s_mov_b32 exec_hi, -1")

        def slots(h, i):
            if h % 2 == 0:
                return 8 * h + 2 * i, 8 * h + 2 * i + 1
            return 8 * h + (8 - 2 * i) % 8, 8 * h + 7 - 2 * i

        def gate(h0, h1):
            rng = range(4 * h0, 4 * h1)
            for i in rng:
                lo, hi = slots(i // 4, i % 4)
                a(f"v_lshlrev_b32 v{XF + lo}, 16, v{XP + i}\nv_and_b32 v{XF + hi}, 0xffff0000, v{XP + i}")
            for i in rng:
                s_ = SG + 4 * (i // 4)
                a(f"v_pk_fma_f32 v[{GG + 2 * i}:{GG + 2 * i + 1}], v[{XF + 2 * i}:{XF + 2 * i + 1}], v[{s_}:{s_ + 1}], v[{s_ + 2}:{s_ + 3}] op_sel_hi:[1,0,0]")
            for i in rng:
                a(f"v_exp_f32 v{AC + 2 * i}, v{GG + 2 * i}\nv_exp_f32 v{AC + 2 * i + 1}, v{GG + 2 * i + 1}")
            for i in rng:
                a(f"v_pk_add_f32 v[{AC + 2 * i}:{AC + 2 * i + 1}], v[{AC + 2 * i}:{AC + 2 * i + 1}], 1.0 op_sel_hi:[1,0]")
            for i in rng:
                a(f"v_rcp_f32 v{AC + 2 * i}, v{AC + 2 * i}\nv_rcp_f32 v{AC + 2 * i + 1}, v{AC + 2 * i + 1}")
            for i in rng:
                a(f"v_pk_mul_f32 v[{GG + 2 * i}:{GG + 2 * i + 1}], v[{GG + 2 * i}:{GG + 2 * i + 1}], v[{AC + 2 * i}:{AC + 2 * i + 1}]")

        for i in range(4):
            a(f"v_mov_b32 v{ZN + i}, v{VTAG}")
        def masks():
            self.wait_then(C_S2, 1, lambda: a(f"ds_read_b32 v198, v0 offset:{L_KEY + 4}"), 1)
            a(f"v_and_b32 v6, 48, v2\nv_lshlrev_b32 v6, 1, v6\nv_mov_b32 v209, {OOB}\ns_waitcnt lgkmcnt(0)\nv_readfirstlane_b32 s33, v198")
            a("s_andn2_b32 s33, 0x7ff, s33\ns_sub_u32 s31, 0, s33\ns_and_b32 s31, s31, 2047")
            a("s_sub_u32 s32, s33, 1024\ns_sub_u32 s34, s31, 1024" if self.eo else "s_sub_u32 s32, s48, s33\ns_sub_u32 s34, s48, s31")
            for h, sr in enumerate((33, 31, 32, 34)):
                a(f"v_cmp_eq_u32 vcc, s{sr}, v{VTC}\nv_cmp_eq_u32 s[{54 + 2 * h}:{55 + 2 * h}], s{sr}, v{VTA}\nv_cndmask_b32 v{XS_[h]}, v{XS_[h]}, v209, vcc")
            a("s_or_b64 s[62:63], s[54:55], s[58:59]\ns_or_b64 s[64:65], s[56:57], s[60:61]")

        order = self.order if "r" in self.order else self.order + ("ykrvh" if self.zwith else "ykvrh")
        assert sorted(order.replace("t", "")) == sorted("xzmawgykvrh") and order.find("t") < order.index("r")
        for first, second in ("xw", "wg", "yk", "zk", "wk", "yv", "vh", "wh", "ar", "xr", "yr", "zr", "ak"):
            assert order.index(first) < order.index(second), (first, second)
        for op in order:
            step(op)
        if self.u64:
            a(f"s_and_b32 s31, s28, {ZMASK:#x}\ns_sub_u32 s66, 0, s31\ns_subb_u32 s67, 0, s31")
        self.stamp(9)
        a("L_z_wait:")
        self.setprio(self.P["tail"])
        ZC = AF + 8
        srcs = [ZL + i for i in range(16)] + [ZN + i for i in range(4)]
        for j in range(5):
            a(f"s_waitcnt vmcnt({4 - j})")
            for i in range(4):
                if not self.u64:
                    a(f"v_xor_b32 v{ZC + 4 * j + i}, v{VTAG}, v{srcs[4 * j + i]}")
                elif i % 2 == 0:
                    a(f"v_lshl_add_u64 v[{ZC + 4 * j + i}:{ZC + 4 * j + i + 1}], v[{srcs[4 * j + i]}:{srcs[4 * j + i] + 1}], 0, s[66:67]")
            if j < 4:
                a(f"ds_write_b128 v250, v[{ZC + 4 * j}:{ZC + 4 * j + 3}] offset:{1024 * j}")
            else:
                a(f"s_mov_b32 exec_hi, 0x1ff\nds_write_b128 v201, v[{ZC + 16}:{ZC + 19}]\ns_mov_b32 exec_hi, -1")
            if j == 0:
                a(f"v_or3_b32 v1, v{ZC}, v{ZC + 1}, v{ZC + 2}\nv_or_b32 v1, v1, v{ZC + 3}")
            else:
                a(f"v_or3_b32 v1, v1, v{ZC + 4 * j}, v{ZC + 4 * j + 1}\nv_or3_b32 v1, v1, v{ZC + 4 * j + 2}, v{ZC + 4 * j + 3}")
        a(f"v_and_b32 v1, {ZMASK:#x}, v1\nv_cmp_ne_u32 vcc, 0, v1\ns_cbranch_vccz L_z_got")
        self.spin_guard("L_z_got")
        a("s_mov_b64 exec, vcc")
        for j in range(4):
            a(f"buffer_load_dwordx4 v[{ZL + 4 * j}:{ZL + 4 * j + 3}], v3, s[12:15], s50 offen offset:{1024 * j} sc1")
        a("s_and_b32 exec_hi, exec_hi, 0x1ff\ns_or_b32 exec_lo, exec_lo, 1")
        a(f"buffer_load_dwordx4 v[{ZN}:{ZN + 3}], v200, s[12:15], s51 offen sc1")
        a("s_mov_b64 exec, -1\ns_waitcnt lgkmcnt(0)\ns_branch L_z_wait")
        a("L_z_got:")
        self.stamp(10)
        self.fine(0)
        if self.hold:
            a(f"ds_read_b32 v198, v0 offset:{L_CNT + 4 * C_YG}")
        self.arrive(C_D)
        self.fine(1)
        if self.diag == "fine":
            a("s_waitcnt lgkmcnt(0)")

        def rd(ks):
            c, ph = ks // 4, ks % 4
            b = AF + 8 * (ks % 4)
            for mb in range(2):
                for v in range(2):
                    ad = 206 + mb if (ks == 4 and v == 0) else 251 + mb + 2 * c
                    a(f"ds_read_b64_tr_b16 v[{b + 4 * mb + 2 * v}:{b + 4 * mb + 2 * v + 1}], v{ad} offset:{4096 * ph + 1024 * v}")

        def half(ks):
            return (ks % 4) // 2 if self.eo else ks // 4

        def first(ks):
            return ks in ((0, 2) if self.eo else (0, 4))

        def b3(ks):
            return (ZL if ks < 4 else 240 - 16 * (ks // 6) * 4) + 4 * (ks % 4)

        def rd3(ks):
            c, ph = ks // 4, ks % 4
            for v in range(2):
                ad = 204 if (ks == 4 and v == 0) else 202 + c
                a(f"ds_read_b64_tr_b16 v[{b3(ks) + 2 * v}:{b3(ks) + 2 * v + 1}], v{ad} offset:{4096 * ph + 1024 * v}")

        def mf3(ks):
            d = AC + 16 + 4 * half(ks)
            self.mfma("f16", d, b3(ks), MM + 4 * ks, None if first(ks) else d)

        self.wait_then(C_D, 4, lambda: rd(0), 4)
        if self.hold:
            a("v_readfirstlane_b32 s66, v198")
        self.stamp(11)
        rd(1); rd(2)
        for ks in range(8):
            b = AF + 8 * (ks % 4)
            a("s_waitcnt lgkmcnt(8)")
            for mb in range(2):
                d = AC + 8 * half(ks) + 4 * mb
                self.mfma("f16", d, b + 4 * mb, MM + 4 * ks, None if first(ks) else d)
            if ks + 3 < 8:
                rd(ks + 3)
            else:
                rd3(2 * (ks - 5))
                rd3(2 * (ks - 5) + 1)
        a("s_waitcnt lgkmcnt(8)")
        rd3(6); rd3(7)
        mf3(0); mf3(1)
        a("s_waitcnt lgkmcnt(4)")
        mf3(2); mf3(3)
        SA = AF

        def combine(h):
            ng = " neg_lo:[0,1] neg_hi:[0,1]" if h else ""
            for i in range(4):
                e, o = AC + 2 * i, AC + 8 + 2 * i
                a(f"v_pk_add_f32 v[{SA + 8 * h + 2 * i}:{SA + 8 * h + 2 * i + 1}], v[{e}:{e + 1}], v[{o}:{o + 1}]{ng}")

        def emit(h, between=None):
            sa = SA + 8 * (h // 2)
            for i in range(4):
                k = 8 * h + 2 * i
                a(f"v_pk_fma_f32 v[{XF + k}:{XF + k + 1}], v[{sa + 2 * i}:{sa + 2 * i + 1}], v[{GG + k}:{GG + k + 1}], v[{XF + k}:{XF + k + 1}]")
            if between:
                between()
            for i in range(4):
                lo, hi = slots(h, i)
                a(f"v_cvt_pk_bf16_f32 v{XP + 4 * h + i}, v{XF + lo}, v{XF + hi}")
            a(f"ds_write_b128 v{XR}, v[{XP + 4 * h}:{XP + 4 * h + 3}] offset:{1024 * h}")
            a(f"ds_read_b128 v[{SG + 4 * h}:{SG + 4 * h + 3}], v199 offset:{1024 * h}")

        def store(h, left):
            a(f"s_waitcnt lgkmcnt({left})")
            if self.cheat & 16:
                return
            a(f"buffer_store_dwordx4 v[{SG + 4 * h}:{SG + 4 * h + 3}], v{XS_[h]}, s[16:19], 0 offen {self.oflag}")

        def dump(m, sfx=''):
            a(f"s_cmp_eq_u64 s[{62 + 2 * m}:{63 + 2 * m}], 0\ns_cbranch_scc1 L_nodump{m}{sfx}")
            for h in (m, m + 2):
                sa, o = SA + 8 * (h // 2), L_ROW + 128 * m
                a(f"s_mov_b64 exec, s[{54 + 2 * h}:{55 + 2 * h}]")
                a(f"ds_write_b128 v6, v[{sa}:{sa + 3}] offset:{o}\nds_write_b128 v6, v[{sa + 4}:{sa + 7}] offset:{o + 16}")
            self.arrive(C_ROW1 if m else C_ROW)
            a("s_waitcnt lgkmcnt(0)")
            a(f"L_nodump{m}{sfx}:")

        def tail_a():
            a("s_waitcnt lgkmcnt(0)")
            self.fine(2)
            mf3(6); mf3(7)

        combine(0)
        mf3(4); mf3(5)
        emit(0, tail_a)
        self.fine(3)
        combine(1)
        dump(0)
        emit(2)
        if self.hold:
            a("s_cmp_lt_u32 s66, 4\ns_cbranch_scc1 L_held")
        store(0, 2)
        self.fine(4)
        a(f"v_add_f32 v{SA}, v{AC + 16}, v{AC + 20}\nv_sub_f32 v{SA + 8}, v{AC + 16}, v{AC + 20}")
        dump(1)
        emit(1)
        store(2, 2)
        self.fine(5)
        emit(3)
        store(1, 2)
        store(3, 0)
        self.fine(6)
        if self.diag == "fine":
            a("s_waitcnt vmcnt(0)")
            self.fine(7)
            a("s_waitcnt lgkmcnt(0)")
            for i in range(1, 8):
                a(f"s_sub_u32 s31, s{76 + 2 * i}, s76\ns_add_u32 s31, s31, s68\nv_writelane_b32 v211, s31, {i}")
        self.stamp(12)
        a("s_branch L_fin")
        if self.hold:
            a("L_held:")
            a(f"v_add_f32 v{SA}, v{AC + 16}, v{AC + 20}\nv_sub_f32 v{SA + 8}, v{AC + 16}, v{AC + 20}")
            dump(1, "h")
            emit(1)
            emit(3)
            self.wait(C_YG, 4)
            for h in range(4):
                store(h, 0)
            self.stamp(12)
            a("s_branch L_fin")

    def moe_head(self):
        a = self.a
        a("L_moe:")
        self.role = "moe"
        a("s_load_dwordx2 s[20:21], s[0:1], 64")
        if self.narrow:
            a("s_and_b32 s32, s2, 7\ns_mul_i32 s32, s32, 7\ns_lshr_b32 s31, s2, 6\ns_lshl_b32 s31, s31, 1\ns_add_u32 s46, s31, s32")
            a("s_bfe_u32 s47, s2, 0x30003\ns_cmp_ge_u32 s2, 192\ns_cselect_b32 s75, 1, 0\ns_lshl_b32 s47, s47, s75\ns_and_b32 s47, s47, 7")
        else:
            a("s_and_b32 s32, s2, 7\ns_mul_i32 s32, s32, 28\ns_lshr_b32 s31, s2, 3\ns_add_u32 s31, s31, s32\ns_lshr_b32 s46, s31, 3\ns_lshl_b32 s46, s46, 1\ns_and_b32 s47, s31, 7\ns_mov_b32 s75, 0")
        for d in (16, 20, 24):
            a(f"s_mov_b32 s{d + 2}, {WBYTES}\ns_mov_b32 s{d + 3}, 0x00020000")
        a("v_lshrrev_b32 v4, 4, v2\nv_lshlrev_b32 v5, 5, v4\nv_and_b32 v6, 0x70, v3\nv_xor_b32 v5, v5, v6\nv_mul_u32_u24 v4, 7168, v4")
        a(f"s_mul_i32 s31, s47, {128 * 7168}\ns_lshl_b32 s32, s46, 7\ns_add_u32 s31, s31, s32\nv_add3_u32 v4, v4, v5, s31")
        a(f"s_cmp_eq_u32 s75, 0\ns_mov_b32 s31, {128 * 7168}\ns_cselect_b32 s31, 128, s31\nv_add_u32 v6, s31, v4")
        a("s_mov_b32 vcc_lo, 0xff00ff00\ns_mov_b32 vcc_hi, 0xff00ff00\nv_cndmask_b32 v5, v6, v4, vcc\nv_cndmask_b32 v4, v4, v6, vcc")
        a(f"s_mov_b32 s48, 0\ns_mov_b32 s49, {M_G}")
        a("s_waitcnt lgkmcnt(0)")
        a("s_mov_b32 s16, s38\ns_mov_b32 s17, s39")
        if self.diag == "start":
            a("s_memrealtime s[80:81]\ns_waitcnt lgkmcnt(0)\nv_writelane_b32 v211, s80, 1")
        if self.gtouch:
            self.gran_slot()
            a("s_load_dword s54, s[12:13], s31")
        a(f"s_load_dwordx2 s[28:29], s[12:13], {EPOCH}\ns_load_dwordx2 s[24:25], s[0:1], 72\ns_load_dwordx2 s[44:45], s[0:1], 80")
        a("s_barrier")
        a(f"s_cmp_ge_u32 s2, {0 if self.diag == 'nomoe' else 224}\ns_cselect_b32 s66, 0, 1\ns_cbranch_scc1 L_dma_done")
        a("s_cmp_lg_u32 s30, 0\ns_cbranch_scc1 L_dma_done")
        self.setprio(self.P["dma"])
        if self.uoff:
            a(f"s_mov_b32 s52, {32768 + 4096}\ns_mov_b32 s53, {16 * 7168}")
        phases = [(self.win, 128)] if not self.win0 else [self.win0, (self.win, 128)]
        for n, (win, rows) in enumerate(phases):
            a(f"L_dma{n}:")
            for i in range(4):
                a(f"s_mov_b32 m0, s49\ns_waitcnt vmcnt({win - (1 if self.w1 else 2)})")
                a(f"buffer_load_dwordx4 v{4 + i // 2}, s[16:19], s48 offen {self.wflag} lds")
                if self.uoff:
                    a("s_add_u32 m0, s49, s52\ns_add_u32 s31, s48, s53\ns_add_u32 s49, s49, 1024")
                else:
                    a("s_add_u32 m0, s49, 32768\ns_add_u32 s49, s49, 1024")
                if self.w1:
                    a(f"s_waitcnt vmcnt({win - 1})")
                a(f"buffer_load_dwordx4 v{4 + i // 2}, s[20:23], {'s31' if self.uoff else 's48'} offen {self.wflag} lds")
                a(f"s_add_u32 s48, s48, {4 * 7168}")
            if self.uoff:
                a("s_sub_u32 s52, 65536, s52\ns_sub_u32 s53, 0, s53")
            a(f"s_cmp_lt_u32 s48, {rows * 7168}\ns_cbranch_scc1 L_dma{n}")

    def moe(self):
        a = self.a
        if not self.near:
            self.moe_head()
        self.role = "moe"
        a("L_dma_done:")
        self.setprio(self.P["wait"])
        WD = 100
        a("s_lshr_b32 s31, s47, 2\ns_andn2_b32 s31, s31, s75\ns_add_u32 s50, s31, s46")
        a("s_lshl_b32 s31, s50, 17\ns_bfe_u32 s32, s2, 0x20003\ns_lshl_b32 s32, s32, 2\ns_add_u32 s51, s32, s30\ns_lshl_b32 s32, s51, 7\ns_add_u32 s31, s31, s32")
        if self.dlds:
            assert self.xc == 0
            a("v_lshrrev_b32 v6, 3, v2\nv_lshlrev_b32 v6, 11, v6\nv_and_b32 v7, 0x70, v3\nv_and_b32 v11, 16, v2\nv_lshlrev_b32 v11, 1, v11\nv_xor_b32 v11, v11, v7")
            a("v_add3_u32 v6, v6, v11, s31\nv_xor_b32 v11, 64, v6")
            a(f"s_lshl_b32 s74, s30, 13\ns_cmp_lt_u32 s30, 2\ns_mov_b32 s31, {L_XT - 16384}\ns_cselect_b32 s31, {EX + 16384}, s31\ns_add_u32 s74, s74, s31")
        else:
            a("v_lshrrev_b32 v6, 3, v2\nv_lshlrev_b32 v6, 14, v6\nv_and_b32 v7, 0x70, v3\nv_add3_u32 v6, v6, v7, s31")
        a("s_mov_b32 s60, 4096\ns_mov_b32 s61, 8192\ns_mov_b32 s62, 12288")
        if self.cheat & 128:
            a("s_lshl_b32 s31, s50, 4\ns_add_u32 s31, s31, s51\ns_lshl_b32 s31, s31, 13\nv_add_u32 v6, s31, v3\ns_mov_b32 s60, 1024\ns_mov_b32 s61, 4096\ns_mov_b32 s62, 5120")
        if self.cheat & 256:
            a("s_lshl_b32 s31, s50, 17\ns_lshl_b32 s32, s30, 15\ns_add_u32 s31, s31, s32\ns_bfe_u32 s32, s2, 0x20003\ns_lshl_b32 s32, s32, 9\ns_add_u32 s31, s31, s32")
            a("v_lshrrev_b32 v6, 5, v2\nv_lshlrev_b32 v6, 14, v6\nv_and_b32 v250, 0x1f0, v3\nv_add3_u32 v6, v6, v250, s31")

        def d_loads(j0, j1):
            for j in range(j0, j1):
                if self.cheat & 32:
                    a(f"buffer_load_dwordx4 v[{WD + 4 * j}:{WD + 4 * j + 3}], v7, s[24:27], 0 offen")
                    continue
                if self.dlds:
                    a(f"s_add_u32 m0, s74, {1024 * j}\ns_mov_b32 s31, {16384 * j}")
                    a(f"buffer_load_dwordx4 v{11 if j % 2 else 6}, s[24:27], s31 offen {self.wflag} lds")
                    continue
                so = "0" if j < 2 else f"s{59 + j // 2}"
                a(f"buffer_load_dwordx4 v[{WD + 4 * j}:{WD + 4 * j + 3}], v6, s[24:27], {so} offen offset:{2048 * (j % 2)} {self.wflag}")

        a("v_bfe_u32 v8, v2, 2, 3\nv_lshlrev_b32 v9, 5, v8\ns_lshl_b32 s31, s30, 6\nv_xor_b32 v9, s31, v9")
        a(f"v_bfe_u32 v8, v2, 2, 2\nv_lshl_add_u32 v9, v8, 8, v9\nv_lshrrev_b32 v8, 4, v2\nv_lshl_add_u32 v9, v8, 11, v9\nv_and_b32 v10, 3, v2\nv_lshl_add_u32 v9, v10, 3, v9")
        a(f"v_add_u32 v9, {M_G}, v9\nv_xor_b32 v10, 32, v9\nv_lshlrev_b32 v8, 4, v8")
        a("s_lshr_b32 s31, s30, 1\ns_and_b32 s32, s31, s75\ns_lshl_b32 s32, s32, 8\nv_add_u32 v8, s32, v8\ns_cmp_eq_u32 s75, 0\ns_cselect_b32 s32, 12, 9\ns_lshl_b32 s31, s31, s32")
        a("s_lshl_b32 s32, s46, 3\ns_add_u32 s32, s32, s47\ns_lshl_b32 s32, s32, 9\ns_add_u32 s31, s31, s32")
        a(f"s_and_b32 s32, s30, 1\ns_lshl_b32 s32, s32, 8\ns_add_u32 s31, s31, s32\ns_add_u32 s31, s31, {HP}\nv_lshl_add_u32 v13, v2, 3, s31")
        a("s_waitcnt lgkmcnt(0)")
        self.tag_from_epoch()
        a(f"s_and_b32 s31, s28, {FMASK:#x}\nv_mov_b32 v14, s31\ns_mov_b32 s49, {~FMASK & 0xFFFFFFFF:#x}")
        DF = self.dfirst
        if isinstance(self.tlb, tuple):
            shift, parts = self.tlb
            a("s_cmp_lg_u32 s30, 2\ns_cbranch_scc1 L_no_tlb")
            a(f"s_mov_b32 s52, s44\ns_mov_b32 s53, s45\ns_mov_b32 s54, 0x400000\ns_mov_b32 s55, 0x00020000\nv_lshlrev_b32 v250, {shift}, v2")
            if "o" in parts:
                a("buffer_load_dword v252, v250, s[52:55], 0 offen")
            if "O" in parts:
                m = (2 << (1 << (22 - shift))) - 1
                a(f"v_min_u32 v250, 0x3ffffc, v250\ns_mov_b32 exec_lo, {m & 0xFFFFFFFF:#x}\ns_mov_b32 exec_hi, {m >> 32:#x}\nbuffer_load_dword v252, v250, s[52:55], 0 offen")
            if "Z" in parts:
                a(f"s_mov_b64 exec, 0x3f\nv_lshlrev_b32 v250, 20, v2\nv_add_u32 v250, {YP + 0x38000}, v250\nv_min_u32 v250, {ZB + (4 * 32 + 17) * ZTS}, v250")
                a("buffer_load_dword v251, v250, s[12:15], 0 offen")
            if "D" in parts:
                a("s_mov_b64 exec, 3\nv_mul_u32_u24 v250, 0x1f800, v2\nv_add_u32 v250, v250, v6\nbuffer_load_dword v253, v250, s[24:27], 0 offen")
            if "G" in parts:
                a(f"s_mov_b64 exec, 1\ns_mov_b32 s31, {127 * 7168}\nbuffer_load_dword v249, v4, s[16:19], s31 offen\nbuffer_load_dword v248, v4, s[20:23], s31 offen")
            if "z" in parts:
                a(f"s_mov_b64 exec, 3\nv_lshlrev_b32 v250, 21, v2\ns_mov_b32 s31, {ZB + 16384 + 31 * ZTS}\nbuffer_load_dword v251, v250, s[12:15], s31 offen")
            if "d" in parts:
                a("s_mov_b64 exec, 1\nbuffer_load_dword v253, v6, s[24:27], 0 offen")
            a("s_mov_b64 exec, -1\nL_no_tlb:")
        elif self.tlb:
            a("s_cmp_lg_u32 s30, 2\ns_cbranch_scc1 L_no_tlb")
            if self.tlb == "i":
                a("s_cmp_lg_u32 s66, 0\ns_cbranch_scc1 L_no_tlb")
            a("s_mov_b32 s52, s44\ns_mov_b32 s53, s45\ns_mov_b32 s54, 0x400000\ns_mov_b32 s55, 0x00020000\nv_lshlrev_b32 v250, 20, v2\ns_mov_b64 exec, 0xff")
            if self.tlb == 2:
                a("s_bfe_u32 s31, s2, 0x40003\ns_lshl_b32 s31, s31, 16\nv_add_u32 v250, s31, v250")
            a("buffer_load_dword v251, v250, s[12:15], 0 offen\nbuffer_load_dword v252, v250, s[52:55], 0 offen\nbuffer_load_dword v253, v250, s[24:27], 0 offen")
            a("s_mov_b64 exec, -1\nL_no_tlb:")
        a("s_cmp_lg_u32 s66, 0\ns_cbranch_scc1 L_tagged")
        self.arrive(C_E)
        if self.walk:
            a("s_cmp_lg_u32 s30, 1\ns_cbranch_scc1 L_no_walk")
            a("s_mov_b32 s52, s44\ns_mov_b32 s53, s45\ns_mov_b32 s54, 0x400000\ns_mov_b32 s55, 0x00020000")
            a("s_bfe_u32 s31, s2, 0x20003\ns_lshl_b32 s31, s31, 16\nv_lshl_add_u32 v250, v2, 18, s31\ns_mov_b32 exec_hi, 0")
            for ch, srd in (("g", 16), ("g", 20), ("d", 24), ("o", 52), ("w", 12)):
                if ch in self.walk:
                    a(f"buffer_load_dword v251, v250, s[{srd}:{srd + 3}], 0 offen")
            a("s_mov_b32 exec_hi, -1\nL_no_walk:")
        if self.dpf:
            gate, win, rows = self.dpf
            a("s_cmp_lg_u32 s30, 0\ns_cbranch_scc1 L_tagged")
            for c in (C_DMA, C_HP, C_H, C_Y) + ((C_YG,) if self.psig else ()):
                self.arrive(c)
            self.wait(*gate)
            a("s_and_b32 s32, s2, 7\ns_mul_i32 s32, s32, 28\ns_bfe_u32 s31, s2, 0x20003\ns_mul_i32 s31, s31, 7\ns_add_u32 s52, s31, s32\ns_add_u32 s53, s52, 7")
            a("v_lshrrev_b32 v250, 2, v2\nv_lshlrev_b32 v250, 11, v250\nv_and_b32 v251, 3, v2\nv_lshl_add_u32 v250, v251, 7, v250")
            a("L_dpf:\ns_lshr_b32 s31, s52, 2\ns_lshl_b32 s31, s31, 17\ns_and_b32 s32, s52, 3\ns_lshl_b32 s32, s32, 9\ns_add_u32 s31, s31, s32")
            for r in rows:
                a(f"s_add_u32 s32, s31, {2048 * r}\ns_waitcnt vmcnt({win - 1})\nbuffer_load_dword v251, v250, s[24:27], s32 offen")
            a("s_add_u32 s52, s52, 1\ns_cmp_lt_u32 s52, s53\ns_cbranch_scc1 L_dpf")
        a("L_tagged:")
        XA, BF, GA = 20, 36, 132
        order = [(ks, t) for ks in range(4) for t in range(4)]

        def b_reads(n0, n1):
            for n in range(n0, n1):
                ks, t = order[n]
                if n - n0 >= 7:
                    a("s_waitcnt lgkmcnt(12)")
                for v in range(2):
                    a(f"ds_read_b64_tr_b16 v[{BF + 4 * n + 2 * v}:{BF + 4 * n + 2 * v + 1}], v{9 + t % 2} offset:{32768 * (t // 2) + 8192 * ks + 1024 * v}")

        def last_k(sfx, loader=True):
            if loader:
                a(f"s_cmp_lg_u32 s30, 0\ns_cbranch_scc1 L_k3_wait{sfx}")
                a(f"s_waitcnt vmcnt({DF if self.dall else 0})")
                self.arrive(C_DMA)
                self.stamp(1)
                a(f"L_k3_wait{sfx}:")
            if sfx:
                a("s_waitcnt lgkmcnt(4)")
            self.wait_then(C_DMA, 3, lambda: b_reads(12, 16), 8)

        a("s_cmp_eq_u32 s30, 3\ns_cbranch_scc1 L_h1")
        a("s_cmp_eq_u32 s66, 0\ns_cbranch_scc1 L_key")
        a("s_cmp_lg_u32 s30, 0\ns_cbranch_scc1 L_follower")
        self.setprio(self.P["moe"])
        a("s_waitcnt vmcnt(16)")
        self.arrive(C_DMA)
        b_reads(0, 12)
        a("s_waitcnt vmcnt(8)")
        self.arrive(C_DMA)
        self.stamp(10)
        a("s_branch L_d_first" if self.dall else "s_branch L_key")
        a("L_follower:")
        if self.touch in ("s", "y"):
            a("v_readfirstlane_b32 s52, v13\ns_and_b32 s32, s30, 1\ns_lshl_b32 s32, s32, 8\ns_sub_u32 s52, s52, s32")
            a(f"s_lshl_b32 s31, s50, 12\ns_sub_u32 s31, s31, s32\ns_lshl_b32 s32, s51, 8\ns_add_u32 s31, s31, s32\ns_add_u32 s53, s31, {YP}")
            for k in range(8):
                a("s_load_dword s54, s[12:13], s53")
                if self.touch == "s":
                    a("s_load_dword s54, s[12:13], s52")
                if k < 7:
                    a("s_add_u32 s52, s52, 64\ns_add_u32 s53, s53, 64")
                if k == 3:
                    a("s_waitcnt lgkmcnt(0)")
        elif self.touch:
            a(f"s_and_b32 s32, s30, 1\ns_lshl_b32 s32, s32, 8\nv_subrev_u32 v250, s32, v13\nbuffer_load_dword v251, v250, s[12:15], 0 offen")
            a(f"s_lshl_b32 s31, s50, 12\ns_sub_u32 s31, s31, s32\ns_lshl_b32 s32, s51, 8\ns_add_u32 s31, s31, s32\ns_add_u32 s31, s31, {YP}\nv_lshl_add_u32 v250, v2, 3, s31")
            a("buffer_load_dword v252, v250, s[12:15], 0 offen")
        self.wait(C_DMA, 1, self.nap)
        self.setprio(self.P["moe"])
        b_reads(0, 12)
        a(f"s_add_u32 s67, s30, {self.dlag}")
        self.wait(C_DMA, "s67")
        a("L_d_first:")
        self.release(self.drel)
        d_loads(0, DF)
        if self.pre3:
            assert self.dall
            last_k("p")
        if self.droll:
            who, left = self.droll
            if who == "f":
                a("s_cmp_eq_u32 s30, 0\ns_cbranch_scc1 L_key")
            for j in range(DF, 8):
                a(f"s_waitcnt vmcnt({left})")
                d_loads(j, j + 1)
        a("L_key:")

        def a_reads():
            for ks in range(4):
                a(f"ds_read_b128 v[{XA + 4 * ks}:{XA + 4 * ks + 3}], v8 offset:{M_XS + 64 * ks}")

        def key_and_a():
            a(f"ds_read_b64 v[18:19], v0 offset:{L_KEY}")
            a_reads()

        a("s_waitcnt lgkmcnt(0)")
        self.wait_then(C_S2, 1, key_and_a, 5)
        a("s_cmp_eq_u32 s66, 0\ns_cbranch_scc1 L_idle")
        a("s_branch L_xs_ok")
        a("L_h1:")
        a(f"s_mov_b32 s63, {GRAN}\ns_lshl_b32 s31, s47, 8\nv_lshlrev_b32 v15, 3, v2\nv_add_u32 v16, s31, v15")
        a("s_cmp_lg_u32 s66, 0\ns_cbranch_scc1 L_gate")
        self.wait(C_ST3, 4, self.nap)
        a("s_branch L_gate_open")
        a("L_gate:")
        if self.tgate:
            a(f"L_tg:\ns_memrealtime s[52:53]\ns_waitcnt lgkmcnt(0)\ns_sub_u32 s31, s52, s90\ns_cmp_lt_u32 s31, {self.tgate}\ns_cbranch_scc1 L_tg")
        else:
            self.wait(*self.gate, self.nap)
        a("L_gate_open:")
        self.setprio(self.P["moe"])
        self.stamp(7)
        self.gran_issue(20)
        self.arrive(C_S0)
        a("s_waitcnt vmcnt(0)")
        self.stamp(8)
        self.gran_resolve("mi", 20, 18)
        a("s_andn2_b32 s31, 0x7ff, s33\ns_lshl_b32 s48, s31, 11")
        a("buffer_load_dwordx2 v[150:151], v16, s[8:11], s48 offen")
        self.arrive(C_S1)
        self.stamp(9)
        self.gran_stats(20, 18)
        a(f"v_mov_b32 v19, s33\nv_mov_b32 v18, s34\nds_write_b64 v0, v[18:19] offset:{L_KEY}")
        a("s_lshl_b32 s52, s34, 16\ns_and_b32 s32, s34, 0xffff0000\nv_rcp_f32 v148, s32")
        if self.h1pre:
            a("s_cmp_eq_u32 s66, 0\ns_cbranch_scc1 L_h1_idle")
            self.wait(C_DMA, 1)
            if self.h1pre == 1:
                d_loads(0, DF)
            b_reads(0, 12)
            if self.pre3:
                last_k("h", False)
            a(f"s_waitcnt vmcnt({DF if self.h1pre == 1 else 0}) lgkmcnt(0)\ns_branch L_h1_x\nL_h1_idle:")
        a("s_waitcnt vmcnt(0)")
        a("L_h1_x:")
        un = "v_lshlrev_b32 v20, 16, v150\nv_and_b32 v21, 0xffff0000, v150\nv_lshlrev_b32 v22, 16, v151\nv_and_b32 v23, 0xffff0000, v151"
        pk = "v_cvt_pk_bf16_f32 v150, v20, v21\nv_cvt_pk_bf16_f32 v151, v22, v23"
        a(un)
        for p in (20, 22):
            a(f"v_pk_add_f32 v[{p}:{p + 1}], v[{p}:{p + 1}], s[52:53] op_sel_hi:[1,0] neg_lo:[0,1] neg_hi:[0,1]")
        a(pk)
        a(un)
        for p in (20, 22):
            a(f"v_pk_mul_f32 v[{p}:{p + 1}], v[{p}:{p + 1}], v[148:149] op_sel_hi:[1,0]")
        a(pk)
        a(f"ds_write_b64 v15, v[150:151] offset:{M_XS}")
        self.arrive(C_S2)
        a("s_cmp_eq_u32 s66, 0\ns_cbranch_scc1 L_idle")
        if not self.h1pre:
            self.wait(C_DMA, 1)
            b_reads(0, 12)
            if self.dall:
                d_loads(0, DF)
            if self.pre3:
                last_k("h", False)
            a("s_waitcnt lgkmcnt(8)")
        a_reads()
        if self.h1pre == 2:
            d_loads(0, DF)
        a("L_xs_ok:")
        self.stamp(2)
        for n, (ks, t) in enumerate(order[:12]):
            if t == 0:
                a(f"s_waitcnt lgkmcnt({3 - ks})")
            self.mfma("bf16", GA + 4 * t, XA + 4 * ks, BF + 4 * n, None if ks == 0 else GA + 4 * t)
        if not self.pre3:
            last_k("")
        a("v_readfirstlane_b32 s33, v19\nv_readfirstlane_b32 s34, v18")
        for n in range(12, 16):
            if not self.pre3 or n == 12:
                a(f"s_waitcnt lgkmcnt({0 if self.pre3 else 2 * (15 - n)})")
            self.mfma("bf16", GA + 4 * (n % 4), XA + 12, BF + 4 * n, GA + 4 * (n % 4))
        a("s_mov_b32 vcc_lo, 0xffff0000\ns_mov_b32 vcc_hi, 0")
        a(f"s_lshl_b32 s31, s50, 12\ns_lshl_b32 s32, s30, 7\ns_add_u32 s31, s31, s32\ns_add_u32 s31, s31, {HP}")
        a("v_lshrrev_b32 v15, 3, v2\nv_lshlrev_b32 v15, 9, v15\nv_add3_u32 v15, v15, v7, s31")
        a(f"v_cndmask_b32 v26, v{GA}, v{GA + 4}, vcc\nv_cndmask_b32 v27, v{GA + 8}, v{GA + 12}, vcc")
        a("v_and_or_b32 v26, v26, s49, v14\nv_and_or_b32 v27, v27, s49, v14")
        a("s_mov_b32 exec_hi, 0")
        a(f"buffer_store_dwordx2 v[26:27], v13, s[12:15], 0 offen {'' if self.local else 'sc1'}")
        a("s_mov_b64 exec, -1")
        if not self.dall:
            a("s_sub_u32 s31, s30, 1\ns_cmp_lt_u32 s31, 2\ns_cbranch_scc1 L_d_rest")
            d_loads(0, DF)
            a("L_d_rest:")
        if self.droll:
            a("s_sub_u32 s31, s30, 1\ns_cmp_lt_u32 s31, 2" if self.droll[0] == "f" else "s_cmp_lt_u32 s30, 3")
            a("s_cbranch_scc1 L_d_done")
        d_loads(DF, 8)
        a("L_d_done:")
        self.arrive(C_HP)
        self.hint_store("hp")
        self.setprio(self.P["moe2"])
        self.stamp(3)
        pair = {}
        free = [98]
        YA = 36
        if not self.dlds:
            a("s_mov_b32 s52, 0x05040100\ns_mov_b32 s53, 0x07060302")
            for i in range(8):
                a(f"v_mov_b32 v{YA + i}, 0")
        a("v_and_b32 v16, 7, v2\nv_lshlrev_b32 v16, 2, v16\nv_lshrrev_b32 v17, 5, v2\nv_lshl_add_u32 v16, v17, 1, v16\ns_lshl_b32 s31, s30, 5\nv_add_u32 v16, s31, v16")
        if self.dlds:
            a("v_and_b32 v17, 48, v2\nv_bfe_u32 v9, v2, 3, 2\nv_lshlrev_b32 v9, 5, v9\nv_bfe_u32 v10, v2, 2, 2\nv_lshl_add_u32 v9, v10, 7, v9")
            a("v_lshl_add_u32 v9, v17, 6, v9\nv_and_b32 v10, 3, v2\nv_lshlrev_b32 v10, 3, v10\nv_add3_u32 v9, v9, v10, s74")
            a("v_xor_b32 v10, 32, v9\nv_xor_b32 v12, 96, v9\nv_xor_b32 v8, 64, v9")
        else:
            a("v_lshrrev_b32 v17, 3, v2\nv_lshlrev_b32 v17, 4, v17")
        a(f"s_lshl_b32 s31, s50, 12\ns_lshl_b32 s32, s51, 8\ns_add_u32 s31, s31, s32\ns_add_u32 s31, s31, {YP}")
        if self.dlds:
            a("v_lshl_add_u32 v18, v2, 2, s31")
        else:
            a("v_lshlrev_b32 v18, 1, v7\nv_lshrrev_b32 v19, 4, v2\nv_lshl_add_u32 v18, v19, 3, v18\nv_add_u32 v18, s31, v18")
        if self.pack:
            if self.dall:
                a(f"s_waitcnt vmcnt({8 - DF})")
            else:
                a(f"s_waitcnt vmcnt(8)\ns_sub_u32 s31, s30, 1\ns_cmp_ge_u32 s31, 2\ns_cbranch_scc1 L_acked\ns_waitcnt vmcnt({8 - DF})\nL_acked:")
            a("buffer_load_dwordx4 v[20:23], v15, s[12:15], 0 offen sc1")
            self.arrive(C_YG)
        for j in range(0, 8, 2):
            if self.dlds and j % 4 == 0:
                continue
            if j == self.hpearly:
                a("buffer_load_dwordx4 v[20:23], v15, s[12:15], 0 offen sc1")
            a(f"s_waitcnt vmcnt({6 - j + (1 if self.dall and j + 2 <= DF else 0) + (1 if j >= self.hpearly or self.pack else 0)})")
            if self.dlds:
                if j == 6 and not self.pack:
                    a("buffer_load_dwordx4 v[20:23], v15, s[12:15], 0 offen sc1")
                    if self.psig:
                        self.arrive(C_YG)
                a("s_waitcnt lgkmcnt(4)")
                for b in range(4):
                    for v in range(2):
                        r = WD + 16 * (j // 4) + 4 * b + 2 * v
                        a(f"ds_read_b64_tr_b16 v[{r}:{r + 1}], v{(9, 10, 8, 12)[b]} offset:{4096 * (j // 4) + 512 * v}")
                continue
            for d in range(4):
                r0, r1 = WD + 4 * j + d, WD + 4 * j + 4 + d
                t = free.pop()
                a(f"v_perm_b32 v{t}, v{r1}, v{r0}, s52\nv_perm_b32 v{r1}, v{r1}, v{r0}, s53")
                pair[(j // 2, 2 * d)] = t
                pair[(j // 2, 2 * d + 1)] = r1
                free.append(r0)
        self.hint_store("d")
        self.stamp(4)
        a("s_mov_b32 s54, 0")

        def fallback_store():
            a("s_mov_b32 exec_hi, 0\nbuffer_store_dwordx2 v[26:27], v13, s[12:15], 0 offen sc1\ns_mov_b32 exec_hi, -1")

        self.sleep(self.hs[0])
        if self.hpearly < 8 or self.pack or self.dlds:
            a("s_branch L_hp_wait")
        elif self.psig:
            a("buffer_load_dwordx4 v[20:23], v15, s[12:15], 0 offen sc1")
            self.arrive(C_YG)
            a("s_branch L_hp_wait")
        a("L_hp_poll:")
        a("buffer_load_dwordx4 v[20:23], v15, s[12:15], 0 offen sc1")
        a("L_hp_wait:")
        a("s_waitcnt vmcnt(0)")
        for i in range(4):
            a(f"v_xor_b32 v{20 + i}, v14, v{20 + i}")
        a(f"v_or3_b32 v24, v20, v21, v22\nv_or_b32 v24, v24, v23\nv_and_b32 v24, {FMASK:#x}, v24\nv_cmp_ne_u32 vcc, 0, v24")
        a("v_permlane16_swap_b32 v20, v21\nv_permlane16_swap_b32 v22, v23")
        a("s_cbranch_vccz L_hp_got")
        self.spin_guard("L_hp_got", self.hs[1])
        if self.local:
            a(f"s_add_u32 s54, s54, 1\ns_cmp_lg_u32 s54, {self.local}\ns_cbranch_scc1 L_hp_poll")
            fallback_store()
        a("s_branch L_hp_poll")
        a("L_hp_got:")
        self.stamp(5)
        a("v_add_f32 v20, v20, v21\nv_add_f32 v22, v22, v23\nv_permlane32_swap_b32 v20, v22\nv_add_f32 v20, v20, v22")
        a("v_add_f32_dpp v21, v20, v20 row_ror:8 row_mask:0xf bank_mask:0xf\nv_add_f32_dpp v20, v20, v20 row_ror:8 row_mask:0xf bank_mask:0xf")
        a("v_permlane16_swap_b32 v20, v21\nv_cvt_pk_bf16_f32 v20, v20, v21\nv_and_b32 v21, 0xffff0000, v20\nv_lshlrev_b32 v20, 16, v20")
        a("v_mul_f32 v22, 0xbfb8aa3b, v20\nv_exp_f32 v22, v22\nv_add_f32 v22, 1.0, v22\nv_rcp_f32 v22, v22\nv_mul_f32 v20, v20, v22")
        a("v_cvt_pk_bf16_f32 v20, v20, v20\nv_lshlrev_b32 v20, 16, v20\nv_mul_f32 v20, v20, v21\nv_cvt_pk_bf16_f32 v20, v20, v20")
        a(f"ds_write_b16 v16, v20 offset:{M_HS}")
        self.arrive(C_H)
        if self.dlds:
            self.wait_then(C_H, 4, lambda: a(f"ds_read_b128 v[28:31], v17 offset:{M_HS}\nds_read_b128 v[32:35], v17 offset:{M_HS + 64}"), 2)
            for ks in range(2):
                a(f"s_waitcnt lgkmcnt({1 - ks})")
                for b in range(4):
                    self.mfma("bf16", YA + 4 * b, 28 + 4 * ks, WD + 16 * ks + 4 * b, YA + 4 * b if ks else None)
            a("s_mov_b32 vcc_lo, 0xffff0000\ns_mov_b32 vcc_hi, 0xffff0000\ns_mov_b32 s52, 0\ns_mov_b32 s53, -1")
            a(f"v_cndmask_b32 v{YA}, v{YA}, v{YA + 4}, vcc\nv_cndmask_b32 v{YA + 8}, v{YA + 8}, v{YA + 12}, vcc\nv_cndmask_b32 v{YA}, v{YA}, v{YA + 8}, s[52:53]")
            a(f"v_and_or_b32 v{YA}, v{YA}, s49, v14\nbuffer_store_dword v{YA}, v18, s[12:15], 0 offen sc1")
        else:
            self.wait_then(C_H, 4, lambda: a(f"ds_read_b128 v[28:31], v17 offset:{M_HS}"), 1)
            a("s_waitcnt lgkmcnt(0)")
            for p in range(4):
                for c in range(8):
                    a(f"v_dot2c_f32_bf16 v{YA + c}, v{28 + p}, v{pair[(p, c)]}")
            for c in range(4):
                a(f"v_permlane32_swap_b32 v{YA + c}, v{YA + c + 4}")
            for c in range(4):
                a(f"v_add_f32 v{YA + c}, v{YA + c}, v{YA + c + 4}")
            for c in range(2):
                a(f"v_permlane16_swap_b32 v{YA + c}, v{YA + c + 2}")
            for c in range(2):
                a(f"v_add_f32 v{YA + c}, v{YA + c}, v{YA + c + 2}")
            for c in range(2):
                a(f"v_add_f32_dpp v{YA + c}, v{YA + c}, v{YA + c} row_ror:8 row_mask:0xf bank_mask:0xf")
            a(f"v_and_or_b32 v{YA}, v{YA}, s49, v14\nv_and_or_b32 v{YA + 1}, v{YA + 1}, s49, v14")
            a("s_mov_b32 exec_lo, 0x00ff00ff\ns_mov_b32 exec_hi, 0x00ff00ff")
            a(f"buffer_store_dwordx2 v[{YA}:{YA + 1}], v18, s[12:15], 0 offen sc1")
        self.arrive(C_Y)
        if self.local:
            fallback_store()
        self.stamp(6)
        a("s_branch L_owner")
        a("L_idle:")
        if self.dpf:
            a("s_cmp_eq_u32 s30, 0\ns_cbranch_scc1 L_idle_done")
        for c in (C_DMA, C_HP, C_H, C_Y) + ((C_YG,) if self.psig else ()):
            if c == C_HP:
                self.sleep(self.idelay)
                if self.hint is not None and self.diag != "nomoe":
                    a(f"s_and_b32 s52, s2, 31\ns_lshl_b32 s52, s52, 7\ns_add_u32 s52, s52, {HINT}")
                    a("L_hint:\ns_load_dwordx2 s[54:55], s[12:13], s52 glc\ns_waitcnt lgkmcnt(0)\ns_cmp_eq_u64 s[54:55], s[28:29]\ns_cbranch_scc1 L_hint_ok")
                    self.spin_guard("L_hint_ok", 4)
                    a("s_branch L_hint\nL_hint_ok:")
            self.arrive(c)
        a("L_idle_done:")
        a("s_waitcnt lgkmcnt(0)\nv_readfirstlane_b32 s33, v19\nv_readfirstlane_b32 s34, v18")
        self.sleep(self.isleep)
        a("L_owner:")
        self.setprio(self.P["own"])
        if self.diag or self.cheat & 8:
            a("s_branch L_fin")
        YL, YC = 20, 28
        self.tile_decode()
        a("s_lshl_b32 s53, s53, 3\ns_add_u32 s53, s53, s46\ns_andn2_b32 s51, 0x7ff, s33\ns_mov_b32 s54, s51\ns_mov_b32 s55, 0\ns_mov_b32 s56, 0")
        a("s_mov_b32 s16, s44\ns_mov_b32 s17, s45\ns_mov_b32 s18, 0x400000\nv_and_b32 v8, 31, v2\nv_lshlrev_b32 v15, 2, v8\nv_lshlrev_b32 v8, 1, v8\nv_mov_b32 v16, 0")
        a("L_seg:")
        if self.eo:
            a("s_xor_b32 s31, s54, s53\ns_and_b32 s31, s31, 0x87\ns_cbranch_scc1 L_seg_next")
        else:
            a("s_xor_b32 s31, s54, s53\ns_and_b32 s31, s31, 0x487\ns_cbranch_scc0 L_seg_own\ns_cmpk_lg_u32 s31, 0x480\ns_cbranch_scc1 L_seg_next")
            a("L_seg_own:")
        a("s_lshl_b32 s31, s51, 11\ns_lshl_b32 s32, s47, 6\ns_add_u32 s63, s31, s32")
        a("buffer_load_ushort v9, v8, s[8:11], s63 offen")
        a(f"v_lshrrev_b32 v4, 3, v2\ns_lshl_b32 s31, s30, 4\nv_add_u32 v4, s31, v4\nv_lshlrev_b32 v4, 12, v4")
        a(f"s_lshl_b32 s31, s47, 7\ns_add_u32 s31, s31, {YP}\nv_add3_u32 v4, v4, v7, s31\ns_mov_b32 s62, 32768")
        for i in range(4):
            a(f"v_mov_b32 v{YL + 4 + i}, v14")
        a("v_lshrrev_b32 v5, 4, v2\nv_lshl_add_u32 v6, v5, 2, v7\ns_lshl_b32 s31, s30, 7\ns_add_u32 s31, s31, s55\nv_add_u32 v6, s31, v6")
        a("s_ashr_i32 s31, s33, 31\ns_orn2_b32 s31, 0x80000000, s31\ns_xor_b32 s31, s31, s33\ns_and_b32 s31, s31, 0xfffff800")
        a("v_cvt_pk_bf16_f32 v11, s31, s31\nv_lshlrev_b32 v11, 16, v11\nv_mul_f32 v11, 0xbfb8aa3b, v11\nv_exp_f32 v11, v11\ns_and_b32 s32, s34, 0xffff0000\nv_add_f32 v11, 1.0, v11\nv_rcp_f32 v11, v11")
        a("v_rcp_f32 v12, s32\nv_cvt_pk_bf16_f32 v11, v11, v11\nv_lshlrev_b32 v11, 16, v11\ns_lshl_b32 s31, s34, 16")
        if self.ywait:
            a("s_waitcnt vmcnt(0)")
        a("v_lshl_add_u32 v13, v8, 1, s55\ns_mov_b64 vcc, -1\ns_mov_b32 s56, 1")
        if self.ygate and not self.cheat & 4:
            self.wait(*self.ygate)
        self.sleep(self.ys[0])
        self.stamp(11)
        if self.stamps:
            a(f"s_mov_b32 s35, {SPIN}")
        a("L_y_poll:")
        self.stamp(12)
        a("s_mov_b64 exec, vcc")
        a(f"buffer_load_dwordx4 v[{YL}:{YL + 3}], v4, s[12:15], 0 offen sc1")
        a("s_cmp_eq_u32 s30, 3\ns_cbranch_scc1 L_y_one")
        a(f"buffer_load_dwordx4 v[{YL + 4}:{YL + 7}], v4, s[12:15], s62 offen sc1")
        a("L_y_one:\ns_mov_b64 exec, -1\ns_waitcnt vmcnt(0)")
        for i in range(8):
            a(f"v_xor_b32 v{YC + i}, v14, v{YL + i}")
        a(f"v_or3_b32 v1, v{YC}, v{YC + 1}, v{YC + 2}\nv_or3_b32 v1, v1, v{YC + 3}, v{YC + 4}\nv_or3_b32 v1, v1, v{YC + 5}, v{YC + 6}\nv_or_b32 v1, v1, v{YC + 7}")
        a(f"v_and_b32 v1, {FMASK:#x}, v1\nv_cmp_ne_u32 vcc, 0, v1")
        for p in (0, 2):
            a(f"v_pk_add_f32 v[{YC + p}:{YC + p + 1}], v[{YC + p}:{YC + p + 1}], v[{YC + 4 + p}:{YC + 5 + p}]")
        a("s_cbranch_vccz L_y_got")
        self.spin_guard("L_y_got", self.ys[1])
        a("s_branch L_y_poll")
        a("L_y_got:")
        if self.hold:
            self.arrive(C_YG)
        a(f"v_permlane16_swap_b32 v{YC}, v{YC + 1}\nv_permlane16_swap_b32 v{YC + 2}, v{YC + 3}")
        a(f"v_add_f32 v{YC}, v{YC}, v{YC + 1}\nv_add_f32 v{YC + 2}, v{YC + 2}, v{YC + 3}")
        a(f"v_permlane32_swap_b32 v{YC}, v{YC + 2}\nv_add_f32 v{YC}, v{YC}, v{YC + 2}")
        a(f"v_add_f32_dpp v{YC}, v{YC}, v{YC} row_ror:8 row_mask:0xf bank_mask:0xf")
        a(f"ds_write_b32 v6, v{YC} offset:{L_YS}")
        a(f"s_mov_b64 exec, 1\nds_add_u32 v16, v255 offset:{L_CNT + 4 * C_ROW}\ns_mov_b64 exec, -1")
        self.stamp(13)
        a("s_cmp_lg_u32 s30, 0\ns_cbranch_scc1 L_seg_next")
        a(f"s_cmp_eq_u32 s47, 0\ns_cselect_b32 s32, {EPOCH}, {OOB}\nv_mov_b32 v5, {OOB}\nv_writelane_b32 v5, s32, 0\nv_mov_b32 v18, s28\nv_mov_b32 v19, s29")
        a("s_lshl_b32 s31, s34, 16\nv_lshlrev_b32 v9, 16, v9\nv_subrev_f32 v10, s31, v9\nv_cvt_pk_bf16_f32 v10, v10, v10\nv_lshlrev_b32 v10, 16, v10\nv_mul_f32 v10, v10, v12")
        a("v_cvt_pk_bf16_f32 v10, v10, v10\nv_lshlrev_b32 v10, 16, v10")

        def row_reads():
            for j in range(4):
                a(f"ds_read_b32 v{YL + j}, v13 offset:{L_YS + 128 * j}")
            a(f"ds_read_b32 v{YL + 4}, v15 offset:{L_ROW}")

        self.wait_then(C_ROW, 4 if self.cheat & 4 else 5, row_reads, 5, "v16")
        a("s_waitcnt lgkmcnt(0)")
        y = YL
        a(f"v_add_f32 v{y}, v{y}, v{y + 1}\nv_add_f32 v{y + 2}, v{y + 2}, v{y + 3}\nv_add_f32 v{y}, v{y}, v{y + 2}")
        a(f"v_cvt_pk_bf16_f32 v{y}, v{y}, v{y}\nv_lshlrev_b32 v{y}, 16, v{y}\nv_mul_f32 v{y}, v{y}, v11")
        a(f"v_cvt_pk_bf16_f32 v{y}, v{y}, v{y}\nv_lshlrev_b32 v{y}, 16, v{y}\nv_add_f32 v{y}, v{y}, v10")
        a(f"v_cvt_pk_bf16_f32 v{y}, v{y}, v{y}\nv_lshlrev_b32 v{y}, 16, v{y}\nv_mul_f32 v1, 0xbfb8aa3b, v{y}")
        a(f"v_mul_f32 v{y}, v1, v{YL + 4}\nv_exp_f32 v1, v1\nv_add_f32 v1, 1.0, v1\nv_rcp_f32 v1, v1")
        a(f"s_mov_b32 exec_hi, 0\nv_fma_f32 v{y}, v{y}, v1, v9\nv_cvt_pk_bf16_f32 v{y}, v{y}, v{y}")
        a(f"buffer_store_short v{y}, v8, s[16:19], s63 offen {self.oflag}")
        a("buffer_store_dwordx2 v[18:19], v5, s[12:15], 0 offen sc1")
        a("s_mov_b64 exec, -1")
        self.stamp(14)
        a("L_seg_next:")
        a("s_cmp_lg_u32 s55, 0\ns_cbranch_scc1 L_seg_end")
        a(f"s_mov_b32 s55, 512\ns_sub_u32 s54, 0, s51\ns_sub_u32 s47, 31, s47\nv_mov_b32 v16, {4 * (C_ROW1 - C_ROW)}")
        a("v_and_b32 v15, 24, v2\nv_xor_b32 v15, 24, v15\nv_sub_u32 v1, 0, v2\nv_and_b32 v1, 7, v1\nv_add_u32 v15, v15, v1\nv_lshlrev_b32 v15, 2, v15\nv_add_u32 v15, 128, v15")
        a("s_branch L_seg")
        a("L_seg_end:")
        if self.hold:
            a("s_cmp_lg_u32 s56, 0\ns_cbranch_scc1 L_fin")
            self.arrive(C_YG)

    def finish(self):
        a = self.a
        a("L_fin:")
        self.role = "all"
        if self.probe:
            if self.probe == ("all", 15):
                a("s_waitcnt vmcnt(0)")
                self.stamp(15)
            a("s_cmp_eq_u32 s68, 0\ns_cbranch_scc1 L_exit\ns_mov_b32 s35, 100000")
            a("L_probe:\ns_sleep 1\ns_memrealtime s[70:71]\ns_waitcnt lgkmcnt(0)\ns_sub_u32 s31, s70, s68\ns_cmp_ge_u32 s31, 4000\ns_cbranch_scc1 L_exit")
            a("s_cmp_eq_u32 s35, 0\ns_cbranch_scc1 L_exit\ns_sub_u32 s35, s35, 1\ns_branch L_probe")
        if self.stamps:
            a("s_waitcnt vmcnt(0)")
            self.stamp(15)
            if self.stamps is not True and ("cnt", 0) in self.stamps:
                a("v_writelane_b32 v211, s35, 10")
            a(f"v_writelane_b32 v211, s68, 0\ns_lshl_b32 s31, s2, 3\ns_add_u32 s31, s31, s3\ns_lshl_b32 s31, s31, 6\ns_add_u32 s31, s31, {STAMP}\nv_lshl_add_u32 v4, v2, 2, s31")
            a("s_mov_b64 exec, 0xffff\nbuffer_store_dword v211, v4, s[12:15], 0 offen")
        a("L_exit:")
        a("s_endpgm")
        a("L_code_end:")
        a.kernel_desc(NAME + "_kernel", 256, 94)
        a.add_launch(NAME + "_kernel", NWG, 64 * WAVES, LDS_BYTES)

    def build(self, path, verbose=False):
        self.prologue()
        self.dft()
        self.moe()
        self.finish()
        rep = []
        self.a.lines = hazard.fix(self.a.lines, rep)
        if verbose:
            for pad, s in rep:
                print("nop", pad, s)
        if self.align:
            self.a.lines = hazard.align_runs(self.a, self.align)
        self.a.write(path, HEADER)


GROUPS = {"dft": (slice(0, 256), slice(0, 4)), "load": (slice(0, 224), slice(4, 7)), "h1": (slice(0, 224), slice(7, 8)), "idle": (slice(224, 256), slice(4, 8))}

if __name__ == "__main__":
    kw = eval(sys.argv[2]) if len(sys.argv) > 2 else {}
    Gen(**kw).build(sys.argv[1], verbose=True)
```

```python
import struct
import sys

sys.path.insert(0, "tools")
from asmgen import Asm, NAME
import hazard

EPOCH = 0
GRAN = 0x1000
HINT = 0x3000
STAT = 0x8000
HP = 0x40000
YP = 0x80000
ZB = 0x200000
ZTS = 129 * 128
STAMP = 0x1000000
OOB = 0x7FFFFF00
WBYTES = 1024 * 3584 * 2
ZMASK = 0x00030003
FMASK = 0x000000FF

RS, QS = 2592, 640
MISC = 16 * RS
EX = MISC + 2560
L_ENT = MISC
L_KEY = MISC + 80
L_MEAN = MISC + 96
L_YS = MISC + 1536
L_ROW = MISC + 1024
L_RST = MISC + 1280
L_CNT = MISC + 1344
M_XS = MISC + 128
M_HS = MISC + 896
M_G = EX + 32768
M_U = M_G + 32768
L_XT = M_U + 32768
LDS_BYTES = L_XT + 16384
C_A, C_B, C_C, C_ST3, C_D, C_ROW, C_S1, C_S2, C_HP, C_H, C_Y, C_S0, C_ROW1, C_DMA, C_E = range(15)
C_YG = 15
SHD = 16640
REL = {"k1": (C_DMA, 2), "p1": (C_YG, 1), "p4": (C_YG, 4), "k2": (C_DMA, 1), "k3": (C_DMA, 3), "s0": (C_S0, 1), "s1": (C_S1, 1), "s2": (C_S2, 1), "hp": (C_HP, 4), "h": (C_H, 4), "y": (C_Y, 4)}

SPIN = 1 << 16
NWG = 256
WAVES = 8

HEADER = """; Fused kernel: LayerNorm, Re(2-D DFT) as a folded mixed-radix transform on MFMA, routed-token SwiGLU, gating.
; Waves 0..3 of a workgroup run the transform, waves 4..7 the routed-token path."""

SHR = ("row_shr:1", "row_shr:2", "row_shr:4", "row_shr:8")


def fbits(x):
    return struct.unpack("<I", struct.pack("<f", float(x)))[0]


class Gen:
    DEFAULTS = dict(stamps=False, probe=None, diag=None, wflag="nt", oflag="sc1", prefetch=True, prio=True, psleep=2, win=21, dfirst=5, dlag=0,
                    drel=None, gate=(C_ST3, 1), rel_zw="s1", rel_x0="s0", rel_x="hp", rel_zr=None, order="zxmawg", xearly=2, zwith=False,
                    nfpre=3, defer=False, near=True, dall=True, hpearly=8, tlb=(18, "OZD"), tmask=1, gslot=True, gtouch=False, walk=None, uoff=False, droll=None, pre3=True, h1pre=2, win0=None, u64=False, dlds=True, pr={}, nap=0, tgate=0, dpf=None, w1=True, eo=True, pack=False, narrow=False, counted=True, align=9, bounded=True, hint="hp", idelay=0, zflag="sc1", touch="s", isleep=0, ygate=None, ywait=True, hold=False, hs=(0, 0), ys=(0, 0), local=False, cheat=0, xb=0, xc=0)

    def __init__(self, **kw):
        self.a = Asm()
        self.role = "all"
        self.nsync = 0
        assert set(kw) <= set(self.DEFAULTS), set(kw) - set(self.DEFAULTS)
        self.__dict__.update(self.DEFAULTS)
        self.__dict__.update(kw)
        self.P = dict(dict(wait=0, dma=3, moe=3, moe2=3, own=1, stat=3, p1=3, mid=0, gate=2, tail=2), **self.pr)
        self.psig = bool({"p1", "p4"} & {self.rel_x, self.rel_zr})
        assert not (self.psig and self.hold)

    def arrive(self, c):
        self.a(f"s_mov_b64 exec, 1\nds_add_u32 v0, v255 offset:{L_CNT + 4 * c}\ns_mov_b64 exec, -1")

    def wait(self, c, n, nap=0):
        self.wait_then(c, n, None, 0, nap=nap)

    def wait_then(self, c, n, reads, count, addr="v0", nap=0):
        self.nsync += 1
        lb = f"L_sync{self.nsync}"
        self.a(f"s_branch {lb}a\n{lb}:\ns_waitcnt lgkmcnt(0)\n{lb}a:" if count > 7 else f"{lb}:")
        self.sleep(nap)
        self.a(f"ds_read_b32 v1, {addr} offset:{L_CNT + 4 * c}")
        if reads:
            reads()
        if self.bounded:
            self.a(f"s_add_u32 s92, s92, 1\ns_bitcmp1_b32 s92, 20\ns_cbranch_scc1 {lb}x")
        self.a(f"s_waitcnt lgkmcnt({count})\nv_readfirstlane_b32 s31, v1\ns_cmp_ge_u32 s31, {n}\ns_cbranch_scc0 {lb}\n{lb}x:")

    def sync(self, c, n=4):
        self.arrive(c)
        self.wait(c, n)

    def release(self, name):
        for part in name.split("+") if name else ():
            self.wait(*REL[part])

    def stamp(self, i):
        if self.probe == (self.role, i):
            self.a("s_memrealtime s[68:69]\ns_waitcnt lgkmcnt(0)")
        if self.stamps and (self.stamps is True or i == 15 or (self.role, i) in self.stamps):
            self.a(f"s_memrealtime s[70:71]\ns_waitcnt lgkmcnt(0)\nv_writelane_b32 v211, s70, {i}")

    def fine(self, i):
        if self.diag == "fine" and i not in (2, 3, 4, 5):
            self.a(f"s_memtime s[{76 + 2 * i}:{77 + 2 * i}]")

    def spin_guard(self, out, sleep=None):
        self.a(f"s_cmp_eq_u32 s35, 0\ns_cbranch_scc1 {out}\ns_sub_u32 s35, s35, 1")
        self.sleep(self.psleep if sleep is None else sleep)

    def setprio(self, p):
        if self.prio:
            self.a(f"s_setprio {p}")

    def mfma(self, ty, d, A, B, c=None):
        c = "0" if c is None else f"v[{c}:{c + 3}]"
        self.a(f"v_mfma_f32_16x16x32_{ty} v[{d}:{d + 3}], v[{A}:{A + 3}], v[{B}:{B + 3}], {c}")

    def prologue(self):
        a = self.a
        a.begin(NAME + "_kernel")
        if self.stamps:
            a("s_memrealtime s[68:69]")
        if self.tgate:
            a("s_memrealtime s[90:91]")
        a(f"s_cmp_ge_u32 s2, {NWG}\ns_cbranch_scc1 L_exit")
        a("s_load_dwordx2 s[8:9], s[0:1], 0")
        a("s_load_dwordx4 s[36:39], s[0:1], 48")
        a("s_load_dwordx2 s[12:13], s[0:1], 96")
        if self.stamps:
            a("v_mov_b32 v211, 0")
        if self.probe:
            a("s_mov_b32 s68, 0")
            if self.probe == ("all", 0) or self.probe[0] == "amp":
                a("s_memrealtime s[68:69]")
        if self.prefetch:
            a("s_getpc_b64 s[32:33]\nL_pc:\ns_bfe_u32 s31, s2, 0x30003\nv_subrev_u32 v3, 492, v0\nv_lshl_add_u32 v3, v3, 3, s31\nv_lshlrev_b32 v3, 7, v3")
            a("v_cmp_gt_u32 vcc, L_code_end-L_pc, v3\ns_and_saveexec_b64 s[46:47], vcc\ns_cbranch_execz L_nopf")
            a("global_load_dword v254, v3, s[32:33]")
            a("L_nopf:\ns_mov_b64 exec, -1")
        a("v_lshrrev_b32 v1, 6, v0\nv_and_b32 v2, 63, v0")
        a("v_readfirstlane_b32 s30, v1")
        a("s_mov_b32 s10, 0x400000\ns_mov_b32 s11, 0x00020000\ns_mov_b32 s14, 0x10000000\ns_mov_b32 s15, 0x00020000")
        a(f"s_mov_b32 s35, {SPIN}\ns_mov_b32 s92, 0\nv_lshlrev_b32 v3, 4, v2")
        a("v_mov_b32 v0, 0\nv_mov_b32 v255, 1\ns_mov_b32 s3, s30\ns_and_b32 s30, s30, 3")
        a("s_cmp_ge_u32 s3, 4\ns_cbranch_scc1 L_moe")

    def tag_from_epoch(self):
        self.a("s_add_u32 s28, s28, 0x7f4a7c15\ns_addc_u32 s29, s29, 0x9e3779b9")

    def gran_slot(self):
        if self.gslot:
            self.a(f"s_and_b32 s31, s2, 7\ns_lshl_b32 s31, s31, 9\ns_lshr_b32 s32, s2, 3\ns_lshl_b32 s32, s32, 4\ns_add_u32 s31, s31, s32\ns_add_u32 s31, s31, {GRAN}")
        else:
            self.a(f"s_lshl_b32 s31, s2, 4\ns_add_u32 s31, s31, {GRAN}")

    def gran_issue(self, g):
        for j in range(4):
            self.a(f"buffer_load_dwordx4 v[{g + 4 * j}:{g + 4 * j + 3}], v3, s[12:15], s63 offen offset:{1024 * j} sc1")

    def gran_resolve(self, name, g, k):
        a = self.a
        a(f"L_{name}_check:")
        for j in range(4):
            a(f"v_cmp_ne_u64 s[{52 + 2 * j}:{53 + 2 * j}], s[28:29], v[{g + 4 * j + 2}:{g + 4 * j + 3}]")
        a(f"v_max_u32 v{k}, v{g + 1}, v{g + 5}\nv_max3_u32 v{k}, v{k}, v{g + 9}, v{g + 13}")
        a("s_or_b64 s[64:65], s[52:53], s[54:55]\ns_or_b64 vcc, s[56:57], s[58:59]\ns_or_b64 s[64:65], s[64:65], vcc")
        a(f"s_cbranch_scc0 L_{name}_got")
        self.spin_guard(f"L_{name}_got")
        for j in range(4):
            a(f"s_mov_b64 exec, s[{52 + 2 * j}:{53 + 2 * j}]\ns_cbranch_execz L_{name}_skip{j}")
            a(f"buffer_load_dwordx4 v[{g + 4 * j}:{g + 4 * j + 3}], v3, s[12:15], s63 offen offset:{1024 * j} sc1")
            a(f"L_{name}_skip{j}:")
        a(f"s_mov_b64 exec, -1\ns_waitcnt vmcnt(0)\ns_branch L_{name}_check")
        a(f"L_{name}_got:")
        a(f"v_max_u32_dpp v{k + 1}, v{k}, v{k} row_ror:1 row_mask:0xf bank_mask:0xf")
        for d in ("row_ror:2", "row_ror:4", "row_ror:8"):
            a(f"v_max_u32_dpp v{k + 1}, v{k + 1}, v{k + 1} {d} row_mask:0xf bank_mask:0xf")
        a(f"v_readlane_b32 s33, v{k + 1}, 0\nv_readlane_b32 s31, v{k + 1}, 16\nv_readlane_b32 s32, v{k + 1}, 32\nv_readlane_b32 s34, v{k + 1}, 48")
        a("s_max_u32 s33, s33, s31\ns_max_u32 s32, s32, s34\ns_max_u32 s33, s33, s32")

    def gran_stats(self, g, k):
        a = self.a
        for j in (1, 2, 3):
            a(f"v_cmp_eq_u32 s[{50 + 2 * j}:{51 + 2 * j}], s33, v{g + 4 * j + 1}")
        a(f"v_cmp_eq_u32 vcc, s33, v{k}")
        a(f"v_cndmask_b32 v{k + 1}, v{g}, v{g + 4}, s[52:53]\nv_cndmask_b32 v{k + 1}, v{k + 1}, v{g + 8}, s[54:55]\nv_cndmask_b32 v{k + 1}, v{k + 1}, v{g + 12}, s[56:57]")
        a("s_ff1_i32_b64 s32, vcc")
        a(f"v_readlane_b32 s34, v{k + 1}, s32")

    def p2_matrix(self, MM, T0, T1, T2):
        a = self.a
        a(f"v_and_b32 v{T0}, 15, v2\nv_add_u32 v{T0}, s53, v{T0}\nv_cvt_f32_u32 v{T0}, v{T0}\nv_add_f32 v{T0}, 0.5, v{T0}\nv_mul_f32 v{T0}, 0x3b800000, v{T0}")
        a(f"v_and_b32 v{T1}, 32, v2\nv_bfe_u32 v{T2}, v2, 4, 1\nv_lshl_add_u32 v{T1}, v{T2}, 3, v{T1}\nv_cvt_f32_u32 v{T1}, v{T1}\nv_mul_f32 v{T1}, v{T1}, v{T0}")
        for p in range(2):
            for hf in range(2):
                for dw in range(4):
                    c0 = 64 * hf + 16 * (dw // 2) + 4 * (dw % 2) + p
                    dc, ds = MM + 4 * (2 * p + hf) + dw, MM + 16 + 4 * (2 * p + hf) + dw
                    a(f"v_fmamk_f32 v{dc}, v{T0}, {fbits(c0):#x}, v{T1}\nv_fmamk_f32 v{T2}, v{T0}, {fbits(c0 + 2):#x}, v{T1}")
                    a(f"v_sin_f32 v{ds}, v{dc}\nv_sin_f32 v{T2 + 1}, v{T2}\nv_cos_f32 v{dc}, v{dc}\nv_cos_f32 v{T2}, v{T2}")
                    a(f"v_cvt_pk_f16_f32 v{ds}, v{ds}, v{T2 + 1}\nv_cvt_pk_f16_f32 v{dc}, v{dc}, v{T2}")
        a(f"v_cmp_gt_u32 vcc, 16, v2\nv_and_b32 v{T2}, 1, v2\nv_lshlrev_b32 v{T2}, 15, v{T2}\nv_or_b32 v{T2}, 0x3c00, v{T2}\nv_and_b32 v{T0}, 0xffff0000, v{MM + 16}\nv_or_b32 v{T2}, v{T2}, v{T0}")
        a(f"v_cndmask_b32 v{MM + 16}, v{MM + 16}, v{T2}, vcc")

    def tile_decode(self, t1=46, tile=47, tau=53):
        if self.eo:
            self.a(f"s_and_b32 s31, s2, 7\ns_sub_u32 s32, 8, s31\ns_min_u32 s{t1}, s31, s32\ns_lshr_b32 s{tau}, s31, 2\ns_lshr_b32 s{tile}, s2, 3")
            self.a(f"s_and_b32 s32, s{tile}, 1\ns_and_b32 s31, s31, 3\ns_cselect_b32 s{tau}, s{tau}, s32\ns_cselect_b32 s31, 0, 1\ns_lshr_b32 s{tile}, s{tile}, s31\ns_lshl_b32 s{tau}, s{tau}, 4")
        else:
            self.a(f"s_and_b32 s31, s2, 7\ns_sub_u32 s32, 8, s31\ns_min_u32 s{t1}, s31, s32\ns_cmp_gt_u32 s31, 4\ns_cselect_b32 s31, 16, 0")
            self.a(f"s_lshr_b32 s{tile}, s2, 4\ns_add_u32 s{tile}, s{tile}, s31\ns_bfe_u32 s{tau}, s2, 0x10003\ns_lshl_b32 s{tau}, s{tau}, 7\ns_add_u32 s{tau}, s{tau}, s31")

    XS_, VTA, XR, VTC, VSA = (112, 113, 114, 115), 116, 117, 118, 119

    def out_addresses(self):
        a = self.a
        XS_, VTA, XR, VTC, VSA = self.XS_, self.VTA, self.XR, self.VTC, self.VSA
        self.tile_decode(76, 77, 78)
        a("s_lshl_b32 s31, s30, 5\ns_add_u32 s78, s78, s31\ns_lshl_b32 s78, s78, 3\ns_add_u32 s78, s78, s76")
        a("s_lshl_b32 s77, s77, 6\ns_sub_u32 s79, 1984, s77\ns_lshl_b32 s76, s76, 1\ns_add_u32 s76, s76, 2040")
        a(f"v_and_b32 v{VTA}, 15, v2\nv_lshl_add_u32 v{VTA}, v{VTA}, 3, s78")
        if self.eo:
            a(f"v_and_b32 v7, 32, v2\nv_lshl_add_u32 v7, v7, 5, v{VTA}")
        else:
            a(f"s_mov_b32 vcc_lo, 0\ns_mov_b32 vcc_hi, -1\nv_sub_u32 v7, s76, v{VTA}\nv_cndmask_b32 v7, v{VTA}, v7, vcc")
        a("s_mov_b32 vcc_lo, 0xffff0000\ns_mov_b32 vcc_hi, 0xffff0000\nv_sub_u32 v6, 0, v7\nv_cndmask_b32 v7, v7, v6, vcc")
        a(f"v_and_b32 v6, 7, v7\nv_and_b32 v1, 1024, v7\nv_lshl_add_u32 v6, v6, 11, v1\nv_and_b32 v1, 0xf8, v7\nv_lshl_add_u32 v6, v1, 2, v6")
        a(f"v_bfe_u32 v1, v7, 9, 1\nv_lshl_add_u32 v{VSA}, v1, 4, v6\nv_and_b32 v1, 256, v7\nv_cmp_ne_u32 s[88:89], 0, v1")
        if self.cheat & 2:
            a(f"v_and_b32 v{VSA}, 0x1f0, v3")
        d, vt = XS_, VTC
        a(f"v_lshrrev_b32 v{vt}, 2, v2\nv_lshl_add_u32 v{vt}, v{vt}, 3, s78\nv_lshlrev_b32 v1, 1, v2\nv_xor_b32 v1, v1, v3\nv_and_b32 v1, 48, v1")
        a(f"v_add_u32 v{d[2]}, 1024, v{vt}" if self.eo else f"v_sub_u32 v{d[2]}, s76, v{vt}")
        a(f"v_sub_u32 v{d[1]}, 0, v{vt}\nv_and_b32 v{d[1]}, 2047, v{d[1]}\nv_sub_u32 v{d[3]}, 2048, v{d[2]}")
        a(f"v_add_u32 v{d[0]}, s77, v1\nv_lshl_add_u32 v{d[2]}, v{d[2]}, 11, v{d[0]}\nv_lshl_add_u32 v{d[0]}, v{vt}, 11, v{d[0]}")
        a(f"v_xor_b32 v1, 48, v1\nv_add_u32 v1, s79, v1\nv_lshl_add_u32 v{d[1]}, v{d[1]}, 11, v1\nv_lshl_add_u32 v{d[3]}, v{d[3]}, 11, v1")
        a(f"s_lshl_b32 s76, s30, 12\ns_add_u32 s76, s76, {EX if self.dlds else L_XT}")
        a(f"v_and_b32 v1, 15, v2\nv_lshlrev_b32 v6, 6, v1\nv_lshlrev_b32 v1, 3, v2\nv_xor_b32 v1, v1, v2\nv_and_b32 v1, 48, v1\nv_add3_u32 v{XR}, v6, v1, s76")

    def x_loads(self, h0, h1):
        for h in range(h0, h1):
            self.a(f"s_add_u32 m0, s76, {1024 * h}")
            self.a(f"buffer_load_dwordx4 v{self.XS_[h]}, s[8:11], 0 offen lds")

    def park_move(self):
        new = dict(XS_=(4, 5, 249, 205), VTA=248, XR=208, VTC=7, VSA=6)
        for o, n in zip(self.XS_ + (self.VTA, self.XR, self.VTC, self.VSA), new["XS_"] + (new["VTA"], new["XR"], new["VTC"], new["VSA"])):
            self.a(f"v_mov_b32 v{n}, v{o}")
        self.__dict__.update(new)

    def hint_store(self, at):
        if self.hint != at:
            return
        a = self.a
        a("s_cmp_eq_u32 s30, 1\ns_cselect_b32 s31, s2, 0\ns_cmp_lt_u32 s31, 192\ns_cbranch_scc1 L_no_hint")
        a(f"s_and_b32 s31, s2, 31\ns_lshl_b32 s31, s31, 7\ns_add_u32 s31, s31, {HINT}\nv_mov_b32 v250, s28\nv_mov_b32 v251, s29\ns_mov_b64 exec, 1")
        a("buffer_store_dwordx2 v[250:251], v0, s[12:15], s31 offen sc1\ns_mov_b64 exec, -1")
        a("L_no_hint:")

    def sleep(self, n):
        while n > 0:
            self.a(f"s_sleep {min(n, 127)}")
            n -= 127

    def dft(self):
        a = self.a
        self.role = "dft"
        CV, M2, TW, M3, MM = 8, 16, 48, 80, 88
        RW, WR = 120, 152
        T = 160
        VPUB = 4

        a("s_and_b32 s31, s2, 7\ns_lshr_b32 s32, s2, 4\ns_sub_u32 s32, 15, s32\ns_lshl_b32 s32, s32, 3\ns_add_u32 s46, s32, s31\ns_bfe_u32 s47, s2, 0x10003")
        a("s_lshl_b32 s31, s47, 2\ns_add_u32 s51, s31, s30\ns_lshl_b32 s31, s51, 8\ns_add_u32 s52, s31, s46\ns_xor_b32 s54, s52, 1024")
        a("s_sub_u32 s53, 2048, s52\ns_add_u32 s31, s52, 128\ns_cmp_eq_u32 s46, 0\ns_cselect_b32 s53, s31, s53\ns_cselect_b32 s50, 1, 0\ns_xor_b32 s55, s53, 1024")
        for i in range(4):
            a(f"s_lshl_b32 s{56 + i}, s{52 + i}, 11")
        a("s_mov_b32 s22, 2048\ns_mov_b32 s23, 0x00020000")
        a(f"v_mov_b32 v1, 0\nv_and_b32 v6, 15, v2\nv_lshlrev_b32 v6, 2, v6\nds_write_b64 v0, v[0:1] offset:{L_ENT + 32}\nds_write_b32 v6, v0 offset:{L_CNT}")
        a("s_waitcnt lgkmcnt(0)")
        if self.diag == "start":
            a("s_memrealtime s[80:81]")
        a(f"s_load_dwordx2 s[28:29], s[12:13], {EPOCH}\ns_load_dwordx2 s[16:17], s[0:1], 80")
        for r in range(4):
            if r == 2:
                a("s_mov_b32 s20, s36\ns_mov_b32 s21, s37")
                a(f"buffer_load_dwordx4 v[{WR}:{WR + 3}], v3, s[20:23], 0 offen")
                a(f"buffer_load_dwordx4 v[{WR + 4}:{WR + 7}], v3, s[20:23], 0 offen offset:1024")
                if self.defer:
                    break
            a(f"buffer_load_dwordx4 v[{RW + 8 * r}:{RW + 8 * r + 3}], v3, s[8:11], s{56 + r} offen")
            a(f"buffer_load_dwordx4 v[{RW + 8 * r + 4}:{RW + 8 * r + 7}], v3, s[8:11], s{56 + r} offen offset:1024")
        if self.diag == "start":
            a("s_memrealtime s[82:83]")
        a("s_barrier")
        if self.near:
            a("s_branch L_dft_rest")
            self.moe_head()
            a("s_branch L_dma_done")
            a("L_dft_rest:")
            self.role = "dft"
        if self.diag == "start":
            a(f"s_memrealtime s[84:85]\ns_waitcnt vmcnt({2 if self.defer else 6})\ns_memrealtime s[86:87]\ns_waitcnt lgkmcnt(0)")
            for i in range(4):
                a(f"v_writelane_b32 v211, s{80 + 2 * i}, {1 + i}")
        a("s_mov_b32 s18, 0x400000\ns_mov_b32 s19, 0x00020000")
        VROW, VEN, VST, VLD, VLM, VTR, VEX, VSG = T + 40, T + 41, T + 42, T + 44, T + 45, T + 46, T + 47, T + 48
        a(f"s_sub_u32 s31, 2047, s52\ns_sub_u32 s32, 2047, s53\nv_mov_b32 v{VROW}, s31\nv_writelane_b32 v{VROW}, s32, 63")
        a(f"s_lshl_b32 s31, s30, 2\nv_mov_b32 v{VEN}, s31\ns_bfe_u32 s31, s53, 0x20008\ns_lshl_b32 s31, s31, 2\ns_add_u32 s31, s31, 16\nv_writelane_b32 v{VEN}, s31, 63")
        a(f"v_and_b32 v6, 32, v2\ns_lshl_b32 s31, s51, 2\nv_add_u32 v{VST + 1}, s31, v6\nv_lshrrev_b32 v{VST}, 1, v{VST + 1}")
        self.gran_slot()
        a(f"v_mov_b32 v{VPUB}, s31\nv_lshlrev_b32 v5, 3, v2")
        for t in range(2):
            a(f"s_and_b32 s31, s{52 + t}, 7\ns_lshl_b32 s31, s31, 11\ns_and_b32 s32, s{52 + t}, 1024\ns_add_u32 s31, s31, s32\ns_and_b32 s32, s{52 + t}, 0xf8\ns_lshl_b32 s32, s32, 2")
            a(f"s_add_u32 s31, s31, s32\ns_add_u32 s31, s31, {STAT}\nv_writelane_b32 v{VPUB}, s31, {2 * t}\ns_add_u32 s31, s31, 16\nv_writelane_b32 v{VPUB}, s31, {2 * t + 1}")
        a(f"s_mul_i32 s31, s51, {RS}\nv_and_b32 v{VLD}, 32, v2\nv_lshlrev_b32 v{VLD}, 2, v{VLD}\nv_add3_u32 v{VLD}, v{VLD}, v3, s31")
        a(f"s_lshl_b32 s32, s31, 1\ns_add_u32 s32, s32, {8 * RS + 63 * 16 + 128}\nv_sub_u32 v{VLM}, s32, v{VLD}")
        a(f"v_bfe_u32 v{VTR}, v2, 2, 2\nv_mul_u32_u24 v{VTR}, {RS}, v{VTR}\nv_lshrrev_b32 v6, 4, v2\nv_mul_u32_u24 v7, {QS}, v6\nv_add_u32 v{VTR}, v{VTR}, v7")
        a(f"v_and_b32 v7, 3, v2\nv_lshlrev_b32 v7, 3, v7\ns_lshl_b32 s31, s30, 7\nv_add3_u32 v{VTR}, v{VTR}, v7, s31")
        a(f"v_lshlrev_b32 v6, 12, v6\nv_and_b32 v7, 15, v2\nv_lshl_add_u32 v6, v7, 4, v6\ns_lshl_b32 s31, s30, 8\nv_add_u32 v{VEX}, s31, v6")
        a(f"v_bfe_i32 v{VSG}, v2, 4, 1\nv_and_b32 v{VSG}, 0x80008000, v{VSG}")

        T0, T1, T2 = T + 90, T + 91, T + 92
        a(f"s_cmp_eq_u32 s47, 0\ns_movk_i32 s48, 0x7403\ns_cselect_b32 s48, 0x7721, s48\nv_and_b32 v{T0}, 12, v2\nv_bfe_u32 v{T0}, s48, v{T0}, 4")
        a(f"v_lshrrev_b32 v{T1}, 4, v2\nv_bfe_u32 v{T2}, v2, 1, 1\nv_mul_u32_u24 v{T1}, v{T1}, v{T2}\nv_and_b32 v{T2}, 1, v2\nv_add_u32 v{T1}, v{T1}, v{T2}")
        a(f"v_cvt_f32_u32 v{T0}, v{T0}\nv_cvt_f32_u32 v{T1}, v{T1}\nv_mul_f32 v{T0}, 0x3e000000, v{T0}\nv_mul_f32 v{T1}, 0x3e800000, v{T1}")
        for j in range(8):
            a(f"v_cos_f32 v{CV + j}, v{T1}")
            if j < 7:
                a(f"v_add_f32 v{T1}, v{T1}, v{T0}")
        for j in range(8):
            a(f"v_mul_f32 v{CV + j}, 0xbf317218, v{CV + j}")
        BI = T + 52
        a(f"v_lshrrev_b32 v{T0}, 2, v2\nv_and_b32 v{T0}, 12, v{T0}\nv_and_b32 v{T1}, 15, v2\nv_lshlrev_b32 v{T1}, 2, v{T1}")
        a(f"v_cvt_f32_u32 v{T0}, v{T0}\nv_cvt_f32_u32 v{T1}, v{T1}\nv_mul_f32 v{BI}, 0x3c800000, v{T0}")
        a(f"s_lshl_b32 s31, s30, 2\ns_lshr_b32 s48, s48, s31\ns_and_b32 s48, s48, 15\ns_sub_u32 s31, s48, 4\ns_mul_i32 s31, s31, s46\nv_cvt_f32_i32 v{T2}, s31\nv_mul_f32 v{T2}, 0x3a000000, v{T2}")
        a(f"v_add_f32 v{BI + 1}, 0x3c800000, v{BI}\nv_add_f32 v{BI + 2}, 0x3d000000, v{BI}\nv_add_f32 v{BI + 3}, 0x3d400000, v{BI}")
        def consts(f0, f1):
            for f in range(f0, f1):
                for i in range(4):
                    re, im = M2 + 8 * f + i, M2 + 8 * f + 4 + i
                    tc, ts = TW + 8 * f + i, TW + 8 * f + 4 + i
                    a(f"v_mul_f32 v{T0}, v{BI + i}, v{T1}")
                    a(f"v_fmamk_f32 v{ts}, v{T0}, 0x3d800000, v{T2}")
                    a(f"v_sin_f32 v{im}, v{T0}\nv_cos_f32 v{T0}, v{T0}\nv_cos_f32 v{tc}, v{ts}\nv_sin_f32 v{ts}, v{ts}")
                    a(f"v_cvt_pk_f16_f32 v{re}, v{T0}, v{im}\nv_cvt_pk_f16_f32 v{im}, -v{im}, v{T0}")
                if f < 3:
                    a(f"v_add_f32 v{T1}, 1.0, v{T1}")

        VZ = T + 49

        def late_consts():
            consts(self.nfpre, 4)
            a("s_and_b32 s31, s46, 1\ns_lshl_b32 s31, s31, 6\ns_lshr_b32 s32, s46, 1\ns_add_u32 s49, s31, s32")
            a("s_bitcmp1_b32 s49, 2\ns_cselect_b64 vcc, -1, 0")
            for i in range(4):
                a(f"v_cndmask_b32 v{M3 + i}, v{M2 + i}, v{M2 + 4 + i}, vcc\nv_cndmask_b32 v{M3 + 4 + i}, v{M2 + 4 + i}, v{M2 + i}, vcc")
            a(f"s_bfe_u32 s31, s49, 0x10001\nv_and_b32 v6, 7, v2\nv_xor_b32 v6, s31, v6\nv_lshlrev_b32 v6, 4, v6")
            a(f"v_lshrrev_b32 v7, 4, v2\nv_lshlrev_b32 v7, 3, v7\nv_bfe_u32 v{VZ}, v2, 3, 1\nv_add_u32 v7, v7, v{VZ}\nv_mul_u32_u24 v7, {ZTS}, v7\nv_add_u32 v{VZ}, v6, v7")
            a(f"s_mul_i32 s31, s48, {32 * ZTS}\ns_lshl_b32 s32, s49, 7\ns_add_u32 s31, s31, s32\ns_add_u32 s60, s31, {ZB}")

        self.out_addresses()
        consts(0, self.nfpre)
        SS, QQ, DD, DC = T, T + 4, T + 8, T + 10
        PB, RST, MEAN, SH = T + 12, T + 16, T + 32, T + 56
        for r in range(11):
            a(f"v_mov_b32 v{T + r}, 0")
        if self.defer:
            a("s_mov_b32 s84, s58\ns_mov_b32 s85, s59")
        a("s_mov_b32 s57, 0x3f803f80\ns_mov_b32 s59, 0xffff\ns_brev_b32 s67, 1\ns_mov_b32 s66, 0\ns_brev_b32 s64, 1\ns_brev_b32 s65, 1")
        a(f"s_cmp_eq_u32 s47, 0\ns_movk_i32 s62, {-4 * RS}\ns_cselect_b32 s62, {4 * RS}, s62")
        a("s_waitcnt lgkmcnt(0)")
        self.tag_from_epoch()
        a(f"v_mov_b32 v{PB + 2}, s28\nv_mov_b32 v{PB + 3}, s29")
        a(f"s_cmp_lt_u32 s2, {0 if self.diag == 'nomoe' else 224}\ns_cbranch_scc1 L_epoch_ok")
        self.wait(C_E, 4)
        a("L_epoch_ok:")
        self.setprio(self.P["stat"])
        self.stamp(1)

        def sq(r):
            for i in range(8):
                x = RW + 8 * r + i
                a(f"v_dot2c_f32_bf16 v{SS + r}, s57, v{x}\nv_dot2c_f32_bf16 v{QQ + r}, v{x}, v{x}")

        def plain(r, off):
            a(f"ds_write_b128 v{VLD}, v[{RW + 8 * r}:{RW + 8 * r + 3}] offset:{off}\nds_write_b128 v{VLD}, v[{RW + 8 * r + 4}:{RW + 8 * r + 7}] offset:{off + 2 * QS}")

        def rotate(r):
            b = RW + 8 * r
            a(f"v_mov_b32_dpp v6, v{b} wave_rol:1 row_mask:0xf bank_mask:0xf\nv_mov_b32_dpp v7, v{b + 4} wave_rol:1 row_mask:0xf bank_mask:0xf")
            for half in range(2):
                for i in (1, 2, 3):
                    a(f"v_bfi_b32 v{SH + 4 * (1 - half) + i}, s59, v{b + 4 * half + 4 - i}, v{b + 4 * half + 3 - i}")
            a(f"v_cndmask_b32 v{SH + 4}, v6, v7, s[66:67]\nv_cndmask_b32 v{SH}, v7, v6, s[66:67]")
            a(f"v_bfi_b32 v{SH + 4}, s59, v{SH + 4}, v{b + 3}\nv_bfi_b32 v{SH}, s59, v{SH}, v{b + 7}")

        def second(r):
            a(f"s_cmp_lg_u32 s50, 0\ns_cbranch_scc1 L_plain{r}")
            a(f"ds_write_b128 v{VLM}, v[{SH}:{SH + 3}]\nds_write_b128 v{VLM}, v[{SH + 4}:{SH + 7}] offset:{2 * QS}\ns_branch L_second{r}")
            a(f"L_plain{r}:")
            plain(r, 8 * RS)
            a(f"L_second{r}:")

        def reduce(regs):
            for r in regs:
                a(f"v_permlane32_swap_b32 v{r}, v{r + 1}")
            for r in regs:
                a(f"v_add_f32 v{r}, v{r}, v{r + 1}")
            for d, m in [(d, 0xf) for d in SHR] + [("row_bcast:15", 0xa)]:
                for r in regs:
                    a(f"v_add_f32_dpp v{r}, v{r}, v{r} {d} row_mask:{m:#x} bank_mask:0xf")

        def tail(m_, q_, NM, st):
            a(f"v_mul_f32 v{m_}, 0x3a800000, v{m_}\nv_mul_f32 v{q_}, 0x3a800000, v{q_}")
            a(f"v_fma_f32 v{q_}, -v{m_}, v{m_}, v{q_}\nv_cvt_pk_bf16_f32 v{NM}, -v{m_}, -v{m_}\nv_max_f32 v{q_}, 0, v{q_}")
            a(f"v_cvt_pk_bf16_f32 v{q_}, v{q_}, v{q_}\nv_and_b32 v{q_}, 0xffff0000, v{q_}\nv_add_f32 v{q_}, 0x3727c5ac, v{q_}")
            a(f"v_cvt_pk_bf16_f32 v{q_}, v{q_}, v{q_}\nv_and_b32 v{q_}, 0xffff0000, v{q_}\nv_sqrt_f32 v{q_}, v{q_}\nv_and_b32 v{q_ + 1}, 0xffff0000, v{NM}")
            a(f"v_cvt_pk_bf16_f32 v{st}, v{m_}, v{q_}\nv_and_b32 v{q_}, 0xffff0000, v{st}\nv_rcp_f32 v{q_}, v{q_}")

        a(f"s_waitcnt vmcnt({4 if self.defer else 8})")
        if self.defer:
            for r in (2, 3):
                a(f"buffer_load_dwordx4 v[{RW + 8 * r}:{RW + 8 * r + 3}], v3, s[8:11], s{82 + r} offen")
                a(f"buffer_load_dwordx4 v[{RW + 8 * r + 4}:{RW + 8 * r + 7}], v3, s[8:11], s{82 + r} offen offset:1024")
        sq(0)
        a("s_waitcnt vmcnt(6)")
        sq(1)
        a("s_waitcnt vmcnt(4)")
        self.stamp(2)
        for i in range(8):
            a(f"v_dot2c_f32_bf16 v{DC}, s57, v{WR + i}")
        for i in range(8):
            a(f"v_dot2c_f32_bf16 v{DD}, v{WR + i}, v{RW + i}\nv_dot2c_f32_bf16 v{DD + 1}, v{WR + i}, v{RW + 8 + i}")
            if i == 3:
                a(f"v_mov_b32 v{DC + 1}, v{DC}")
        reduce((SS, QQ, DC, DD))
        t_, NM, st = DD, SS + 1, T + 88
        tail(SS, QQ, NM, st)
        a(f"v_fmac_f32 v{t_}, v{DC}, v{QQ + 1}\nv_mul_f32 v{t_}, v{t_}, v{QQ}")
        a(f"v_ashrrev_i32 v{DC}, 31, v{t_}\nv_or_b32 v{DC}, 0x80000000, v{DC}\nv_xor_b32 v{t_}, v{t_}, v{DC}")
        a(f"v_and_b32 v{t_}, 0xfffff800, v{t_}\nv_or_b32 v{st + 1}, v{VROW}, v{t_}")
        a("s_mov_b64 exec, s[64:65]")
        a(f"ds_write_b32 v{VEN}, v{st} offset:{L_ENT}\nds_max_u64 v0, v[{st}:{st + 1}] offset:{L_ENT + 32}")
        a(f"s_mov_b64 exec, 1\nds_add_rtn_u32 v1, v0, v255 offset:{L_CNT + 4 * C_A}\ns_mov_b64 exec, 31\nds_read_b64 v[{PB}:{PB + 1}], v5 offset:{L_ENT}")
        a("s_mov_b64 exec, s[64:65]")
        a(f"ds_write_b16 v{VST}, v{NM} offset:{L_MEAN}\nds_write_b32 v{VST + 1}, v{QQ} offset:{L_RST}")
        a("s_mov_b64 exec, -1")
        rotate(1)
        a("s_waitcnt lgkmcnt(2)\nv_readfirstlane_b32 s31, v1\ns_cmp_lg_u32 s31, 3\ns_cbranch_scc1 L_not_last")
        a(f"s_mov_b64 exec, 31\nbuffer_store_dwordx4 v[{PB}:{PB + 3}], v{VPUB}, s[12:15], 0 offen sc1\ns_mov_b64 exec, -1")
        self.stamp(3)
        a("s_waitcnt vmcnt(1)\ns_branch L_b_ready")
        a("L_not_last:")
        a("s_waitcnt vmcnt(0)")
        a("L_b_ready:")
        self.setprio(self.P["p1"])
        if self.diag == "pubonly":
            self.arrive(self.gate[0])
            self.arrive(C_ST3)
            a("s_branch L_fin")
        plain(0, 0)
        second(1)
        a(f"v_add_u32 v{VLD}, s62, v{VLD}\nv_add_u32 v{VLM}, s62, v{VLM}")
        sq(2)
        plain(2, 0)
        sq(3)
        a(f"v_xor_b32 v{VST}, 8, v{VST}\nv_xor_b32 v{VST + 1}, 16, v{VST + 1}\ns_waitcnt lgkmcnt(2)")
        rotate(3)
        second(3)
        reduce((SS + 2, QQ + 2))
        tail(SS + 2, QQ + 2, NM, st)
        a("s_mov_b64 exec, s[64:65]")
        a(f"ds_write_b16 v{VST}, v{NM} offset:{L_MEAN}\nds_write_b32 v{VST + 1}, v{QQ + 2} offset:{L_RST}")
        self.arrive(C_B)
        AD, AM, C0 = T, WR, T + 8

        def stat_reads():
            for k in range(4):
                a(f"ds_read_b128 v[{RST + 4 * k}:{RST + 4 * k + 3}], v0 offset:{L_RST + 16 * k}")
            a(f"ds_read_b128 v[{MEAN}:{MEAN + 3}], v0 offset:{L_MEAN}\nds_read_b128 v[{MEAN + 4}:{MEAN + 7}], v0 offset:{L_MEAN + 16}")

        self.wait_then(C_B, 4, stat_reads, 6)
        self.stamp(4)
        FR, DA, EE = RW, T + 56, RST

        def trd(blk):
            for m in range(2):
                for v in range(2):
                    d = FR + 8 * blk + 4 * m + 2 * v
                    a(f"ds_read_b64_tr_b16 v[{d}:{d + 1}], v{VTR} offset:{(8 * m + 4 * v) * RS + 32 * blk}")

        def cvt_ex(blk):
            for f in range(4):
                a(f"v_cvt_pk_f16_f32 v{EE + 4 * f + blk}, v{DA + 8 * blk + 2 * f}, v{DA + 8 * blk + 2 * f + 1}")

        def cvt_f(f, area):
            for blk in range(4):
                a(f"v_cvt_pk_f16_f32 v{EE + 4 * f + blk}, v{DA + 8 * blk + 2 * f}, v{DA + 8 * blk + 2 * f + 1}")
            a(f"ds_write_b128 v{VEX}, v[{EE + 4 * f}:{EE + 4 * f + 3}] offset:{EX + area + 1024 * f}")

        def write_ex(area):
            for f in range(4):
                a(f"ds_write_b128 v{VEX}, v[{EE + 4 * f}:{EE + 4 * f + 3}] offset:{EX + area + 1024 * f}")

        trd(0); trd(1)
        self.x_loads(0, self.xb)
        a("s_waitcnt lgkmcnt(10)")
        trd(2)
        for k in range(8):
            a(f"v_pk_mul_f32 v[{RST + 2 * k}:{RST + 2 * k + 1}], v[{RST + 2 * k}:{RST + 2 * k + 1}], v[{CV + 2 * (k % 4)}:{CV + 2 * (k % 4) + 1}]")
        for k in range(4):
            a(f"v_cvt_pk_bf16_f32 v{AD + k}, v{RST + 2 * k}, v{RST + 2 * k + 1}\nv_cvt_pk_bf16_f32 v{AM + k}, v{RST + 8 + 2 * k}, v{RST + 9 + 2 * k}")
        for k in range(4):
            a(f"v_xor_b32 v{AD + 4 + k}, v{VSG}, v{AD + k}\nv_xor_b32 v{AM + 4 + k}, v{VSG}, v{AM + k}")
        a("s_waitcnt lgkmcnt(12)")
        a("s_cmp_lg_u32 s50, 0\ns_cbranch_scc1 L_st1_split")
        self.mfma("bf16", C0, AD, MEAN)
        self.mfma("bf16", C0, AM, MEAN + 4, C0)
        for blk in range(4):
            d, fr = DA + 8 * blk, FR + 8 * blk
            a(f"s_waitcnt lgkmcnt({(10, 10, 6, 2)[blk]})")
            if blk == 0:
                trd(3)
            self.mfma("bf16", d, AD, fr, C0)
            a(f"s_waitcnt lgkmcnt({(12, 8, 4, 0)[blk]})")
            self.mfma("bf16", d, AM, fr + 4, d)
        for blk in range(4):
            d, fr = DA + 8 * blk, FR + 8 * blk
            self.mfma("bf16", d + 4, AD + 4, fr)
            self.mfma("bf16", d + 4, AM + 4, fr + 4, d + 4)
            if blk in (1, 2):
                cvt_f(blk - 1, 0)
        cvt_f(2, 0)
        cvt_f(3, 0)
        a("s_branch L_st1_done")
        a("L_st1_split:")
        a("s_waitcnt lgkmcnt(8)")
        trd(3)
        a("s_waitcnt lgkmcnt(0)")
        for A, o, area in ((AD, 0, 0), (AM, 4, 16384)):
            self.mfma("bf16", C0, A, MEAN + o)
            for blk in range(4):
                self.mfma("bf16", DA + 8 * blk + 4, A + 4, FR + 8 * blk + o)
                self.mfma("bf16", DA + 8 * blk, A, FR + 8 * blk + o, C0)
            if area:
                a("s_waitcnt lgkmcnt(0)")
            for blk in range(4):
                cvt_ex(blk)
            write_ex(area)
        a("L_st1_done:")
        self.x_loads(self.xb, self.xc)
        self.arrive(C_C)
        PP, UU, TT, ZZ, VTAG = RW, RW + 16, WR, T + 56, T + 50
        a(f"s_lshl_b32 s31, s30, 12\nv_add_u32 v5, s31, v3\ns_and_b32 s31, s28, {ZMASK:#x}\nv_mov_b32 v{VTAG}, s31\ns_mov_b32 s58, {~ZMASK & 0xFFFFFFFF:#x}")
        a("s_and_b32 s32, s48, 3\ns_cselect_b32 s72, -1, 0xff\ns_cselect_b32 s73, -1, 0\ns_mov_b32 s74, s48")
        a("s_mov_b64 s[60:61], 0\ns_mov_b64 s[62:63], 0")
        a(f"v_mov_b32 v{VZ}, {OOB}\ns_cmp_eq_u32 s48, 7\ns_cbranch_scc1 L_no_consts")
        late_consts()
        a("L_no_consts:")

        def ex_reads():
            for f in range(4):
                a(f"ds_read_b128 v[{PP + 4 * f}:{PP + 4 * f + 3}], v5 offset:{EX + 1024 * f}")

        a("L_st23:")
        self.wait_then(C_C, 4, ex_reads, 4)
        self.stamp(5)
        a("s_cmp_eq_u32 s48, 7\ns_cbranch_scc1 L_p1_done")
        for i in range(1, 4):
            a(f"s_add_u32 s{60 + i}, s{59 + i}, {2 * ZTS}")

        def st2(f):
            u = UU + 8 * (f % 2)
            a(f"s_waitcnt lgkmcnt({3 - f})")
            self.mfma("f16", u, PP + 4 * f, M2 + 8 * f)
            self.mfma("f16", u + 4, PP + 4 * f, M2 + 8 * f + 4)

        def tw(f):
            u = UU + 8 * (f % 2)
            tc, ts = TW + 8 * f, TW + 8 * f + 4
            for p in (0, 2):
                a(f"v_pk_mul_f32 v[{TT + p}:{TT + p + 1}], v[{tc + p}:{tc + p + 1}], v[{u + p}:{u + p + 1}]")
            for p in (0, 2):
                a(f"v_pk_mul_f32 v[{TT + 4 + p}:{TT + 5 + p}], v[{ts + p}:{ts + p + 1}], v[{u + p}:{u + p + 1}]")
            for p in (0, 2):
                a(f"v_pk_fma_f32 v[{TT + p}:{TT + p + 1}], v[{ts + p}:{ts + p + 1}], v[{u + 4 + p}:{u + 5 + p}], v[{TT + p}:{TT + p + 1}]")
                a(f"v_pk_fma_f32 v[{TT + 4 + p}:{TT + 5 + p}], v[{tc + p}:{tc + p + 1}], v[{u + 4 + p}:{u + 5 + p}], v[{TT + 4 + p}:{TT + 5 + p}] neg_lo:[0,0,1] neg_hi:[0,0,1]")
            for i in range(4):
                a(f"v_cvt_pk_f16_f32 v{PP + 4 * f + i}, v{TT + i}, v{TT + 4 + i}")

        def st3(f):
            self.mfma("f16", ZZ + 8 * f, M3, PP + 4 * f)
            self.mfma("f16", ZZ + 8 * f + 4, M3 + 4, PP + 4 * f)

        OO = T + 16

        def pack(lo):
            for i in range(4):
                o = OO + 4 * i + lo
                a(f"v_cvt_pk_f16_f32 v{o}, v{ZZ + 16 * lo + i}, v{ZZ + 16 * lo + 8 + i}\nv_cvt_pk_f16_f32 v{o + 2}, v{ZZ + 16 * lo + 4 + i}, v{ZZ + 16 * lo + 12 + i}")
                a(f"v_and_or_b32 v{o}, v{o}, s58, v{VTAG}\nv_and_or_b32 v{o + 2}, v{o + 2}, s58, v{VTAG}")

        def z_stores():
            for i in range(4):
                if i < 2:
                    a(f"s_mov_b32 exec_hi, s{72 + i}")
                a(f"buffer_store_dwordx4 v[{OO + 4 * i}:{OO + 4 * i + 3}], v{VZ}, s[12:15], s{60 + i} offen {self.zflag}")
            a("s_mov_b32 exec_hi, -1")

        st2(0); st2(1); tw(0); st2(2); st3(0); tw(1); st2(3); st3(1); tw(2); st3(2); tw(3); st3(3); pack(0); pack(1)
        a("s_cmp_eq_u32 s50, 0\ns_cbranch_scc1 L_p1_done")
        z_stores()
        a(f"s_mov_b32 s50, 0\ns_add_u32 s60, s60, 16384\nv_add_u32 v5, 16384, v5\ns_sub_u32 s31, s48, 4\nv_cvt_f32_i32 v{T2}, s31\nv_mul_f32 v{T2}, 0x3d800000, v{T2}")
        a(f"v_and_b32 v{T1}, 15, v2\nv_lshlrev_b32 v{T1}, 2, v{T1}\nv_cvt_f32_u32 v{T1}, v{T1}")
        for i in range(4):
            a(f"v_fma_f32 v{T0}, v{BI + i}, v{T1}, v{T2}\nv_sin_f32 v{M3 + 4 + i}, v{T0}\nv_cos_f32 v{T0}, v{T0}")
            a(f"v_cvt_pk_f16_f32 v{M3 + i}, v{T0}, v{M3 + 4 + i}\nv_cvt_pk_f16_f32 v{M3 + 4 + i}, -v{M3 + 4 + i}, v{T0}")
        a("s_branch L_st23")
        a("L_p1_done:")
        self.arrive(C_ST3)
        self.stamp(6)
        self.setprio(self.P["mid"])
        self.park_move()
        self.phase2(MM, VTAG, z_stores)

    def phase2(self, MM, VTAG, z_stores):
        a = self.a
        XP, SG, XF, GG = 8, 24, 40, 120
        AC, ZL, AF, GR = 216, 72, 152, 192
        ZN = 212
        XS_, VTA, XR, VTC, VSA = self.XS_, self.VTA, self.XR, self.VTC, self.VSA
        self.tile_decode()
        a(f"s_lshl_b32 s31, s30, 5\ns_add_u32 s53, s53, s31\ns_lshl_b32 s48, s46, 1\ns_add_u32 s48, s48, 2040\ns_mov_b32 s49, {STAT}")
        x_loads = self.x_loads

        def x_reads(h0, h1):
            for h in range(h0, h1):
                a(f"ds_read_b128 v[{XP + 4 * h}:{XP + 4 * h + 3}], v{XR} offset:{1024 * h}")
            a("s_waitcnt lgkmcnt(0)")

        XE = max(self.xearly, self.xc)

        ledger = []

        def younger(tag):
            return len(ledger) - 1 - max(i for i, t in enumerate(ledger) if t == tag)

        def step(op):
            if op == "x":
                self.release(self.rel_x0)
                a(f"buffer_load_dwordx4 v[{SG}:{SG + 3}], v6, s[12:15], s49 offen")
                x_loads(self.xc, XE)
                ledger.extend("x" * (1 + XE - self.xc))
            elif op == "z":
                if self.rel_zw:
                    a("s_cmp_ge_u32 s2, 224\ns_cbranch_scc1 L_zst_go")
                    self.release(self.rel_zw)
                    a("L_zst_go:")
                z_stores()
                ledger.extend("zzzz")
                self.stamp(7)
                if self.cheat & 4:
                    a("s_branch L_fin")
            elif op == "m":
                self.p2_matrix(MM, 160, 161, 162)
            elif op == "a":
                addresses()
            elif op == "w":
                stat_wait()
            elif op == "g":
                x_reads(0, XE)
                self.stamp(13)
                gate(0, XE)
                self.stamp(14)
            elif op == "y" and XE < 4:
                self.release(self.rel_x)
                x_loads(XE, 4)
                ledger.extend("y" * (4 - XE))
            elif op == "t":
                a(f"s_mov_b32 exec_lo, {self.tmask & 0xFFFFFFFF:#x}\ns_mov_b32 exec_hi, {self.tmask >> 32:#x}")
                for h in range(4):
                    a(f"buffer_load_dword v197, v{XS_[h]}, s[16:19], 0 offen")
                a("s_mov_b64 exec, -1")
                ledger.extend("tttt")
            elif op == "k":
                masks()
            elif op == "v" and XE < 4:
                a(f"s_waitcnt vmcnt({younger('y')})")
            elif op == "r":
                self.release(self.rel_zr)
                z_loads()
                ledger.extend("rrrrr")
            elif op == "h":
                self.setprio(self.P["gate"])
                x_reads(XE, 4)
                self.stamp(8)
                gate(XE, 4)

        def addresses():
            a(f"s_mul_i32 s51, s46, {32 * ZTS}\ns_add_u32 s51, s51, {ZB}\ns_mul_i32 s54, s47, {ZTS}\ns_lshl_b32 s32, s30, 12\ns_add_u32 s50, s51, s54\ns_add_u32 s50, s50, s32")
            a(f"s_add_u32 s55, s47, 1\ns_and_b32 s55, s55, 31\ns_mul_i32 s55, s55, {ZTS}\nv_add_u32 v250, s32, v3\nv_add_u32 v199, s76, v3")
            a(f"v_lshl_add_u32 v200, v2, 7, s32\nv_and_b32 v1, 2, v2\nv_lshl_add_u32 v200, v1, 3, v200\nv_and_b32 v1, 0x70, v3\nv_add_u32 v1, 16384, v1")
            a(f"s_mov_b32 vcc_lo, 0\ns_mov_b32 vcc_hi, -1\nv_cndmask_b32 v200, v200, v1, vcc\ns_mov_b32 vcc_hi, 0xff\nv_mov_b32 v1, s55\nv_mov_b32 v201, s54")
            a(f"v_cndmask_b32 v1, v1, v201, vcc\nv_mov_b32 v201, {SHD}\nv_cndmask_b32 v201, v201, v0, vcc\nv_add_u32 v201, v201, v200\nv_add_u32 v200, v1, v200")
            if self.cheat & 1:
                a("v_and_b32 v200, 0x70, v3\nv_add_u32 v200, s54, v200")
            a("v_lshrrev_b32 v251, 5, v2\nv_lshlrev_b32 v251, 11, v251\nv_bfe_u32 v1, v2, 2, 3\nv_lshl_add_u32 v251, v1, 7, v251")
            a("v_and_b32 v1, 3, v2\nv_lshl_add_u32 v251, v1, 5, v251\nv_bfe_u32 v1, v2, 3, 1\nv_lshl_add_u32 v251, v1, 4, v251\nv_bfe_u32 v1, v2, 4, 1\nv_lshl_add_u32 v251, v1, 3, v251")
            a("v_xor_b32 v252, 16, v251\nv_xor_b32 v253, 8, v251\nv_xor_b32 v254, 24, v251\nv_cmp_gt_u32 vcc, 4, v2\nv_mov_b32 v1, 16384\nv_cndmask_b32 v1, v0, v1, vcc")
            a("v_add_u32 v206, v253, v1\nv_add_u32 v207, v254, v1")
            a(f"s_mov_b32 vcc_lo, 0x88888888\ns_mov_b32 vcc_hi, 0x88888888\nv_mov_b32 v1, {SHD - 96}\nv_cndmask_b32 v1, 32, v1, vcc")
            a("v_add_u32 v202, v251, v1\nv_add_u32 v203, v253, v1\nv_add_u32 v204, v206, v1")

        def stat_wait():
            a(f"s_waitcnt vmcnt({younger('x') if self.counted else 0})")
            a("L_stat_check:")
            a(f"v_cmp_ne_u64 vcc, s[28:29], v[{SG + 2}:{SG + 3}]\ns_cbranch_vccz L_stat_got")
            self.spin_guard("L_stat_got")
            a(f"s_mov_b64 exec, vcc\nbuffer_load_dwordx4 v[{SG}:{SG + 3}], v6, s[12:15], s49 offen sc1")
            a("s_mov_b64 exec, -1\ns_waitcnt vmcnt(0)\ns_branch L_stat_check")
            a("L_stat_got:")
            a(f"v_cndmask_b32 v{SG}, v{SG}, v{SG + 1}, s[88:89]")
            a(f"v_mov_b32 v{SG + 8}, v{SG}\nv_permlane32_swap_b32 v{SG}, v{SG + 8}\nv_mov_b32 v{SG + 4}, v{SG}\nv_mov_b32 v{SG + 12}, v{SG + 8}")
            a(f"v_permlane16_swap_b32 v{SG}, v{SG + 4}\nv_permlane16_swap_b32 v{SG + 8}, v{SG + 12}")
            for h in range(4):
                s_ = SG + 4 * h
                a(f"v_lshlrev_b32 v{s_ + 2}, 16, v{s_}\nv_and_b32 v{s_}, 0xffff0000, v{s_}\nv_rcp_f32 v{s_}, v{s_}")
            for h in range(4):
                s_ = SG + 4 * h
                a(f"v_mul_f32 v{s_}, 0xbfb8aa3b, v{s_}\nv_mul_f32_e64 v{s_ + 2}, -v{s_ + 2}, v{s_}")

        def z_loads():
            for j in range(4):
                a(f"buffer_load_dwordx4 v[{ZL + 4 * j}:{ZL + 4 * j + 3}], v3, s[12:15], s50 offen offset:{1024 * j} sc1")
            a("s_mov_b32 exec_hi, 0x1ff")
            a(f"buffer_load_dwordx4 v[{ZN}:{ZN + 3}], v200, s[12:15], s51 offen sc1")
            a("s_mov_b32 exec_hi, -1")

        def slots(h, i):
            if h % 2 == 0:
                return 8 * h + 2 * i, 8 * h + 2 * i + 1
            return 8 * h + (8 - 2 * i) % 8, 8 * h + 7 - 2 * i

        def gate(h0, h1):
            rng = range(4 * h0, 4 * h1)
            for i in rng:
                lo, hi = slots(i // 4, i % 4)
                a(f"v_lshlrev_b32 v{XF + lo}, 16, v{XP + i}\nv_and_b32 v{XF + hi}, 0xffff0000, v{XP + i}")
            for i in rng:
                s_ = SG + 4 * (i // 4)
                a(f"v_pk_fma_f32 v[{GG + 2 * i}:{GG + 2 * i + 1}], v[{XF + 2 * i}:{XF + 2 * i + 1}], v[{s_}:{s_ + 1}], v[{s_ + 2}:{s_ + 3}] op_sel_hi:[1,0,0]")
            for i in rng:
                a(f"v_exp_f32 v{AC + 2 * i}, v{GG + 2 * i}\nv_exp_f32 v{AC + 2 * i + 1}, v{GG + 2 * i + 1}")
            for i in rng:
                a(f"v_pk_add_f32 v[{AC + 2 * i}:{AC + 2 * i + 1}], v[{AC + 2 * i}:{AC + 2 * i + 1}], 1.0 op_sel_hi:[1,0]")
            for i in rng:
                a(f"v_rcp_f32 v{AC + 2 * i}, v{AC + 2 * i}\nv_rcp_f32 v{AC + 2 * i + 1}, v{AC + 2 * i + 1}")
            for i in rng:
                a(f"v_pk_mul_f32 v[{GG + 2 * i}:{GG + 2 * i + 1}], v[{GG + 2 * i}:{GG + 2 * i + 1}], v[{AC + 2 * i}:{AC + 2 * i + 1}]")

        for i in range(4):
            a(f"v_mov_b32 v{ZN + i}, v{VTAG}")
        def masks():
            self.wait_then(C_S2, 1, lambda: a(f"ds_read_b32 v198, v0 offset:{L_KEY + 4}"), 1)
            a(f"v_and_b32 v6, 48, v2\nv_lshlrev_b32 v6, 1, v6\nv_mov_b32 v209, {OOB}\ns_waitcnt lgkmcnt(0)\nv_readfirstlane_b32 s33, v198")
            a("s_andn2_b32 s33, 0x7ff, s33\ns_sub_u32 s31, 0, s33\ns_and_b32 s31, s31, 2047")
            a("s_sub_u32 s32, s33, 1024\ns_sub_u32 s34, s31, 1024" if self.eo else "s_sub_u32 s32, s48, s33\ns_sub_u32 s34, s48, s31")
            for h, sr in enumerate((33, 31, 32, 34)):
                a(f"v_cmp_eq_u32 vcc, s{sr}, v{VTC}\nv_cmp_eq_u32 s[{54 + 2 * h}:{55 + 2 * h}], s{sr}, v{VTA}\nv_cndmask_b32 v{XS_[h]}, v{XS_[h]}, v209, vcc")
            a("s_or_b64 s[62:63], s[54:55], s[58:59]\ns_or_b64 s[64:65], s[56:57], s[60:61]")

        order = self.order if "r" in self.order else self.order + ("ykrvh" if self.zwith else "ykvrh")
        assert sorted(order.replace("t", "")) == sorted("xzmawgykvrh") and order.find("t") < order.index("r")
        for first, second in ("xw", "wg", "yk", "zk", "wk", "yv", "vh", "wh", "ar", "xr", "yr", "zr", "ak"):
            assert order.index(first) < order.index(second), (first, second)
        for op in order:
            step(op)
        if self.u64:
            a(f"s_and_b32 s31, s28, {ZMASK:#x}\ns_sub_u32 s66, 0, s31\ns_subb_u32 s67, 0, s31")
        self.stamp(9)
        a("L_z_wait:")
        self.setprio(self.P["tail"])
        ZC = AF + 8
        srcs = [ZL + i for i in range(16)] + [ZN + i for i in range(4)]
        for j in range(5):
            a(f"s_waitcnt vmcnt({4 - j})")
            for i in range(4):
                if not self.u64:
                    a(f"v_xor_b32 v{ZC + 4 * j + i}, v{VTAG}, v{srcs[4 * j + i]}")
                elif i % 2 == 0:
                    a(f"v_lshl_add_u64 v[{ZC + 4 * j + i}:{ZC + 4 * j + i + 1}], v[{srcs[4 * j + i]}:{srcs[4 * j + i] + 1}], 0, s[66:67]")
            if j < 4:
                a(f"ds_write_b128 v250, v[{ZC + 4 * j}:{ZC + 4 * j + 3}] offset:{1024 * j}")
            else:
                a(f"s_mov_b32 exec_hi, 0x1ff\nds_write_b128 v201, v[{ZC + 16}:{ZC + 19}]\ns_mov_b32 exec_hi, -1")
            if j == 0:
                a(f"v_or3_b32 v1, v{ZC}, v{ZC + 1}, v{ZC + 2}\nv_or_b32 v1, v1, v{ZC + 3}")
            else:
                a(f"v_or3_b32 v1, v1, v{ZC + 4 * j}, v{ZC + 4 * j + 1}\nv_or3_b32 v1, v1, v{ZC + 4 * j + 2}, v{ZC + 4 * j + 3}")
        a(f"v_and_b32 v1, {ZMASK:#x}, v1\nv_cmp_ne_u32 vcc, 0, v1\ns_cbranch_vccz L_z_got")
        self.spin_guard("L_z_got")
        a("s_mov_b64 exec, vcc")
        for j in range(4):
            a(f"buffer_load_dwordx4 v[{ZL + 4 * j}:{ZL + 4 * j + 3}], v3, s[12:15], s50 offen offset:{1024 * j} sc1")
        a("s_and_b32 exec_hi, exec_hi, 0x1ff\ns_or_b32 exec_lo, exec_lo, 1")
        a(f"buffer_load_dwordx4 v[{ZN}:{ZN + 3}], v200, s[12:15], s51 offen sc1")
        a("s_mov_b64 exec, -1\ns_waitcnt lgkmcnt(0)\ns_branch L_z_wait")
        a("L_z_got:")
        self.stamp(10)
        self.fine(0)
        if self.hold:
            a(f"ds_read_b32 v198, v0 offset:{L_CNT + 4 * C_YG}")
        self.arrive(C_D)
        self.fine(1)
        if self.diag == "fine":
            a("s_waitcnt lgkmcnt(0)")

        def rd(ks):
            c, ph = ks // 4, ks % 4
            b = AF + 8 * (ks % 4)
            for mb in range(2):
                for v in range(2):
                    ad = 206 + mb if (ks == 4 and v == 0) else 251 + mb + 2 * c
                    a(f"ds_read_b64_tr_b16 v[{b + 4 * mb + 2 * v}:{b + 4 * mb + 2 * v + 1}], v{ad} offset:{4096 * ph + 1024 * v}")

        def half(ks):
            return (ks % 4) // 2 if self.eo else ks // 4

        def first(ks):
            return ks in ((0, 2) if self.eo else (0, 4))

        def b3(ks):
            return (ZL if ks < 4 else 240 - 16 * (ks // 6) * 4) + 4 * (ks % 4)

        def rd3(ks):
            c, ph = ks // 4, ks % 4
            for v in range(2):
                ad = 204 if (ks == 4 and v == 0) else 202 + c
                a(f"ds_read_b64_tr_b16 v[{b3(ks) + 2 * v}:{b3(ks) + 2 * v + 1}], v{ad} offset:{4096 * ph + 1024 * v}")

        def mf3(ks):
            d = AC + 16 + 4 * half(ks)
            self.mfma("f16", d, b3(ks), MM + 4 * ks, None if first(ks) else d)

        self.wait_then(C_D, 4, lambda: rd(0), 4)
        if self.hold:
            a("v_readfirstlane_b32 s66, v198")
        self.stamp(11)
        rd(1); rd(2)
        for ks in range(8):
            b = AF + 8 * (ks % 4)
            a("s_waitcnt lgkmcnt(8)")
            for mb in range(2):
                d = AC + 8 * half(ks) + 4 * mb
                self.mfma("f16", d, b + 4 * mb, MM + 4 * ks, None if first(ks) else d)
            if ks + 3 < 8:
                rd(ks + 3)
            else:
                rd3(2 * (ks - 5))
                rd3(2 * (ks - 5) + 1)
        a("s_waitcnt lgkmcnt(8)")
        rd3(6); rd3(7)
        mf3(0); mf3(1)
        a("s_waitcnt lgkmcnt(4)")
        mf3(2); mf3(3)
        SA = AF

        def combine(h):
            ng = " neg_lo:[0,1] neg_hi:[0,1]" if h else ""
            for i in range(4):
                e, o = AC + 2 * i, AC + 8 + 2 * i
                a(f"v_pk_add_f32 v[{SA + 8 * h + 2 * i}:{SA + 8 * h + 2 * i + 1}], v[{e}:{e + 1}], v[{o}:{o + 1}]{ng}")

        def emit(h, between=None):
            sa = SA + 8 * (h // 2)
            for i in range(4):
                k = 8 * h + 2 * i
                a(f"v_pk_fma_f32 v[{XF + k}:{XF + k + 1}], v[{sa + 2 * i}:{sa + 2 * i + 1}], v[{GG + k}:{GG + k + 1}], v[{XF + k}:{XF + k + 1}]")
            if between:
                between()
            for i in range(4):
                lo, hi = slots(h, i)
                a(f"v_cvt_pk_bf16_f32 v{XP + 4 * h + i}, v{XF + lo}, v{XF + hi}")
            a(f"ds_write_b128 v{XR}, v[{XP + 4 * h}:{XP + 4 * h + 3}] offset:{1024 * h}")
            a(f"ds_read_b128 v[{SG + 4 * h}:{SG + 4 * h + 3}], v199 offset:{1024 * h}")

        def store(h, left):
            a(f"s_waitcnt lgkmcnt({left})")
            if self.cheat & 16:
                return
            a(f"buffer_store_dwordx4 v[{SG + 4 * h}:{SG + 4 * h + 3}], v{XS_[h]}, s[16:19], 0 offen {self.oflag}")

        def dump(m, sfx=''):
            a(f"s_cmp_eq_u64 s[{62 + 2 * m}:{63 + 2 * m}], 0\ns_cbranch_scc1 L_nodump{m}{sfx}")
            for h in (m, m + 2):
                sa, o = SA + 8 * (h // 2), L_ROW + 128 * m
                a(f"s_mov_b64 exec, s[{54 + 2 * h}:{55 + 2 * h}]")
                a(f"ds_write_b128 v6, v[{sa}:{sa + 3}] offset:{o}\nds_write_b128 v6, v[{sa + 4}:{sa + 7}] offset:{o + 16}")
            self.arrive(C_ROW1 if m else C_ROW)
            a("s_waitcnt lgkmcnt(0)")
            a(f"L_nodump{m}{sfx}:")

        def tail_a():
            a("s_waitcnt lgkmcnt(0)")
            self.fine(2)
            mf3(6); mf3(7)

        combine(0)
        mf3(4); mf3(5)
        emit(0, tail_a)
        self.fine(3)
        combine(1)
        dump(0)
        emit(2)
        if self.hold:
            a("s_cmp_lt_u32 s66, 4\ns_cbranch_scc1 L_held")
        store(0, 2)
        self.fine(4)
        a(f"v_add_f32 v{SA}, v{AC + 16}, v{AC + 20}\nv_sub_f32 v{SA + 8}, v{AC + 16}, v{AC + 20}")
        dump(1)
        emit(1)
        store(2, 2)
        self.fine(5)
        emit(3)
        store(1, 2)
        store(3, 0)
        self.fine(6)
        if self.diag == "fine":
            a("s_waitcnt vmcnt(0)")
            self.fine(7)
            a("s_waitcnt lgkmcnt(0)")
            for i in range(1, 8):
                a(f"s_sub_u32 s31, s{76 + 2 * i}, s76\ns_add_u32 s31, s31, s68\nv_writelane_b32 v211, s31, {i}")
        self.stamp(12)
        a("s_branch L_fin")
        if self.hold:
            a("L_held:")
            a(f"v_add_f32 v{SA}, v{AC + 16}, v{AC + 20}\nv_sub_f32 v{SA + 8}, v{AC + 16}, v{AC + 20}")
            dump(1, "h")
            emit(1)
            emit(3)
            self.wait(C_YG, 4)
            for h in range(4):
                store(h, 0)
            self.stamp(12)
            a("s_branch L_fin")

    def moe_head(self):
        a = self.a
        a("L_moe:")
        self.role = "moe"
        a("s_load_dwordx2 s[20:21], s[0:1], 64")
        if self.narrow:
            a("s_and_b32 s32, s2, 7\ns_mul_i32 s32, s32, 7\ns_lshr_b32 s31, s2, 6\ns_lshl_b32 s31, s31, 1\ns_add_u32 s46, s31, s32")
            a("s_bfe_u32 s47, s2, 0x30003\ns_cmp_ge_u32 s2, 192\ns_cselect_b32 s75, 1, 0\ns_lshl_b32 s47, s47, s75\ns_and_b32 s47, s47, 7")
        else:
            a("s_and_b32 s32, s2, 7\ns_mul_i32 s32, s32, 28\ns_lshr_b32 s31, s2, 3\ns_add_u32 s31, s31, s32\ns_lshr_b32 s46, s31, 3\ns_lshl_b32 s46, s46, 1\ns_and_b32 s47, s31, 7\ns_mov_b32 s75, 0")
        for d in (16, 20, 24):
            a(f"s_mov_b32 s{d + 2}, {WBYTES}\ns_mov_b32 s{d + 3}, 0x00020000")
        a("v_lshrrev_b32 v4, 4, v2\nv_lshlrev_b32 v5, 5, v4\nv_and_b32 v6, 0x70, v3\nv_xor_b32 v5, v5, v6\nv_mul_u32_u24 v4, 7168, v4")
        a(f"s_mul_i32 s31, s47, {128 * 7168}\ns_lshl_b32 s32, s46, 7\ns_add_u32 s31, s31, s32\nv_add3_u32 v4, v4, v5, s31")
        a(f"s_cmp_eq_u32 s75, 0\ns_mov_b32 s31, {128 * 7168}\ns_cselect_b32 s31, 128, s31\nv_add_u32 v6, s31, v4")
        a("s_mov_b32 vcc_lo, 0xff00ff00\ns_mov_b32 vcc_hi, 0xff00ff00\nv_cndmask_b32 v5, v6, v4, vcc\nv_cndmask_b32 v4, v4, v6, vcc")
        a(f"s_mov_b32 s48, 0\ns_mov_b32 s49, {M_G}")
        a("s_waitcnt lgkmcnt(0)")
        a("s_mov_b32 s16, s38\ns_mov_b32 s17, s39")
        if self.diag == "start":
            a("s_memrealtime s[80:81]\ns_waitcnt lgkmcnt(0)\nv_writelane_b32 v211, s80, 1")
        if self.gtouch:
            self.gran_slot()
            a("s_load_dword s54, s[12:13], s31")
        a(f"s_load_dwordx2 s[28:29], s[12:13], {EPOCH}\ns_load_dwordx2 s[24:25], s[0:1], 72\ns_load_dwordx2 s[44:45], s[0:1], 80")
        a("s_barrier")
        a(f"s_cmp_ge_u32 s2, {0 if self.diag == 'nomoe' else 224}\ns_cselect_b32 s66, 0, 1\ns_cbranch_scc1 L_dma_done")
        a("s_cmp_lg_u32 s30, 0\ns_cbranch_scc1 L_dma_done")
        self.setprio(self.P["dma"])
        if self.uoff:
            a(f"s_mov_b32 s52, {32768 + 4096}\ns_mov_b32 s53, {16 * 7168}")
        phases = [(self.win, 128)] if not self.win0 else [self.win0, (self.win, 128)]
        for n, (win, rows) in enumerate(phases):
            a(f"L_dma{n}:")
            for i in range(4):
                a(f"s_mov_b32 m0, s49\ns_waitcnt vmcnt({win - (1 if self.w1 else 2)})")
                a(f"buffer_load_dwordx4 v{4 + i // 2}, s[16:19], s48 offen {self.wflag} lds")
                if self.uoff:
                    a("s_add_u32 m0, s49, s52\ns_add_u32 s31, s48, s53\ns_add_u32 s49, s49, 1024")
                else:
                    a("s_add_u32 m0, s49, 32768\ns_add_u32 s49, s49, 1024")
                if self.w1:
                    a(f"s_waitcnt vmcnt({win - 1})")
                a(f"buffer_load_dwordx4 v{4 + i // 2}, s[20:23], {'s31' if self.uoff else 's48'} offen {self.wflag} lds")
                a(f"s_add_u32 s48, s48, {4 * 7168}")
            if self.uoff:
                a("s_sub_u32 s52, 65536, s52\ns_sub_u32 s53, 0, s53")
            a(f"s_cmp_lt_u32 s48, {rows * 7168}\ns_cbranch_scc1 L_dma{n}")

    def moe(self):
        a = self.a
        if not self.near:
            self.moe_head()
        self.role = "moe"
        a("L_dma_done:")
        self.setprio(self.P["wait"])
        WD = 100
        a("s_lshr_b32 s31, s47, 2\ns_andn2_b32 s31, s31, s75\ns_add_u32 s50, s31, s46")
        a("s_lshl_b32 s31, s50, 17\ns_bfe_u32 s32, s2, 0x20003\ns_lshl_b32 s32, s32, 2\ns_add_u32 s51, s32, s30\ns_lshl_b32 s32, s51, 7\ns_add_u32 s31, s31, s32")
        if self.dlds:
            assert self.xc == 0
            a("v_lshrrev_b32 v6, 3, v2\nv_lshlrev_b32 v6, 11, v6\nv_and_b32 v7, 0x70, v3\nv_and_b32 v11, 16, v2\nv_lshlrev_b32 v11, 1, v11\nv_xor_b32 v11, v11, v7")
            a("v_add3_u32 v6, v6, v11, s31\nv_xor_b32 v11, 64, v6")
            a(f"s_lshl_b32 s74, s30, 13\ns_cmp_lt_u32 s30, 2\ns_mov_b32 s31, {L_XT - 16384}\ns_cselect_b32 s31, {EX + 16384}, s31\ns_add_u32 s74, s74, s31")
        else:
            a("v_lshrrev_b32 v6, 3, v2\nv_lshlrev_b32 v6, 14, v6\nv_and_b32 v7, 0x70, v3\nv_add3_u32 v6, v6, v7, s31")
        a("s_mov_b32 s60, 4096\ns_mov_b32 s61, 8192\ns_mov_b32 s62, 12288")
        if self.cheat & 128:
            a("s_lshl_b32 s31, s50, 4\ns_add_u32 s31, s31, s51\ns_lshl_b32 s31, s31, 13\nv_add_u32 v6, s31, v3\ns_mov_b32 s60, 1024\ns_mov_b32 s61, 4096\ns_mov_b32 s62, 5120")
        if self.cheat & 256:
            a("s_lshl_b32 s31, s50, 17\ns_lshl_b32 s32, s30, 15\ns_add_u32 s31, s31, s32\ns_bfe_u32 s32, s2, 0x20003\ns_lshl_b32 s32, s32, 9\ns_add_u32 s31, s31, s32")
            a("v_lshrrev_b32 v6, 5, v2\nv_lshlrev_b32 v6, 14, v6\nv_and_b32 v250, 0x1f0, v3\nv_add3_u32 v6, v6, v250, s31")

        def d_loads(j0, j1):
            for j in range(j0, j1):
                if self.cheat & 32:
                    a(f"buffer_load_dwordx4 v[{WD + 4 * j}:{WD + 4 * j + 3}], v7, s[24:27], 0 offen")
                    continue
                if self.dlds:
                    a(f"s_add_u32 m0, s74, {1024 * j}\ns_mov_b32 s31, {16384 * j}")
                    a(f"buffer_load_dwordx4 v{11 if j % 2 else 6}, s[24:27], s31 offen {self.wflag} lds")
                    continue
                so = "0" if j < 2 else f"s{59 + j // 2}"
                a(f"buffer_load_dwordx4 v[{WD + 4 * j}:{WD + 4 * j + 3}], v6, s[24:27], {so} offen offset:{2048 * (j % 2)} {self.wflag}")

        a("v_bfe_u32 v8, v2, 2, 3\nv_lshlrev_b32 v9, 5, v8\ns_lshl_b32 s31, s30, 6\nv_xor_b32 v9, s31, v9")
        a(f"v_bfe_u32 v8, v2, 2, 2\nv_lshl_add_u32 v9, v8, 8, v9\nv_lshrrev_b32 v8, 4, v2\nv_lshl_add_u32 v9, v8, 11, v9\nv_and_b32 v10, 3, v2\nv_lshl_add_u32 v9, v10, 3, v9")
        a(f"v_add_u32 v9, {M_G}, v9\nv_xor_b32 v10, 32, v9\nv_lshlrev_b32 v8, 4, v8")
        a("s_lshr_b32 s31, s30, 1\ns_and_b32 s32, s31, s75\ns_lshl_b32 s32, s32, 8\nv_add_u32 v8, s32, v8\ns_cmp_eq_u32 s75, 0\ns_cselect_b32 s32, 12, 9\ns_lshl_b32 s31, s31, s32")
        a("s_lshl_b32 s32, s46, 3\ns_add_u32 s32, s32, s47\ns_lshl_b32 s32, s32, 9\ns_add_u32 s31, s31, s32")
        a(f"s_and_b32 s32, s30, 1\ns_lshl_b32 s32, s32, 8\ns_add_u32 s31, s31, s32\ns_add_u32 s31, s31, {HP}\nv_lshl_add_u32 v13, v2, 3, s31")
        a("s_waitcnt lgkmcnt(0)")
        self.tag_from_epoch()
        a(f"s_and_b32 s31, s28, {FMASK:#x}\nv_mov_b32 v14, s31\ns_mov_b32 s49, {~FMASK & 0xFFFFFFFF:#x}")
        DF = self.dfirst
        if isinstance(self.tlb, tuple):
            shift, parts = self.tlb
            a("s_cmp_lg_u32 s30, 2\ns_cbranch_scc1 L_no_tlb")
            a(f"s_mov_b32 s52, s44\ns_mov_b32 s53, s45\ns_mov_b32 s54, 0x400000\ns_mov_b32 s55, 0x00020000\nv_lshlrev_b32 v250, {shift}, v2")
            if "o" in parts:
                a("buffer_load_dword v252, v250, s[52:55], 0 offen")
            if "O" in parts:
                m = (2 << (1 << (22 - shift))) - 1
                a(f"v_min_u32 v250, 0x3ffffc, v250\ns_mov_b32 exec_lo, {m & 0xFFFFFFFF:#x}\ns_mov_b32 exec_hi, {m >> 32:#x}\nbuffer_load_dword v252, v250, s[52:55], 0 offen")
            if "Z" in parts:
                a(f"s_mov_b64 exec, 0x3f\nv_lshlrev_b32 v250, 20, v2\nv_add_u32 v250, {YP + 0x38000}, v250\nv_min_u32 v250, {ZB + (4 * 32 + 17) * ZTS}, v250")
                a("buffer_load_dword v251, v250, s[12:15], 0 offen")
            if "D" in parts:
                a("s_mov_b64 exec, 3\nv_mul_u32_u24 v250, 0x1f800, v2\nv_add_u32 v250, v250, v6\nbuffer_load_dword v253, v250, s[24:27], 0 offen")
            if "G" in parts:
                a(f"s_mov_b64 exec, 1\ns_mov_b32 s31, {127 * 7168}\nbuffer_load_dword v249, v4, s[16:19], s31 offen\nbuffer_load_dword v248, v4, s[20:23], s31 offen")
            if "z" in parts:
                a(f"s_mov_b64 exec, 3\nv_lshlrev_b32 v250, 21, v2\ns_mov_b32 s31, {ZB + 16384 + 31 * ZTS}\nbuffer_load_dword v251, v250, s[12:15], s31 offen")
            if "d" in parts:
                a("s_mov_b64 exec, 1\nbuffer_load_dword v253, v6, s[24:27], 0 offen")
            a("s_mov_b64 exec, -1\nL_no_tlb:")
        elif self.tlb:
            a("s_cmp_lg_u32 s30, 2\ns_cbranch_scc1 L_no_tlb")
            if self.tlb == "i":
                a("s_cmp_lg_u32 s66, 0\ns_cbranch_scc1 L_no_tlb")
            a("s_mov_b32 s52, s44\ns_mov_b32 s53, s45\ns_mov_b32 s54, 0x400000\ns_mov_b32 s55, 0x00020000\nv_lshlrev_b32 v250, 20, v2\ns_mov_b64 exec, 0xff")
            if self.tlb == 2:
                a("s_bfe_u32 s31, s2, 0x40003\ns_lshl_b32 s31, s31, 16\nv_add_u32 v250, s31, v250")
            a("buffer_load_dword v251, v250, s[12:15], 0 offen\nbuffer_load_dword v252, v250, s[52:55], 0 offen\nbuffer_load_dword v253, v250, s[24:27], 0 offen")
            a("s_mov_b64 exec, -1\nL_no_tlb:")
        a("s_cmp_lg_u32 s66, 0\ns_cbranch_scc1 L_tagged")
        self.arrive(C_E)
        if self.walk:
            a("s_cmp_lg_u32 s30, 1\ns_cbranch_scc1 L_no_walk")
            a("s_mov_b32 s52, s44\ns_mov_b32 s53, s45\ns_mov_b32 s54, 0x400000\ns_mov_b32 s55, 0x00020000")
            a("s_bfe_u32 s31, s2, 0x20003\ns_lshl_b32 s31, s31, 16\nv_lshl_add_u32 v250, v2, 18, s31\ns_mov_b32 exec_hi, 0")
            for ch, srd in (("g", 16), ("g", 20), ("d", 24), ("o", 52), ("w", 12)):
                if ch in self.walk:
                    a(f"buffer_load_dword v251, v250, s[{srd}:{srd + 3}], 0 offen")
            a("s_mov_b32 exec_hi, -1\nL_no_walk:")
        if self.dpf:
            gate, win, rows = self.dpf
            a("s_cmp_lg_u32 s30, 0\ns_cbranch_scc1 L_tagged")
            for c in (C_DMA, C_HP, C_H, C_Y) + ((C_YG,) if self.psig else ()):
                self.arrive(c)
            self.wait(*gate)
            a("s_and_b32 s32, s2, 7\ns_mul_i32 s32, s32, 28\ns_bfe_u32 s31, s2, 0x20003\ns_mul_i32 s31, s31, 7\ns_add_u32 s52, s31, s32\ns_add_u32 s53, s52, 7")
            a("v_lshrrev_b32 v250, 2, v2\nv_lshlrev_b32 v250, 11, v250\nv_and_b32 v251, 3, v2\nv_lshl_add_u32 v250, v251, 7, v250")
            a("L_dpf:\ns_lshr_b32 s31, s52, 2\ns_lshl_b32 s31, s31, 17\ns_and_b32 s32, s52, 3\ns_lshl_b32 s32, s32, 9\ns_add_u32 s31, s31, s32")
            for r in rows:
                a(f"s_add_u32 s32, s31, {2048 * r}\ns_waitcnt vmcnt({win - 1})\nbuffer_load_dword v251, v250, s[24:27], s32 offen")
            a("s_add_u32 s52, s52, 1\ns_cmp_lt_u32 s52, s53\ns_cbranch_scc1 L_dpf")
        a("L_tagged:")
        XA, BF, GA = 20, 36, 132
        order = [(ks, t) for ks in range(4) for t in range(4)]

        def b_reads(n0, n1):
            for n in range(n0, n1):
                ks, t = order[n]
                if n - n0 >= 7:
                    a("s_waitcnt lgkmcnt(12)")
                for v in range(2):
                    a(f"ds_read_b64_tr_b16 v[{BF + 4 * n + 2 * v}:{BF + 4 * n + 2 * v + 1}], v{9 + t % 2} offset:{32768 * (t // 2) + 8192 * ks + 1024 * v}")

        def last_k(sfx, loader=True):
            if loader:
                a(f"s_cmp_lg_u32 s30, 0\ns_cbranch_scc1 L_k3_wait{sfx}")
                a(f"s_waitcnt vmcnt({DF if self.dall else 0})")
                self.arrive(C_DMA)
                self.stamp(1)
                a(f"L_k3_wait{sfx}:")
            if sfx:
                a("s_waitcnt lgkmcnt(4)")
            self.wait_then(C_DMA, 3, lambda: b_reads(12, 16), 8)

        a("s_cmp_eq_u32 s30, 3\ns_cbranch_scc1 L_h1")
        a("s_cmp_eq_u32 s66, 0\ns_cbranch_scc1 L_key")
        a("s_cmp_lg_u32 s30, 0\ns_cbranch_scc1 L_follower")
        self.setprio(self.P["moe"])
        a("s_waitcnt vmcnt(16)")
        self.arrive(C_DMA)
        b_reads(0, 12)
        a("s_waitcnt vmcnt(8)")
        self.arrive(C_DMA)
        self.stamp(10)
        a("s_branch L_d_first" if self.dall else "s_branch L_key")
        a("L_follower:")
        if self.touch in ("s", "y"):
            a("v_readfirstlane_b32 s52, v13\ns_and_b32 s32, s30, 1\ns_lshl_b32 s32, s32, 8\ns_sub_u32 s52, s52, s32")
            a(f"s_lshl_b32 s31, s50, 12\ns_sub_u32 s31, s31, s32\ns_lshl_b32 s32, s51, 8\ns_add_u32 s31, s31, s32\ns_add_u32 s53, s31, {YP}")
            for k in range(8):
                a("s_load_dword s54, s[12:13], s53")
                if self.touch == "s":
                    a("s_load_dword s54, s[12:13], s52")
                if k < 7:
                    a("s_add_u32 s52, s52, 64\ns_add_u32 s53, s53, 64")
                if k == 3:
                    a("s_waitcnt lgkmcnt(0)")
        elif self.touch:
            a(f"s_and_b32 s32, s30, 1\ns_lshl_b32 s32, s32, 8\nv_subrev_u32 v250, s32, v13\nbuffer_load_dword v251, v250, s[12:15], 0 offen")
            a(f"s_lshl_b32 s31, s50, 12\ns_sub_u32 s31, s31, s32\ns_lshl_b32 s32, s51, 8\ns_add_u32 s31, s31, s32\ns_add_u32 s31, s31, {YP}\nv_lshl_add_u32 v250, v2, 3, s31")
            a("buffer_load_dword v252, v250, s[12:15], 0 offen")
        self.wait(C_DMA, 1, self.nap)
        self.setprio(self.P["moe"])
        b_reads(0, 12)
        a(f"s_add_u32 s67, s30, {self.dlag}")
        self.wait(C_DMA, "s67")
        a("L_d_first:")
        self.release(self.drel)
        d_loads(0, DF)
        if self.pre3:
            assert self.dall
            last_k("p")
        if self.droll:
            who, left = self.droll
            if who == "f":
                a("s_cmp_eq_u32 s30, 0\ns_cbranch_scc1 L_key")
            for j in range(DF, 8):
                a(f"s_waitcnt vmcnt({left})")
                d_loads(j, j + 1)
        a("L_key:")

        def a_reads():
            for ks in range(4):
                a(f"ds_read_b128 v[{XA + 4 * ks}:{XA + 4 * ks + 3}], v8 offset:{M_XS + 64 * ks}")

        def key_and_a():
            a(f"ds_read_b64 v[18:19], v0 offset:{L_KEY}")
            a_reads()

        a("s_waitcnt lgkmcnt(0)")
        self.wait_then(C_S2, 1, key_and_a, 5)
        a("s_cmp_eq_u32 s66, 0\ns_cbranch_scc1 L_idle")
        a("s_branch L_xs_ok")
        a("L_h1:")
        a(f"s_mov_b32 s63, {GRAN}\ns_lshl_b32 s31, s47, 8\nv_lshlrev_b32 v15, 3, v2\nv_add_u32 v16, s31, v15")
        a("s_cmp_lg_u32 s66, 0\ns_cbranch_scc1 L_gate")
        self.wait(C_ST3, 4, self.nap)
        a("s_branch L_gate_open")
        a("L_gate:")
        if self.tgate:
            a(f"L_tg:\ns_memrealtime s[52:53]\ns_waitcnt lgkmcnt(0)\ns_sub_u32 s31, s52, s90\ns_cmp_lt_u32 s31, {self.tgate}\ns_cbranch_scc1 L_tg")
        else:
            self.wait(*self.gate, self.nap)
        a("L_gate_open:")
        self.setprio(self.P["moe"])
        self.stamp(7)
        self.gran_issue(20)
        self.arrive(C_S0)
        a("s_waitcnt vmcnt(0)")
        self.stamp(8)
        self.gran_resolve("mi", 20, 18)
        a("s_andn2_b32 s31, 0x7ff, s33\ns_lshl_b32 s48, s31, 11")
        a("buffer_load_dwordx2 v[150:151], v16, s[8:11], s48 offen")
        self.arrive(C_S1)
        self.stamp(9)
        self.gran_stats(20, 18)
        a(f"v_mov_b32 v19, s33\nv_mov_b32 v18, s34\nds_write_b64 v0, v[18:19] offset:{L_KEY}")
        a("s_lshl_b32 s52, s34, 16\ns_and_b32 s32, s34, 0xffff0000\nv_rcp_f32 v148, s32")
        if self.h1pre:
            a("s_cmp_eq_u32 s66, 0\ns_cbranch_scc1 L_h1_idle")
            self.wait(C_DMA, 1)
            if self.h1pre == 1:
                d_loads(0, DF)
            b_reads(0, 12)
            if self.pre3:
                last_k("h", False)
            a(f"s_waitcnt vmcnt({DF if self.h1pre == 1 else 0}) lgkmcnt(0)\ns_branch L_h1_x\nL_h1_idle:")
        a("s_waitcnt vmcnt(0)")
        a("L_h1_x:")
        un = "v_lshlrev_b32 v20, 16, v150\nv_and_b32 v21, 0xffff0000, v150\nv_lshlrev_b32 v22, 16, v151\nv_and_b32 v23, 0xffff0000, v151"
        pk = "v_cvt_pk_bf16_f32 v150, v20, v21\nv_cvt_pk_bf16_f32 v151, v22, v23"
        a(un)
        for p in (20, 22):
            a(f"v_pk_add_f32 v[{p}:{p + 1}], v[{p}:{p + 1}], s[52:53] op_sel_hi:[1,0] neg_lo:[0,1] neg_hi:[0,1]")
        a(pk)
        a(un)
        for p in (20, 22):
            a(f"v_pk_mul_f32 v[{p}:{p + 1}], v[{p}:{p + 1}], v[148:149] op_sel_hi:[1,0]")
        a(pk)
        a(f"ds_write_b64 v15, v[150:151] offset:{M_XS}")
        self.arrive(C_S2)
        a("s_cmp_eq_u32 s66, 0\ns_cbranch_scc1 L_idle")
        if not self.h1pre:
            self.wait(C_DMA, 1)
            b_reads(0, 12)
            if self.dall:
                d_loads(0, DF)
            if self.pre3:
                last_k("h", False)
            a("s_waitcnt lgkmcnt(8)")
        a_reads()
        if self.h1pre == 2:
            d_loads(0, DF)
        a("L_xs_ok:")
        self.stamp(2)
        for n, (ks, t) in enumerate(order[:12]):
            if t == 0:
                a(f"s_waitcnt lgkmcnt({3 - ks})")
            self.mfma("bf16", GA + 4 * t, XA + 4 * ks, BF + 4 * n, None if ks == 0 else GA + 4 * t)
        if not self.pre3:
            last_k("")
        a("v_readfirstlane_b32 s33, v19\nv_readfirstlane_b32 s34, v18")
        for n in range(12, 16):
            if not self.pre3 or n == 12:
                a(f"s_waitcnt lgkmcnt({0 if self.pre3 else 2 * (15 - n)})")
            self.mfma("bf16", GA + 4 * (n % 4), XA + 12, BF + 4 * n, GA + 4 * (n % 4))
        a("s_mov_b32 vcc_lo, 0xffff0000\ns_mov_b32 vcc_hi, 0")
        a(f"s_lshl_b32 s31, s50, 12\ns_lshl_b32 s32, s30, 7\ns_add_u32 s31, s31, s32\ns_add_u32 s31, s31, {HP}")
        a("v_lshrrev_b32 v15, 3, v2\nv_lshlrev_b32 v15, 9, v15\nv_add3_u32 v15, v15, v7, s31")
        a(f"v_cndmask_b32 v26, v{GA}, v{GA + 4}, vcc\nv_cndmask_b32 v27, v{GA + 8}, v{GA + 12}, vcc")
        a("v_and_or_b32 v26, v26, s49, v14\nv_and_or_b32 v27, v27, s49, v14")
        a("s_mov_b32 exec_hi, 0")
        a(f"buffer_store_dwordx2 v[26:27], v13, s[12:15], 0 offen {'' if self.local else 'sc1'}")
        a("s_mov_b64 exec, -1")
        if not self.dall:
            a("s_sub_u32 s31, s30, 1\ns_cmp_lt_u32 s31, 2\ns_cbranch_scc1 L_d_rest")
            d_loads(0, DF)
            a("L_d_rest:")
        if self.droll:
            a("s_sub_u32 s31, s30, 1\ns_cmp_lt_u32 s31, 2" if self.droll[0] == "f" else "s_cmp_lt_u32 s30, 3")
            a("s_cbranch_scc1 L_d_done")
        d_loads(DF, 8)
        a("L_d_done:")
        self.arrive(C_HP)
        self.hint_store("hp")
        self.setprio(self.P["moe2"])
        self.stamp(3)
        pair = {}
        free = [98]
        YA = 36
        if not self.dlds:
            a("s_mov_b32 s52, 0x05040100\ns_mov_b32 s53, 0x07060302")
            for i in range(8):
                a(f"v_mov_b32 v{YA + i}, 0")
        a("v_and_b32 v16, 7, v2\nv_lshlrev_b32 v16, 2, v16\nv_lshrrev_b32 v17, 5, v2\nv_lshl_add_u32 v16, v17, 1, v16\ns_lshl_b32 s31, s30, 5\nv_add_u32 v16, s31, v16")
        if self.dlds:
            a("v_and_b32 v17, 48, v2\nv_bfe_u32 v9, v2, 3, 2\nv_lshlrev_b32 v9, 5, v9\nv_bfe_u32 v10, v2, 2, 2\nv_lshl_add_u32 v9, v10, 7, v9")
            a("v_lshl_add_u32 v9, v17, 6, v9\nv_and_b32 v10, 3, v2\nv_lshlrev_b32 v10, 3, v10\nv_add3_u32 v9, v9, v10, s74")
            a("v_xor_b32 v10, 32, v9\nv_xor_b32 v12, 96, v9\nv_xor_b32 v8, 64, v9")
        else:
            a("v_lshrrev_b32 v17, 3, v2\nv_lshlrev_b32 v17, 4, v17")
        a(f"s_lshl_b32 s31, s50, 12\ns_lshl_b32 s32, s51, 8\ns_add_u32 s31, s31, s32\ns_add_u32 s31, s31, {YP}")
        if self.dlds:
            a("v_lshl_add_u32 v18, v2, 2, s31")
        else:
            a("v_lshlrev_b32 v18, 1, v7\nv_lshrrev_b32 v19, 4, v2\nv_lshl_add_u32 v18, v19, 3, v18\nv_add_u32 v18, s31, v18")
        if self.pack:
            if self.dall:
                a(f"s_waitcnt vmcnt({8 - DF})")
            else:
                a(f"s_waitcnt vmcnt(8)\ns_sub_u32 s31, s30, 1\ns_cmp_ge_u32 s31, 2\ns_cbranch_scc1 L_acked\ns_waitcnt vmcnt({8 - DF})\nL_acked:")
            a("buffer_load_dwordx4 v[20:23], v15, s[12:15], 0 offen sc1")
            self.arrive(C_YG)
        for j in range(0, 8, 2):
            if self.dlds and j % 4 == 0:
                continue
            if j == self.hpearly:
                a("buffer_load_dwordx4 v[20:23], v15, s[12:15], 0 offen sc1")
            a(f"s_waitcnt vmcnt({6 - j + (1 if self.dall and j + 2 <= DF else 0) + (1 if j >= self.hpearly or self.pack else 0)})")
            if self.dlds:
                if j == 6 and not self.pack:
                    a("buffer_load_dwordx4 v[20:23], v15, s[12:15], 0 offen sc1")
                    if self.psig:
                        self.arrive(C_YG)
                a("s_waitcnt lgkmcnt(4)")
                for b in range(4):
                    for v in range(2):
                        r = WD + 16 * (j // 4) + 4 * b + 2 * v
                        a(f"ds_read_b64_tr_b16 v[{r}:{r + 1}], v{(9, 10, 8, 12)[b]} offset:{4096 * (j // 4) + 512 * v}")
                continue
            for d in range(4):
                r0, r1 = WD + 4 * j + d, WD + 4 * j + 4 + d
                t = free.pop()
                a(f"v_perm_b32 v{t}, v{r1}, v{r0}, s52\nv_perm_b32 v{r1}, v{r1}, v{r0}, s53")
                pair[(j // 2, 2 * d)] = t
                pair[(j // 2, 2 * d + 1)] = r1
                free.append(r0)
        self.hint_store("d")
        self.stamp(4)
        a("s_mov_b32 s54, 0")

        def fallback_store():
            a("s_mov_b32 exec_hi, 0\nbuffer_store_dwordx2 v[26:27], v13, s[12:15], 0 offen sc1\ns_mov_b32 exec_hi, -1")

        self.sleep(self.hs[0])
        if self.hpearly < 8 or self.pack or self.dlds:
            a("s_branch L_hp_wait")
        elif self.psig:
            a("buffer_load_dwordx4 v[20:23], v15, s[12:15], 0 offen sc1")
            self.arrive(C_YG)
            a("s_branch L_hp_wait")
        a("L_hp_poll:")
        a("buffer_load_dwordx4 v[20:23], v15, s[12:15], 0 offen sc1")
        a("L_hp_wait:")
        a("s_waitcnt vmcnt(0)")
        for i in range(4):
            a(f"v_xor_b32 v{20 + i}, v14, v{20 + i}")
        a(f"v_or3_b32 v24, v20, v21, v22\nv_or_b32 v24, v24, v23\nv_and_b32 v24, {FMASK:#x}, v24\nv_cmp_ne_u32 vcc, 0, v24")
        a("v_permlane16_swap_b32 v20, v21\nv_permlane16_swap_b32 v22, v23")
        a("s_cbranch_vccz L_hp_got")
        self.spin_guard("L_hp_got", self.hs[1])
        if self.local:
            a(f"s_add_u32 s54, s54, 1\ns_cmp_lg_u32 s54, {self.local}\ns_cbranch_scc1 L_hp_poll")
            fallback_store()
        a("s_branch L_hp_poll")
        a("L_hp_got:")
        self.stamp(5)
        a("v_add_f32 v20, v20, v21\nv_add_f32 v22, v22, v23\nv_permlane32_swap_b32 v20, v22\nv_add_f32 v20, v20, v22")
        a("v_add_f32_dpp v21, v20, v20 row_ror:8 row_mask:0xf bank_mask:0xf\nv_add_f32_dpp v20, v20, v20 row_ror:8 row_mask:0xf bank_mask:0xf")
        a("v_permlane16_swap_b32 v20, v21\nv_cvt_pk_bf16_f32 v20, v20, v21\nv_and_b32 v21, 0xffff0000, v20\nv_lshlrev_b32 v20, 16, v20")
        a("v_mul_f32 v22, 0xbfb8aa3b, v20\nv_exp_f32 v22, v22\nv_add_f32 v22, 1.0, v22\nv_rcp_f32 v22, v22\nv_mul_f32 v20, v20, v22")
        a("v_cvt_pk_bf16_f32 v20, v20, v20\nv_lshlrev_b32 v20, 16, v20\nv_mul_f32 v20, v20, v21\nv_cvt_pk_bf16_f32 v20, v20, v20")
        a(f"ds_write_b16 v16, v20 offset:{M_HS}")
        self.arrive(C_H)
        if self.dlds:
            self.wait_then(C_H, 4, lambda: a(f"ds_read_b128 v[28:31], v17 offset:{M_HS}\nds_read_b128 v[32:35], v17 offset:{M_HS + 64}"), 2)
            for ks in range(2):
                a(f"s_waitcnt lgkmcnt({1 - ks})")
                for b in range(4):
                    self.mfma("bf16", YA + 4 * b, 28 + 4 * ks, WD + 16 * ks + 4 * b, YA + 4 * b if ks else None)
            a("s_mov_b32 vcc_lo, 0xffff0000\ns_mov_b32 vcc_hi, 0xffff0000\ns_mov_b32 s52, 0\ns_mov_b32 s53, -1")
            a(f"v_cndmask_b32 v{YA}, v{YA}, v{YA + 4}, vcc\nv_cndmask_b32 v{YA + 8}, v{YA + 8}, v{YA + 12}, vcc\nv_cndmask_b32 v{YA}, v{YA}, v{YA + 8}, s[52:53]")
            a(f"v_and_or_b32 v{YA}, v{YA}, s49, v14\nbuffer_store_dword v{YA}, v18, s[12:15], 0 offen sc1")
        else:
            self.wait_then(C_H, 4, lambda: a(f"ds_read_b128 v[28:31], v17 offset:{M_HS}"), 1)
            a("s_waitcnt lgkmcnt(0)")
            for p in range(4):
                for c in range(8):
                    a(f"v_dot2c_f32_bf16 v{YA + c}, v{28 + p}, v{pair[(p, c)]}")
            for c in range(4):
                a(f"v_permlane32_swap_b32 v{YA + c}, v{YA + c + 4}")
            for c in range(4):
                a(f"v_add_f32 v{YA + c}, v{YA + c}, v{YA + c + 4}")
            for c in range(2):
                a(f"v_permlane16_swap_b32 v{YA + c}, v{YA + c + 2}")
            for c in range(2):
                a(f"v_add_f32 v{YA + c}, v{YA + c}, v{YA + c + 2}")
            for c in range(2):
                a(f"v_add_f32_dpp v{YA + c}, v{YA + c}, v{YA + c} row_ror:8 row_mask:0xf bank_mask:0xf")
            a(f"v_and_or_b32 v{YA}, v{YA}, s49, v14\nv_and_or_b32 v{YA + 1}, v{YA + 1}, s49, v14")
            a("s_mov_b32 exec_lo, 0x00ff00ff\ns_mov_b32 exec_hi, 0x00ff00ff")
            a(f"buffer_store_dwordx2 v[{YA}:{YA + 1}], v18, s[12:15], 0 offen sc1")
        self.arrive(C_Y)
        if self.local:
            fallback_store()
        self.stamp(6)
        a("s_branch L_owner")
        a("L_idle:")
        if self.dpf:
            a("s_cmp_eq_u32 s30, 0\ns_cbranch_scc1 L_idle_done")
        for c in (C_DMA, C_HP, C_H, C_Y) + ((C_YG,) if self.psig else ()):
            if c == C_HP:
                self.sleep(self.idelay)
                if self.hint is not None and self.diag != "nomoe":
                    a(f"s_and_b32 s52, s2, 31\ns_lshl_b32 s52, s52, 7\ns_add_u32 s52, s52, {HINT}")
                    a("L_hint:\ns_load_dwordx2 s[54:55], s[12:13], s52 glc\ns_waitcnt lgkmcnt(0)\ns_cmp_eq_u64 s[54:55], s[28:29]\ns_cbranch_scc1 L_hint_ok")
                    self.spin_guard("L_hint_ok", 4)
                    a("s_branch L_hint\nL_hint_ok:")
            self.arrive(c)
        a("L_idle_done:")
        a("s_waitcnt lgkmcnt(0)\nv_readfirstlane_b32 s33, v19\nv_readfirstlane_b32 s34, v18")
        self.sleep(self.isleep)
        a("L_owner:")
        self.setprio(self.P["own"])
        if self.diag or self.cheat & 8:
            a("s_branch L_fin")
        YL, YC = 20, 28
        self.tile_decode()
        a("s_lshl_b32 s53, s53, 3\ns_add_u32 s53, s53, s46\ns_andn2_b32 s51, 0x7ff, s33\ns_mov_b32 s54, s51\ns_mov_b32 s55, 0\ns_mov_b32 s56, 0")
        a("s_mov_b32 s16, s44\ns_mov_b32 s17, s45\ns_mov_b32 s18, 0x400000\nv_and_b32 v8, 31, v2\nv_lshlrev_b32 v15, 2, v8\nv_lshlrev_b32 v8, 1, v8\nv_mov_b32 v16, 0")
        a("L_seg:")
        if self.eo:
            a("s_xor_b32 s31, s54, s53\ns_and_b32 s31, s31, 0x87\ns_cbranch_scc1 L_seg_next")
        else:
            a("s_xor_b32 s31, s54, s53\ns_and_b32 s31, s31, 0x487\ns_cbranch_scc0 L_seg_own\ns_cmpk_lg_u32 s31, 0x480\ns_cbranch_scc1 L_seg_next")
            a("L_seg_own:")
        a("s_lshl_b32 s31, s51, 11\ns_lshl_b32 s32, s47, 6\ns_add_u32 s63, s31, s32")
        a("buffer_load_ushort v9, v8, s[8:11], s63 offen")
        a(f"v_lshrrev_b32 v4, 3, v2\ns_lshl_b32 s31, s30, 4\nv_add_u32 v4, s31, v4\nv_lshlrev_b32 v4, 12, v4")
        a(f"s_lshl_b32 s31, s47, 7\ns_add_u32 s31, s31, {YP}\nv_add3_u32 v4, v4, v7, s31\ns_mov_b32 s62, 32768")
        for i in range(4):
            a(f"v_mov_b32 v{YL + 4 + i}, v14")
        a("v_lshrrev_b32 v5, 4, v2\nv_lshl_add_u32 v6, v5, 2, v7\ns_lshl_b32 s31, s30, 7\ns_add_u32 s31, s31, s55\nv_add_u32 v6, s31, v6")
        a("s_ashr_i32 s31, s33, 31\ns_orn2_b32 s31, 0x80000000, s31\ns_xor_b32 s31, s31, s33\ns_and_b32 s31, s31, 0xfffff800")
        a("v_cvt_pk_bf16_f32 v11, s31, s31\nv_lshlrev_b32 v11, 16, v11\nv_mul_f32 v11, 0xbfb8aa3b, v11\nv_exp_f32 v11, v11\ns_and_b32 s32, s34, 0xffff0000\nv_add_f32 v11, 1.0, v11\nv_rcp_f32 v11, v11")
        a("v_rcp_f32 v12, s32\nv_cvt_pk_bf16_f32 v11, v11, v11\nv_lshlrev_b32 v11, 16, v11\ns_lshl_b32 s31, s34, 16")
        if self.ywait:
            a("s_waitcnt vmcnt(0)")
        a("v_lshl_add_u32 v13, v8, 1, s55\ns_mov_b64 vcc, -1\ns_mov_b32 s56, 1")
        if self.ygate and not self.cheat & 4:
            self.wait(*self.ygate)
        self.sleep(self.ys[0])
        self.stamp(11)
        if self.stamps:
            a(f"s_mov_b32 s35, {SPIN}")
        a("L_y_poll:")
        self.stamp(12)
        a("s_mov_b64 exec, vcc")
        a(f"buffer_load_dwordx4 v[{YL}:{YL + 3}], v4, s[12:15], 0 offen sc1")
        a("s_cmp_eq_u32 s30, 3\ns_cbranch_scc1 L_y_one")
        a(f"buffer_load_dwordx4 v[{YL + 4}:{YL + 7}], v4, s[12:15], s62 offen sc1")
        a("L_y_one:\ns_mov_b64 exec, -1\ns_waitcnt vmcnt(0)")
        for i in range(8):
            a(f"v_xor_b32 v{YC + i}, v14, v{YL + i}")
        a(f"v_or3_b32 v1, v{YC}, v{YC + 1}, v{YC + 2}\nv_or3_b32 v1, v1, v{YC + 3}, v{YC + 4}\nv_or3_b32 v1, v1, v{YC + 5}, v{YC + 6}\nv_or_b32 v1, v1, v{YC + 7}")
        a(f"v_and_b32 v1, {FMASK:#x}, v1\nv_cmp_ne_u32 vcc, 0, v1")
        for p in (0, 2):
            a(f"v_pk_add_f32 v[{YC + p}:{YC + p + 1}], v[{YC + p}:{YC + p + 1}], v[{YC + 4 + p}:{YC + 5 + p}]")
        a("s_cbranch_vccz L_y_got")
        self.spin_guard("L_y_got", self.ys[1])
        a("s_branch L_y_poll")
        a("L_y_got:")
        if self.hold:
            self.arrive(C_YG)
        a(f"v_permlane16_swap_b32 v{YC}, v{YC + 1}\nv_permlane16_swap_b32 v{YC + 2}, v{YC + 3}")
        a(f"v_add_f32 v{YC}, v{YC}, v{YC + 1}\nv_add_f32 v{YC + 2}, v{YC + 2}, v{YC + 3}")
        a(f"v_permlane32_swap_b32 v{YC}, v{YC + 2}\nv_add_f32 v{YC}, v{YC}, v{YC + 2}")
        a(f"v_add_f32_dpp v{YC}, v{YC}, v{YC} row_ror:8 row_mask:0xf bank_mask:0xf")
        a(f"ds_write_b32 v6, v{YC} offset:{L_YS}")
        a(f"s_mov_b64 exec, 1\nds_add_u32 v16, v255 offset:{L_CNT + 4 * C_ROW}\ns_mov_b64 exec, -1")
        self.stamp(13)
        a("s_cmp_lg_u32 s30, 0\ns_cbranch_scc1 L_seg_next")
        a(f"s_cmp_eq_u32 s47, 0\ns_cselect_b32 s32, {EPOCH}, {OOB}\nv_mov_b32 v5, {OOB}\nv_writelane_b32 v5, s32, 0\nv_mov_b32 v18, s28\nv_mov_b32 v19, s29")
        a("s_lshl_b32 s31, s34, 16\nv_lshlrev_b32 v9, 16, v9\nv_subrev_f32 v10, s31, v9\nv_cvt_pk_bf16_f32 v10, v10, v10\nv_lshlrev_b32 v10, 16, v10\nv_mul_f32 v10, v10, v12")
        a("v_cvt_pk_bf16_f32 v10, v10, v10\nv_lshlrev_b32 v10, 16, v10")

        def row_reads():
            for j in range(4):
                a(f"ds_read_b32 v{YL + j}, v13 offset:{L_YS + 128 * j}")
            a(f"ds_read_b32 v{YL + 4}, v15 offset:{L_ROW}")

        self.wait_then(C_ROW, 4 if self.cheat & 4 else 5, row_reads, 5, "v16")
        a("s_waitcnt lgkmcnt(0)")
        y = YL
        a(f"v_add_f32 v{y}, v{y}, v{y + 1}\nv_add_f32 v{y + 2}, v{y + 2}, v{y + 3}\nv_add_f32 v{y}, v{y}, v{y + 2}")
        a(f"v_cvt_pk_bf16_f32 v{y}, v{y}, v{y}\nv_lshlrev_b32 v{y}, 16, v{y}\nv_mul_f32 v{y}, v{y}, v11")
        a(f"v_cvt_pk_bf16_f32 v{y}, v{y}, v{y}\nv_lshlrev_b32 v{y}, 16, v{y}\nv_add_f32 v{y}, v{y}, v10")
        a(f"v_cvt_pk_bf16_f32 v{y}, v{y}, v{y}\nv_lshlrev_b32 v{y}, 16, v{y}\nv_mul_f32 v1, 0xbfb8aa3b, v{y}")
        a(f"v_mul_f32 v{y}, v1, v{YL + 4}\nv_exp_f32 v1, v1\nv_add_f32 v1, 1.0, v1\nv_rcp_f32 v1, v1")
        a(f"s_mov_b32 exec_hi, 0\nv_fma_f32 v{y}, v{y}, v1, v9\nv_cvt_pk_bf16_f32 v{y}, v{y}, v{y}")
        a(f"buffer_store_short v{y}, v8, s[16:19], s63 offen {self.oflag}")
        a("buffer_store_dwordx2 v[18:19], v5, s[12:15], 0 offen sc1")
        a("s_mov_b64 exec, -1")
        self.stamp(14)
        a("L_seg_next:")
        a("s_cmp_lg_u32 s55, 0\ns_cbranch_scc1 L_seg_end")
        a(f"s_mov_b32 s55, 512\ns_sub_u32 s54, 0, s51\ns_sub_u32 s47, 31, s47\nv_mov_b32 v16, {4 * (C_ROW1 - C_ROW)}")
        a("v_and_b32 v15, 24, v2\nv_xor_b32 v15, 24, v15\nv_sub_u32 v1, 0, v2\nv_and_b32 v1, 7, v1\nv_add_u32 v15, v15, v1\nv_lshlrev_b32 v15, 2, v15\nv_add_u32 v15, 128, v15")
        a("s_branch L_seg")
        a("L_seg_end:")
        if self.hold:
            a("s_cmp_lg_u32 s56, 0\ns_cbranch_scc1 L_fin")
            self.arrive(C_YG)

    def finish(self):
        a = self.a
        a("L_fin:")
        self.role = "all"
        if self.probe:
            if self.probe == ("all", 15):
                a("s_waitcnt vmcnt(0)")
                self.stamp(15)
            if self.probe[0] == "amp":
                a(f"s_waitcnt vmcnt(0)\ns_memrealtime s[70:71]\ns_waitcnt lgkmcnt(0)\ns_sub_u32 s31, s70, s68\ns_mul_i32 s31, s31, {self.probe[1]}\ns_add_u32 s68, s68, s31\ns_sub_u32 s68, s68, 4000")
            a("s_cmp_eq_u32 s68, 0\ns_cbranch_scc1 L_exit\ns_mov_b32 s35, 100000")
            a("L_probe:\ns_sleep 1\ns_memrealtime s[70:71]\ns_waitcnt lgkmcnt(0)\ns_sub_u32 s31, s70, s68\ns_cmp_ge_i32 s31, 4000\ns_cbranch_scc1 L_exit")
            a("s_cmp_eq_u32 s35, 0\ns_cbranch_scc1 L_exit\ns_sub_u32 s35, s35, 1\ns_branch L_probe")
        if self.stamps:
            a("s_waitcnt vmcnt(0)")
            self.stamp(15)
            if self.stamps is not True and ("cnt", 0) in self.stamps:
                a("v_writelane_b32 v211, s35, 10")
            a(f"v_writelane_b32 v211, s68, 0\ns_lshl_b32 s31, s2, 3\ns_add_u32 s31, s31, s3\ns_lshl_b32 s31, s31, 6\ns_add_u32 s31, s31, {STAMP}\nv_lshl_add_u32 v4, v2, 2, s31")
            a("s_mov_b64 exec, 0xffff\nbuffer_store_dword v211, v4, s[12:15], 0 offen")
        a("L_exit:")
        a("s_endpgm")
        a("L_code_end:")
        a.kernel_desc(NAME + "_kernel", 256, 94)
        a.add_launch(NAME + "_kernel", NWG, 64 * WAVES, LDS_BYTES)

    def build(self, path, verbose=False):
        self.prologue()
        self.dft()
        self.moe()
        self.finish()
        rep = []
        self.a.lines = hazard.fix(self.a.lines, rep)
        if verbose:
            for pad, s in rep:
                print("nop", pad, s)
        if self.align:
            self.a.lines = hazard.align_runs(self.a, self.align)
        self.a.write(path, HEADER)


GROUPS = {"dft": (slice(0, 256), slice(0, 4)), "load": (slice(0, 224), slice(4, 7)), "h1": (slice(0, 224), slice(7, 8)), "idle": (slice(224, 256), slice(4, 8))}

if __name__ == "__main__":
    kw = eval(sys.argv[2]) if len(sys.argv) > 2 else {}
    Gen(**kw).build(sys.argv[1], verbose=True)
```

```python
import struct
import sys

sys.path.insert(0, "tools")
from asmgen import Asm, NAME
import hazard

EPOCH = 0
GRAN = 0x1000
HINT = 0x3000
STAT = 0x8000
HP = 0x40000
YP = 0x80000
ZB = 0x200000
ZTS = 129 * 128
STAMP = 0x1000000
OOB = 0x7FFFFF00
WBYTES = 1024 * 3584 * 2
ZMASK = 0x00030003
FMASK = 0x000000FF

RS, QS = 2592, 640
MISC = 16 * RS
EX = MISC + 2560
L_ENT = MISC
L_KEY = MISC + 80
L_MEAN = MISC + 96
L_YS = MISC + 1536
L_ROW = MISC + 1024
L_RST = MISC + 1280
L_CNT = MISC + 1344
M_XS = MISC + 128
M_HS = MISC + 896
M_G = EX + 32768
M_U = M_G + 32768
L_XT = M_U + 32768
LDS_BYTES = L_XT + 16384
C_A, C_B, C_C, C_ST3, C_D, C_ROW, C_S1, C_S2, C_HP, C_H, C_Y, C_S0, C_ROW1, C_DMA, C_E = range(15)
C_YG = 15
SHD = 16640
REL = {"k1": (C_DMA, 2), "p1": (C_YG, 1), "p4": (C_YG, 4), "k2": (C_DMA, 1), "k3": (C_DMA, 3), "s0": (C_S0, 1), "s1": (C_S1, 1), "s2": (C_S2, 1), "hp": (C_HP, 4), "h": (C_H, 4), "y": (C_Y, 4)}

SPIN = 1 << 16
NWG = 256
WAVES = 8

HEADER = """; Fused kernel: LayerNorm, Re(2-D DFT) as a folded mixed-radix transform on MFMA, routed-token SwiGLU, gating.
; Waves 0..3 of a workgroup run the transform, waves 4..7 the routed-token path."""

SHR = ("row_shr:1", "row_shr:2", "row_shr:4", "row_shr:8")


def fbits(x):
    return struct.unpack("<I", struct.pack("<f", float(x)))[0]


class Gen:
    DEFAULTS = dict(stamps=False, probe=None, diag=None, wflag="nt", oflag="sc1", prefetch=True, prio=True, psleep=2, win=21, dfirst=5, dlag=0,
                    drel=None, gate=(C_ST3, 1), rel_zw="s1", rel_x0="s0", rel_x="hp", rel_zr=None, order="zxmawg", xearly=2, zwith=False,
                    nfpre=3, defer=False, near=True, dall=True, hpearly=8, tlb=(18, "OZD"), tmask=1, pfw=492, boost=None, unroll=4, lean=False, vwait=False, adapt=0, gslot=True, gtouch=False, walk=None, droll=None, pre3=True, h1pre=2, u64=False, dlds=True, pr={}, nap=0, tgate=0, dpf=None, eo=True, pack=False, narrow=False, counted=True, align=9, bounded=True, hint="hp", idelay=0, zflag="sc1", touch="s", isleep=0, ygate=None, ywait=True, hold=False, hs=(0, 0), ys=(0, 0), local=False, cheat=0, xb=0, xc=0)

    def __init__(self, **kw):
        self.a = Asm()
        self.role = "all"
        self.nsync = 0
        assert set(kw) <= set(self.DEFAULTS), set(kw) - set(self.DEFAULTS)
        self.__dict__.update(self.DEFAULTS)
        self.__dict__.update(kw)
        self.P = dict(dict(wait=0, dma=3, moe=3, moe2=3, own=1, stat=3, p1=3, mid=0, gate=2, tail=2), **self.pr)
        self.unit = 4 if self.lean else 1
        assert not (self.lean and (self.hold or self.adapt))
        self.psig = bool({"p1", "p4"} & {self.rel_x, self.rel_zr})
        assert not (self.psig and self.hold)

    def arrive(self, c, masked=False):
        if self.lean:
            if masked:
                self.a("s_mov_b64 exec, -1")
            self.a(f"ds_add_u32 v255, v255 offset:{L_CNT + 4 * c - 4}")
        else:
            self.a(f"s_mov_b64 exec, 1\nds_add_u32 v0, v255 offset:{L_CNT + 4 * c}\ns_mov_b64 exec, -1")

    def wait(self, c, n, nap=0):
        self.wait_then(c, n, None, 0, nap=nap)

    def wait_then(self, c, n, reads, count, addr="v0", nap=0):
        self.nsync += 1
        lb = f"L_sync{self.nsync}"
        self.a(f"s_branch {lb}a\n{lb}:\ns_waitcnt lgkmcnt(0)\n{lb}a:" if count > 7 else f"{lb}:")
        self.sleep(nap)
        self.a(f"ds_read_b32 v1, {addr} offset:{L_CNT + 4 * c}")
        if reads:
            reads()
        if self.bounded:
            self.a(f"s_add_u32 s92, s92, 1\ns_bitcmp1_b32 s92, 20\ns_cbranch_scc1 {lb}x")
        if isinstance(n, int):
            n *= self.unit
        if self.vwait:
            self.a(f"s_waitcnt lgkmcnt({count})\nv_cmp_le_u32 vcc, {n}, v1\ns_cbranch_vccz {lb}\n{lb}x:")
        else:
            self.a(f"s_waitcnt lgkmcnt({count})\nv_readfirstlane_b32 s31, v1\ns_cmp_ge_u32 s31, {n}\ns_cbranch_scc0 {lb}\n{lb}x:")

    def sync(self, c, n=4):
        self.arrive(c)
        self.wait(c, n)

    def release(self, name):
        for part in name.split("+") if name else ():
            self.wait(*REL[part])

    def stamp(self, i):
        if self.probe == (self.role, i):
            self.a("s_memrealtime s[68:69]\ns_waitcnt lgkmcnt(0)")
        if self.stamps and (self.stamps is True or i == 15 or (self.role, i) in self.stamps):
            self.a(f"s_memrealtime s[70:71]\ns_waitcnt lgkmcnt(0)\nv_writelane_b32 v211, s70, {i}")

    def fine(self, i):
        if self.diag == "fine" and i not in (2, 3, 4, 5):
            self.a(f"s_memtime s[{76 + 2 * i}:{77 + 2 * i}]")

    def spin_guard(self, out, sleep=None):
        self.a(f"s_cmp_eq_u32 s35, 0\ns_cbranch_scc1 {out}\ns_sub_u32 s35, s35, 1")
        self.sleep(self.psleep if sleep is None else sleep)

    def setprio(self, p):
        if self.prio:
            self.a(f"s_setprio {p}")

    def mfma(self, ty, d, A, B, c=None):
        c = "0" if c is None else f"v[{c}:{c + 3}]"
        self.a(f"v_mfma_f32_16x16x32_{ty} v[{d}:{d + 3}], v[{A}:{A + 3}], v[{B}:{B + 3}], {c}")

    def prologue(self):
        a = self.a
        a.begin(NAME + "_kernel")
        if self.stamps:
            a("s_memrealtime s[68:69]")
        if self.tgate:
            a("s_memrealtime s[90:91]")
        a(f"s_cmp_ge_u32 s2, {NWG}\ns_cbranch_scc1 L_exit")
        a("s_load_dwordx2 s[8:9], s[0:1], 0")
        a("s_load_dwordx4 s[36:39], s[0:1], 48")
        a("s_load_dwordx2 s[12:13], s[0:1], 96")
        if self.stamps:
            a("v_mov_b32 v211, 0")
        if self.probe:
            a("s_mov_b32 s68, 0")
            if self.probe == ("all", 0) or self.probe[0] == "amp":
                a("s_memrealtime s[68:69]")
        if self.prefetch:
            a(f"s_getpc_b64 s[32:33]\nL_pc:\ns_bfe_u32 s31, s2, 0x30003\nv_subrev_u32 v3, {self.pfw}, v0\nv_lshl_add_u32 v3, v3, 3, s31\nv_lshlrev_b32 v3, 7, v3")
            a("v_cmp_gt_u32 vcc, L_code_end-L_pc, v3\ns_and_saveexec_b64 s[46:47], vcc\ns_cbranch_execz L_nopf")
            a("global_load_dword v254, v3, s[32:33]")
            a("L_nopf:\ns_mov_b64 exec, -1")
        a("v_lshrrev_b32 v1, 6, v0\nv_and_b32 v2, 63, v0")
        a("v_readfirstlane_b32 s30, v1")
        a("s_mov_b32 s10, 0x400000\ns_mov_b32 s11, 0x00020000\ns_mov_b32 s14, 0x10000000\ns_mov_b32 s15, 0x00020000")
        a(f"s_mov_b32 s35, {SPIN}\ns_mov_b32 s92, 0\nv_lshlrev_b32 v3, 4, v2")
        a("v_mov_b32 v0, 0\ns_mov_b32 s3, s30\ns_and_b32 s30, s30, 3")
        a("v_mov_b32 v255, 0x30000\nv_writelane_b32 v255, 4, 0" if self.lean else "v_mov_b32 v255, 1")
        a("s_cmp_ge_u32 s3, 4\ns_cbranch_scc1 L_moe")

    def tag_from_epoch(self):
        self.a("s_add_u32 s28, s28, 0x7f4a7c15\ns_addc_u32 s29, s29, 0x9e3779b9")

    def gran_slot(self):
        if self.gslot:
            self.a(f"s_and_b32 s31, s2, 7\ns_lshl_b32 s31, s31, 9\ns_lshr_b32 s32, s2, 3\ns_lshl_b32 s32, s32, 4\ns_add_u32 s31, s31, s32\ns_add_u32 s31, s31, {GRAN}")
        else:
            self.a(f"s_lshl_b32 s31, s2, 4\ns_add_u32 s31, s31, {GRAN}")

    def gran_issue(self, g):
        for j in range(4):
            self.a(f"buffer_load_dwordx4 v[{g + 4 * j}:{g + 4 * j + 3}], v3, s[12:15], s63 offen offset:{1024 * j} sc1")

    def gran_resolve(self, name, g, k):
        a = self.a
        a(f"L_{name}_check:")
        for j in range(4):
            a(f"v_cmp_ne_u64 s[{52 + 2 * j}:{53 + 2 * j}], s[28:29], v[{g + 4 * j + 2}:{g + 4 * j + 3}]")
        a(f"v_max_u32 v{k}, v{g + 1}, v{g + 5}\nv_max3_u32 v{k}, v{k}, v{g + 9}, v{g + 13}")
        a("s_or_b64 s[64:65], s[52:53], s[54:55]\ns_or_b64 vcc, s[56:57], s[58:59]\ns_or_b64 s[64:65], s[64:65], vcc")
        a(f"s_cbranch_scc0 L_{name}_got")
        self.spin_guard(f"L_{name}_got")
        for j in range(4):
            a(f"s_mov_b64 exec, s[{52 + 2 * j}:{53 + 2 * j}]\ns_cbranch_execz L_{name}_skip{j}")
            a(f"buffer_load_dwordx4 v[{g + 4 * j}:{g + 4 * j + 3}], v3, s[12:15], s63 offen offset:{1024 * j} sc1")
            a(f"L_{name}_skip{j}:")
        a(f"s_mov_b64 exec, -1\ns_waitcnt vmcnt(0)\ns_branch L_{name}_check")
        a(f"L_{name}_got:")
        a(f"v_max_u32_dpp v{k + 1}, v{k}, v{k} row_ror:1 row_mask:0xf bank_mask:0xf")
        for d in ("row_ror:2", "row_ror:4", "row_ror:8"):
            a(f"v_max_u32_dpp v{k + 1}, v{k + 1}, v{k + 1} {d} row_mask:0xf bank_mask:0xf")
        a(f"v_readlane_b32 s33, v{k + 1}, 0\nv_readlane_b32 s31, v{k + 1}, 16\nv_readlane_b32 s32, v{k + 1}, 32\nv_readlane_b32 s34, v{k + 1}, 48")
        a("s_max_u32 s33, s33, s31\ns_max_u32 s32, s32, s34\ns_max_u32 s33, s33, s32")

    def gran_stats(self, g, k):
        a = self.a
        for j in (1, 2, 3):
            a(f"v_cmp_eq_u32 s[{50 + 2 * j}:{51 + 2 * j}], s33, v{g + 4 * j + 1}")
        a(f"v_cmp_eq_u32 vcc, s33, v{k}")
        a(f"v_cndmask_b32 v{k + 1}, v{g}, v{g + 4}, s[52:53]\nv_cndmask_b32 v{k + 1}, v{k + 1}, v{g + 8}, s[54:55]\nv_cndmask_b32 v{k + 1}, v{k + 1}, v{g + 12}, s[56:57]")
        a("s_ff1_i32_b64 s32, vcc")
        a(f"v_readlane_b32 s34, v{k + 1}, s32")

    def p2_matrix(self, MM, T0, T1, T2):
        a = self.a
        a(f"v_and_b32 v{T0}, 15, v2\nv_add_u32 v{T0}, s53, v{T0}\nv_cvt_f32_u32 v{T0}, v{T0}\nv_add_f32 v{T0}, 0.5, v{T0}\nv_mul_f32 v{T0}, 0x3b800000, v{T0}")
        a(f"v_and_b32 v{T1}, 32, v2\nv_bfe_u32 v{T2}, v2, 4, 1\nv_lshl_add_u32 v{T1}, v{T2}, 3, v{T1}\nv_cvt_f32_u32 v{T1}, v{T1}\nv_mul_f32 v{T1}, v{T1}, v{T0}")
        for p in range(2):
            for hf in range(2):
                for dw in range(4):
                    c0 = 64 * hf + 16 * (dw // 2) + 4 * (dw % 2) + p
                    dc, ds = MM + 4 * (2 * p + hf) + dw, MM + 16 + 4 * (2 * p + hf) + dw
                    a(f"v_fmamk_f32 v{dc}, v{T0}, {fbits(c0):#x}, v{T1}\nv_fmamk_f32 v{T2}, v{T0}, {fbits(c0 + 2):#x}, v{T1}")
                    a(f"v_sin_f32 v{ds}, v{dc}\nv_sin_f32 v{T2 + 1}, v{T2}\nv_cos_f32 v{dc}, v{dc}\nv_cos_f32 v{T2}, v{T2}")
                    a(f"v_cvt_pk_f16_f32 v{ds}, v{ds}, v{T2 + 1}\nv_cvt_pk_f16_f32 v{dc}, v{dc}, v{T2}")
        a(f"v_cmp_gt_u32 vcc, 16, v2\nv_and_b32 v{T2}, 1, v2\nv_lshlrev_b32 v{T2}, 15, v{T2}\nv_or_b32 v{T2}, 0x3c00, v{T2}\nv_and_b32 v{T0}, 0xffff0000, v{MM + 16}\nv_or_b32 v{T2}, v{T2}, v{T0}")
        a(f"v_cndmask_b32 v{MM + 16}, v{MM + 16}, v{T2}, vcc")

    def tile_decode(self, t1=46, tile=47, tau=53):
        if self.eo:
            self.a(f"s_and_b32 s31, s2, 7\ns_sub_u32 s32, 8, s31\ns_min_u32 s{t1}, s31, s32\ns_lshr_b32 s{tau}, s31, 2\ns_lshr_b32 s{tile}, s2, 3")
            self.a(f"s_and_b32 s32, s{tile}, 1\ns_and_b32 s31, s31, 3\ns_cselect_b32 s{tau}, s{tau}, s32\ns_cselect_b32 s31, 0, 1\ns_lshr_b32 s{tile}, s{tile}, s31\ns_lshl_b32 s{tau}, s{tau}, 4")
        else:
            self.a(f"s_and_b32 s31, s2, 7\ns_sub_u32 s32, 8, s31\ns_min_u32 s{t1}, s31, s32\ns_cmp_gt_u32 s31, 4\ns_cselect_b32 s31, 16, 0")
            self.a(f"s_lshr_b32 s{tile}, s2, 4\ns_add_u32 s{tile}, s{tile}, s31\ns_bfe_u32 s{tau}, s2, 0x10003\ns_lshl_b32 s{tau}, s{tau}, 7\ns_add_u32 s{tau}, s{tau}, s31")

    XS_, VTA, XR, VTC, VSA = (112, 113, 114, 115), 116, 117, 118, 119

    def out_addresses(self):
        a = self.a
        XS_, VTA, XR, VTC, VSA = self.XS_, self.VTA, self.XR, self.VTC, self.VSA
        self.tile_decode(76, 77, 78)
        a("s_lshl_b32 s31, s30, 5\ns_add_u32 s78, s78, s31\ns_lshl_b32 s78, s78, 3\ns_add_u32 s78, s78, s76")
        a("s_lshl_b32 s77, s77, 6\ns_sub_u32 s79, 1984, s77\ns_lshl_b32 s76, s76, 1\ns_add_u32 s76, s76, 2040")
        a(f"v_and_b32 v{VTA}, 15, v2\nv_lshl_add_u32 v{VTA}, v{VTA}, 3, s78")
        if self.eo:
            a(f"v_and_b32 v7, 32, v2\nv_lshl_add_u32 v7, v7, 5, v{VTA}")
        else:
            a(f"s_mov_b32 vcc_lo, 0\ns_mov_b32 vcc_hi, -1\nv_sub_u32 v7, s76, v{VTA}\nv_cndmask_b32 v7, v{VTA}, v7, vcc")
        a("s_mov_b32 vcc_lo, 0xffff0000\ns_mov_b32 vcc_hi, 0xffff0000\nv_sub_u32 v6, 0, v7\nv_cndmask_b32 v7, v7, v6, vcc")
        a(f"v_and_b32 v6, 7, v7\nv_and_b32 v1, 1024, v7\nv_lshl_add_u32 v6, v6, 11, v1\nv_and_b32 v1, 0xf8, v7\nv_lshl_add_u32 v6, v1, 2, v6")
        a(f"v_bfe_u32 v1, v7, 9, 1\nv_lshl_add_u32 v{VSA}, v1, 4, v6\nv_and_b32 v1, 256, v7\nv_cmp_ne_u32 s[88:89], 0, v1")
        if self.cheat & 2:
            a(f"v_and_b32 v{VSA}, 0x1f0, v3")
        d, vt = XS_, VTC
        a(f"v_lshrrev_b32 v{vt}, 2, v2\nv_lshl_add_u32 v{vt}, v{vt}, 3, s78\nv_lshlrev_b32 v1, 1, v2\nv_xor_b32 v1, v1, v3\nv_and_b32 v1, 48, v1")
        a(f"v_add_u32 v{d[2]}, 1024, v{vt}" if self.eo else f"v_sub_u32 v{d[2]}, s76, v{vt}")
        a(f"v_sub_u32 v{d[1]}, 0, v{vt}\nv_and_b32 v{d[1]}, 2047, v{d[1]}\nv_sub_u32 v{d[3]}, 2048, v{d[2]}")
        a(f"v_add_u32 v{d[0]}, s77, v1\nv_lshl_add_u32 v{d[2]}, v{d[2]}, 11, v{d[0]}\nv_lshl_add_u32 v{d[0]}, v{vt}, 11, v{d[0]}")
        a(f"v_xor_b32 v1, 48, v1\nv_add_u32 v1, s79, v1\nv_lshl_add_u32 v{d[1]}, v{d[1]}, 11, v1\nv_lshl_add_u32 v{d[3]}, v{d[3]}, 11, v1")
        a(f"s_lshl_b32 s76, s30, 12\ns_add_u32 s76, s76, {EX if self.dlds else L_XT}")
        a(f"v_and_b32 v1, 15, v2\nv_lshlrev_b32 v6, 6, v1\nv_lshlrev_b32 v1, 3, v2\nv_xor_b32 v1, v1, v2\nv_and_b32 v1, 48, v1\nv_add3_u32 v{XR}, v6, v1, s76")

    def x_loads(self, h0, h1):
        for h in range(h0, h1):
            self.a(f"s_add_u32 m0, s76, {1024 * h}")
            self.a(f"buffer_load_dwordx4 v{0 if self.cheat & 1024 else self.XS_[h]}, s[8:11], 0 offen lds")

    def park_move(self):
        new = dict(XS_=(4, 5, 249, 205), VTA=248, XR=208, VTC=7, VSA=6)
        for o, n in zip(self.XS_ + (self.VTA, self.XR, self.VTC, self.VSA), new["XS_"] + (new["VTA"], new["XR"], new["VTC"], new["VSA"])):
            self.a(f"v_mov_b32 v{n}, v{o}")
        self.__dict__.update(new)

    def hint_store(self, at):
        if self.hint != at:
            return
        a = self.a
        a("s_cmp_eq_u32 s30, 1\ns_cselect_b32 s31, s2, 0\ns_cmp_lt_u32 s31, 192\ns_cbranch_scc1 L_no_hint")
        a(f"s_and_b32 s31, s2, 31\ns_lshl_b32 s31, s31, 7\ns_add_u32 s31, s31, {HINT}\nv_mov_b32 v250, s28\nv_mov_b32 v251, s29\ns_mov_b64 exec, 1")
        a("buffer_store_dwordx2 v[250:251], v0, s[12:15], s31 offen sc1\ns_mov_b64 exec, -1")
        a("L_no_hint:")

    def sleep(self, n):
        while n > 0:
            self.a(f"s_sleep {min(n, 127)}")
            n -= 127

    def dft(self):
        a = self.a
        self.role = "dft"
        CV, M2, TW, M3, MM = 8, 16, 48, 80, 88
        RW, WR = 120, 152
        T = 160
        VPUB = 4

        a("s_and_b32 s31, s2, 7\ns_lshr_b32 s32, s2, 4\ns_sub_u32 s32, 15, s32\ns_lshl_b32 s32, s32, 3\ns_add_u32 s46, s32, s31\ns_bfe_u32 s47, s2, 0x10003")
        a("s_lshl_b32 s31, s47, 2\ns_add_u32 s51, s31, s30\ns_lshl_b32 s31, s51, 8\ns_add_u32 s52, s31, s46\ns_xor_b32 s54, s52, 1024")
        a("s_sub_u32 s53, 2048, s52\ns_add_u32 s31, s52, 128\ns_cmp_eq_u32 s46, 0\ns_cselect_b32 s53, s31, s53\ns_cselect_b32 s50, 1, 0\ns_xor_b32 s55, s53, 1024")
        for i in range(4):
            a(f"s_lshl_b32 s{56 + i}, s{52 + (i % 2 if self.cheat & 512 else i)}, 11")
        a("s_mov_b32 s22, 2048\ns_mov_b32 s23, 0x00020000")
        a(f"v_mov_b32 v1, 0\nv_and_b32 v6, 15, v2\nv_lshlrev_b32 v6, 2, v6\nds_write_b64 v0, v[0:1] offset:{L_ENT + 32}\nds_write_b32 v6, v0 offset:{L_CNT}")
        a("s_waitcnt lgkmcnt(0)")
        if self.diag == "start":
            a("s_memrealtime s[80:81]")
        a(f"s_load_dwordx2 s[28:29], s[12:13], {EPOCH}\ns_load_dwordx2 s[16:17], s[0:1], 80")
        for r in range(4):
            if r == 2:
                a("s_mov_b32 s20, s36\ns_mov_b32 s21, s37")
                a(f"buffer_load_dwordx4 v[{WR}:{WR + 3}], v3, s[20:23], 0 offen")
                a(f"buffer_load_dwordx4 v[{WR + 4}:{WR + 7}], v3, s[20:23], 0 offen offset:1024")
                if self.defer:
                    break
            a(f"buffer_load_dwordx4 v[{RW + 8 * r}:{RW + 8 * r + 3}], v3, s[8:11], s{56 + r} offen")
            a(f"buffer_load_dwordx4 v[{RW + 8 * r + 4}:{RW + 8 * r + 7}], v3, s[8:11], s{56 + r} offen offset:1024")
        if self.diag == "start":
            a("s_memrealtime s[82:83]")
        a("s_barrier")
        if self.near:
            a("s_branch L_dft_rest")
            self.moe_head()
            a("s_branch L_dma1" if self.boost else "s_branch L_dma_done")
            a("L_dft_rest:")
            self.role = "dft"
        if self.diag == "start":
            a(f"s_memrealtime s[84:85]\ns_waitcnt vmcnt({2 if self.defer else 6})\ns_memrealtime s[86:87]\ns_waitcnt lgkmcnt(0)")
            for i in range(4):
                a(f"v_writelane_b32 v211, s{80 + 2 * i}, {1 + i}")
        a("s_mov_b32 s18, 0x400000\ns_mov_b32 s19, 0x00020000")
        VROW, VEN, VST, VLD, VLM, VTR, VEX, VSG = T + 40, T + 41, T + 42, T + 44, T + 45, T + 46, T + 47, T + 48
        a(f"s_sub_u32 s31, 2047, s52\ns_sub_u32 s32, 2047, s53\nv_mov_b32 v{VROW}, s31\nv_writelane_b32 v{VROW}, s32, 63")
        a(f"s_lshl_b32 s31, s30, 2\nv_mov_b32 v{VEN}, s31\ns_bfe_u32 s31, s53, 0x20008\ns_lshl_b32 s31, s31, 2\ns_add_u32 s31, s31, 16\nv_writelane_b32 v{VEN}, s31, 63")
        a(f"v_and_b32 v6, 32, v2\ns_lshl_b32 s31, s51, 2\nv_add_u32 v{VST + 1}, s31, v6\nv_lshrrev_b32 v{VST}, 1, v{VST + 1}")
        self.gran_slot()
        a(f"v_mov_b32 v{VPUB}, s31\nv_lshlrev_b32 v5, 3, v2")
        for t in range(2):
            a(f"s_and_b32 s31, s{52 + t}, 7\ns_lshl_b32 s31, s31, 11\ns_and_b32 s32, s{52 + t}, 1024\ns_add_u32 s31, s31, s32\ns_and_b32 s32, s{52 + t}, 0xf8\ns_lshl_b32 s32, s32, 2")
            a(f"s_add_u32 s31, s31, s32\ns_add_u32 s31, s31, {STAT}\nv_writelane_b32 v{VPUB}, s31, {2 * t}\ns_add_u32 s31, s31, 16\nv_writelane_b32 v{VPUB}, s31, {2 * t + 1}")
        a(f"s_mul_i32 s31, s51, {RS}\nv_and_b32 v{VLD}, 32, v2\nv_lshlrev_b32 v{VLD}, 2, v{VLD}\nv_add3_u32 v{VLD}, v{VLD}, v3, s31")
        a(f"s_lshl_b32 s32, s31, 1\ns_add_u32 s32, s32, {8 * RS + 63 * 16 + 128}\nv_sub_u32 v{VLM}, s32, v{VLD}")
        a(f"v_bfe_u32 v{VTR}, v2, 2, 2\nv_mul_u32_u24 v{VTR}, {RS}, v{VTR}\nv_lshrrev_b32 v6, 4, v2\nv_mul_u32_u24 v7, {QS}, v6\nv_add_u32 v{VTR}, v{VTR}, v7")
        a(f"v_and_b32 v7, 3, v2\nv_lshlrev_b32 v7, 3, v7\ns_lshl_b32 s31, s30, 7\nv_add3_u32 v{VTR}, v{VTR}, v7, s31")
        a(f"v_lshlrev_b32 v6, 12, v6\nv_and_b32 v7, 15, v2\nv_lshl_add_u32 v6, v7, 4, v6\ns_lshl_b32 s31, s30, 8\nv_add_u32 v{VEX}, s31, v6")
        a(f"v_bfe_i32 v{VSG}, v2, 4, 1\nv_and_b32 v{VSG}, 0x80008000, v{VSG}")

        T0, T1, T2 = T + 90, T + 91, T + 92
        a(f"s_cmp_eq_u32 s47, 0\ns_movk_i32 s48, 0x7403\ns_cselect_b32 s48, 0x7721, s48\nv_and_b32 v{T0}, 12, v2\nv_bfe_u32 v{T0}, s48, v{T0}, 4")
        a(f"v_lshrrev_b32 v{T1}, 4, v2\nv_bfe_u32 v{T2}, v2, 1, 1\nv_mul_u32_u24 v{T1}, v{T1}, v{T2}\nv_and_b32 v{T2}, 1, v2\nv_add_u32 v{T1}, v{T1}, v{T2}")
        a(f"v_cvt_f32_u32 v{T0}, v{T0}\nv_cvt_f32_u32 v{T1}, v{T1}\nv_mul_f32 v{T0}, 0x3e000000, v{T0}\nv_mul_f32 v{T1}, 0x3e800000, v{T1}")
        for j in range(8):
            a(f"v_cos_f32 v{CV + j}, v{T1}")
            if j < 7:
                a(f"v_add_f32 v{T1}, v{T1}, v{T0}")
        for j in range(8):
            a(f"v_mul_f32 v{CV + j}, 0xbf317218, v{CV + j}")
        BI = T + 52
        a(f"v_lshrrev_b32 v{T0}, 2, v2\nv_and_b32 v{T0}, 12, v{T0}\nv_and_b32 v{T1}, 15, v2\nv_lshlrev_b32 v{T1}, 2, v{T1}")
        a(f"v_cvt_f32_u32 v{T0}, v{T0}\nv_cvt_f32_u32 v{T1}, v{T1}\nv_mul_f32 v{BI}, 0x3c800000, v{T0}")
        a(f"s_lshl_b32 s31, s30, 2\ns_lshr_b32 s48, s48, s31\ns_and_b32 s48, s48, 15\ns_sub_u32 s31, s48, 4\ns_mul_i32 s31, s31, s46\nv_cvt_f32_i32 v{T2}, s31\nv_mul_f32 v{T2}, 0x3a000000, v{T2}")
        a(f"v_add_f32 v{BI + 1}, 0x3c800000, v{BI}\nv_add_f32 v{BI + 2}, 0x3d000000, v{BI}\nv_add_f32 v{BI + 3}, 0x3d400000, v{BI}")
        def consts(f0, f1):
            for f in range(f0, f1):
                for i in range(4):
                    re, im = M2 + 8 * f + i, M2 + 8 * f + 4 + i
                    tc, ts = TW + 8 * f + i, TW + 8 * f + 4 + i
                    a(f"v_mul_f32 v{T0}, v{BI + i}, v{T1}")
                    a(f"v_fmamk_f32 v{ts}, v{T0}, 0x3d800000, v{T2}")
                    a(f"v_sin_f32 v{im}, v{T0}\nv_cos_f32 v{T0}, v{T0}\nv_cos_f32 v{tc}, v{ts}\nv_sin_f32 v{ts}, v{ts}")
                    a(f"v_cvt_pk_f16_f32 v{re}, v{T0}, v{im}\nv_cvt_pk_f16_f32 v{im}, -v{im}, v{T0}")
                if f < 3:
                    a(f"v_add_f32 v{T1}, 1.0, v{T1}")

        VZ = T + 49

        def late_consts():
            consts(self.nfpre, 4)
            a("s_and_b32 s31, s46, 1\ns_lshl_b32 s31, s31, 6\ns_lshr_b32 s32, s46, 1\ns_add_u32 s49, s31, s32")
            a("s_bitcmp1_b32 s49, 2\ns_cselect_b64 vcc, -1, 0")
            for i in range(4):
                a(f"v_cndmask_b32 v{M3 + i}, v{M2 + i}, v{M2 + 4 + i}, vcc\nv_cndmask_b32 v{M3 + 4 + i}, v{M2 + 4 + i}, v{M2 + i}, vcc")
            a(f"s_bfe_u32 s31, s49, 0x10001\nv_and_b32 v6, 7, v2\nv_xor_b32 v6, s31, v6\nv_lshlrev_b32 v6, 4, v6")
            a(f"v_lshrrev_b32 v7, 4, v2\nv_lshlrev_b32 v7, 3, v7\nv_bfe_u32 v{VZ}, v2, 3, 1\nv_add_u32 v7, v7, v{VZ}\nv_mul_u32_u24 v7, {ZTS}, v7\nv_add_u32 v{VZ}, v6, v7")
            a(f"s_mul_i32 s31, s48, {32 * ZTS}\ns_lshl_b32 s32, s49, 7\ns_add_u32 s31, s31, s32\ns_add_u32 s60, s31, {ZB}")

        self.out_addresses()
        consts(0, self.nfpre)
        SS, QQ, DD, DC = T, T + 4, T + 8, T + 10
        PB, RST, MEAN, SH = T + 12, T + 16, T + 32, T + 56
        for r in range(11):
            a(f"v_mov_b32 v{T + r}, 0")
        if self.defer:
            a("s_mov_b32 s84, s58\ns_mov_b32 s85, s59")
        a("s_mov_b32 s57, 0x3f803f80\ns_mov_b32 s59, 0xffff\ns_brev_b32 s67, 1\ns_mov_b32 s66, 0\ns_brev_b32 s64, 1\ns_brev_b32 s65, 1")
        a(f"s_cmp_eq_u32 s47, 0\ns_movk_i32 s62, {-4 * RS}\ns_cselect_b32 s62, {4 * RS}, s62")
        a("s_waitcnt lgkmcnt(0)")
        self.tag_from_epoch()
        a(f"v_mov_b32 v{PB + 2}, s28\nv_mov_b32 v{PB + 3}, s29")
        a(f"s_cmp_lt_u32 s2, {0 if self.diag == 'nomoe' else 224}\ns_cbranch_scc1 L_epoch_ok")
        self.wait(C_E, 4)
        a("L_epoch_ok:")
        self.setprio(self.P["stat"])
        self.stamp(1)

        def sq(r):
            for i in range(8):
                x = RW + 8 * r + i
                a(f"v_dot2c_f32_bf16 v{SS + r}, s57, v{x}\nv_dot2c_f32_bf16 v{QQ + r}, v{x}, v{x}")

        def plain(r, off):
            a(f"ds_write_b128 v{VLD}, v[{RW + 8 * r}:{RW + 8 * r + 3}] offset:{off}\nds_write_b128 v{VLD}, v[{RW + 8 * r + 4}:{RW + 8 * r + 7}] offset:{off + 2 * QS}")

        def rotate(r):
            b = RW + 8 * r
            a(f"v_mov_b32_dpp v6, v{b} wave_rol:1 row_mask:0xf bank_mask:0xf\nv_mov_b32_dpp v7, v{b + 4} wave_rol:1 row_mask:0xf bank_mask:0xf")
            for half in range(2):
                for i in (1, 2, 3):
                    a(f"v_bfi_b32 v{SH + 4 * (1 - half) + i}, s59, v{b + 4 * half + 4 - i}, v{b + 4 * half + 3 - i}")
            a(f"v_cndmask_b32 v{SH + 4}, v6, v7, s[66:67]\nv_cndmask_b32 v{SH}, v7, v6, s[66:67]")
            a(f"v_bfi_b32 v{SH + 4}, s59, v{SH + 4}, v{b + 3}\nv_bfi_b32 v{SH}, s59, v{SH}, v{b + 7}")

        def second(r):
            a(f"s_cmp_lg_u32 s50, 0\ns_cbranch_scc1 L_plain{r}")
            a(f"ds_write_b128 v{VLM}, v[{SH}:{SH + 3}]\nds_write_b128 v{VLM}, v[{SH + 4}:{SH + 7}] offset:{2 * QS}\ns_branch L_second{r}")
            a(f"L_plain{r}:")
            plain(r, 8 * RS)
            a(f"L_second{r}:")

        def reduce(regs):
            for r in regs:
                a(f"v_permlane32_swap_b32 v{r}, v{r + 1}")
            for r in regs:
                a(f"v_add_f32 v{r}, v{r}, v{r + 1}")
            for d, m in [(d, 0xf) for d in SHR] + [("row_bcast:15", 0xa)]:
                for r in regs:
                    a(f"v_add_f32_dpp v{r}, v{r}, v{r} {d} row_mask:{m:#x} bank_mask:0xf")

        def tail(m_, q_, NM, st):
            a(f"v_mul_f32 v{m_}, 0x3a800000, v{m_}\nv_mul_f32 v{q_}, 0x3a800000, v{q_}")
            a(f"v_fma_f32 v{q_}, -v{m_}, v{m_}, v{q_}\nv_cvt_pk_bf16_f32 v{NM}, -v{m_}, -v{m_}\nv_max_f32 v{q_}, 0, v{q_}")
            a(f"v_cvt_pk_bf16_f32 v{q_}, v{q_}, v{q_}\nv_and_b32 v{q_}, 0xffff0000, v{q_}\nv_add_f32 v{q_}, 0x3727c5ac, v{q_}")
            a(f"v_cvt_pk_bf16_f32 v{q_}, v{q_}, v{q_}\nv_and_b32 v{q_}, 0xffff0000, v{q_}\nv_sqrt_f32 v{q_}, v{q_}\nv_and_b32 v{q_ + 1}, 0xffff0000, v{NM}")
            a(f"v_cvt_pk_bf16_f32 v{st}, v{m_}, v{q_}\nv_and_b32 v{q_}, 0xffff0000, v{st}\nv_rcp_f32 v{q_}, v{q_}")

        a(f"s_waitcnt vmcnt({4 if self.defer else 8})")
        if self.defer:
            for r in (2, 3):
                a(f"buffer_load_dwordx4 v[{RW + 8 * r}:{RW + 8 * r + 3}], v3, s[8:11], s{82 + r} offen")
                a(f"buffer_load_dwordx4 v[{RW + 8 * r + 4}:{RW + 8 * r + 7}], v3, s[8:11], s{82 + r} offen offset:1024")
        sq(0)
        a("s_waitcnt vmcnt(6)")
        sq(1)
        a("s_waitcnt vmcnt(4)")
        self.stamp(2)
        for i in range(8):
            a(f"v_dot2c_f32_bf16 v{DC}, s57, v{WR + i}")
        for i in range(8):
            a(f"v_dot2c_f32_bf16 v{DD}, v{WR + i}, v{RW + i}\nv_dot2c_f32_bf16 v{DD + 1}, v{WR + i}, v{RW + 8 + i}")
            if i == 3:
                a(f"v_mov_b32 v{DC + 1}, v{DC}")
        reduce((SS, QQ, DC, DD))
        t_, NM, st = DD, SS + 1, T + 88
        tail(SS, QQ, NM, st)
        a(f"v_fmac_f32 v{t_}, v{DC}, v{QQ + 1}\nv_mul_f32 v{t_}, v{t_}, v{QQ}")
        a(f"v_ashrrev_i32 v{DC}, 31, v{t_}\nv_or_b32 v{DC}, 0x80000000, v{DC}\nv_xor_b32 v{t_}, v{t_}, v{DC}")
        a(f"v_and_b32 v{t_}, 0xfffff800, v{t_}\nv_or_b32 v{st + 1}, v{VROW}, v{t_}")
        a("s_mov_b64 exec, s[64:65]")
        a(f"ds_write_b32 v{VEN}, v{st} offset:{L_ENT}\nds_max_u64 v0, v[{st}:{st + 1}] offset:{L_ENT + 32}")
        a(f"s_mov_b64 exec, 1\nds_add_rtn_u32 v1, v0, v255 offset:{L_CNT + 4 * C_A}\ns_mov_b64 exec, 31\nds_read_b64 v[{PB}:{PB + 1}], v5 offset:{L_ENT}")
        a("s_mov_b64 exec, s[64:65]")
        a(f"ds_write_b16 v{VST}, v{NM} offset:{L_MEAN}\nds_write_b32 v{VST + 1}, v{QQ} offset:{L_RST}")
        a("s_mov_b64 exec, -1")
        rotate(1)
        a(f"s_waitcnt lgkmcnt(2)\nv_readfirstlane_b32 s31, v1\ns_cmp_lg_u32 s31, {3 * self.unit}\ns_cbranch_scc1 L_not_last")
        a(f"s_mov_b64 exec, 31\nbuffer_store_dwordx4 v[{PB}:{PB + 3}], v{VPUB}, s[12:15], 0 offen sc1\ns_mov_b64 exec, -1")
        self.stamp(3)
        a("s_waitcnt vmcnt(1)\ns_branch L_b_ready")
        a("L_not_last:")
        a("s_waitcnt vmcnt(0)")
        a("L_b_ready:")
        if self.cheat & 4096:
            for r in range(4):
                a(f"s_xor_b32 s31, s{52 + r}, 64\ns_lshl_b32 s31, s31, 11")
                a(f"buffer_load_dwordx4 v[{88 + 4 * r}:{91 + 4 * r}], v3, s[8:11], s31 offen\nbuffer_load_dwordx4 v[{88 + 4 * r}:{91 + 4 * r}], v3, s[8:11], s31 offen offset:1024")
        self.setprio(self.P["p1"])
        if self.diag == "pubonly":
            self.arrive(self.gate[0])
            self.arrive(C_ST3)
            a("s_branch L_fin")
        plain(0, 0)
        second(1)
        a(f"v_add_u32 v{VLD}, s62, v{VLD}\nv_add_u32 v{VLM}, s62, v{VLM}")
        sq(2)
        plain(2, 0)
        sq(3)
        a(f"v_xor_b32 v{VST}, 8, v{VST}\nv_xor_b32 v{VST + 1}, 16, v{VST + 1}\ns_waitcnt lgkmcnt(2)")
        rotate(3)
        second(3)
        reduce((SS + 2, QQ + 2))
        tail(SS + 2, QQ + 2, NM, st)
        a("s_mov_b64 exec, s[64:65]")
        a(f"ds_write_b16 v{VST}, v{NM} offset:{L_MEAN}\nds_write_b32 v{VST + 1}, v{QQ + 2} offset:{L_RST}")
        if self.cheat & 4096:
            a("s_mov_b64 exec, -1\ns_waitcnt vmcnt(0)")
            for r in range(4):
                sq(r)
                plain(2, 0)
        self.arrive(C_B, True)
        AD, AM, C0 = T, WR, T + 8

        def stat_reads():
            for k in range(4):
                a(f"ds_read_b128 v[{RST + 4 * k}:{RST + 4 * k + 3}], v0 offset:{L_RST + 16 * k}")
            a(f"ds_read_b128 v[{MEAN}:{MEAN + 3}], v0 offset:{L_MEAN}\nds_read_b128 v[{MEAN + 4}:{MEAN + 7}], v0 offset:{L_MEAN + 16}")

        self.wait_then(C_B, 4, stat_reads, 6)
        self.stamp(4)
        FR, DA, EE = RW, T + 56, RST

        def trd(blk):
            for m in range(2):
                for v in range(2):
                    d = FR + 8 * blk + 4 * m + 2 * v
                    a(f"ds_read_b64_tr_b16 v[{d}:{d + 1}], v{VTR} offset:{(8 * m + 4 * v) * RS + 32 * blk}")

        def cvt_ex(blk):
            for f in range(4):
                a(f"v_cvt_pk_f16_f32 v{EE + 4 * f + blk}, v{DA + 8 * blk + 2 * f}, v{DA + 8 * blk + 2 * f + 1}")

        def cvt_f(f, area):
            for blk in range(4):
                a(f"v_cvt_pk_f16_f32 v{EE + 4 * f + blk}, v{DA + 8 * blk + 2 * f}, v{DA + 8 * blk + 2 * f + 1}")
            a(f"ds_write_b128 v{VEX}, v[{EE + 4 * f}:{EE + 4 * f + 3}] offset:{EX + area + 1024 * f}")

        def write_ex(area):
            for f in range(4):
                a(f"ds_write_b128 v{VEX}, v[{EE + 4 * f}:{EE + 4 * f + 3}] offset:{EX + area + 1024 * f}")

        trd(0); trd(1)
        self.x_loads(0, self.xb)
        a("s_waitcnt lgkmcnt(10)")
        trd(2)
        for k in range(8):
            a(f"v_pk_mul_f32 v[{RST + 2 * k}:{RST + 2 * k + 1}], v[{RST + 2 * k}:{RST + 2 * k + 1}], v[{CV + 2 * (k % 4)}:{CV + 2 * (k % 4) + 1}]")
        for k in range(4):
            a(f"v_cvt_pk_bf16_f32 v{AD + k}, v{RST + 2 * k}, v{RST + 2 * k + 1}\nv_cvt_pk_bf16_f32 v{AM + k}, v{RST + 8 + 2 * k}, v{RST + 9 + 2 * k}")
        for k in range(4):
            a(f"v_xor_b32 v{AD + 4 + k}, v{VSG}, v{AD + k}\nv_xor_b32 v{AM + 4 + k}, v{VSG}, v{AM + k}")
        a("s_waitcnt lgkmcnt(12)")
        a("s_cmp_lg_u32 s50, 0\ns_cbranch_scc1 L_st1_split")
        self.mfma("bf16", C0, AD, MEAN)
        self.mfma("bf16", C0, AM, MEAN + 4, C0)
        for blk in range(4):
            d, fr = DA + 8 * blk, FR + 8 * blk
            a(f"s_waitcnt lgkmcnt({(10, 10, 6, 2)[blk]})")
            if blk == 0:
                trd(3)
            self.mfma("bf16", d, AD, fr, C0)
            a(f"s_waitcnt lgkmcnt({(12, 8, 4, 0)[blk]})")
            self.mfma("bf16", d, AM, fr + 4, d)
        for blk in range(4):
            d, fr = DA + 8 * blk, FR + 8 * blk
            self.mfma("bf16", d + 4, AD + 4, fr)
            self.mfma("bf16", d + 4, AM + 4, fr + 4, d + 4)
            if blk in (1, 2):
                cvt_f(blk - 1, 0)
        cvt_f(2, 0)
        cvt_f(3, 0)
        a("s_branch L_st1_done")
        a("L_st1_split:")
        a("s_waitcnt lgkmcnt(8)")
        trd(3)
        a("s_waitcnt lgkmcnt(0)")
        for A, o, area in ((AD, 0, 0), (AM, 4, 16384)):
            self.mfma("bf16", C0, A, MEAN + o)
            for blk in range(4):
                self.mfma("bf16", DA + 8 * blk + 4, A + 4, FR + 8 * blk + o)
                self.mfma("bf16", DA + 8 * blk, A, FR + 8 * blk + o, C0)
            if area:
                a("s_waitcnt lgkmcnt(0)")
            for blk in range(4):
                cvt_ex(blk)
            write_ex(area)
        a("L_st1_done:")
        self.x_loads(self.xb, self.xc)
        self.arrive(C_C)
        PP, UU, TT, ZZ, VTAG = RW, RW + 16, WR, T + 56, T + 50
        a(f"s_lshl_b32 s31, s30, 12\nv_add_u32 v5, s31, v3\ns_and_b32 s31, s28, {ZMASK:#x}\nv_mov_b32 v{VTAG}, s31\ns_mov_b32 s58, {~ZMASK & 0xFFFFFFFF:#x}")
        a("s_and_b32 s32, s48, 3\ns_cselect_b32 s72, -1, 0xff\ns_cselect_b32 s73, -1, 0\ns_mov_b32 s74, s48")
        a("s_mov_b64 s[60:61], 0\ns_mov_b64 s[62:63], 0")
        a(f"v_mov_b32 v{VZ}, {OOB}\ns_cmp_eq_u32 s48, 7\ns_cbranch_scc1 L_no_consts")
        late_consts()
        a("L_no_consts:")

        def ex_reads():
            for f in range(4):
                a(f"ds_read_b128 v[{PP + 4 * f}:{PP + 4 * f + 3}], v5 offset:{EX + 1024 * f}")

        a("L_st23:")
        self.wait_then(C_C, 4, ex_reads, 4)
        self.stamp(5)
        a("s_cmp_eq_u32 s48, 7\ns_cbranch_scc1 L_p1_done")
        for i in range(1, 4):
            a(f"s_add_u32 s{60 + i}, s{59 + i}, {2 * ZTS}")

        def st2(f):
            u = UU + 8 * (f % 2)
            a(f"s_waitcnt lgkmcnt({3 - f})")
            self.mfma("f16", u, PP + 4 * f, M2 + 8 * f)
            self.mfma("f16", u + 4, PP + 4 * f, M2 + 8 * f + 4)

        def tw(f):
            u = UU + 8 * (f % 2)
            tc, ts = TW + 8 * f, TW + 8 * f + 4
            for p in (0, 2):
                a(f"v_pk_mul_f32 v[{TT + p}:{TT + p + 1}], v[{tc + p}:{tc + p + 1}], v[{u + p}:{u + p + 1}]")
            for p in (0, 2):
                a(f"v_pk_mul_f32 v[{TT + 4 + p}:{TT + 5 + p}], v[{ts + p}:{ts + p + 1}], v[{u + p}:{u + p + 1}]")
            for p in (0, 2):
                a(f"v_pk_fma_f32 v[{TT + p}:{TT + p + 1}], v[{ts + p}:{ts + p + 1}], v[{u + 4 + p}:{u + 5 + p}], v[{TT + p}:{TT + p + 1}]")
                a(f"v_pk_fma_f32 v[{TT + 4 + p}:{TT + 5 + p}], v[{tc + p}:{tc + p + 1}], v[{u + 4 + p}:{u + 5 + p}], v[{TT + 4 + p}:{TT + 5 + p}] neg_lo:[0,0,1] neg_hi:[0,0,1]")
            for i in range(4):
                a(f"v_cvt_pk_f16_f32 v{PP + 4 * f + i}, v{TT + i}, v{TT + 4 + i}")

        def st3(f):
            self.mfma("f16", ZZ + 8 * f, M3, PP + 4 * f)
            self.mfma("f16", ZZ + 8 * f + 4, M3 + 4, PP + 4 * f)

        OO = T + 16

        def pack(lo):
            for i in range(4):
                o = OO + 4 * i + lo
                a(f"v_cvt_pk_f16_f32 v{o}, v{ZZ + 16 * lo + i}, v{ZZ + 16 * lo + 8 + i}\nv_cvt_pk_f16_f32 v{o + 2}, v{ZZ + 16 * lo + 4 + i}, v{ZZ + 16 * lo + 12 + i}")
                a(f"v_and_or_b32 v{o}, v{o}, s58, v{VTAG}\nv_and_or_b32 v{o + 2}, v{o + 2}, s58, v{VTAG}")

        def z_stores():
            for i in range(4):
                if i < 2:
                    a(f"s_mov_b32 exec_hi, s{72 + i}")
                a(f"buffer_store_dwordx4 v[{OO + 4 * i}:{OO + 4 * i + 3}], v{VZ}, s[12:15], s{60 + i} offen {self.zflag}")
            a("s_mov_b32 exec_hi, -1")

        st2(0); st2(1); tw(0); st2(2); st3(0); tw(1); st2(3); st3(1); tw(2); st3(2); tw(3); st3(3); pack(0); pack(1)
        a("s_cmp_eq_u32 s50, 0\ns_cbranch_scc1 L_p1_done")
        z_stores()
        a(f"s_mov_b32 s50, 0\ns_add_u32 s60, s60, 16384\nv_add_u32 v5, 16384, v5\ns_sub_u32 s31, s48, 4\nv_cvt_f32_i32 v{T2}, s31\nv_mul_f32 v{T2}, 0x3d800000, v{T2}")
        a(f"v_and_b32 v{T1}, 15, v2\nv_lshlrev_b32 v{T1}, 2, v{T1}\nv_cvt_f32_u32 v{T1}, v{T1}")
        for i in range(4):
            a(f"v_fma_f32 v{T0}, v{BI + i}, v{T1}, v{T2}\nv_sin_f32 v{M3 + 4 + i}, v{T0}\nv_cos_f32 v{T0}, v{T0}")
            a(f"v_cvt_pk_f16_f32 v{M3 + i}, v{T0}, v{M3 + 4 + i}\nv_cvt_pk_f16_f32 v{M3 + 4 + i}, -v{M3 + 4 + i}, v{T0}")
        a("s_branch L_st23")
        a("L_p1_done:")
        self.arrive(C_ST3)
        self.stamp(6)
        self.setprio(self.P["mid"])
        self.park_move()
        self.phase2(MM, VTAG, z_stores)

    def phase2(self, MM, VTAG, z_stores):
        a = self.a
        XP, SG, XF, GG = 8, 24, 40, 120
        AC, ZL, AF, GR = 216, 72, 152, 192
        ZN = 212
        XS_, VTA, XR, VTC, VSA = self.XS_, self.VTA, self.XR, self.VTC, self.VSA
        self.tile_decode()
        a(f"s_lshl_b32 s31, s30, 5\ns_add_u32 s53, s53, s31\ns_lshl_b32 s48, s46, 1\ns_add_u32 s48, s48, 2040\ns_mov_b32 s49, {STAT}")
        x_loads = self.x_loads

        def x_reads(h0, h1):
            for h in range(h0, h1):
                a(f"ds_read_b128 v[{XP + 4 * h}:{XP + 4 * h + 3}], v{XR} offset:{1024 * h}")
            a("s_waitcnt lgkmcnt(0)")

        XE = max(self.xearly, self.xc)

        ledger = []

        def younger(tag):
            return len(ledger) - 1 - max(i for i, t in enumerate(ledger) if t == tag)

        def step(op):
            if op == "x":
                self.release(self.rel_x0)
                if self.adapt:
                    a(f"ds_read_b32 v1, v0 offset:{L_CNT + 4 * C_DMA}\ns_cmp_ge_u32 s2, 224\ns_cbranch_scc1 L_x_go")
                    a(f"s_waitcnt lgkmcnt(0)\nv_readfirstlane_b32 s31, v1\ns_cmp_ge_u32 s31, {self.adapt}\ns_cbranch_scc1 L_x_go")
                    self.release("hp")
                    a("L_x_go:\ns_waitcnt lgkmcnt(0)")
                a(f"buffer_load_dwordx4 v[{SG}:{SG + 3}], v6, s[12:15], s49 offen")
                x_loads(self.xc, XE)
                ledger.extend("x" * (1 + XE - self.xc))
            elif op == "z":
                if self.rel_zw:
                    a("s_cmp_ge_u32 s2, 224\ns_cbranch_scc1 L_zst_go")
                    self.release(self.rel_zw)
                    a("L_zst_go:")
                z_stores()
                ledger.extend("zzzz")
                self.stamp(7)
                if self.cheat & 4:
                    a("s_branch L_fin")
            elif op == "m":
                self.p2_matrix(MM, 160, 161, 162)
            elif op == "a":
                addresses()
            elif op == "w":
                stat_wait()
            elif op == "g":
                x_reads(0, XE)
                self.stamp(13)
                gate(0, XE)
                self.stamp(14)
            elif op == "y" and XE < 4:
                self.release(self.rel_x)
                x_loads(XE, 4)
                ledger.extend("y" * (4 - XE))
            elif op == "t":
                a(f"s_mov_b32 exec_lo, {self.tmask & 0xFFFFFFFF:#x}\ns_mov_b32 exec_hi, {self.tmask >> 32:#x}")
                for h in range(4):
                    a(f"buffer_load_dword v197, v{XS_[h]}, s[16:19], 0 offen")
                a("s_mov_b64 exec, -1")
                ledger.extend("tttt")
            elif op == "k":
                masks()
            elif op == "v" and XE < 4:
                a(f"s_waitcnt vmcnt({younger('y')})")
            elif op == "r":
                self.release(self.rel_zr)
                z_loads()
                ledger.extend("rrrrr")
            elif op == "h":
                self.setprio(self.P["gate"])
                x_reads(XE, 4)
                self.stamp(8)
                gate(XE, 4)

        def addresses():
            a(f"s_mul_i32 s51, s46, {32 * ZTS}\ns_add_u32 s51, s51, {ZB}\ns_mul_i32 s54, s47, {ZTS}\ns_lshl_b32 s32, s30, 12\ns_add_u32 s50, s51, s54\ns_add_u32 s50, s50, s32")
            a(f"s_add_u32 s55, s47, 1\ns_and_b32 s55, s55, 31\ns_mul_i32 s55, s55, {ZTS}\nv_add_u32 v250, s32, v3\nv_add_u32 v199, s76, v3")
            a(f"v_lshl_add_u32 v200, v2, 7, s32\nv_and_b32 v1, 2, v2\nv_lshl_add_u32 v200, v1, 3, v200\nv_and_b32 v1, 0x70, v3\nv_add_u32 v1, 16384, v1")
            a(f"s_mov_b32 vcc_lo, 0\ns_mov_b32 vcc_hi, -1\nv_cndmask_b32 v200, v200, v1, vcc\ns_mov_b32 vcc_hi, 0xff\nv_mov_b32 v1, s55\nv_mov_b32 v201, s54")
            a(f"v_cndmask_b32 v1, v1, v201, vcc\nv_mov_b32 v201, {SHD}\nv_cndmask_b32 v201, v201, v0, vcc\nv_add_u32 v201, v201, v200\nv_add_u32 v200, v1, v200")
            if self.cheat & 1:
                a("v_and_b32 v200, 0x70, v3\nv_add_u32 v200, s54, v200")
            a("v_lshrrev_b32 v251, 5, v2\nv_lshlrev_b32 v251, 11, v251\nv_bfe_u32 v1, v2, 2, 3\nv_lshl_add_u32 v251, v1, 7, v251")
            a("v_and_b32 v1, 3, v2\nv_lshl_add_u32 v251, v1, 5, v251\nv_bfe_u32 v1, v2, 3, 1\nv_lshl_add_u32 v251, v1, 4, v251\nv_bfe_u32 v1, v2, 4, 1\nv_lshl_add_u32 v251, v1, 3, v251")
            a("v_xor_b32 v252, 16, v251\nv_xor_b32 v253, 8, v251\nv_xor_b32 v254, 24, v251\nv_cmp_gt_u32 vcc, 4, v2\nv_mov_b32 v1, 16384\nv_cndmask_b32 v1, v0, v1, vcc")
            a("v_add_u32 v206, v253, v1\nv_add_u32 v207, v254, v1")
            a(f"s_mov_b32 vcc_lo, 0x88888888\ns_mov_b32 vcc_hi, 0x88888888\nv_mov_b32 v1, {SHD - 96}\nv_cndmask_b32 v1, 32, v1, vcc")
            a("v_add_u32 v202, v251, v1\nv_add_u32 v203, v253, v1\nv_add_u32 v204, v206, v1")

        def stat_wait():
            a(f"s_waitcnt vmcnt({younger('x') if self.counted else 0})")
            a("L_stat_check:")
            a(f"v_cmp_ne_u64 vcc, s[28:29], v[{SG + 2}:{SG + 3}]\ns_cbranch_vccz L_stat_got")
            self.spin_guard("L_stat_got")
            a(f"s_mov_b64 exec, vcc\nbuffer_load_dwordx4 v[{SG}:{SG + 3}], v6, s[12:15], s49 offen sc1")
            a("s_mov_b64 exec, -1\ns_waitcnt vmcnt(0)\ns_branch L_stat_check")
            a("L_stat_got:")
            a(f"v_cndmask_b32 v{SG}, v{SG}, v{SG + 1}, s[88:89]")
            a(f"v_mov_b32 v{SG + 8}, v{SG}\nv_permlane32_swap_b32 v{SG}, v{SG + 8}\nv_mov_b32 v{SG + 4}, v{SG}\nv_mov_b32 v{SG + 12}, v{SG + 8}")
            a(f"v_permlane16_swap_b32 v{SG}, v{SG + 4}\nv_permlane16_swap_b32 v{SG + 8}, v{SG + 12}")
            for h in range(4):
                s_ = SG + 4 * h
                a(f"v_lshlrev_b32 v{s_ + 2}, 16, v{s_}\nv_and_b32 v{s_}, 0xffff0000, v{s_}\nv_rcp_f32 v{s_}, v{s_}")
            for h in range(4):
                s_ = SG + 4 * h
                a(f"v_mul_f32 v{s_}, 0xbfb8aa3b, v{s_}\nv_mul_f32_e64 v{s_ + 2}, -v{s_ + 2}, v{s_}")

        def z_loads():
            for j in range(4):
                if self.cheat & 2048 and j == 2:
                    a("s_mov_b64 exec, 1")
                a(f"buffer_load_dwordx4 v[{ZL + 4 * j}:{ZL + 4 * j + 3}], v3, s[12:15], s50 offen offset:{1024 * j} sc1")
            if self.cheat & 2048:
                a("s_mov_b32 exec_lo, 0xffff")
            a("s_mov_b32 exec_hi, 0x1ff")
            a(f"buffer_load_dwordx4 v[{ZN}:{ZN + 3}], v200, s[12:15], s51 offen sc1")
            a("s_mov_b64 exec, -1" if self.cheat & 2048 else "s_mov_b32 exec_hi, -1")

        def slots(h, i):
            if h % 2 == 0:
                return 8 * h + 2 * i, 8 * h + 2 * i + 1
            return 8 * h + (8 - 2 * i) % 8, 8 * h + 7 - 2 * i

        def gate(h0, h1):
            rng = range(4 * h0, 4 * h1)
            for i in rng:
                lo, hi = slots(i // 4, i % 4)
                a(f"v_lshlrev_b32 v{XF + lo}, 16, v{XP + i}\nv_and_b32 v{XF + hi}, 0xffff0000, v{XP + i}")
            for i in rng:
                s_ = SG + 4 * (i // 4)
                a(f"v_pk_fma_f32 v[{GG + 2 * i}:{GG + 2 * i + 1}], v[{XF + 2 * i}:{XF + 2 * i + 1}], v[{s_}:{s_ + 1}], v[{s_ + 2}:{s_ + 3}] op_sel_hi:[1,0,0]")
            for i in rng:
                a(f"v_exp_f32 v{AC + 2 * i}, v{GG + 2 * i}\nv_exp_f32 v{AC + 2 * i + 1}, v{GG + 2 * i + 1}")
            for i in rng:
                a(f"v_pk_add_f32 v[{AC + 2 * i}:{AC + 2 * i + 1}], v[{AC + 2 * i}:{AC + 2 * i + 1}], 1.0 op_sel_hi:[1,0]")
            for i in rng:
                a(f"v_rcp_f32 v{AC + 2 * i}, v{AC + 2 * i}\nv_rcp_f32 v{AC + 2 * i + 1}, v{AC + 2 * i + 1}")
            for i in rng:
                a(f"v_pk_mul_f32 v[{GG + 2 * i}:{GG + 2 * i + 1}], v[{GG + 2 * i}:{GG + 2 * i + 1}], v[{AC + 2 * i}:{AC + 2 * i + 1}]")

        for i in range(4):
            a(f"v_mov_b32 v{ZN + i}, v{VTAG}")
        def masks():
            self.wait_then(C_S2, 1, lambda: a(f"ds_read_b32 v198, v0 offset:{L_KEY + 4}"), 1)
            a(f"v_and_b32 v6, 48, v2\nv_lshlrev_b32 v6, 1, v6\nv_mov_b32 v209, {OOB}\ns_waitcnt lgkmcnt(0)\nv_readfirstlane_b32 s33, v198")
            a("s_andn2_b32 s33, 0x7ff, s33\ns_sub_u32 s31, 0, s33\ns_and_b32 s31, s31, 2047")
            a("s_sub_u32 s32, s33, 1024\ns_sub_u32 s34, s31, 1024" if self.eo else "s_sub_u32 s32, s48, s33\ns_sub_u32 s34, s48, s31")
            for h, sr in enumerate((33, 31, 32, 34)):
                a(f"v_cmp_eq_u32 vcc, s{sr}, v{VTC}\nv_cmp_eq_u32 s[{54 + 2 * h}:{55 + 2 * h}], s{sr}, v{VTA}\nv_cndmask_b32 v{XS_[h]}, v{XS_[h]}, v209, vcc")
            a("s_or_b64 s[62:63], s[54:55], s[58:59]\ns_or_b64 s[64:65], s[56:57], s[60:61]")

        order = self.order if "r" in self.order else self.order + ("ykrvh" if self.zwith else "ykvrh")
        assert sorted(order.replace("t", "")) == sorted("xzmawgykvrh") and order.find("t") < order.index("r")
        for first, second in ("xw", "wg", "yk", "zk", "wk", "yv", "vh", "wh", "ar", "xr", "yr", "zr", "ak"):
            assert order.index(first) < order.index(second), (first, second)
        for op in order:
            step(op)
        if self.u64:
            a(f"s_and_b32 s31, s28, {ZMASK:#x}\ns_sub_u32 s66, 0, s31\ns_subb_u32 s67, 0, s31")
        self.stamp(9)
        a("L_z_wait:")
        self.setprio(self.P["tail"])
        ZC = AF + 8
        srcs = [ZL + i for i in range(16)] + [ZN + i for i in range(4)]
        for j in range(5):
            if self.cheat & 2048 and j in (2, 3):
                continue
            a(f"s_waitcnt vmcnt({4 - j})")
            for i in range(4):
                if not self.u64:
                    a(f"v_xor_b32 v{ZC + 4 * j + i}, v{VTAG}, v{srcs[4 * j + i]}")
                elif i % 2 == 0:
                    a(f"v_lshl_add_u64 v[{ZC + 4 * j + i}:{ZC + 4 * j + i + 1}], v[{srcs[4 * j + i]}:{srcs[4 * j + i] + 1}], 0, s[66:67]")
            if j < 4:
                a(f"ds_write_b128 v250, v[{ZC + 4 * j}:{ZC + 4 * j + 3}] offset:{1024 * j}")
            else:
                a(f"s_mov_b32 exec_hi, 0x1ff\nds_write_b128 v201, v[{ZC + 16}:{ZC + 19}]\ns_mov_b32 exec_hi, -1")
            if j == 0:
                a(f"v_or3_b32 v1, v{ZC}, v{ZC + 1}, v{ZC + 2}\nv_or_b32 v1, v1, v{ZC + 3}")
            else:
                a(f"v_or3_b32 v1, v1, v{ZC + 4 * j}, v{ZC + 4 * j + 1}\nv_or3_b32 v1, v1, v{ZC + 4 * j + 2}, v{ZC + 4 * j + 3}")
        a(f"v_and_b32 v1, {ZMASK:#x}, v1\nv_cmp_ne_u32 vcc, 0, v1\ns_cbranch_vccz L_z_got")
        self.spin_guard("L_z_got")
        a("s_mov_b64 exec, vcc")
        for j in range(4):
            a(f"buffer_load_dwordx4 v[{ZL + 4 * j}:{ZL + 4 * j + 3}], v3, s[12:15], s50 offen offset:{1024 * j} sc1")
        a("s_and_b32 exec_hi, exec_hi, 0x1ff\ns_or_b32 exec_lo, exec_lo, 1")
        a(f"buffer_load_dwordx4 v[{ZN}:{ZN + 3}], v200, s[12:15], s51 offen sc1")
        a("s_mov_b64 exec, -1\ns_waitcnt lgkmcnt(0)\ns_branch L_z_wait")
        a("L_z_got:")
        self.stamp(10)
        self.fine(0)
        if self.hold:
            a(f"ds_read_b32 v198, v0 offset:{L_CNT + 4 * C_YG}")
        self.arrive(C_D)
        self.fine(1)
        if self.diag == "fine":
            a("s_waitcnt lgkmcnt(0)")

        def rd(ks):
            c, ph = ks // 4, ks % 4
            if self.cheat & 2048 and ks % 2:
                return
            b = AF + 8 * (ks % 4)
            for mb in range(2):
                for v in range(2):
                    ad = 206 + mb if (ks == 4 and v == 0) else 251 + mb + 2 * c
                    a(f"ds_read_b64_tr_b16 v[{b + 4 * mb + 2 * v}:{b + 4 * mb + 2 * v + 1}], v{ad} offset:{4096 * ph + 1024 * v}")

        def half(ks):
            return (ks % 4) // 2 if self.eo else ks // 4

        def first(ks):
            return ks in ((0, 2) if self.eo else (0, 4))

        def b3(ks):
            return (ZL if ks < 4 else 240 - 16 * (ks // 6) * 4) + 4 * (ks % 4)

        def rd3(ks):
            c, ph = ks // 4, ks % 4
            if self.cheat & 2048 and ks % 2:
                return
            for v in range(2):
                ad = 204 if (ks == 4 and v == 0) else 202 + c
                a(f"ds_read_b64_tr_b16 v[{b3(ks) + 2 * v}:{b3(ks) + 2 * v + 1}], v{ad} offset:{4096 * ph + 1024 * v}")

        def mf3(ks):
            if self.cheat & 2048 and ks % 2:
                return
            d = AC + 16 + 4 * half(ks)
            self.mfma("f16", d, b3(ks), MM + 4 * ks, None if first(ks) else d)

        self.wait_then(C_D, 4, lambda: rd(0), 4)
        if self.hold:
            a("v_readfirstlane_b32 s66, v198")
        self.stamp(11)
        rd(1); rd(2)
        for ks in range(8):
            b = AF + 8 * (ks % 4)
            if not (self.cheat & 2048 and ks % 2):
                a(f"s_waitcnt lgkmcnt({4 if self.cheat & 2048 else 8})")
            for mb in range(2 if not (self.cheat & 2048 and ks % 2) else 0):
                d = AC + 8 * half(ks) + 4 * mb
                self.mfma("f16", d, b + 4 * mb, MM + 4 * ks, None if first(ks) else d)
            if ks + 3 < 8:
                rd(ks + 3)
            else:
                rd3(2 * (ks - 5))
                rd3(2 * (ks - 5) + 1)
        a("s_waitcnt lgkmcnt(8)")
        rd3(6); rd3(7)
        mf3(0); mf3(1)
        a("s_waitcnt lgkmcnt(4)")
        mf3(2); mf3(3)
        SA = AF

        def combine(h):
            ng = " neg_lo:[0,1] neg_hi:[0,1]" if h else ""
            for i in range(4):
                e, o = AC + 2 * i, AC + 8 + 2 * i
                a(f"v_pk_add_f32 v[{SA + 8 * h + 2 * i}:{SA + 8 * h + 2 * i + 1}], v[{e}:{e + 1}], v[{o}:{o + 1}]{ng}")

        def emit(h, between=None):
            sa = SA + 8 * (h // 2)
            for i in range(4):
                k = 8 * h + 2 * i
                a(f"v_pk_fma_f32 v[{XF + k}:{XF + k + 1}], v[{sa + 2 * i}:{sa + 2 * i + 1}], v[{GG + k}:{GG + k + 1}], v[{XF + k}:{XF + k + 1}]")
            if between:
                between()
            for i in range(4):
                lo, hi = slots(h, i)
                a(f"v_cvt_pk_bf16_f32 v{XP + 4 * h + i}, v{XF + lo}, v{XF + hi}")
            a(f"ds_write_b128 v{XR}, v[{XP + 4 * h}:{XP + 4 * h + 3}] offset:{1024 * h}")
            a(f"ds_read_b128 v[{SG + 4 * h}:{SG + 4 * h + 3}], v199 offset:{1024 * h}")

        def store(h, left):
            a(f"s_waitcnt lgkmcnt({left})")
            if self.cheat & 16:
                return
            a(f"buffer_store_dwordx4 v[{SG + 4 * h}:{SG + 4 * h + 3}], v{XS_[h]}, s[16:19], 0 offen {self.oflag}")

        def dump(m, sfx=''):
            a(f"s_cmp_eq_u64 s[{62 + 2 * m}:{63 + 2 * m}], 0\ns_cbranch_scc1 L_nodump{m}{sfx}")
            for h in (m, m + 2):
                sa, o = SA + 8 * (h // 2), L_ROW + 128 * m
                a(f"s_mov_b64 exec, s[{54 + 2 * h}:{55 + 2 * h}]")
                a(f"ds_write_b128 v6, v[{sa}:{sa + 3}] offset:{o}\nds_write_b128 v6, v[{sa + 4}:{sa + 7}] offset:{o + 16}")
            self.arrive(C_ROW1 if m else C_ROW, True)
            a("s_waitcnt lgkmcnt(0)")
            a(f"L_nodump{m}{sfx}:")

        def tail_a():
            a("s_waitcnt lgkmcnt(0)")
            self.fine(2)
            mf3(6); mf3(7)

        combine(0)
        mf3(4); mf3(5)
        emit(0, tail_a)
        self.fine(3)
        combine(1)
        dump(0)
        emit(2)
        if self.hold:
            a("s_cmp_lt_u32 s66, 4\ns_cbranch_scc1 L_held")
        store(0, 2)
        self.fine(4)
        a(f"v_add_f32 v{SA}, v{AC + 16}, v{AC + 20}\nv_sub_f32 v{SA + 8}, v{AC + 16}, v{AC + 20}")
        dump(1)
        emit(1)
        store(2, 2)
        self.fine(5)
        emit(3)
        store(1, 2)
        store(3, 0)
        self.fine(6)
        if self.diag == "fine":
            a("s_waitcnt vmcnt(0)")
            self.fine(7)
            a("s_waitcnt lgkmcnt(0)")
            for i in range(1, 8):
                a(f"s_sub_u32 s31, s{76 + 2 * i}, s76\ns_add_u32 s31, s31, s68\nv_writelane_b32 v211, s31, {i}")
        self.stamp(12)
        a("s_branch L_fin")
        if self.hold:
            a("L_held:")
            a(f"v_add_f32 v{SA}, v{AC + 16}, v{AC + 20}\nv_sub_f32 v{SA + 8}, v{AC + 16}, v{AC + 20}")
            dump(1, "h")
            emit(1)
            emit(3)
            self.wait(C_YG, 4)
            for h in range(4):
                store(h, 0)
            self.stamp(12)
            a("s_branch L_fin")

    def moe_head(self):
        a = self.a
        a("L_moe:")
        self.role = "moe"
        a("s_load_dwordx2 s[20:21], s[0:1], 64")
        if self.narrow:
            a("s_and_b32 s32, s2, 7\ns_mul_i32 s32, s32, 7\ns_lshr_b32 s31, s2, 6\ns_lshl_b32 s31, s31, 1\ns_add_u32 s46, s31, s32")
            a("s_bfe_u32 s47, s2, 0x30003\ns_cmp_ge_u32 s2, 192\ns_cselect_b32 s75, 1, 0\ns_lshl_b32 s47, s47, s75\ns_and_b32 s47, s47, 7")
        else:
            a("s_and_b32 s32, s2, 7\ns_mul_i32 s32, s32, 28\ns_lshr_b32 s31, s2, 3\ns_add_u32 s31, s31, s32\ns_lshr_b32 s46, s31, 3\ns_lshl_b32 s46, s46, 1\ns_and_b32 s47, s31, 7\ns_mov_b32 s75, 0")
        for d in (16, 20, 24):
            a(f"s_mov_b32 s{d + 2}, {WBYTES}\ns_mov_b32 s{d + 3}, 0x00020000")
        a("v_lshrrev_b32 v4, 4, v2\nv_lshlrev_b32 v5, 5, v4\nv_and_b32 v6, 0x70, v3\nv_xor_b32 v5, v5, v6\nv_mul_u32_u24 v4, 7168, v4")
        a(f"s_mul_i32 s31, s47, {128 * 7168}\ns_lshl_b32 s32, s46, 7\ns_add_u32 s31, s31, s32\nv_add3_u32 v4, v4, v5, s31")
        a(f"s_cmp_eq_u32 s75, 0\ns_mov_b32 s31, {128 * 7168}\ns_cselect_b32 s31, 128, s31\nv_add_u32 v6, s31, v4")
        a("s_mov_b32 vcc_lo, 0xff00ff00\ns_mov_b32 vcc_hi, 0xff00ff00\nv_cndmask_b32 v5, v6, v4, vcc\nv_cndmask_b32 v4, v4, v6, vcc")
        a(f"s_mov_b32 s48, 0\ns_mov_b32 s49, {M_G}")
        a("s_waitcnt lgkmcnt(0)")
        a("s_mov_b32 s16, s38\ns_mov_b32 s17, s39")
        if self.diag == "start":
            a("s_memrealtime s[80:81]\ns_waitcnt lgkmcnt(0)\nv_writelane_b32 v211, s80, 1")
        if self.gtouch:
            self.gran_slot()
            a("s_load_dword s54, s[12:13], s31")
        a(f"s_load_dwordx2 s[28:29], s[12:13], {EPOCH}\ns_load_dwordx2 s[24:25], s[0:1], 72\ns_load_dwordx2 s[44:45], s[0:1], 80")
        a("s_barrier")
        a(f"s_cmp_ge_u32 s2, {0 if self.diag == 'nomoe' else 224}\ns_cselect_b32 s66, 0, 1\ns_cbranch_scc1 L_dma_done")
        a("s_cmp_lg_u32 s30, 0\ns_cbranch_scc1 L_dma_done")
        self.setprio(self.P["dma"])
        self.dma_loop(0, self.win, self.boost[0] if self.boost else 128)

    def dma_loop(self, n, win, rows, check=None):
        a = self.a
        a(f"L_dma{n}:")
        if check is not None:
            a(f"ds_read_b32 v1, v0 offset:{L_CNT + 4 * check}")
        for i in range(self.unroll):
            v = 4 + i // 2
            a(f"s_mov_b32 m0, s49\ns_waitcnt vmcnt({win - 1})")
            a(f"buffer_load_dwordx4 v{v}, s[16:19], s48 offen {self.wflag} lds")
            a(f"s_add_u32 m0, s49, 32768\ns_add_u32 s49, s49, 1024\ns_waitcnt vmcnt({win - 1})")
            a(f"buffer_load_dwordx4 v{v}, s[20:23], s48 offen {self.wflag} lds")
            a(f"s_add_u32 s48, s48, {4 * 7168}")
        if self.unroll == 2:
            a("v_swap_b32 v4, v5")
        if check is None:
            a(f"s_cmp_lt_u32 s48, {rows * 7168}\ns_cbranch_scc1 L_dma{n}")
        else:
            a(f"s_cmp_ge_u32 s48, {rows * 7168}\ns_cbranch_scc1 L_dma_done")
            a(f"s_waitcnt lgkmcnt(0)\nv_readfirstlane_b32 s31, v1\ns_cmp_eq_u32 s31, 0\ns_cbranch_scc1 L_dma{n}")

    def moe(self):
        a = self.a
        if not self.near:
            self.moe_head()
        self.role = "moe"
        if self.boost:
            self.dma_loop(1, self.win, 128, self.boost[1])
            self.dma_loop(2, self.boost[2], 128)
        a("L_dma_done:")
        self.setprio(self.P["wait"])
        WD = 100
        a("s_lshr_b32 s31, s47, 2\ns_andn2_b32 s31, s31, s75\ns_add_u32 s50, s31, s46")
        a("s_lshl_b32 s31, s50, 17\ns_bfe_u32 s32, s2, 0x20003\ns_lshl_b32 s32, s32, 2\ns_add_u32 s51, s32, s30\ns_lshl_b32 s32, s51, 7\ns_add_u32 s31, s31, s32")
        if self.dlds:
            assert self.xc == 0
            a("v_lshrrev_b32 v6, 3, v2\nv_lshlrev_b32 v6, 11, v6\nv_and_b32 v7, 0x70, v3\nv_and_b32 v11, 16, v2\nv_lshlrev_b32 v11, 1, v11\nv_xor_b32 v11, v11, v7")
            a("v_add3_u32 v6, v6, v11, s31\nv_xor_b32 v11, 64, v6")
            a(f"s_lshl_b32 s74, s30, 13\ns_cmp_lt_u32 s30, 2\ns_mov_b32 s31, {L_XT - 16384}\ns_cselect_b32 s31, {EX + 16384}, s31\ns_add_u32 s74, s74, s31")
        else:
            a("v_lshrrev_b32 v6, 3, v2\nv_lshlrev_b32 v6, 14, v6\nv_and_b32 v7, 0x70, v3\nv_add3_u32 v6, v6, v7, s31")
        a("s_mov_b32 s60, 4096\ns_mov_b32 s61, 8192\ns_mov_b32 s62, 12288")
        if self.cheat & 128:
            a("s_lshl_b32 s31, s50, 4\ns_add_u32 s31, s31, s51\ns_lshl_b32 s31, s31, 13\nv_add_u32 v6, s31, v3\ns_mov_b32 s60, 1024\ns_mov_b32 s61, 4096\ns_mov_b32 s62, 5120")
        if self.cheat & 256:
            a("s_lshl_b32 s31, s50, 17\ns_lshl_b32 s32, s30, 15\ns_add_u32 s31, s31, s32\ns_bfe_u32 s32, s2, 0x20003\ns_lshl_b32 s32, s32, 9\ns_add_u32 s31, s31, s32")
            a("v_lshrrev_b32 v6, 5, v2\nv_lshlrev_b32 v6, 14, v6\nv_and_b32 v250, 0x1f0, v3\nv_add3_u32 v6, v6, v250, s31")

        def d_loads(j0, j1):
            for j in range(j0, j1):
                if self.cheat & 32:
                    a(f"buffer_load_dwordx4 v[{WD + 4 * j}:{WD + 4 * j + 3}], v7, s[24:27], 0 offen")
                    continue
                if self.dlds:
                    a(f"s_add_u32 m0, s74, {1024 * j}\ns_mov_b32 s31, {16384 * j}")
                    a(f"buffer_load_dwordx4 v{11 if j % 2 else 6}, s[24:27], s31 offen {self.wflag} lds")
                    continue
                so = "0" if j < 2 else f"s{59 + j // 2}"
                a(f"buffer_load_dwordx4 v[{WD + 4 * j}:{WD + 4 * j + 3}], v6, s[24:27], {so} offen offset:{2048 * (j % 2)} {self.wflag}")

        a("v_bfe_u32 v8, v2, 2, 3\nv_lshlrev_b32 v9, 5, v8\ns_lshl_b32 s31, s30, 6\nv_xor_b32 v9, s31, v9")
        a(f"v_bfe_u32 v8, v2, 2, 2\nv_lshl_add_u32 v9, v8, 8, v9\nv_lshrrev_b32 v8, 4, v2\nv_lshl_add_u32 v9, v8, 11, v9\nv_and_b32 v10, 3, v2\nv_lshl_add_u32 v9, v10, 3, v9")
        a(f"v_add_u32 v9, {M_G}, v9\nv_xor_b32 v10, 32, v9\nv_lshlrev_b32 v8, 4, v8")
        a("s_lshr_b32 s31, s30, 1\ns_and_b32 s32, s31, s75\ns_lshl_b32 s32, s32, 8\nv_add_u32 v8, s32, v8\ns_cmp_eq_u32 s75, 0\ns_cselect_b32 s32, 12, 9\ns_lshl_b32 s31, s31, s32")
        a("s_lshl_b32 s32, s46, 3\ns_add_u32 s32, s32, s47\ns_lshl_b32 s32, s32, 9\ns_add_u32 s31, s31, s32")
        a(f"s_and_b32 s32, s30, 1\ns_lshl_b32 s32, s32, 8\ns_add_u32 s31, s31, s32\ns_add_u32 s31, s31, {HP}\nv_lshl_add_u32 v13, v2, 3, s31")
        a("s_waitcnt lgkmcnt(0)")
        self.tag_from_epoch()
        a(f"s_and_b32 s31, s28, {FMASK:#x}\nv_mov_b32 v14, s31\ns_mov_b32 s49, {~FMASK & 0xFFFFFFFF:#x}")
        DF = self.dfirst
        if isinstance(self.tlb, tuple):
            shift, parts = self.tlb
            a("s_cmp_lg_u32 s30, 2\ns_cbranch_scc1 L_no_tlb")
            a(f"s_mov_b32 s52, s44\ns_mov_b32 s53, s45\ns_mov_b32 s54, 0x400000\ns_mov_b32 s55, 0x00020000\nv_lshlrev_b32 v250, {shift}, v2")
            if "o" in parts:
                a("buffer_load_dword v252, v250, s[52:55], 0 offen")
            if "O" in parts:
                m = (2 << (1 << (22 - shift))) - 1
                a(f"v_min_u32 v250, 0x3ffffc, v250\ns_mov_b32 exec_lo, {m & 0xFFFFFFFF:#x}\ns_mov_b32 exec_hi, {m >> 32:#x}\nbuffer_load_dword v252, v250, s[52:55], 0 offen")
            if "Z" in parts:
                a(f"s_mov_b64 exec, 0x3f\nv_lshlrev_b32 v250, 20, v2\nv_add_u32 v250, {YP + 0x38000}, v250\nv_min_u32 v250, {ZB + (4 * 32 + 17) * ZTS}, v250")
                a("buffer_load_dword v251, v250, s[12:15], 0 offen")
            if "D" in parts:
                a("s_mov_b64 exec, 3\nv_mul_u32_u24 v250, 0x1f800, v2\nv_add_u32 v250, v250, v6\nbuffer_load_dword v253, v250, s[24:27], 0 offen")
            if "G" in parts:
                a(f"s_mov_b64 exec, 1\ns_mov_b32 s31, {127 * 7168}\nbuffer_load_dword v249, v4, s[16:19], s31 offen\nbuffer_load_dword v248, v4, s[20:23], s31 offen")
            if "z" in parts:
                a(f"s_mov_b64 exec, 3\nv_lshlrev_b32 v250, 21, v2\ns_mov_b32 s31, {ZB + 16384 + 31 * ZTS}\nbuffer_load_dword v251, v250, s[12:15], s31 offen")
            if "d" in parts:
                a("s_mov_b64 exec, 1\nbuffer_load_dword v253, v6, s[24:27], 0 offen")
            a("s_mov_b64 exec, -1\nL_no_tlb:")
        elif self.tlb:
            a("s_cmp_lg_u32 s30, 2\ns_cbranch_scc1 L_no_tlb")
            if self.tlb == "i":
                a("s_cmp_lg_u32 s66, 0\ns_cbranch_scc1 L_no_tlb")
            a("s_mov_b32 s52, s44\ns_mov_b32 s53, s45\ns_mov_b32 s54, 0x400000\ns_mov_b32 s55, 0x00020000\nv_lshlrev_b32 v250, 20, v2\ns_mov_b64 exec, 0xff")
            if self.tlb == 2:
                a("s_bfe_u32 s31, s2, 0x40003\ns_lshl_b32 s31, s31, 16\nv_add_u32 v250, s31, v250")
            a("buffer_load_dword v251, v250, s[12:15], 0 offen\nbuffer_load_dword v252, v250, s[52:55], 0 offen\nbuffer_load_dword v253, v250, s[24:27], 0 offen")
            a("s_mov_b64 exec, -1\nL_no_tlb:")
        a("s_cmp_lg_u32 s66, 0\ns_cbranch_scc1 L_tagged")
        self.arrive(C_E)
        if self.walk:
            a("s_cmp_lg_u32 s30, 1\ns_cbranch_scc1 L_no_walk")
            a("s_mov_b32 s52, s44\ns_mov_b32 s53, s45\ns_mov_b32 s54, 0x400000\ns_mov_b32 s55, 0x00020000")
            a("s_bfe_u32 s31, s2, 0x20003\ns_lshl_b32 s31, s31, 16\nv_lshl_add_u32 v250, v2, 18, s31\ns_mov_b32 exec_hi, 0")
            for ch, srd in (("g", 16), ("g", 20), ("d", 24), ("o", 52), ("w", 12)):
                if ch in self.walk:
                    a(f"buffer_load_dword v251, v250, s[{srd}:{srd + 3}], 0 offen")
            a("s_mov_b32 exec_hi, -1\nL_no_walk:")
        if self.dpf:
            gate, win, rows = self.dpf
            a("s_cmp_lg_u32 s30, 0\ns_cbranch_scc1 L_tagged")
            for c in (C_DMA, C_HP, C_H, C_Y) + ((C_YG,) if self.psig else ()):
                self.arrive(c)
            self.wait(*gate)
            a("s_and_b32 s32, s2, 7\ns_mul_i32 s32, s32, 28\ns_bfe_u32 s31, s2, 0x20003\ns_mul_i32 s31, s31, 7\ns_add_u32 s52, s31, s32\ns_add_u32 s53, s52, 7")
            a("v_lshrrev_b32 v250, 2, v2\nv_lshlrev_b32 v250, 11, v250\nv_and_b32 v251, 3, v2\nv_lshl_add_u32 v250, v251, 7, v250")
            a("L_dpf:\ns_lshr_b32 s31, s52, 2\ns_lshl_b32 s31, s31, 17\ns_and_b32 s32, s52, 3\ns_lshl_b32 s32, s32, 9\ns_add_u32 s31, s31, s32")
            for r in rows:
                a(f"s_add_u32 s32, s31, {2048 * r}\ns_waitcnt vmcnt({win - 1})\nbuffer_load_dword v251, v250, s[24:27], s32 offen")
            a("s_add_u32 s52, s52, 1\ns_cmp_lt_u32 s52, s53\ns_cbranch_scc1 L_dpf")
        a("L_tagged:")
        XA, BF, GA = 20, 36, 132
        order = [(ks, t) for ks in range(4) for t in range(4)]

        def b_reads(n0, n1):
            for n in range(n0, n1):
                ks, t = order[n]
                if n - n0 >= 7:
                    a("s_waitcnt lgkmcnt(12)")
                for v in range(2):
                    a(f"ds_read_b64_tr_b16 v[{BF + 4 * n + 2 * v}:{BF + 4 * n + 2 * v + 1}], v{9 + t % 2} offset:{32768 * (t // 2) + 8192 * ks + 1024 * v}")

        def last_k(sfx, loader=True):
            if loader:
                a(f"s_cmp_lg_u32 s30, 0\ns_cbranch_scc1 L_k3_wait{sfx}")
                a(f"s_waitcnt vmcnt({DF if self.dall else 0})")
                self.arrive(C_DMA)
                self.stamp(1)
                a(f"L_k3_wait{sfx}:")
            if sfx:
                a("s_waitcnt lgkmcnt(4)")
            self.wait_then(C_DMA, 3, lambda: b_reads(12, 16), 8)

        a("s_cmp_eq_u32 s30, 3\ns_cbranch_scc1 L_h1")
        a("s_cmp_eq_u32 s66, 0\ns_cbranch_scc1 L_key")
        a("s_cmp_lg_u32 s30, 0\ns_cbranch_scc1 L_follower")
        self.setprio(self.P["moe"])
        a("s_waitcnt vmcnt(16)")
        self.arrive(C_DMA)
        b_reads(0, 12)
        a("s_waitcnt vmcnt(8)")
        self.arrive(C_DMA)
        self.stamp(10)
        a("s_branch L_d_first" if self.dall else "s_branch L_key")
        a("L_follower:")
        if self.touch in ("s", "y"):
            a("v_readfirstlane_b32 s52, v13\ns_and_b32 s32, s30, 1\ns_lshl_b32 s32, s32, 8\ns_sub_u32 s52, s52, s32")
            a(f"s_lshl_b32 s31, s50, 12\ns_sub_u32 s31, s31, s32\ns_lshl_b32 s32, s51, 8\ns_add_u32 s31, s31, s32\ns_add_u32 s53, s31, {YP}")
            for k in range(8):
                a("s_load_dword s54, s[12:13], s53")
                if self.touch == "s":
                    a("s_load_dword s54, s[12:13], s52")
                if k < 7:
                    a("s_add_u32 s52, s52, 64\ns_add_u32 s53, s53, 64")
                if k == 3:
                    a("s_waitcnt lgkmcnt(0)")
        elif self.touch:
            a(f"s_and_b32 s32, s30, 1\ns_lshl_b32 s32, s32, 8\nv_subrev_u32 v250, s32, v13\nbuffer_load_dword v251, v250, s[12:15], 0 offen")
            a(f"s_lshl_b32 s31, s50, 12\ns_sub_u32 s31, s31, s32\ns_lshl_b32 s32, s51, 8\ns_add_u32 s31, s31, s32\ns_add_u32 s31, s31, {YP}\nv_lshl_add_u32 v250, v2, 3, s31")
            a("buffer_load_dword v252, v250, s[12:15], 0 offen")
        self.wait(C_DMA, 1, self.nap)
        self.setprio(self.P["moe"])
        b_reads(0, 12)
        a(f"s_add_u32 s67, s30, {self.dlag}")
        if self.unit != 1:
            a(f"s_mul_i32 s67, s67, {self.unit}")
        self.wait(C_DMA, "s67")
        a("L_d_first:")
        self.release(self.drel)
        d_loads(0, DF)
        if self.pre3:
            assert self.dall
            last_k("p")
        if self.droll:
            who, left = self.droll
            if who == "f":
                a("s_cmp_eq_u32 s30, 0\ns_cbranch_scc1 L_key")
            for j in range(DF, 8):
                a(f"s_waitcnt vmcnt({left})")
                d_loads(j, j + 1)
        a("L_key:")

        def a_reads():
            for ks in range(4):
                a(f"ds_read_b128 v[{XA + 4 * ks}:{XA + 4 * ks + 3}], v8 offset:{M_XS + 64 * ks}")

        def key_and_a():
            a(f"ds_read_b64 v[18:19], v0 offset:{L_KEY}")
            a_reads()

        a("s_waitcnt lgkmcnt(0)")
        self.wait_then(C_S2, 1, key_and_a, 5)
        a("s_cmp_eq_u32 s66, 0\ns_cbranch_scc1 L_idle")
        a("s_branch L_xs_ok")
        a("L_h1:")
        a(f"s_mov_b32 s63, {GRAN}\ns_lshl_b32 s31, s47, 8\nv_lshlrev_b32 v15, 3, v2\nv_add_u32 v16, s31, v15")
        a("s_cmp_lg_u32 s66, 0\ns_cbranch_scc1 L_gate")
        self.wait(C_ST3, 4, self.nap)
        a("s_branch L_gate_open")
        a("L_gate:")
        if self.tgate:
            a(f"L_tg:\ns_memrealtime s[52:53]\ns_waitcnt lgkmcnt(0)\ns_sub_u32 s31, s52, s90\ns_cmp_lt_u32 s31, {self.tgate}\ns_cbranch_scc1 L_tg")
        else:
            self.wait(*self.gate, self.nap)
        a("L_gate_open:")
        self.setprio(self.P["moe"])
        self.stamp(7)
        self.gran_issue(20)
        self.arrive(C_S0)
        a("s_waitcnt vmcnt(0)")
        self.stamp(8)
        self.gran_resolve("mi", 20, 18)
        a("s_andn2_b32 s31, 0x7ff, s33\ns_lshl_b32 s48, s31, 11")
        a("buffer_load_dwordx2 v[150:151], v16, s[8:11], s48 offen")
        self.arrive(C_S1)
        self.stamp(9)
        self.gran_stats(20, 18)
        a(f"v_mov_b32 v19, s33\nv_mov_b32 v18, s34\nds_write_b64 v0, v[18:19] offset:{L_KEY}")
        a("s_lshl_b32 s52, s34, 16\ns_and_b32 s32, s34, 0xffff0000\nv_rcp_f32 v148, s32")
        if self.h1pre:
            a("s_cmp_eq_u32 s66, 0\ns_cbranch_scc1 L_h1_idle")
            self.wait(C_DMA, 1)
            if self.h1pre == 1:
                d_loads(0, DF)
            b_reads(0, 12)
            if self.pre3:
                last_k("h", False)
            a(f"s_waitcnt vmcnt({DF if self.h1pre == 1 else 0}) lgkmcnt(0)\ns_branch L_h1_x\nL_h1_idle:")
        a("s_waitcnt vmcnt(0)")
        a("L_h1_x:")
        un = "v_lshlrev_b32 v20, 16, v150\nv_and_b32 v21, 0xffff0000, v150\nv_lshlrev_b32 v22, 16, v151\nv_and_b32 v23, 0xffff0000, v151"
        pk = "v_cvt_pk_bf16_f32 v150, v20, v21\nv_cvt_pk_bf16_f32 v151, v22, v23"
        a(un)
        for p in (20, 22):
            a(f"v_pk_add_f32 v[{p}:{p + 1}], v[{p}:{p + 1}], s[52:53] op_sel_hi:[1,0] neg_lo:[0,1] neg_hi:[0,1]")
        a(pk)
        a(un)
        for p in (20, 22):
            a(f"v_pk_mul_f32 v[{p}:{p + 1}], v[{p}:{p + 1}], v[148:149] op_sel_hi:[1,0]")
        a(pk)
        a(f"ds_write_b64 v15, v[150:151] offset:{M_XS}")
        self.arrive(C_S2)
        a("s_cmp_eq_u32 s66, 0\ns_cbranch_scc1 L_idle")
        if not self.h1pre:
            self.wait(C_DMA, 1)
            b_reads(0, 12)
            if self.dall:
                d_loads(0, DF)
            if self.pre3:
                last_k("h", False)
            a("s_waitcnt lgkmcnt(8)")
        a_reads()
        if self.h1pre == 2:
            d_loads(0, DF)
        a("L_xs_ok:")
        self.stamp(2)
        for n, (ks, t) in enumerate(order[:12]):
            if t == 0:
                a(f"s_waitcnt lgkmcnt({3 - ks})")
            self.mfma("bf16", GA + 4 * t, XA + 4 * ks, BF + 4 * n, None if ks == 0 else GA + 4 * t)
        if not self.pre3:
            last_k("")
        a("v_readfirstlane_b32 s33, v19\nv_readfirstlane_b32 s34, v18")
        for n in range(12, 16):
            if not self.pre3 or n == 12:
                a(f"s_waitcnt lgkmcnt({0 if self.pre3 else 2 * (15 - n)})")
            self.mfma("bf16", GA + 4 * (n % 4), XA + 12, BF + 4 * n, GA + 4 * (n % 4))
        a("s_mov_b32 vcc_lo, 0xffff0000\ns_mov_b32 vcc_hi, 0")
        a(f"s_lshl_b32 s31, s50, 12\ns_lshl_b32 s32, s30, 7\ns_add_u32 s31, s31, s32\ns_add_u32 s31, s31, {HP}")
        a("v_lshrrev_b32 v15, 3, v2\nv_lshlrev_b32 v15, 9, v15\nv_add3_u32 v15, v15, v7, s31")
        a(f"v_cndmask_b32 v26, v{GA}, v{GA + 4}, vcc\nv_cndmask_b32 v27, v{GA + 8}, v{GA + 12}, vcc")
        a("v_and_or_b32 v26, v26, s49, v14\nv_and_or_b32 v27, v27, s49, v14")
        a("s_mov_b32 exec_hi, 0")
        a(f"buffer_store_dwordx2 v[26:27], v13, s[12:15], 0 offen {'' if self.local else 'sc1'}")
        a("s_mov_b64 exec, -1")
        if not self.dall:
            a("s_sub_u32 s31, s30, 1\ns_cmp_lt_u32 s31, 2\ns_cbranch_scc1 L_d_rest")
            d_loads(0, DF)
            a("L_d_rest:")
        if self.droll:
            a("s_sub_u32 s31, s30, 1\ns_cmp_lt_u32 s31, 2" if self.droll[0] == "f" else "s_cmp_lt_u32 s30, 3")
            a("s_cbranch_scc1 L_d_done")
        d_loads(DF, 8)
        a("L_d_done:")
        self.arrive(C_HP)
        self.hint_store("hp")
        self.setprio(self.P["moe2"])
        self.stamp(3)
        pair = {}
        free = [98]
        YA = 36
        if not self.dlds:
            a("s_mov_b32 s52, 0x05040100\ns_mov_b32 s53, 0x07060302")
            for i in range(8):
                a(f"v_mov_b32 v{YA + i}, 0")
        a("v_and_b32 v16, 7, v2\nv_lshlrev_b32 v16, 2, v16\nv_lshrrev_b32 v17, 5, v2\nv_lshl_add_u32 v16, v17, 1, v16\ns_lshl_b32 s31, s30, 5\nv_add_u32 v16, s31, v16")
        if self.dlds:
            a("v_and_b32 v17, 48, v2\nv_bfe_u32 v9, v2, 3, 2\nv_lshlrev_b32 v9, 5, v9\nv_bfe_u32 v10, v2, 2, 2\nv_lshl_add_u32 v9, v10, 7, v9")
            a("v_lshl_add_u32 v9, v17, 6, v9\nv_and_b32 v10, 3, v2\nv_lshlrev_b32 v10, 3, v10\nv_add3_u32 v9, v9, v10, s74")
            a("v_xor_b32 v10, 32, v9\nv_xor_b32 v12, 96, v9\nv_xor_b32 v8, 64, v9")
        else:
            a("v_lshrrev_b32 v17, 3, v2\nv_lshlrev_b32 v17, 4, v17")
        a(f"s_lshl_b32 s31, s50, 12\ns_lshl_b32 s32, s51, 8\ns_add_u32 s31, s31, s32\ns_add_u32 s31, s31, {YP}")
        if self.dlds:
            a("v_lshl_add_u32 v18, v2, 2, s31")
        else:
            a("v_lshlrev_b32 v18, 1, v7\nv_lshrrev_b32 v19, 4, v2\nv_lshl_add_u32 v18, v19, 3, v18\nv_add_u32 v18, s31, v18")
        if self.pack:
            if self.dall:
                a(f"s_waitcnt vmcnt({8 - DF})")
            else:
                a(f"s_waitcnt vmcnt(8)\ns_sub_u32 s31, s30, 1\ns_cmp_ge_u32 s31, 2\ns_cbranch_scc1 L_acked\ns_waitcnt vmcnt({8 - DF})\nL_acked:")
            a("buffer_load_dwordx4 v[20:23], v15, s[12:15], 0 offen sc1")
            self.arrive(C_YG)
        for j in range(0, 8, 2):
            if self.dlds and j % 4 == 0:
                continue
            if j == self.hpearly:
                a("buffer_load_dwordx4 v[20:23], v15, s[12:15], 0 offen sc1")
            a(f"s_waitcnt vmcnt({6 - j + (1 if self.dall and j + 2 <= DF else 0) + (1 if j >= self.hpearly or self.pack else 0)})")
            if self.dlds:
                if j == 6 and not self.pack:
                    a("buffer_load_dwordx4 v[20:23], v15, s[12:15], 0 offen sc1")
                    if self.psig:
                        self.arrive(C_YG)
                a("s_waitcnt lgkmcnt(4)")
                for b in range(4):
                    for v in range(2):
                        r = WD + 16 * (j // 4) + 4 * b + 2 * v
                        a(f"ds_read_b64_tr_b16 v[{r}:{r + 1}], v{(9, 10, 8, 12)[b]} offset:{4096 * (j // 4) + 512 * v}")
                continue
            for d in range(4):
                r0, r1 = WD + 4 * j + d, WD + 4 * j + 4 + d
                t = free.pop()
                a(f"v_perm_b32 v{t}, v{r1}, v{r0}, s52\nv_perm_b32 v{r1}, v{r1}, v{r0}, s53")
                pair[(j // 2, 2 * d)] = t
                pair[(j // 2, 2 * d + 1)] = r1
                free.append(r0)
        self.hint_store("d")
        self.stamp(4)
        a("s_mov_b32 s54, 0")

        def fallback_store():
            a("s_mov_b32 exec_hi, 0\nbuffer_store_dwordx2 v[26:27], v13, s[12:15], 0 offen sc1\ns_mov_b32 exec_hi, -1")

        self.sleep(self.hs[0])
        if self.hpearly < 8 or self.pack or self.dlds:
            a("s_branch L_hp_wait")
        elif self.psig:
            a("buffer_load_dwordx4 v[20:23], v15, s[12:15], 0 offen sc1")
            self.arrive(C_YG)
            a("s_branch L_hp_wait")
        a("L_hp_poll:")
        a("buffer_load_dwordx4 v[20:23], v15, s[12:15], 0 offen sc1")
        a("L_hp_wait:")
        a("s_waitcnt vmcnt(0)")
        for i in range(4):
            a(f"v_xor_b32 v{20 + i}, v14, v{20 + i}")
        a(f"v_or3_b32 v24, v20, v21, v22\nv_or_b32 v24, v24, v23\nv_and_b32 v24, {FMASK:#x}, v24\nv_cmp_ne_u32 vcc, 0, v24")
        a("v_permlane16_swap_b32 v20, v21\nv_permlane16_swap_b32 v22, v23")
        a("s_cbranch_vccz L_hp_got")
        self.spin_guard("L_hp_got", self.hs[1])
        if self.local:
            a(f"s_add_u32 s54, s54, 1\ns_cmp_lg_u32 s54, {self.local}\ns_cbranch_scc1 L_hp_poll")
            fallback_store()
        a("s_branch L_hp_poll")
        a("L_hp_got:")
        self.stamp(5)
        a("v_add_f32 v20, v20, v21\nv_add_f32 v22, v22, v23\nv_permlane32_swap_b32 v20, v22\nv_add_f32 v20, v20, v22")
        a("v_add_f32_dpp v21, v20, v20 row_ror:8 row_mask:0xf bank_mask:0xf\nv_add_f32_dpp v20, v20, v20 row_ror:8 row_mask:0xf bank_mask:0xf")
        a("v_permlane16_swap_b32 v20, v21\nv_cvt_pk_bf16_f32 v20, v20, v21\nv_and_b32 v21, 0xffff0000, v20\nv_lshlrev_b32 v20, 16, v20")
        a("v_mul_f32 v22, 0xbfb8aa3b, v20\nv_exp_f32 v22, v22\nv_add_f32 v22, 1.0, v22\nv_rcp_f32 v22, v22\nv_mul_f32 v20, v20, v22")
        a("v_cvt_pk_bf16_f32 v20, v20, v20\nv_lshlrev_b32 v20, 16, v20\nv_mul_f32 v20, v20, v21\nv_cvt_pk_bf16_f32 v20, v20, v20")
        a(f"ds_write_b16 v16, v20 offset:{M_HS}")
        self.arrive(C_H)
        if self.dlds:
            self.wait_then(C_H, 4, lambda: a(f"ds_read_b128 v[28:31], v17 offset:{M_HS}\nds_read_b128 v[32:35], v17 offset:{M_HS + 64}"), 2)
            for ks in range(2):
                a(f"s_waitcnt lgkmcnt({1 - ks})")
                for b in range(4):
                    self.mfma("bf16", YA + 4 * b, 28 + 4 * ks, WD + 16 * ks + 4 * b, YA + 4 * b if ks else None)
            a("s_mov_b32 vcc_lo, 0xffff0000\ns_mov_b32 vcc_hi, 0xffff0000\ns_mov_b32 s52, 0\ns_mov_b32 s53, -1")
            a(f"v_cndmask_b32 v{YA}, v{YA}, v{YA + 4}, vcc\nv_cndmask_b32 v{YA + 8}, v{YA + 8}, v{YA + 12}, vcc\nv_cndmask_b32 v{YA}, v{YA}, v{YA + 8}, s[52:53]")
            a(f"v_and_or_b32 v{YA}, v{YA}, s49, v14\nbuffer_store_dword v{YA}, v18, s[12:15], 0 offen sc1")
        else:
            self.wait_then(C_H, 4, lambda: a(f"ds_read_b128 v[28:31], v17 offset:{M_HS}"), 1)
            a("s_waitcnt lgkmcnt(0)")
            for p in range(4):
                for c in range(8):
                    a(f"v_dot2c_f32_bf16 v{YA + c}, v{28 + p}, v{pair[(p, c)]}")
            for c in range(4):
                a(f"v_permlane32_swap_b32 v{YA + c}, v{YA + c + 4}")
            for c in range(4):
                a(f"v_add_f32 v{YA + c}, v{YA + c}, v{YA + c + 4}")
            for c in range(2):
                a(f"v_permlane16_swap_b32 v{YA + c}, v{YA + c + 2}")
            for c in range(2):
                a(f"v_add_f32 v{YA + c}, v{YA + c}, v{YA + c + 2}")
            for c in range(2):
                a(f"v_add_f32_dpp v{YA + c}, v{YA + c}, v{YA + c} row_ror:8 row_mask:0xf bank_mask:0xf")
            a(f"v_and_or_b32 v{YA}, v{YA}, s49, v14\nv_and_or_b32 v{YA + 1}, v{YA + 1}, s49, v14")
            a("s_mov_b32 exec_lo, 0x00ff00ff\ns_mov_b32 exec_hi, 0x00ff00ff")
            a(f"buffer_store_dwordx2 v[{YA}:{YA + 1}], v18, s[12:15], 0 offen sc1")
        self.arrive(C_Y, not self.dlds)
        if self.local:
            fallback_store()
        self.stamp(6)
        a("s_branch L_owner")
        a("L_idle:")
        if self.dpf:
            a("s_cmp_eq_u32 s30, 0\ns_cbranch_scc1 L_idle_done")
        for c in (C_DMA, C_HP, C_H, C_Y) + ((C_YG,) if self.psig else ()):
            if c == C_HP:
                self.sleep(self.idelay)
                if self.hint is not None and self.diag != "nomoe":
                    a(f"s_and_b32 s52, s2, 31\ns_lshl_b32 s52, s52, 7\ns_add_u32 s52, s52, {HINT}")
                    a("L_hint:\ns_load_dwordx2 s[54:55], s[12:13], s52 glc\ns_waitcnt lgkmcnt(0)\ns_cmp_eq_u64 s[54:55], s[28:29]\ns_cbranch_scc1 L_hint_ok")
                    self.spin_guard("L_hint_ok", 4)
                    a("s_branch L_hint\nL_hint_ok:")
            self.arrive(c)
        a("L_idle_done:")
        a("s_waitcnt lgkmcnt(0)\nv_readfirstlane_b32 s33, v19\nv_readfirstlane_b32 s34, v18")
        self.sleep(self.isleep)
        a("L_owner:")
        self.setprio(self.P["own"])
        if self.diag or self.cheat & 8:
            a("s_branch L_fin")
        YL, YC = 20, 28
        self.tile_decode()
        a("s_lshl_b32 s53, s53, 3\ns_add_u32 s53, s53, s46\ns_andn2_b32 s51, 0x7ff, s33\ns_mov_b32 s54, s51\ns_mov_b32 s55, 0\ns_mov_b32 s56, 0")
        a("s_mov_b32 s16, s44\ns_mov_b32 s17, s45\ns_mov_b32 s18, 0x400000\nv_and_b32 v8, 31, v2\nv_lshlrev_b32 v15, 2, v8\nv_lshlrev_b32 v8, 1, v8\nv_mov_b32 v16, 0")
        a("L_seg:")
        if self.eo:
            a("s_xor_b32 s31, s54, s53\ns_and_b32 s31, s31, 0x87\ns_cbranch_scc1 L_seg_next")
        else:
            a("s_xor_b32 s31, s54, s53\ns_and_b32 s31, s31, 0x487\ns_cbranch_scc0 L_seg_own\ns_cmpk_lg_u32 s31, 0x480\ns_cbranch_scc1 L_seg_next")
            a("L_seg_own:")
        a("s_lshl_b32 s31, s51, 11\ns_lshl_b32 s32, s47, 6\ns_add_u32 s63, s31, s32")
        a("buffer_load_ushort v9, v8, s[8:11], s63 offen")
        a(f"v_lshrrev_b32 v4, 3, v2\ns_lshl_b32 s31, s30, 4\nv_add_u32 v4, s31, v4\nv_lshlrev_b32 v4, 12, v4")
        a(f"s_lshl_b32 s31, s47, 7\ns_add_u32 s31, s31, {YP}\nv_add3_u32 v4, v4, v7, s31\ns_mov_b32 s62, 32768")
        for i in range(4):
            a(f"v_mov_b32 v{YL + 4 + i}, v14")
        a("v_lshrrev_b32 v5, 4, v2\nv_lshl_add_u32 v6, v5, 2, v7\ns_lshl_b32 s31, s30, 7\ns_add_u32 s31, s31, s55\nv_add_u32 v6, s31, v6")
        a("s_ashr_i32 s31, s33, 31\ns_orn2_b32 s31, 0x80000000, s31\ns_xor_b32 s31, s31, s33\ns_and_b32 s31, s31, 0xfffff800")
        a("v_cvt_pk_bf16_f32 v11, s31, s31\nv_lshlrev_b32 v11, 16, v11\nv_mul_f32 v11, 0xbfb8aa3b, v11\nv_exp_f32 v11, v11\ns_and_b32 s32, s34, 0xffff0000\nv_add_f32 v11, 1.0, v11\nv_rcp_f32 v11, v11")
        a("v_rcp_f32 v12, s32\nv_cvt_pk_bf16_f32 v11, v11, v11\nv_lshlrev_b32 v11, 16, v11\ns_lshl_b32 s31, s34, 16")
        if self.ywait:
            a("s_waitcnt vmcnt(0)")
        a("v_lshl_add_u32 v13, v8, 1, s55\ns_mov_b64 vcc, -1\ns_mov_b32 s56, 1")
        if self.ygate and not self.cheat & 4:
            self.wait(*self.ygate)
        self.sleep(self.ys[0])
        self.stamp(11)
        if self.stamps:
            a(f"s_mov_b32 s35, {SPIN}")
        a("L_y_poll:")
        self.stamp(12)
        a("s_mov_b64 exec, vcc")
        a(f"buffer_load_dwordx4 v[{YL}:{YL + 3}], v4, s[12:15], 0 offen sc1")
        a("s_cmp_eq_u32 s30, 3\ns_cbranch_scc1 L_y_one")
        a(f"buffer_load_dwordx4 v[{YL + 4}:{YL + 7}], v4, s[12:15], s62 offen sc1")
        a("L_y_one:\ns_mov_b64 exec, -1\ns_waitcnt vmcnt(0)")
        for i in range(8):
            a(f"v_xor_b32 v{YC + i}, v14, v{YL + i}")
        a(f"v_or3_b32 v1, v{YC}, v{YC + 1}, v{YC + 2}\nv_or3_b32 v1, v1, v{YC + 3}, v{YC + 4}\nv_or3_b32 v1, v1, v{YC + 5}, v{YC + 6}\nv_or_b32 v1, v1, v{YC + 7}")
        a(f"v_and_b32 v1, {FMASK:#x}, v1\nv_cmp_ne_u32 vcc, 0, v1")
        for p in (0, 2):
            a(f"v_pk_add_f32 v[{YC + p}:{YC + p + 1}], v[{YC + p}:{YC + p + 1}], v[{YC + 4 + p}:{YC + 5 + p}]")
        a("s_cbranch_vccz L_y_got")
        self.spin_guard("L_y_got", self.ys[1])
        a("s_branch L_y_poll")
        a("L_y_got:")
        if self.hold:
            self.arrive(C_YG)
        a(f"v_permlane16_swap_b32 v{YC}, v{YC + 1}\nv_permlane16_swap_b32 v{YC + 2}, v{YC + 3}")
        a(f"v_add_f32 v{YC}, v{YC}, v{YC + 1}\nv_add_f32 v{YC + 2}, v{YC + 2}, v{YC + 3}")
        a(f"v_permlane32_swap_b32 v{YC}, v{YC + 2}\nv_add_f32 v{YC}, v{YC}, v{YC + 2}")
        a(f"v_add_f32_dpp v{YC}, v{YC}, v{YC} row_ror:8 row_mask:0xf bank_mask:0xf")
        a(f"ds_write_b32 v6, v{YC} offset:{L_YS}")
        a(f"s_mov_b64 exec, 1\nds_add_u32 v16, v255 offset:{L_CNT + 4 * C_ROW}\ns_mov_b64 exec, -1")
        self.stamp(13)
        a("s_cmp_lg_u32 s30, 0\ns_cbranch_scc1 L_seg_next")
        a(f"s_cmp_eq_u32 s47, 0\ns_cselect_b32 s32, {EPOCH}, {OOB}\nv_mov_b32 v5, {OOB}\nv_writelane_b32 v5, s32, 0\nv_mov_b32 v18, s28\nv_mov_b32 v19, s29")
        a("s_lshl_b32 s31, s34, 16\nv_lshlrev_b32 v9, 16, v9\nv_subrev_f32 v10, s31, v9\nv_cvt_pk_bf16_f32 v10, v10, v10\nv_lshlrev_b32 v10, 16, v10\nv_mul_f32 v10, v10, v12")
        a("v_cvt_pk_bf16_f32 v10, v10, v10\nv_lshlrev_b32 v10, 16, v10")

        def row_reads():
            for j in range(4):
                a(f"ds_read_b32 v{YL + j}, v13 offset:{L_YS + 128 * j}")
            a(f"ds_read_b32 v{YL + 4}, v15 offset:{L_ROW}")

        self.wait_then(C_ROW, 4 if self.cheat & 4 else 5, row_reads, 5, "v16")
        a("s_waitcnt lgkmcnt(0)")
        y = YL
        a(f"v_add_f32 v{y}, v{y}, v{y + 1}\nv_add_f32 v{y + 2}, v{y + 2}, v{y + 3}\nv_add_f32 v{y}, v{y}, v{y + 2}")
        a(f"v_cvt_pk_bf16_f32 v{y}, v{y}, v{y}\nv_lshlrev_b32 v{y}, 16, v{y}\nv_mul_f32 v{y}, v{y}, v11")
        a(f"v_cvt_pk_bf16_f32 v{y}, v{y}, v{y}\nv_lshlrev_b32 v{y}, 16, v{y}\nv_add_f32 v{y}, v{y}, v10")
        a(f"v_cvt_pk_bf16_f32 v{y}, v{y}, v{y}\nv_lshlrev_b32 v{y}, 16, v{y}\nv_mul_f32 v1, 0xbfb8aa3b, v{y}")
        a(f"v_mul_f32 v{y}, v1, v{YL + 4}\nv_exp_f32 v1, v1\nv_add_f32 v1, 1.0, v1\nv_rcp_f32 v1, v1")
        a(f"s_mov_b32 exec_hi, 0\nv_fma_f32 v{y}, v{y}, v1, v9\nv_cvt_pk_bf16_f32 v{y}, v{y}, v{y}")
        a(f"buffer_store_short v{y}, v8, s[16:19], s63 offen {self.oflag}")
        a("buffer_store_dwordx2 v[18:19], v5, s[12:15], 0 offen sc1")
        a("s_mov_b64 exec, -1")
        self.stamp(14)
        a("L_seg_next:")
        a("s_cmp_lg_u32 s55, 0\ns_cbranch_scc1 L_seg_end")
        a(f"s_mov_b32 s55, 512\ns_sub_u32 s54, 0, s51\ns_sub_u32 s47, 31, s47\nv_mov_b32 v16, {4 * (C_ROW1 - C_ROW)}")
        a("v_and_b32 v15, 24, v2\nv_xor_b32 v15, 24, v15\nv_sub_u32 v1, 0, v2\nv_and_b32 v1, 7, v1\nv_add_u32 v15, v15, v1\nv_lshlrev_b32 v15, 2, v15\nv_add_u32 v15, 128, v15")
        a("s_branch L_seg")
        a("L_seg_end:")
        if self.hold:
            a("s_cmp_lg_u32 s56, 0\ns_cbranch_scc1 L_fin")
            self.arrive(C_YG)

    def finish(self):
        a = self.a
        a("L_fin:")
        self.role = "all"
        if self.probe:
            if self.probe == ("all", 15):
                a("s_waitcnt vmcnt(0)")
                self.stamp(15)
            if self.probe[0] == "amp":
                a(f"s_waitcnt vmcnt(0)\ns_memrealtime s[70:71]\ns_waitcnt lgkmcnt(0)\ns_sub_u32 s31, s70, s68\ns_mul_i32 s31, s31, {self.probe[1]}\ns_add_u32 s68, s68, s31\ns_sub_u32 s68, s68, 4000")
            a("s_cmp_eq_u32 s68, 0\ns_cbranch_scc1 L_exit\ns_mov_b32 s35, 100000")
            a("L_probe:\ns_sleep 1\ns_memrealtime s[70:71]\ns_waitcnt lgkmcnt(0)\ns_sub_u32 s31, s70, s68\ns_cmp_ge_i32 s31, 4000\ns_cbranch_scc1 L_exit")
            a("s_cmp_eq_u32 s35, 0\ns_cbranch_scc1 L_exit\ns_sub_u32 s35, s35, 1\ns_branch L_probe")
        if self.stamps:
            a("s_waitcnt vmcnt(0)")
            self.stamp(15)
            if self.stamps is not True and ("cnt", 0) in self.stamps:
                a("v_writelane_b32 v211, s35, 10")
            a(f"v_writelane_b32 v211, s68, 0\ns_lshl_b32 s31, s2, 3\ns_add_u32 s31, s31, s3\ns_lshl_b32 s31, s31, 6\ns_add_u32 s31, s31, {STAMP}\nv_lshl_add_u32 v4, v2, 2, s31")
            a("s_mov_b64 exec, 0xffff\nbuffer_store_dword v211, v4, s[12:15], 0 offen")
        a("L_exit:")
        a("s_endpgm")
        a("L_code_end:")
        a.kernel_desc(NAME + "_kernel", 256, 94)
        a.add_launch(NAME + "_kernel", NWG, 64 * WAVES, LDS_BYTES)

    def build(self, path, verbose=False):
        self.prologue()
        self.dft()
        self.moe()
        self.finish()
        rep = []
        self.a.lines = hazard.fix(self.a.lines, rep)
        if verbose:
            for pad, s in rep:
                print("nop", pad, s)
        if self.align:
            self.a.lines = hazard.align_runs(self.a, self.align)
        self.a.write(path, HEADER)


GROUPS = {"dft": (slice(0, 256), slice(0, 4)), "load": (slice(0, 224), slice(4, 7)), "h1": (slice(0, 224), slice(7, 8)), "idle": (slice(224, 256), slice(4, 8))}

if __name__ == "__main__":
    kw = eval(sys.argv[2]) if len(sys.argv) > 2 else {}
    Gen(**kw).build(sys.argv[1], verbose=True)
```
